```python
import torch

def _softmax(x, axis=-1):
    return torch.softmax(x, dim=axis)

def _gelu(x):
    return torch.nn.functional.gelu(x, approximate='tanh')

def _silu(x):
    return torch.nn.functional.silu(x)

def _sigmoid(x):
    return torch.sigmoid(x)

def _layernorm(x, axis=-1, eps=1e-05):
    m = x.mean(dim=axis, keepdim=True)
    v = x.var(dim=axis, keepdim=True, unbiased=False)
    return (x - m) / torch.sqrt(v + eps)

def _scatter_add(tgt, idx, src, axis=0):
    return tgt.clone().index_add_(axis, idx, src)

def _segment_sum(src, seg, n):
    out = torch.zeros((n,) + src.shape[1:], dtype=src.dtype)
    return out.index_add_(0, seg, src)

def _pad(x, pw):
    flat = tuple((v for pair in reversed(pw) for v in pair))
    return torch.nn.functional.pad(x, flat)
kernel_name = 'parallel_sum__memory_aug_recurrent_mem_tr__mixer_channel_mlp__prompt'

def setup_inputs():

    _w = lambda a: (lambda t: t.to(torch.bfloat16) if t.is_floating_point() else t)(torch.as_tensor(a))

    def _A_setup():
        B, S, Dm = (1, 2048, 576)
        H, Dh = (32, 128)
        M, seg = (8, 32)
        seg = min(seg, S)
        S = S // seg * seg
        return {'x': _w((lambda *s: torch.randn(*s, dtype=torch.bfloat16) * 0.05)(B, S, Dm)), 'mem0': _w((lambda *s: torch.randn(*s, dtype=torch.bfloat16) * 0.2)(B, M, Dm)), 'Wq': _w((lambda *s: torch.randn(*s, dtype=torch.bfloat16) * 1.6)(Dm, H, Dh) * Dm ** (-0.5)), 'Wk': _w((lambda *s: torch.randn(*s, dtype=torch.bfloat16) * 1.6)(Dm, H, Dh) * Dm ** (-0.5)), 'Wv': _w((lambda *s: torch.randn(*s, dtype=torch.bfloat16) * 0.2)(Dm, H, Dh) * Dm ** (-0.5)), 'Wo': _w((lambda *s: torch.randn(*s, dtype=torch.bfloat16) * 0.2)(H, Dh, Dm) * (H * Dh) ** (-0.5)), 'seg_len': seg}
    _A_in = _A_setup()

    def _B_setup():
        B, S, D, F = (1, 2048, 576, 4608)
        return {'x': _w((lambda *s: torch.randn(*s, dtype=torch.bfloat16) * 0.05)(B, S, D)), 'w1': _w((lambda *s: torch.randn(*s, dtype=torch.bfloat16) * 0.8)(D, F) * D ** (-0.5)), 'b1': _w((lambda *s: torch.randn(*s, dtype=torch.bfloat16) * 0.4)(F)), 'w2': _w((lambda *s: torch.randn(*s, dtype=torch.bfloat16) * 0.05)(F, D) * F ** (-0.5)), 'b2': _w((lambda *s: torch.randn(*s, dtype=torch.bfloat16) * 0.05)(D))}
    _B_in = _B_setup()
    return {'A_x': _A_in['x'], 'A_mem0': _A_in['mem0'], 'A_Wq': _A_in['Wq'], 'A_Wk': _A_in['Wk'], 'A_Wv': _A_in['Wv'], 'A_Wo': _A_in['Wo'], 'A_seg_len': _A_in['seg_len'], 'B_x': _B_in['x'], 'B_w1': _B_in['w1'], 'B_b1': _B_in['b1'], 'B_w2': _B_in['w2'], 'B_b2': _B_in['b2']}

def reference(A_x, A_mem0, A_Wq, A_Wk, A_Wv, A_Wo, A_seg_len, B_x, B_w1, B_b1, B_w2, B_b2):

    def _A_ref(x, mem0, Wq, Wk, Wv, Wo, seg_len):
        B, S, Dm = x.shape
        H, Dh = (Wq.shape[1], Wq.shape[2])
        M = mem0.shape[1]
        scale = Dh ** (-0.5)
        n_seg = S // seg_len
        L = M + seg_len
        idx = torch.arange(L)
        mask = (idx[:, None] < M) | (idx[:, None] >= idx[None, :])
        mem = mem0
        outs = []
        for s in range(n_seg):
            xs = x[:, s * seg_len:(s + 1) * seg_len, :].clone()
            h = torch.concatenate([mem, xs], axis=1)
            q = torch.einsum('btd,dhe->bhte', h, Wq)
            k = torch.einsum('btd,dhe->bhte', h, Wk)
            v = torch.einsum('btd,dhe->bhte', h, Wv)
            scores = torch.einsum('bhqe,bhke->bhqk', q, k) * scale
            scores = torch.where(mask[None, None], scores, -1000000000.0)
            p = _softmax(scores, axis=-1)
            o = torch.einsum('bhqk,bhke->bhqe', p, v)
            o = torch.einsum('bhte,hed->btd', o, Wo)
            mem = o[:, :M, :].clone()
            outs.append(o[:, M:, :])
        return torch.concatenate(outs, axis=1)

    def _B_ref(x, w1, b1, w2, b2):
        y = _layernorm(x, axis=-1)
        h = _gelu(torch.einsum('bsd,df->bsf', y, w1) + b1)
        return torch.einsum('bsf,fd->bsd', h, w2) + b2
    x = A_x
    xn = _layernorm(x, axis=-1)
    return x + _A_ref(xn, A_mem0, A_Wq, A_Wk, A_Wv, A_Wo, A_seg_len) + _B_ref(xn, B_w1, B_b1, B_w2, B_b2)
```

```python
import re

def _parse_regs(tok):
    tok = tok.strip()
    m = re.fullmatch(r'([vas])\[(\d+):(\d+)\]', tok)
    if m:
        return [(m.group(1), i) for i in range(int(m.group(2)), int(m.group(3)) + 1)]
    m = re.fullmatch(r'([vas])(\d+)', tok)
    if m:
        return [(m.group(1), int(m.group(2)))]
    if tok == 'vcc': return [('s', 'vcc')]
    if tok in ('exec', 'exec_lo', 'exec_hi'): return [('s', 'exec')]
    if tok == 'm0': return [('s', 'm0')]
    return []

def split_ops(s):
    out = []; depth = 0; cur = ''
    for ch in s:
        if ch == '[': depth += 1
        if ch == ']': depth -= 1
        if ch == ',' and depth == 0:
            out.append(cur); cur = ''
        else:
            cur += ch
    if cur.strip(): out.append(cur)
    return [o.strip() for o in out]

class I:
    def __init__(self, text):
        self.text = text
        t = text.split(';')[0].strip()
        parts = t.split(None, 1)
        self.op = parts[0]
        rest = parts[1] if len(parts) > 1 else ''
        ops = split_ops(rest)
        clean = []
        for o in ops:
            clean.append(o.split()[0] if o.split() else o)
        self.ops = clean
        self.mods = rest
        op = self.op
        R = lambda k: _parse_regs(clean[k]) if k < len(clean) else []
        self.rd = []; self.wr = []
        self.kind = 'other'
        if op.startswith('v_smfmac'):
            self.kind = 'mfma'; self.wr = R(0); self.rd = R(0) + R(1) + R(2) + R(3)
            self.srcC = R(0); self.srcAB = R(1) + R(2) + R(3)
            self.passes = 4 if '16x16' in op else 8
        elif op.startswith('v_mfma'):
            self.kind = 'mfma'; self.wr = R(0); self.rd = R(1) + R(2) + R(3)
            self.srcC = R(3); self.srcAB = R(1) + R(2)
            self.passes = 4 if '16x16' in op else 8
        elif op.startswith('ds_read') :
            self.kind = 'dsr'; self.wr = R(0); self.rd = R(1)
        elif op.startswith('ds_write') or op.startswith('ds_add'):
            self.kind = 'dsw'; self.rd = sum((R(k) for k in range(len(clean))), [])
        elif op.startswith('buffer_load'):
            if ' lds' in (' ' + rest):
                self.kind = 'vmemlds'; self.rd = R(0) + R(1) + R(2) + [('s', 'm0')]
            else:
                self.kind = 'vmemld'; self.wr = R(0); self.rd = R(1) + R(2) + R(3)
        elif op.startswith('buffer_store'):
            self.kind = 'vmemst'; self.rd = R(0) + R(1) + R(2) + R(3)
            self.wide = ('x4' in op or 'x3' in op)
            self.data = R(0)
        elif op.startswith('buffer_atomic') or op.startswith('global_atomic'):
            self.kind = 'vmemld' if 'sc0' in rest else 'vmemst'
            if self.kind == 'vmemld':
                self.wr = R(0); self.rd = sum((R(k) for k in range(1 if op.startswith('global') else 0, len(clean))), [])
            else:
                self.rd = sum((R(k) for k in range(len(clean))), []); self.wide = False; self.data = []
        elif op.startswith('global_load'):
            self.kind = 'vmemld'; self.wr = R(0); self.rd = R(1) + R(2)
        elif op.startswith('global_store'):
            self.kind = 'vmemst'; self.rd = R(0) + R(1) + R(2); self.wide = ('x4' in op or 'x3' in op); self.data = R(1)
        elif op.startswith('buffer_wbl2') or op.startswith('buffer_inv'):
            self.kind = 'vmemst'; self.wide = False; self.data = []
        elif op.startswith('s_load') or op in ('s_memtime', 's_memrealtime'):
            self.kind = 'smem'; self.wr = R(0); self.rd = R(1)
        elif op.startswith('v_cmp'):
            self.kind = 'valu'; self.wr = R(0); self.rd = R(1) + R(2)
            if op.startswith('v_cmpx'): self.wr += [('s', 'exec')]
        elif op.startswith('v_permlane'):
            self.kind = 'valu'; self.perm = True; self.wr = R(0) + R(1); self.rd = R(0) + R(1)
        elif op.startswith('v_readfirstlane') or op.startswith('v_readlane'):
            self.kind = 'valu'; self.rfl = True; self.wr = R(0); self.rd = R(1) + R(2)
        elif op.startswith('v_'):
            self.kind = 'valu'; self.wr = R(0)
            self.rd = sum((R(k) for k in range(1, len(clean))), [])
            if op.startswith('v_fmac') or op.startswith('v_pk_fmac') or op.startswith('v_writelane') or 'dpp' in op or 'row_' in rest or 'quad_perm' in rest:
                self.rd += R(0)
            if op.startswith('v_cndmask') and len(clean) == 3: self.rd += [('s', 'vcc')]
            if op.startswith('v_add_co') or op.startswith('v_addc_co') or op.startswith('v_sub_co'):
                self.wr += R(1)
            if op.startswith('v_div_fmas'): self.rd += [('s', 'vcc')]
            self.trans = any(op.startswith(x) for x in ('v_exp', 'v_log', 'v_rcp', 'v_rsq', 'v_sqrt', 'v_sin', 'v_cos'))
            self.dpp = ('dpp' in op or 'row_' in rest or 'quad_perm' in rest)
        elif op.startswith('s_'):
            self.kind = 'salu'
            if op in ('s_waitcnt', 's_nop', 's_barrier', 's_sleep', 's_setprio', 's_endpgm') or op.startswith('s_cbranch') or op == 's_branch':
                self.kind = 'ctl'
            elif op.startswith('s_cmp') or op.startswith('s_bitcmp'):
                self.rd = R(0) + R(1)
            else:
                self.wr = R(0); self.rd = sum((R(k) for k in range(1, len(clean))), [])
                if 'saveexec' in op: self.wr += [('s', 'exec')]; self.rd += [('s', 'exec')]
        for a in ('perm', 'rfl', 'trans', 'dpp', 'wide'):
            if not hasattr(self, a): setattr(self, a, False)

class Asm:
    def __init__(self, check=True):
        self.out = []
        self.hist = []
        self.lgk = []
        self.vm = []
        self.nops = 0
        self.nwaits = 0
        self.uid = 0
        self.smem_pending = False
    def label(self, name):
        self.out.append(name + ':')
        self.reset()
    def newlabel(self, base='L'):
        self.uid += 1
        return f'{base}_{self.uid}'
    def reset(self, assume_drained=True):
        self.hist = [None] * 0
        self.lgk = []; self.vm = []
        self.hist_unknown = True
    def comment(self, s):
        self.out.append('  ; ' + s)
    def raw(self, s):
        self.out.append(s)
    def wait(self, vm=None, lgkm=None):
        parts = []
        if vm is not None:
            parts.append(f'vmcnt({vm})')
            if vm < len(self.vm): self.vm = self.vm[len(self.vm) - vm:] if vm > 0 else []
        if lgkm is not None:
            parts.append(f'lgkmcnt({lgkm})')
            if lgkm < len(self.lgk): self.lgk = self.lgk[len(self.lgk) - lgkm:] if lgkm > 0 else []
            if lgkm == 0: self.smem_pending = False
        self._emit(I('s_waitcnt ' + ' '.join(parts)))
    def _emit(self, ins):
        self.out.append('  ' + ins.text)
        if getattr(self, 'cut', None) is not None:
            self.cutn += 1
            if self.cutn == self.cut:
                self.out.append('  s_waitcnt lgkmcnt(0)')
                self.out.append('  s_mov_b64 exec, -1')
                self.out.append('  s_branch ' + self.cutlab)
                self.cut = None
        n = 1
        if ins.op == 's_nop': n = int(ins.ops[0]) + 1
        for _ in range(n): self.hist.append(ins if _ == 0 else None)
        if len(self.hist) > 40: self.hist = self.hist[-40:]
    def _need_states(self, ins):
        need = 0
        rd = set(ins.rd); wr = set(ins.wr)
        H = self.hist
        for d in range(1, min(len(H), 24) + 1):
            p = H[-d]
            if p is None: continue
            gap = d - 1
            req = 0
            pw = set(p.wr)
            if p.kind == 'valu':
                vw = {r for r in pw if r[0] in 'va'}
                sw = {r for r in pw if r[0] == 's'}
                if ins.kind == 'mfma' and vw & rd: req = max(req, 2)
                if ins.kind == 'valu' and ins.perm and vw & rd: req = max(req, 2)
                if ins.kind == 'valu' and ins.dpp and vw & rd: req = max(req, 2)
                if ins.kind == 'valu' and ins.rfl and vw & rd: req = max(req, 1)
                if p.trans and ins.kind in ('valu', 'mfma', 'dsw', 'vmemst') and vw & rd: req = max(req, 1)
                if sw and ins.kind == 'valu' and (sw - {('s', 'exec')}) & rd: req = max(req, 2)
                if sw and ins.kind in ('vmemld', 'vmemst', 'vmemlds') and sw & rd: req = max(req, 5)
                if sw and ins.kind in ('salu', 'smem') and sw & rd: req = max(req, 4)
                if ('s', 'exec') in sw and ins.kind == 'mfma': req = max(req, 4)
                if ('s', 'exec') in sw and (ins.rfl or ins.perm): req = max(req, 4)
            if p.kind == 'mfma':
                np_ = p.passes
                tD = {4: 8, 8: 12, 16: 20}[np_]
                if ins.kind == 'mfma':
                    if pw & set(ins.srcAB): req = max(req, tD)
                    ov = pw & set(ins.srcC)
                    if ov:
                        same = (set(ins.srcC) == pw) and ins.passes == np_
                        if not same: req = max(req, {4: 6, 8: 10}[np_])
                    if (pw & wr) and not ov: req = max(req, tD)
                elif ins.kind in ('valu', 'dsw', 'vmemst', 'vmemld', 'dsr', 'vmemlds'):
                    if pw & (rd | wr): req = max(req, tD)
                if ins.kind == 'valu' and set(p.srcC) & wr: req = max(req, {4: 3, 8: 7}[np_])
            if p.kind == 'vmemst' and p.wide and ins.kind in ('valu', 'dsr', 'vmemld', 'mfma') and set(p.data) & wr: req = max(req, 2)
            if p.kind == 'salu' and ('s', 'm0') in pw and ins.kind == 'vmemlds': req = max(req, 1)
            if req > gap: need = max(need, req - gap)
        return need
    def __call__(self, text, nowait=False):
        for line in text.strip('\n').split('\n'):
            line = line.strip()
            if not line: continue
            if line.startswith(';'):
                self.out.append('  ' + line); continue
            if line.endswith(':'):
                self.label(line[:-1]); continue
            self.ins(line, nowait)
    def ins(self, text, nowait=False):
        ins = I(text)
        rw = set(ins.rd) | set(ins.wr)
        if not nowait:
            k = -1
            for idx, dst in enumerate(self.lgk):
                if dst & rw: k = idx
            if k >= 0:
                n = len(self.lgk) - 1 - k
                if self.smem_pending: n = 0
                self.wait(lgkm=min(n, 15)); self.nwaits += 1
            k = -1
            for idx, dst in enumerate(self.vm):
                if dst & rw: k = idx
            if k >= 0:
                n = len(self.vm) - 1 - k
                self.wait(vm=min(n, 63)); self.nwaits += 1
        need = self._need_states(ins)
        while need > 0:
            n = min(need, 16)
            self._emit(I(f's_nop {n-1}')); self.nops += n; need -= n
        self._emit(ins)
        if ins.kind == 'dsr': self.lgk.append(set(ins.wr))
        elif ins.kind == 'dsw': self.lgk.append(set())
        elif ins.kind == 'smem': self.lgk.append(set(ins.wr)); self.smem_pending = True
        elif ins.kind == 'vmemld': self.vm.append(set(ins.wr))
        elif ins.kind in ('vmemst', 'vmemlds'): self.vm.append(set())
        if ins.op in ('s_branch',) or ins.op.startswith('s_cbranch'):
            pass
    def text(self):
        return '\n'.join(self.out) + '\n'

def v(n, c=1):
    return f'v{n}' if c == 1 else f'v[{n}:{n+c-1}]'
def a(n, c=1):
    return f'a{n}' if c == 1 else f'a[{n}:{n+c-1}]'
def s(n, c=1):
    return f's{n}' if c == 1 else f's[{n}:{n+c-1}]'
```

```python
from asmlib import *
from layout import *
import math

vMS,vF0,vF1,vF2,vIDX,vQW,vKW,vQR,vKR,vOW,vRL,vRS = range(1,13)
T13,T14,T15 = 13,14,15
AB0,AB1 = 16,20
AQ0,AQ1,AK0,AK1,AV0,AV1 = 24,28,32,36,40,44
SB0,SB1,SB2 = 48,56,64
WV0 = 72
def frag_alloc():
    m = {}
    regs = [('v', WV0 + 8*k) for k in range((256-WV0)//8)] + [('a', 8*k) for k in range(32)]
    names = []
    for t in range(9):
        for tau in range(2): names.append(('Q',t,tau))
    for t in range(9):
        for tau in range(2): names.append(('V',t,tau))
    names.append(('K',8,1))
    for q in range(9):
        for tp in range(2): names.append(('O',tp,q))
    assert len(names) == len(regs) == 55, (len(names), len(regs))
    for n, r in zip(names, regs): m[n] = r
    return m
FR = frag_alloc()
LF = {}
for t in range(9):
    for tau in range(2):
        if (t, tau) != (8, 1): LF[('K',t,tau)] = 2*t+tau
def freg(name, off=0, cnt=8):
    k, n = FR[name]
    return f'{k}[{n+off}:{n+off+cnt-1}]'
def lf_addr(name, hh):
    f = LF[name]
    base = [vF0, vF1, vF2][f//8]
    return base, (f % 8)*8192 + hh*1024

sWS = 4
sT  = 8
sH, sW, sS = 16, 17, 18
sPBc, sPBn, sPBx = 19, 20, 21
sMBa, sMBb, sMBc = 22, 23, 24
sTASK = 25
sRSO  = 26
sTMP  = 27
sKX, sVX, sKM, sVM = 36, 37, 38, 39
sCv = 40
sMASK = 42
sDEAD = 44
sRL0 = 46
sPBr = 54
sFLAG = 55
sNEED = 56
sLO = 57
sPBl = 59
sWARM = 45
sKXW = 98
sFLC = 99
sR7 = 100
sK7 = 101
sTS = 60
PBRING = [OFF_PB, OFF_PB+PBS, OFF_PB+2*PBS]

def smf(A_, d, a_reg, bname_or_reg):
    if isinstance(bname_or_reg, tuple): b = freg(bname_or_reg)
    else: b = v(bname_or_reg, 8)
    return f'v_smfmac_f32_16x16x64_bf16 {v(d,4)}, {v(a_reg,4)}, {b}, {v(vIDX)}'

def interleave(main, fill):
    out = []
    for k, m in enumerate(main):
        out.append(m)
        if k < len(fill): out += fill[k]
    for k in range(len(main), len(fill)): out += fill[k]
    return out

def lfread(dst, name):
    r = []
    for hh in range(2):
        b, off = lf_addr(name, hh)
        r.append(f'ds_read_b128 {v(dst+4*hh,4)}, {v(b)} offset:{off}')
    return r

def aread(dst, t):
    return f'ds_read_b128 {v(dst,4)}, {v(vMS)} offset:{L_MEMST-BASE_MS+t*1024}'

class Chain:
    def __init__(self, A, opt):
        self.A = A; self.opt = opt
    def ts(self, k):
        if self.opt.get('upto') == k+100 or self.opt.get('upto') == k:
            self.A.wait(vm=0, lgkm=0)
            self.A('s_branch ch_skip')
        if not self.opt.get('ts'): return
        A = self.A
        A.raw(f'  s_memtime s[{sTS}:{sTS+1}]')
        A.raw(f'  s_waitcnt lgkmcnt(0)')
        A.lgk = []
        A.raw(f'  s_sub_u32 s{sTS+2}, s{sTS}, s{sTS+3}')
        A.raw(f'  s_add_u32 s{sTS+4+k}, s{sTS+4+k}, s{sTS+2}')
        A.raw(f'  s_mov_b32 s{sTS+3}, s{sTS}')

    def at(self, k, adj=0):
        st = self.opt.get('abs')
        if st is None: return
        st += adj
        A = self.A
        lab = A.newlabel('abs')
        A.raw(f'  s_cmp_eq_u32 s{sS}, {st}')
        A.raw(f'  s_cbranch_scc0 {lab}')
        A.raw(f'  s_memtime s[96:97]')
        A.raw(f'  s_waitcnt lgkmcnt(0)')
        A.raw(f'  s_mov_b32 s{88+k}, s96')
        A.raw(f'{lab}:')
    def init(self, short=False):
        A = self.A; opt = self.opt
        A(f'v_lshlrev_b32 v13, 7, v0')
        A(f'global_load_dwordx4 v[16:19], v13, s[28:29]')
        A(f'global_load_dwordx4 v[20:23], v13, s[28:29] offset:16')
        A(f'global_load_dwordx4 v[24:27], v13, s[28:29] offset:32')
        A(f'global_load_dwordx4 v[28:31], v13, s[28:29] offset:48')
        A(f'global_load_dwordx4 v[32:35], v13, s[28:29] offset:64')
        A(f'global_load_dwordx4 v[36:39], v13, s[28:29] offset:80')
        A(f's_load_dwordx2 s[30:31], s[0:1], 16')
        A(f's_load_dwordx2 s[32:33], s[0:1], 24')
        A(f's_load_dwordx2 s[34:35], s[0:1], 32')
        A(f's_load_dwordx2 s[36:37], s[0:1], 40')
        A(f's_load_dwordx2 s[38:39], s[0:1], 8')
        A.wait(vm=0, lgkm=0)
        names = CH_CONSTS
        for k, n in enumerate(names[:12]):
            A(f'v_mov_b32 v{1+k}, v{16+k}')
        vDQ, vDO, vDO8, vTR0, vTR1, vM0 = 28, 29, 30, 31, 32, 33
        A(f'ds_write_b128 {v(vMS)}, v[34:37] offset:{L_SPARE-BASE_MS}')
        A(f'v_mov_b64 v[40:41], 0')
        A(f'v_mov_b64 v[42:43], 0')
        A(f's_mul_i32 s{sTMP}, s{sH}, {HS}')
        A(f's_mul_i32 s{sTMP+1}, s{sW}, 2304')
        A(f's_add_u32 s{sTMP}, s{sTMP}, s{sTMP+1}')
        A(f's_lshl_b32 s{sLO}, s{sW}, 9')
        A(f's_add_u32 s{sLO}, s{sLO}, {L_QEX-BASE_MS-2048}')
        A(f's_add_u32 s{sPBc}, s{sTMP}, {PBRING[0]-BASE_MS}')
        A(f's_sub_u32 s{sPBl}, s{sPBc}, s{sLO}')
        self.clear_partial(sPBc, init=True)
        A(f'v_mov_b64 v[40:41], -1')
        A(f'v_mov_b64 v[42:43], -1')
        A(f's_mul_i32 s{sTMP}, s{sH}, 864')
        A(f's_add_u32 s{sTMP}, s{sTMP}, {OFF_MB-BASE_MS}')
        A(f's_mov_b32 exec_hi, 0x3fffff')
        A(f'buffer_store_dwordx4 v[40:43], {v(vMS)}, s[{sWS}:{sWS+3}], s{sTMP} offen sc1')
        A(f's_mov_b64 exec, -1')
        if not opt.get('chain_only'):
            A(f'v_lshrrev_b32 v44, 4, {v(vMS)}')
            A(f'v_and_b32 v44, 63, v44')
            A(f'v_lshlrev_b32 v45, 7, v44')
            A(f'v_mov_b32 v46, 0x1000')
            A(f'v_cmp_eq_u32 vcc, 8, v44')
            A(f'v_cndmask_b32 v45, v45, v46, vcc')
            A(f'v_mov_b32 v46, 0')
            A(f's_lshl_b32 s{sTMP}, s{sH}, 2')
            A(f's_add_u32 s{sTMP}, s{sTMP}, {OFF_FLAG}')
            A(f's_mov_b64 exec, 0x1ff')
            A(f'buffer_store_dword v46, v45, s[{sWS}:{sWS+3}], s{sTMP} offen sc1')
            A(f's_mov_b64 exec, -1')
        A.wait(vm=0)
        A('s_barrier')
        self.dbg_add(9)
        if short: return
        blocks = []
        for t in range(9): blocks.append(('Q', t))
        for t in range(9): blocks.append(('V', t))
        blocks += [('O', 0, 0), ('O', 0, 2), ('O', 0, 4), ('O', 0, 6), ('O', 1, 0), ('O', 1, 2), ('O', 1, 4), ('O', 1, 6), ('O8',)]
        for t in range(9): blocks.append(('K', t))
        assert len(blocks) == 36
        ptr = {'Q': 30, 'K': 32, 'V': 34, 'O': 36, 'O8': 36}
        size = {'Q': D*8192, 'K': D*8192, 'V': D*8192, 'O': 4096*1152, 'O8': 4096*1152}
        A(f's_lshl_b32 s40, s{sH}, 8')
        A(f's_mul_i32 s41, s{sH}, {128*1152}')
        A(f's_lshl_b32 s42, s{sW}, 10')
        cur = [None]
        def issue(n):
            b = blocks[n]; k = b[0]
            sl = n % 9
            if cur[0] != ptr[k]:
                A(f's_mov_b32 s{sT}, s{ptr[k]}')
                A(f's_and_b32 s{sT+1}, s{ptr[k]+1}, 0xffff')
                A(f's_mov_b32 s{sT+2}, {size[k]}')
                A(f's_mov_b32 s{sT+3}, 0x20000')
                cur[0] = ptr[k]
            for y in range(4):
                if k in 'QKV':
                    so = (64*b[1] + 16*y)*8192; base = 40; vo = vDQ
                elif k == 'O':
                    so = (64*b[1] + 32*(y >> 1) + 8*(y & 1))*1152 + b[2]*32; base = 41; vo = vDO
                else:
                    so = (32*(y >> 1) + 8*(y & 1))*1152 + 8*32; base = 41; vo = vDO8
                A(f's_add_u32 s43, s{base}, {so}')
                A(f's_add_u32 m0, s42, {sl*16384 + y*4096}')
                A(f'buffer_load_dwordx4 {v(vo)}, s[{sT}:{sT+3}], s43 offen lds')
        DEPTH = 6
        for n in range(DEPTH): issue(n)
        TA, TB = 40, 56
        pend = None
        for n in range(36):
            b = blocks[n]; k = b[0]; sl = n % 9
            left = min(35, n + DEPTH - 1) - n
            A.wait(vm=4*left, lgkm=0)
            A('s_barrier')
            if pend is not None:
                pn, treg = pend
                self.writeback(blocks[pn], treg); pend = None
            if n + DEPTH < 36: issue(n + DEPTH)
            inplace = n >= 27
            tmp = TA if (n % 2 == 0) else TB
            if k in 'QKV': names = [(k, b[1], 0), (k, b[1], 1)]
            elif k == 'O': names = [('O', b[1], b[2]), ('O', b[1], b[2]+1)]
            else: names = [('O', 0, 8), ('O', 1, 8)]
            A(f'v_add_u32 v44, {sl*16384}, {v(vTR0)}') if False else None
            for tau in range(2):
                A(f'v_add_u32 v{13+tau}, {sl*16384}, v{vTR0+tau}')
            for tau in range(2):
                nm = names[tau]
                for rr in range(4):
                    off = (32*(rr >> 1) + 4*(rr & 1))*256
                    if nm in FR: dst = freg(nm, 2*rr, 2)
                    else: dst = v(tmp + 8*tau + 2*rr, 2)
                    A(f'ds_read_b64_tr_b16 {dst}, v{13+tau} offset:{off}')
            if inplace: pend = (n, tmp)
        A.wait(lgkm=0)
        A('s_barrier')
        self.writeback(blocks[pend[0]], pend[1])
        A.wait(lgkm=0)
        A('s_barrier')
        A(f's_mov_b32 s{sT}, s38')
        A(f's_and_b32 s{sT+1}, s39, 0xffff')
        A(f's_mov_b32 s{sT+2}, {8*1152}')
        A(f's_mov_b32 s{sT+3}, 0x20000')
        A(f's_lshl_b32 s43, s{sW}, 8')
        A(f'buffer_load_dwordx4 v[48:51], v{vM0}, s[{sT}:{sT+3}], s43 offen')
        A(f'buffer_load_dwordx4 v[52:55], v{vM0}, s[{sT}:{sT+3}], s43 offen offset:128')
        A(f's_mov_b32 s43, {8*128}')
        A(f'buffer_load_dwordx4 v[56:59], v{vM0}, s[{sT}:{sT+3}], s43 offen')
        A(f'ds_write_b128 {v(vF2)}, v[48:51] offset:{L_MEMST-BASE_MS}')
        A(f'ds_write_b128 {v(vF2)}, v[52:55] offset:{L_MEMST-BASE_MS+1024}')
        A(f'ds_write_b128 {v(vMS)}, v[56:59] offset:{L_MEMST-BASE_MS+8192}')
        A(f's_mov_b32 s{sS}, 0')
        A(f's_mov_b32 s{sMBa}, {OFF_MB-BASE_MS}')
        A(f's_mov_b32 s{sMBb}, {OFF_MB+MBS-BASE_MS}')
        A(f's_mov_b32 s{sMBc}, {OFF_MB+2*MBS-BASE_MS}')
        A(f's_mov_b32 s{sPBr}, {PBRING[0]}')
        A(f's_lshr_b32 s{sTMP}, s{sH}, 3')
        A(f's_mul_i32 s{sTMP+1}, s{sTMP}, 2304')
        A(f's_bfe_u32 s{sTMP+2}, s{sH}, 0x10002')
        A(f's_and_b32 s{sTMP+3}, s{sH}, 3')
        A(f's_lshl_b32 s{sTMP+4}, s{sTMP+2}, 10')
        A(f's_lshl_b32 s{sTMP+5}, s{sTMP+3}, 8')
        A(f's_add_u32 s{sTASK}, s{sTMP+1}, s{sTMP+4}')
        A(f's_add_u32 s{sTASK}, s{sTASK}, s{sTMP+5}')
        A(f's_mul_i32 s{sRSO}, s{sTMP}, {9*256}')
        A(f's_add_u32 s{sRSO}, s{sRSO}, s{sTMP+4}')
        A(f's_lshl_b32 s{sTMP+5}, s{sTMP+3}, 6')
        A(f's_add_u32 s{sRSO}, s{sRSO}, s{sTMP+5}')
        lab = A.newlabel('ch_t')
        A(f's_cmp_eq_u32 s{sW}, 0')
        A(f's_cbranch_scc1 {lab}')
        A(f's_mov_b32 s{sTASK}, -1')
        A(f's_cmp_eq_u32 s{sW}, 1')
        A(f's_cbranch_scc0 {lab}')
        A(f's_and_b32 s{sTMP+2}, s{sH}, 7')
        A(f's_cmp_eq_u32 s{sTMP+2}, 0')
        A(f's_cbranch_scc0 {lab}')
        A(f's_add_u32 s{sTASK}, s{sTMP+1}, 2048')
        A(f's_mul_i32 s{sRSO}, s{sTMP}, {9*256}')
        A(f's_add_u32 s{sRSO}, s{sRSO}, {8*256}')
        A.wait(vm=0, lgkm=0)
        A.label(lab)
        A(f's_add_u32 s{sRL0}, s{sTASK}, {OFF_PB}')
        for n in range(1, 8): A(f's_add_u32 s{sRL0+n}, s{sRL0+n-1}, {4*HS}')
        A(f's_add_u32 s{sRSO}, s{sRSO}, {BASE_MS}')
        A(f's_and_b32 s{sKXW}, s{sW}, 1')
        A(f's_lshl_b32 s{sKXW}, s{sKXW}, 12')
        A(f's_lshl_b32 s{sWARM}, s{sH}, 13')
        A(f's_add_u32 s{sWARM}, s{sWARM}, s{sKXW}')
        A(f's_add_u32 s{sWARM}, s{sWARM}, {OFF_KXF-BASE_MS+32*8192}')
        A(f's_cmp_ge_u32 s{sW}, 2')
        A(f's_cselect_b32 s{sTMP}, {OFF_VXF-OFF_KXF}, 0')
        A(f's_add_u32 s{sWARM}, s{sWARM}, s{sTMP}')
        A(f's_lshl_b32 s{sTMP}, s{sH}, 13')
        A(f's_add_u32 s{sKX}, s{sTMP}, {OFF_KXF-BASE_MS}')
        A(f's_lshl_b32 s{sTMP+1}, s{sW}, 11')
        A(f's_add_u32 s{sVX}, s{sTMP}, s{sTMP+1}')
        A(f's_add_u32 s{sVX}, s{sVX}, {OFF_VXF-BASE_MS}')
        A(f's_lshl_b32 s{sTMP}, s{sH}, 12')
        A(f's_lshl_b32 s{sTMP+1}, s{sW}, 10')
        A(f's_add_u32 s{sTMP}, s{sTMP}, s{sTMP+1}')
        A(f's_lshr_b32 s{sTMP}, s{sTMP}, 1')
        A(f's_add_u32 s{sKM}, s{sTMP}, {OFF_KMF-BASE_MS//2}')
        A(f's_add_u32 s{sVM}, s{sTMP}, {OFF_VMF-BASE_MS//2}')
        c = DH**-0.5*math.log2(math.e)
        import struct
        cb = struct.unpack('<I', struct.pack('<f', c))[0]
        A(f's_mov_b32 s{sCv}, {cb:#x}')
        A(f's_mov_b32 s{sCv+1}, {cb:#x}')
        A(f's_mov_b32 s{sMASK}, 0x00ff00ff')
        A(f's_mov_b32 s{sMASK+1}, 0x00ff00ff')
        A(f's_mov_b32 s{sDEAD}, 0')
        for k in range(20): A(f's_mov_b32 s{sTS+k}, 0')
        for k in range(8): A(f's_mov_b32 s{88+k}, 0')
        self.dbg_wait(9, 32)
        A(f's_lshl_b32 s{sFLC}, s{sH}, 2')
        A(f's_add_u32 s{sFLC}, s{sFLC}, {FL_CH}')
        A(f's_mov_b32 s{sR7}, 0'); A(f's_mov_b32 s{sK7}, 0')
        if not opt.get('chain_only'):
            self.kv_wait(); A(f's_mov_b32 s{sR7}, 1'); self.kv_wait()
        A(f's_mov_b32 s{sR7}, 2')
        self.kx_dma(all_waves=True)
        A.wait(vm=0, lgkm=0)
        A('s_barrier')

    def dbg_add(self, idx):
        A = self.A
        lab = A.newlabel('dbga')
        A(f's_cmp_eq_u32 s{sW}, 0')
        A(f's_cbranch_scc0 {lab}')
        A(f's_load_dwordx2 s[{sTMP}:{sTMP+1}], s[0:1], 104') if False else None
        A(f's_mov_b64 exec, 1')
        A(f'v_mov_b32 v13, {idx*4}')
        A(f'v_mov_b32 v14, 1')
        A(f'global_atomic_add v13, v14, s[14:15]')
        A(f's_mov_b64 exec, -1')
        A.wait(vm=0)
        A.label(lab)
    def dbg_wait(self, idx, val):
        A = self.A
        lab = A.newlabel('dbgw'); done = A.newlabel('dbgd')
        A(f's_mov_b32 s{sTMP}, 0')
        A(f'v_mov_b32 v13, {idx*4}')
        A.label(lab)
        A(f'global_load_dword v14, v13, s[14:15] sc1')
        A(f's_add_u32 s{sTMP}, s{sTMP}, 1')
        A.wait(vm=0)
        A(f'v_readfirstlane_b32 s{sTMP+1}, v14')
        A(f's_cmp_ge_u32 s{sTMP+1}, {val}')
        A(f's_cbranch_scc1 {done}')
        A(f's_sleep 2')
        A(f's_cmp_lt_u32 s{sTMP}, 0x40000')
        A(f's_cbranch_scc1 {lab}')
        A(f's_mov_b32 s{sDEAD}, 1')
        A.label(done)
    def writeback(self, b, tmp):
        A = self.A
        k = b[0]
        if k in 'QKV': names = [(k, b[1], 0), (k, b[1], 1)]
        elif k == 'O': names = [('O', b[1], b[2]), ('O', b[1], b[2]+1)]
        else: names = [('O', 0, 8), ('O', 1, 8)]
        for tau in range(2):
            nm = names[tau]
            if nm in FR: continue
            for hh in range(2):
                bs, off = lf_addr(nm, hh)
                A(f'ds_write_b128 {v(bs)}, {v(tmp+8*tau+4*hh,4)} offset:{off}')
    def clear_partial(self, sreg, init=False, fl=None):
        A = self.A
        R = 40 if init else self.NEG
        fl = 'sc1' if init else self.stf
        A(f'buffer_store_dwordx4 {v(R,4)}, {v(vMS)}, s[{sWS}:{sWS+3}], s{sreg} offen {fl}')
        A(f'buffer_store_dwordx4 {v(R,4)}, {v(vMS)}, s[{sWS}:{sWS+3}], s{sreg} offen offset:1024 {fl}')
        A(f's_sub_u32 s{sTMP+1}, s{sreg}, s{sLO}')
        A(f'buffer_store_dword {v(R)}, {v(vQW)}, s[{sWS}:{sWS+3}], s{sTMP+1} offen {fl}')
    def kv_wait(self):
        A = self.A
        lab = A.newlabel('kvw'); done = A.newlabel('kvd')
        A(f's_lshl_b32 s{sTMP}, s{sR7}, 7')
        A(f's_lshl_b32 s{sTMP+1}, s{sH}, 2')
        A(f's_add_u32 s{sTMP}, s{sTMP}, s{sTMP+1}')
        A(f's_add_u32 s{sTMP}, s{sTMP}, {FL_KV + 128}')
        A(f's_mov_b32 s{sTMP+1}, 0')
        A(f'v_mov_b32 v13, 0')
        A.label(lab)
        A(f'buffer_load_dword v14, v13, s[{sWS}:{sWS+3}], s{sTMP} offen sc1')
        A(f's_add_u32 s{sTMP+1}, s{sTMP+1}, 1')
        A.wait(vm=0)
        A(f'v_readfirstlane_b32 s{sTMP+2}, v14')
        A(f's_cmp_gt_u32 s{sTMP+2}, s{sK7}')
        A(f's_cbranch_scc1 {done}')
        A(f's_sleep 2')
        A(f's_cmp_lg_u32 s{sDEAD}, 0')
        A(f's_cbranch_scc1 {done}')
        A(f's_cmp_lt_u32 s{sTMP+1}, 0x40000')
        A(f's_cbranch_scc1 {lab}')
        A(f's_mov_b32 s{sDEAD}, 1')
        A.label(done)
    def kx_dma(self, all_waves=False):
        A = self.A
        A(f's_lshl_b32 s{sTMP}, s{sW}, 11')
        A(f's_add_u32 s{sTMP+1}, s{sKX}, s{sTMP}')
        A(f's_add_u32 m0, s{sTMP}, {L_KXST}')
        A(f'buffer_load_dwordx4 {v(vMS)}, s[{sWS}:{sWS+3}], s{sTMP+1} offen sc1 lds')
        A(f's_add_u32 m0, s{sTMP}, {L_KXST}')
        A(f'buffer_load_dwordx4 {v(vMS)}, s[{sWS}:{sWS+3}], s{sTMP+1} offen offset:1024 sc1 lds')

    def loop(self, slow, tag):
        A = self.A; opt = self.opt
        self.stf = 'sc1' if slow else ''
        L = f'ch_loop_{tag}'
        self.pre_step()
        A.raw('  s_memtime s[84:85]')
        A.raw(f'  s_memtime s[{sTS}:{sTS+1}]')
        A.wait(lgkm=0)
        A(f's_mov_b32 s{sTS+3}, s{sTS}')
        A.label(L)
        self.step(0, tag)
        if not opt.get('single'): self.step(1, tag)
        A(f's_cmp_lt_u32 s{sS}, {opt.get("nsteps", 64)}')
        A(f's_cbranch_scc1 {L}')
    def step(self, par, tag):
        A = self.A; opt = self.opt
        stf = self.stf
        WS = f's[{sWS}:{sWS+3}]'
        skip = f'ch_skip_{tag}_{par}'
        self.skip = skip
        if opt.get('cut') and par == 0: A.cut = opt['cut']; A.cutn = 0; A.cutlab = skip
        self.ts(0)
        self.at(0)
        kseq = [('K', t, tau) for t in range(9) for tau in range(2)][:17]
        SB = [SB0, SB1, SB2]
        kreg = {nm: SB[k % 3] for k, nm in enumerate(kseq)}
        Areg = {t: (AB0 if t % 2 == 0 else AB1) for t in range(9)}
        A(aread(Areg[0], 0))
        for x in lfread(SB2, ('K', 1, 0)): A(x)
        seq = []
        def add(r, x, y): return f'v_add_f32 {v(r)}, {v(x)}, {v(y)}'
        def xread(dst, k4, tau):
            return f'ds_read_b128 {v(dst,4)}, {v(vMS)} offset:{L_KXST-BASE_MS+(k4*2+tau)*1024}'
        X0 = {0: SB0, 1: SB1, 2: SB2, 3: SB0}
        X1 = {0: SB0+4, 1: SB1+4, 2: SB2+4, 3: SB0+4}
        LAG = opt.get('lag', 4)
        for t in range(9):
            kb = lambda tau: (kreg[('K', t, tau)] if ('K', t, tau) in kreg else ('K', t, tau))
            m = [smf(A, AQ0, Areg[t], ('Q', t, 0)), smf(A, AQ1, Areg[t], ('Q', t, 1)),
                 smf(A, AK0, Areg[t], kb(0)), smf(A, AK1, Areg[t], kb(1))]
            f = [[], [], [], []]
            full = t < 9 - LAG
            if full:
                m += [smf(A, AV0, Areg[t], ('V', t, 0)), smf(A, AV1, Areg[t], ('V', t, 1))]
                f += [[], []]
            if t < 8: f[0].append(aread(Areg[t+1], t+1))
            i0 = 2*t
            if i0 + 3 < 17:
                r = lfread(kreg[kseq[i0]], kseq[i0+3])
                if full: f[2].append(r[0]); f[3].append(r[1])
                else: f[2] += r
            if i0 + 4 < 17:
                r = lfread(kreg[kseq[i0+1]], kseq[i0+4])
                if full: f[4].append(r[0]); f[5].append(r[1])
                else: f[3] += r
            if t < 4 and not opt.get('nokx'):
                f[1].append(f'buffer_load_dword v13, {v(vMS)}, {WS}, s{sWARM} offen offset:{1024*t} sc1')
            if t == 7 and LAG == 4:
                f[2].append(aread(SB2, 5)); f[3].append(aread(SB2+4, 6))
            seq += interleave(m, f)
        for x in seq: A(x, nowait=x.startswith('buffer_load_dword v13'))
        self.ts(1)
        cvt = lambda d, x, y: f'v_cvt_pk_bf16_f32 {v(d)}, {v(x)}, {v(y)}'
        sv = lambda acc, areg, t, tau: smf(A, acc, areg, ('V', t, tau))
        qe = [add(AQ0, AQ0, AQ0+2), add(AQ0+1, AQ0+1, AQ0+3), add(AQ1, AQ1, AQ1+2), add(AQ1+1, AQ1+1, AQ1+3),
              cvt(AQ0, AQ0, AQ0+1), cvt(AQ1, AQ1, AQ1+1),
              f'ds_write2_b32 {v(vQW)}, {v(AQ0)}, {v(AQ1)} offset0:0 offset1:64']
        ke = [add(AK0, AK0, AK0+2), add(AK0+1, AK0+1, AK0+3), add(AK1, AK1, AK1+2), add(AK1+1, AK1+1, AK1+3),
              cvt(T14, AK0, AK0+1), cvt(T15, AK1, AK1+1),
              f'ds_write2_b32 {v(vKW)}, {v(T14)}, {v(T14)} offset0:0 offset1:1',
              f'ds_write2_b32 {v(vKW)}, {v(T15)}, {v(T15)} offset0:128 offset1:129']
        prog = [sv(AV0, AB0, 8, 0), xread(X0[0], 0, 0), sv(AV1, AB0, 8, 1), xread(X1[0], 0, 1)]
        prog += qe[0:2] + [sv(AV0, AB1, 7, 0)] + qe[2:4] + [sv(AV1, AB1, 7, 1)] + qe[4:7] + ke
        prog += [xread(X0[1], 1, 0), xread(X1[1], 1, 1)]
        for x in prog: A(x)
        A.wait(lgkm=2)
        A('s_barrier')
        self.ts(2)
        S0, S1, SM = 24, 28, 32
        def qread(dst, k4):
            return [f'ds_read_b64_tr_b16 {v(dst,2)}, {v(vQR)} offset:{k4*512}',
                    f'ds_read_b64_tr_b16 {v(dst+2,2)}, {v(vQR)} offset:{k4*512+128}']
        def kmread(dst, k4):
            return [f'ds_read_b64_tr_b16 {v(dst,2)}, {v(vKR)} offset:{k4*1024}',
                    f'ds_read_b64_tr_b16 {v(dst+2,2)}, {v(vKR)} offset:{k4*1024+256}']
        Q_ = {0: AB0, 1: 36, 2: AB0, 3: 36}
        KM = {0: AB1, 1: 44, 2: AB1, 3: 44}
        for x in qread(Q_[0], 0) + kmread(KM[0], 0) + qread(Q_[1], 1): A(x)
        for x in [sv(AV0, SB2, 5, 0), sv(AV1, SB2, 5, 1), sv(AV0, SB2+4, 6, 0), sv(AV1, SB2+4, 6, 1)]: A(x)
        for x in [xread(X0[2], 2, 0), xread(X1[2], 2, 1)]: A(x)
        ONES = 16; PM = 20
        def smm(k4):
            c = lambda d: (v(d, 4) if k4 > 0 else '0')
            return [f'v_mfma_f32_16x16x32_bf16 {v(S0,4)}, {v(X0[k4],4)}, {v(Q_[k4],4)}, {c(S0)}',
                    f'v_mfma_f32_16x16x32_bf16 {v(S1,4)}, {v(X1[k4],4)}, {v(Q_[k4],4)}, {c(S1)}',
                    f'v_mfma_f32_16x16x32_bf16 {v(SM,4)}, {v(KM[k4],4)}, {v(Q_[k4],4)}, {c(SM)}']
        def pubk(k4): pass
        for x in smm(0): A(x)
        pubk(0)
        for x in qread(Q_[2], 2) + kmread(KM[2], 2) + [xread(X0[3], 3, 0), xread(X1[3], 3, 1)]: A(x)
        for x in [add(AV0, AV0, AV0+2), add(AV0+1, AV0+1, AV0+3), add(AV1, AV1, AV1+2), add(AV1+1, AV1+1, AV1+3),
                  cvt(AV0, AV0, AV0+1), cvt(AV0+1, AV1, AV1+1)]: A(x)
        for x in kmread(KM[1], 1): A(x)
        m1 = smm(1); m2 = smm(2); m3 = smm(3)
        A(m1[0]); A(m1[1]); A(m2[0]); A(m2[1])
        if not opt.get('nokx'):
            A(f'buffer_load_dwordx4 {v(SB1,4)}, {v(vMS)}, {WS}, s{sVX} offen sc1')
            A(f'buffer_load_dwordx4 {v(SB1+4,4)}, {v(vMS)}, {WS}, s{sVX} offen offset:1024 sc1')
        if not opt.get('nopub'):
            A(f'v_lshrrev_b32 {v(T13)}, 1, {v(vMS)}')
            A(f'buffer_store_dwordx2 {v(T14,2)}, {v(T13)}, {WS}, s{sKM} offen sc1')
            A(f'buffer_store_dwordx2 {v(AV0,2)}, {v(T13)}, {WS}, s{sVM} offen sc1')
        A(m1[2]); pubk(1)
        for x in qread(Q_[3], 3) + kmread(KM[3], 3): A(x)
        A(m2[2]); pubk(2)
        A(f'v_mov_b32 {v(ONES)}, 0x3f803f80'); A(f'v_mov_b32 {v(ONES+1)}, 0x3f803f80')
        A(f'v_mov_b32 {v(ONES+2)}, 0x3f803f80'); A(f'v_mov_b32 {v(ONES+3)}, 0x3f803f80')
        A(m3[0]); A(f'v_mov_b32 {v(PM+1)}, 0'); A(m3[1]); A(f'v_mov_b32 {v(PM+2)}, 0'); A(m3[2]); pubk(3)
        self.ts(3)
        MX, TT = 13, 14
        A(f'v_max3_f32 {v(MX)}, {v(S0)}, {v(S0+1)}, {v(S0+2)}')
        A(f'v_max3_f32 {v(TT)}, {v(S1)}, {v(S1+1)}, {v(S1+2)}')
        A(f'v_max3_f32 {v(MX)}, {v(MX)}, {v(S0+3)}, {v(S1+3)}')
        A(f'v_max_f32 {v(MX)}, {v(MX)}, {v(TT)}')
        A(f'v_max3_f32 {v(MX)}, {v(MX)}, {v(SM)}, {v(SM+1)}')
        A(f'v_mov_b32 {v(TT)}, {v(MX)}')
        A(f'v_permlane16_swap_b32 {v(MX)}, {v(TT)}')
        A(f'v_max_f32 {v(MX)}, {v(MX)}, {v(TT)}')
        A(f'v_mov_b32 {v(TT)}, {v(MX)}')
        A(f'v_permlane32_swap_b32 {v(MX)}, {v(TT)}')
        A(f'v_max_f32 {v(MX)}, {v(MX)}, {v(TT)}')
        A(f'v_mul_f32 {v(TT)}, s{sCv}, {v(MX)}')
        for r in (S0, S0+2, S1, S1+2, SM):
            A(f'v_pk_fma_f32 {v(r,2)}, {v(r,2)}, s[{sCv}:{sCv+1}], {v(TT,2)} op_sel_hi:[1,1,0] neg_lo:[0,0,1] neg_hi:[0,0,1]')
        for r in (S0, S0+1, S0+2, S0+3, S1, S1+1, S1+2, S1+3, SM, SM+1):
            A(f'v_exp_f32 {v(r)}, {v(r)}')
        PX = 48
        A(cvt(PX, S0, S0+1)); A(cvt(PX+1, S0+2, S0+3)); A(cvt(PX+2, S1, S1+1)); A(cvt(PX+3, S1+2, S1+3))
        A(cvt(PM, SM, SM+1)); A(cvt(PM+3, SM, SM+1))
        self.ts(4)
        O0, O1, LL = 24, 28, 32
        VX = SB1
        if opt.get('nokx'):
            for r in range(VX, VX+8, 2): A(f'v_mov_b64 {v(r,2)}, 0')
        A(f'v_mfma_f32_16x16x32_bf16 {v(LL,4)}, {v(ONES,4)}, {v(PX,4)}, 0')
        A(f'v_mfma_f32_16x16x32_bf16 {v(O0,4)}, {v(VX,4)}, {v(PX,4)}, 0')
        A(f'v_mfma_f32_16x16x32_bf16 {v(O1,4)}, {v(VX+4,4)}, {v(PX,4)}, 0')
        A(f'v_mfma_f32_16x16x16_bf16 {v(LL,4)}, {v(ONES,2)}, {v(PM,2)}, {v(LL,4)}')
        A(f'v_mfma_f32_16x16x16_bf16 {v(O0,4)}, {v(AV0,2)}, {v(PM,2)}, {v(O0,4)}')
        A(f'v_mfma_f32_16x16x16_bf16 {v(O1,4)}, {v(AV0,2)}, {v(PM+2,2)}, {v(O1,4)}')
        WACC = 36
        zero = [f'v_mov_b64 {v(WACC+2*k,2)}, 0' for k in range(18)]
        zq = list(zero)
        for x in zq[:6]: A(x)
        A(f'v_rcp_f32 {v(MX)}, {v(LL)}')
        A(zq[6])
        for r in range(4): A(f'v_mul_f32 {v(O0+r)}, {v(MX)}, {v(O0+r)}')
        A(cvt(O0, O0, O0+1)); A(cvt(O0+1, O0+2, O0+3))
        for r in range(4): A(f'v_mul_f32 {v(O1+r)}, {v(MX)}, {v(O1+r)}')
        A(cvt(O0+2, O1, O1+1)); A(cvt(O0+3, O1+2, O1+3))
        A(f's_mov_b64 exec, s[{sMASK}:{sMASK+1}]')
        A(f'ds_write_b128 {v(vOW)}, {v(O0,4)}')
        A(f's_mov_b64 exec, -1')
        for x in zq[7:]: A(x)
        A.wait(lgkm=0)
        A('s_barrier')
        self.ts(5)
        OA0, OA1 = 16, 20
        A(f'ds_read_b128 {v(OA0,4)}, {v(vMS)} offset:{L_QEX-BASE_MS}')
        A(f'ds_read_b128 {v(OA1,4)}, {v(vMS)} offset:{L_QEX-BASE_MS+1024}')
        if not opt.get('nokx'): self.next_kx()
        acc = lambda q: WACC + 4*q
        def wo(q, tp):
            return f'v_smfmac_f32_16x16x64_bf16 {v(acc(q),4)}, {v(OA0 if tp == 0 else OA1,4)}, {freg(("O", tp, q))}, {v(vIDX)}'
        def epi(q):
            dst = 24 + q
            tagop = f'v_or_b32 {v(dst)}, 1, {v(dst)}' if par == 0 else f'v_and_b32 {v(dst)}, -2, {v(dst)}'
            return [add(acc(q), acc(q), acc(q)+2), add(acc(q)+1, acc(q)+1, acc(q)+3), cvt(dst, acc(q), acc(q)+1), tagop]
        st = lambda r, off: f'buffer_store_dwordx4 {v(r,4)}, {v(vMS)}, {WS}, s{sPBc} offen offset:{off} {stf}'
        prog = []; pend = []
        for q in range(9):
            prog.append(wo(q, 0))
            if pend: prog.append(pend.pop(0))
            if q >= 2 and pend: prog.append(pend.pop(0))
            prog.append(wo(q, 1))
            if pend: prog.append(pend.pop(0))
            if q >= 2 and pend: prog.append(pend.pop(0))
            if q >= 2:
                pend += epi(q-2)
                if q-2 == 3: pend.append(st(24, 0))
        prog += [f'ds_read_b128 {v(16,4)}, {v(vMS)} offset:{L_SPARE-BASE_MS}']
        prog += pend
        prog += epi(7) + [st(28, 1024)] + epi(8)
        prog += [f'buffer_store_dword {v(32)}, {v(vQW)}, {WS}, s{sPBl} offen {stf}']
        for x in prog: A(x)
        self.ts(6)
        self.at(1)
        nored = A.newlabel('nored')
        gat = A.newlabel('gat')
        if not opt.get('nohop'):
            A(f's_cmp_eq_u32 s{sTASK}, -1')
            A(f's_cbranch_scc1 {nored}')
            self.reducer(par)
            A(f's_branch {gat}')
            A.label(nored)
            if not opt.get('chain_only'):
                nk = A.newlabel('nkv')
                A(f's_cmp_eq_u32 s{sW}, 2'); A(f's_cbranch_scc0 {nk}')
                A(f's_cmp_lt_u32 s{sS}, 62'); A(f's_cbranch_scc0 {nk}')
                self.kv_wait()
                A.label(nk)
            if opt.get("sleep_nr", 6): A(f's_sleep {opt.get("sleep_nr", 6)}')
            A.label(gat)
        A.cut = None
        A.raw(f'{skip}:')
        self.pre_step()
        sG = 58
        A(f's_mov_b32 s{sG}, s{sMBb}')
        A(f's_mov_b32 s{sTMP}, s{sMBa}'); A(f's_mov_b32 s{sMBa}, s{sMBb}'); A(f's_mov_b32 s{sMBb}, s{sMBc}'); A(f's_mov_b32 s{sMBc}, s{sTMP}')
        A(f's_add_u32 s{sVX}, s{sVX}, {32*8192}')
        A(f's_add_u32 s{sWARM}, s{sWARM}, {32*8192}')
        A(f's_add_u32 s{sKM}, s{sKM}, {32*2048}')
        A(f's_add_u32 s{sVM}, s{sVM}, {32*2048}')
        A(f's_add_u32 s{sS}, s{sS}, 1')
        A(f's_add_u32 s{sR7}, s{sR7}, 1')
        A(f's_cmp_eq_u32 s{sR7}, 7')
        A(f's_cselect_b32 s{sR7}, 0, s{sR7}')
        A(f's_addc_u32 s{sK7}, s{sK7}, 0')
        if not opt.get('nohop'): self.gather(sG)
        self.ts(8)
        A.wait(lgkm=0)
        A('s_barrier')
        if not opt.get('chain_only'):
            pf = A.newlabel('pf')
            A.raw(f'  s_cmp_eq_u32 s{sW}, 3')
            A.raw(f'  s_cbranch_scc0 {pf}')
            A.raw(f'  s_mov_b64 exec, 1')
            A.raw(f'  v_mov_b32 v13, 0')
            A.raw(f'  v_mov_b32 v14, s{sS}')
            A.raw(f'  buffer_store_dword v14, v13, {WS}, s{sFLC} offen sc1')
            A.raw(f'  s_mov_b64 exec, -1')
            A.raw(f'{pf}:')
    def next_kx(self):
        A = self.A
        lab = A.newlabel('nkx')
        R = A.raw
        WS = f's[{sWS}:{sWS+3}]'
        A(f's_add_u32 s{sKX}, s{sKX}, {32*8192}')
        R(f'  s_cmp_lt_u32 s{sW}, 2')
        R(f'  s_cbranch_scc1 {lab}')
        R(f'  s_add_u32 s{sTMP+2}, s{sKX}, s{sKXW}')
        R(f'  s_add_u32 m0, s{sKXW}, {L_KXST}')
        R(f'  s_nop 0')
        for k in range(4):
            R(f'  buffer_load_dwordx4 {v(vMS)}, {WS}, s{sTMP+2} offen offset:{1024*k} sc1 lds')
        R(f'{lab}:')
    def pre_step(self):
        A = self.A
        for r in range(AQ0, AV1+4, 2): A(f'v_mov_b64 {v(r,2)}, 0')
        for x in lfread(SB0, ('K', 0, 0)) + lfread(SB1, ('K', 0, 1)): A(x, nowait=True)
    def reducer(self, par):
        A = self.A; opt = self.opt
        WS = f's[{sWS}:{sWS+3}]'
        SEL, ACC = 16, 20
        ld = [36 + 4*n for n in range(8)]
        A(f's_mov_b32 s{sTMP+2}, 0')
        for _ in range(opt.get('nop_red', 0)): A(f's_nop 7')
        A.wait(lgkm=0)
        self.at(2)
        lab = A.newlabel('redp'); ok = A.newlabel('redok')
        A.label(lab)
        for n in range(8):
            A(f'buffer_load_dwordx4 {v(ld[n],4)}, {v(vRL)}, {WS}, s{sRL0+n} offen sc1')
        bop = '0x80' if par == 0 else '0xfe'
        flat = [ld[n] + k for n in range(8) for k in range(4)]
        chk = [f'v_bitop3_b32 {v(T13)}, {v(flat[0])}, {v(flat[1])}, {v(flat[2])} bitop3:{bop}']
        k = 3
        while k < 32:
            b = flat[k+1] if k + 1 < 32 else flat[k]
            chk.append(f'v_bitop3_b32 {v(T13)}, {v(T13)}, {v(flat[k])}, {v(b)} bitop3:{bop}')
            k += 2
        ci = 0
        for n in range(8):
            A(f'v_mfma_f32_16x16x32_bf16 {v(ACC,4)}, {v(ld[n],4)}, {v(SEL,4)}, {v(ACC,4) if n else 0}')
            while ci < len(chk) and max(r[1] for r in I(chk[ci]).rd if r[0] == 'v' and r[1] >= 36) <= ld[n] + 3:
                A(chk[ci]); ci += 1
        assert ci == len(chk)
        A(f's_add_u32 s{sTMP+2}, s{sTMP+2}, 1')
        A(f'v_and_b32 {v(T13)}, 1, {v(T13)}')
        A(f'v_cmp_{"eq" if par == 0 else "ne"}_u32 vcc, 0, {v(T13)}')
        A(f'v_cvt_pk_bf16_f32 {v(ACC)}, {v(ACC)}, {v(ACC+1)}')
        A(f'v_cvt_pk_bf16_f32 {v(ACC+1)}, {v(ACC+2)}, {v(ACC+3)}')
        A(f's_cbranch_vccz {ok}')
        A(f's_cmp_lg_u32 s{sDEAD}, 0')
        A(f's_cbranch_scc1 {ok}')
        A(f's_cmp_lt_u32 s{sTMP+2}, 0x8000')
        A(f's_cbranch_scc1 {lab}')
        A(f's_mov_b32 s{sDEAD}, 1')
        A.label(ok)
        A(f's_add_u32 s{sTMP}, s{sMBb}, s{sRSO}')
        A(f's_mov_b64 exec, s[{sMASK}:{sMASK+1}]')
        A(f'buffer_store_dwordx2 {v(ACC,2)}, {v(vRS)}, {WS}, s{sTMP} offen {self.stf}')
        A(f'v_mov_b64 {v(ACC+2,2)}, -1')
        A(f's_add_u32 s{sTMP}, s{sMBa}, s{sRSO}')
        A(f'buffer_store_dwordx2 {v(ACC+2,2)}, {v(vRS)}, {WS}, s{sTMP} offen {self.stf}')
        A(f's_mov_b64 exec, -1')
        A(f's_add_u32 s{sTS+16}, s{sTS+16}, s{sTMP+2}')
        self.at(3)
        self.ts(7)
    def gather(self, sG):
        A = self.A; opt = self.opt
        WS = f's[{sWS}:{sWS+3}]'
        G0, G1, G2 = 16, 20, 64
        lab = A.newlabel('gatp'); ok = A.newlabel('gatok'); l3 = A.newlabel('gat3'); l3b = A.newlabel('gat3b')
        A(f's_mov_b32 s{sTMP+2}, 0')
        A(f's_add_u32 s{sTMP+1}, s{sG}, 8192')
        A(f'v_mov_b64 {v(G2,2)}, 0')
        A(f'v_mov_b64 {v(G2+2,2)}, 0')
        for _ in range(opt.get('nop_gat', 0)): A(f's_nop 7')
        self.at(4, 1)
        A.label(lab)
        A(f'buffer_load_dwordx4 {v(G0,4)}, {v(vF2)}, {WS}, s{sG} offen sc1')
        A(f'buffer_load_dwordx4 {v(G1,4)}, {v(vF2)}, {WS}, s{sG} offen offset:1024 sc1')
        A.raw(f'  s_cmp_eq_u32 s{sW}, 3')
        A.raw(f'  s_cbranch_scc0 {l3}')
        A.raw(f'  buffer_load_dwordx4 {v(G2,4)}, {v(vMS)}, {WS}, s{sTMP+1} offen sc1')
        A.raw(f'{l3}:')
        A(f's_add_u32 s{sTMP+2}, s{sTMP+2}, 1')
        A.wait(vm=0)
        A(f'v_max3_u32 {v(T13)}, {v(G0)}, {v(G0+1)}, {v(G0+2)}')
        A(f'v_max3_u32 {v(T14)}, {v(G1)}, {v(G1+1)}, {v(G1+2)}')
        A(f'v_max3_u32 {v(T13)}, {v(T13)}, {v(G0+3)}, {v(G1+3)}')
        A(f'v_max3_u32 {v(T14)}, {v(T14)}, {v(G2)}, {v(G2+1)}')
        A(f'v_max3_u32 {v(T13)}, {v(T13)}, {v(G2+2)}, {v(G2+3)}')
        A(f'v_max_u32 {v(T13)}, {v(T13)}, {v(T14)}')
        A(f'v_cmp_eq_u32 vcc, -1, {v(T13)}')
        A(f's_cbranch_vccz {ok}')
        A(f's_cmp_lg_u32 s{sDEAD}, 0')
        A(f's_cbranch_scc1 {ok}')
        A(f's_cmp_lt_u32 s{sTMP+2}, 0x8000')
        A(f's_cbranch_scc1 {lab}')
        A(f's_mov_b32 s{sDEAD}, 1')
        A.label(ok)
        A(f'ds_write_b128 {v(vF2)}, {v(G0,4)} offset:{L_MEMST-BASE_MS}')
        A(f'ds_write_b128 {v(vF2)}, {v(G1,4)} offset:{L_MEMST-BASE_MS+1024}')
        A.raw(f'  s_cmp_eq_u32 s{sW}, 3')
        A.raw(f'  s_cbranch_scc0 {l3b}')
        A.raw(f'  ds_write_b128 {v(vMS)}, {v(G2,4)} offset:{L_MEMST-BASE_MS+8192}')
        A.raw(f'{l3b}:')
        A(f's_add_u32 s{sTS+17}, s{sTS+17}, s{sTMP+2}')
        self.at(5, 1)
```

```python
S=2048; D=576; H=32; DH=128; NSEG=64; SEG=32; M=8; F=4608
HS   = 9472
PBS  = 32*HS
OFF_PB   = 0x0100000
OFF_MB   = 0x0200000
MBS      = 9216
OFF_FLAG = 0x0210000
FL_KV    = OFF_FLAG
FL_CH    = OFF_FLAG + 0x1000
OFF_KXF  = 0x0400000
OFF_VXF  = 0x1400000
OFF_KMF  = 0x2400000
OFF_VMF  = 0x2C00000
OFF_XNF  = 0x3400000
OFF_YF   = 0x3700000
OFF_BASE = 0x3A00000
OFF_WPB  = 0x4000000
NLF      = 17
L_OTH    = NLF*8192
L_MEMST  = L_OTH
L_QEX    = L_MEMST + 9216
L_KEX    = L_QEX + 2048
L_KXST   = L_KEX + 4096
L_SPARE  = L_KXST + 8192
assert L_SPARE + 1024 == 163840
BASE_MS  = 131072

def slot(b, m): return 4*(m >> 1) + 2*b + (m & 1)
def kappa_bu(kappa):
    b = (kappa >> 1) & 1
    u = 2*(kappa >> 2) + (kappa & 1)
    return b, u
def pi16(kappa):
    b, u = kappa_bu(kappa)
    return 8*b + u

CH_CONSTS = ['vMS','vF0','vF1','vF2','vIDX','vQW','vKW','vQR','vKR','vOW','vRL','vRS',
             'vDQ','vDO','vDO8','vTR0','vTR1','vM0','vSEL0','vSEL1','vSEL2','vSEL3']
def chain_consts(w, l):
    i = l & 15; g = l >> 4
    c = {}
    c['vMS'] = BASE_MS + l*16
    c['vF0'] = l*16 + w*2048
    c['vF1'] = c['vF0'] + 65536
    c['vF2'] = c['vF0'] + 131072
    c['vIDX'] = 0xEEEE if (i & 2) else 0x4444
    c['vQW'] = L_QEX + (32*w + i)*16 + g*4
    c['vKW'] = L_KEX + (32*w + i)*32 + g*8
    u = g >> 1; hg = g & 1; rp = i >> 2; cc = i & 3
    c['vQR'] = L_QEX + (16*u + 4*hg + rp)*16 + (cc & 1)*8
    c['vKR'] = L_KEX + (16*u + 4*hg + rp)*32 + cc*8
    m = i & 7; tp = w >> 1; gp = 2*(w & 1) + (g >> 1); b = g & 1
    c['vOW'] = L_QEX + tp*1024 + (gp*16 + slot(b, m))*16
    c['vRL'] = g*HS + i*16
    bb = g >> 1; half = g & 1
    if w == 1:
        c['vRS'] = slot(bb, i & 7)*16 + half*8
    else:
        vv = i & 7; q = vv >> 1; p = vv & 1
        c['vRS'] = q*256 + (2*bb + p)*16 + half*8
    f = 2*(g + 4*(w >> 1))
    c16 = i ^ f
    kap = 4*w + g
    c['vDQ'] = pi16(kap)*8192 + c16*16
    b2, u2 = kappa_bu(kap)
    e_lane = 16*(u2 >> 2) + 4*b2 + (u2 & 3)
    wc = c16 >> 2; tau = (c16 >> 1) & 1; hf = c16 & 1
    c['vDO'] = e_lane*1152 + wc*288 + tau*32 + hf*16
    c['vDO8'] = e_lane*1152 + wc*288 + tau*(64*1152) + hf*16
    f2 = 2*(rp + 4*(g & 1))
    c['vTR0'] = (8*g + rp)*256 + ((4*w + 0) ^ f2)*16 + cc*8
    c['vTR1'] = (8*g + rp)*256 + ((4*w + 2) ^ f2)*16 + cc*8
    mm = 2*(i >> 2) + (i & 1); bm = (i >> 1) & 1
    c['vM0'] = mm*1152 + 32*g + 16*bm
    for r in range(4):
        c[f'vSEL{r}'] = (0x3F80 << (16*(i & 1))) if (i >> 1) == r and i < 8 else 0
    return c

SEGB = 36864
WPB_M = 36864
WPB_SLOT = 32*WPB_M
WPB_GRP = 2*WPB_SLOT
DBG_OVF = 8; DBG_CHINIT = 9; DBG_LN = 16; DBG_PC = 24; DBG_PD = 32
W_QEX = 0
W_OEX = 8192
W_KEX = 17408
W_XT0 = 22528; W_XT1 = W_XT0 + 36864
WK_CONSTS = ['wL16','wLNG','wLNS','wDA','wTA0','wTA1','wTQ','wDW1','wD16','wT1a','wT1b','wT1c',
             'wDO','wTO0','wTO1','wSTK','wQW','wHW','wHW8','wOW','wKW','wKR','wRL','wROb','wROf','wPS8','wB1',
             'wYR','wYR2','wX0','wX1','wL8',
             'wM0','wM1','wM2','wM3','wM4','wM5','wM6','wM7','wSEL0','wSEL1','wSEL2','wSEL3']
NEGBIG = 0xF149F2CA
def worker_consts(w, l):
    i = l & 15; g = l >> 4
    c = {}
    c['wL16'] = l*16
    tok = l >> 3; cc8 = l & 7
    c['wLNG'] = tok*1152 + cc8*16
    c['wLNS'] = cc8*512 + tok*16
    c['wDA'] = g*8192 + (i ^ (4*g))*16
    rp = i >> 2; cc = i & 3; q = g
    for tau in range(2):
        chunk = 8*(w & 1) + 4*tau + 2*(q & 1) + (cc >> 1)
        c[f'wTA{tau}'] = (w >> 1)*8192 + (8*(q >> 1) + rp)*256 + (chunk ^ (4*rp))*16 + (cc & 1)*8
    chunk = 4*w + 2*(q & 1) + (cc >> 1)
    c['wTQ'] = (8*(q >> 1) + rp)*256 + (chunk ^ (4*rp))*16 + (cc & 1)*8
    f = 2*(g + 4*(w >> 1))
    c['wDW1'] = g*9216 + (i ^ f)*16
    c['wD16'] = (l >> 1)*9216 + (l & 1)*16
    f2 = 2*(rp + 4*(g & 1))
    for tau, nm in enumerate(['wT1a', 'wT1b']):
        c[nm] = (8*g + rp)*256 + ((4*w + 2*tau) ^ f2)*16 + cc*8
    c['wT1c'] = (8*g + rp)*32 + cc*8
    f3 = 2*(4*(w & 1) + g)
    c16 = i ^ f3
    wc = c16 >> 2; tau = (c16 >> 1) & 1; hf = c16 & 1
    c['wDO'] = g*1152 + wc*288 + tau*32 + hf*16
    f4 = 2*(4*(g & 1) + rp)
    for tau in range(2):
        c[f'wTO{tau}'] = (4*g + rp)*256 + ((4*w + 2*tau) ^ f4)*16 + cc*8
    t = l & 31; hg = l >> 5
    if w < 2:
        c['wSTK'] = ((t >> 3) & 1)*1024 + hg*256 + (8*(t >> 4) + (t & 7))*16 + w*4096
    else:
        c['wSTK'] = (t >> 4)*1024 + hg*256 + (t & 15)*16 + (w - 2)*4096
    c['wQW'] = W_QEX + w*2048 + (t >> 4)*1024 + hg*256 + (t & 15)*16
    c['wHW'] = W_OEX + w*1024 + l*16
    c['wHW8'] = W_OEX + 8192 + (w & 1)*512 + l*8
    c['wOW'] = W_OEX + (w & 1)*4096 + (w >> 1)*2048 + l*16
    c['wYR'] = g*512 + i*16
    c['wYR2'] = g*512 + i*16 + (w & 1)*256
    c['wL8'] = l*8
    c['wKW'] = W_KEX + (32*w + i)*32 + g*8
    u = g >> 1; hg2 = g & 1
    c['wKR'] = W_KEX + (16*u + 4*hg2 + rp)*32 + cc*8
    c['wRL'] = g*WPB_M + i*16
    c['wROb'] = i*1152 + (g & 1)*32
    c['wROf'] = i*2304 + (g & 1)*64
    c['wPS8'] = ((g >> 1)*16 + i)*16 + (g & 1)*8
    c['wB1'] = g*8
    c['wX0'] = i*1152 + (g & 1)*8
    c['wX1'] = i*2304 + (g & 1)*16
    qtok = 16*(w & 1) + i
    for tau in range(2):
        for r in range(4):
            kt = 16*(g >> 1) + 8*tau + 4*(g & 1) + r
            c[f'wM{4*tau+r}'] = 0 if kt <= qtok else NEGBIG
    for r in range(4):
        c[f'wSEL{r}'] = (0x3F80 << (16*(i & 1))) if (i >> 1) == r and i < 8 else 0
    return c
```

```python
from asmlib import *
from layout import *
import math, struct
def fb(x): return struct.unpack('<I', struct.pack('<f', x))[0]

sWS = 4; sT = 8
sM, sW, sG, sK, sSEG, sN, sSLOW = 16, 17, 18, 19, 20, 21, 22
sTMP = 23
sTAB = 30
sP0 = 32
sA, sB, sC, sD_ = 36, 37, 38, 39
sDEAD = 44
sCv = 40
WS = f's[{sWS}:{sWS+3}]'
TS = f's[{sT}:{sT+3}]'
LO32 = 46
CIDX = {n: k for k, n in enumerate(WK_CONSTS)}

class Worker:
    def __init__(self, A, opt):
        self.A = A; self.opt = opt
    def consts(self, mp):
        A = self.A
        A('v_mul_u32_u24 v255, 192, v0') if False else None
        A(f'v_mov_b32 v{self.vT}, 192')
        A(f'v_mul_u32_u24 v{self.vT}, v{self.vT}, v0')
        for n, r in mp.items():
            A(f'global_load_dword v{r}, v{self.vT}, s[{sTAB}:{sTAB+1}] offset:{4*CIDX[n]}')
        A.wait(vm=0)
    def srd(self, kern_off, size):
        A = self.A
        A(f's_load_dwordx2 s[{sP0}:{sP0+1}], s[0:1], {kern_off}')
        A.wait(lgkm=0)
        A(f's_mov_b32 s{sT}, s{sP0}')
        A(f's_and_b32 s{sT+1}, s{sP0+1}, 0xffff')
        A(f's_mov_b32 s{sT+2}, {size}')
        A(f's_mov_b32 s{sT+3}, 0x20000')
    def dbg_add(self, idx_s=None, idx_c=0):
        A = self.A
        lab = A.newlabel('wda')
        A(f's_cmp_eq_u32 s{sW}, 0')
        A(f's_cbranch_scc0 {lab}')
        A(f's_add_u32 s{sTMP}, s{idx_s}, {idx_c}') if idx_s is not None else A(f's_mov_b32 s{sTMP}, {idx_c}')
        A(f's_lshl_b32 s{sTMP}, s{sTMP}, 2')
        A(f's_mov_b64 exec, 1')
        A(f'v_mov_b32 v60, s{sTMP}')
        A(f'v_mov_b32 v61, 1')
        A(f'global_atomic_add v60, v61, s[14:15]')
        A(f's_mov_b64 exec, -1')
        A.label(lab)
    def dbg_wait(self, idx_s, idx_c, val_s=None, val_c=0, sleep=2, barrier=True):
        A = self.A
        lab = A.newlabel('wdw'); done = A.newlabel('wdd'); skip = A.newlabel('wds')
        A(f's_cmp_eq_u32 s{sW}, 0')
        A(f's_cbranch_scc0 {skip}')
        if idx_s is not None: A(f's_add_u32 s{sTMP}, s{idx_s}, {idx_c}')
        else: A(f's_mov_b32 s{sTMP}, {idx_c}')
        A(f's_lshl_b32 s{sTMP}, s{sTMP}, 2')
        A(f'v_mov_b32 v60, s{sTMP}')
        if val_s is not None: A(f's_mov_b32 s{sTMP+2}, s{val_s}')
        else: A(f's_mov_b32 s{sTMP+2}, {val_c}')
        A(f's_mov_b32 s{sTMP}, 0')
        A.label(lab)
        A(f'global_load_dword v61, v60, s[14:15] sc1')
        A(f's_add_u32 s{sTMP}, s{sTMP}, 1')
        A.wait(vm=0)
        A(f'v_readfirstlane_b32 s{sTMP+1}, v61')
        A(f's_cmp_ge_u32 s{sTMP+1}, s{sTMP+2}')
        A(f's_cbranch_scc1 {done}')
        A(f's_sleep {sleep}')
        A(f's_cmp_lg_u32 s{sDEAD}, 0')
        A(f's_cbranch_scc1 {done}')
        A(f's_cmp_lt_u32 s{sTMP}, 0x40000')
        A(f's_cbranch_scc1 {lab}')
        A(f's_mov_b32 s{sDEAD}, 1')
        A.label(done)
        A.raw(f'{skip}:')
        A.reset()
        if barrier: A('s_barrier')
    def ws_wait(self, off_s, val_s, sleep=2):
        A = self.A
        lab = A.newlabel('www'); done = A.newlabel('wwd'); skip = A.newlabel('wws')
        A(f's_cmp_eq_u32 s{sW}, 0')
        A(f's_cbranch_scc0 {skip}')
        A(f'v_mov_b32 v60, 0')
        A(f's_mov_b32 s{sTMP}, 0')
        A.label(lab)
        A(f'buffer_load_dword v61, v60, {WS}, s{off_s} offen sc1')
        A(f's_add_u32 s{sTMP}, s{sTMP}, 1')
        A.wait(vm=0)
        A(f'v_readfirstlane_b32 s{sTMP+1}, v61')
        A(f's_cmp_ge_u32 s{sTMP+1}, s{val_s}')
        A(f's_cbranch_scc1 {done}')
        A(f's_sleep {sleep}')
        A(f's_cmp_lg_u32 s{sDEAD}, 0')
        A(f's_cbranch_scc1 {done}')
        A(f's_cmp_lt_u32 s{sTMP}, 0x40000')
        A(f's_cbranch_scc1 {lab}')
        A(f's_mov_b32 s{sDEAD}, 1')
        A.label(done)
        A.raw(f'{skip}:')
        A.reset()
        A('s_barrier')
    def layernorm(self):
        A = self.A
        self.vT = 2
        self.consts({'wLNG': 3, 'wLNS': 4})
        done = A.newlabel('lnd')
        A(f's_lshl_b32 s{sTMP}, s{sW}, 5')
        A(f's_add_u32 s{sTMP}, s{sTMP}, s{sM}')
        A(f's_lshl_b32 s{sTMP+1}, s{sN}, 2')
        A(f's_cmp_lt_u32 s{sTMP}, s{sTMP+1}')
        A(f's_cbranch_scc0 {done}')
        A(f's_lshr_b32 s{sTMP+1}, s{sTMP}, 2')
        A(f's_mul_i32 s{sTMP+1}, s{sTMP+1}, 7')
        A(f's_add_u32 s{sTMP+1}, s{sTMP+1}, s{sG}')
        A(f's_and_b32 s{sTMP+2}, s{sTMP}, 3')
        A(f's_lshl_b32 s{sTMP+3}, s{sTMP+1}, 2')
        A(f's_add_u32 s{sTMP+3}, s{sTMP+3}, s{sTMP+2}')
        A(f's_mul_i32 s{sA}, s{sTMP+3}, {8*1152}')
        A(f's_mul_i32 s{sB}, s{sTMP+1}, {SEGB}')
        A(f's_lshl_b32 s{sTMP+2}, s{sTMP+2}, 7')
        A(f's_add_u32 s{sB}, s{sB}, s{sTMP+2}')
        self.srd(0, S*D*2)
        P = 64; F_ = 100
        for n in range(9):
            A(f'buffer_load_dwordx4 {v(P+4*n,4)}, v3, {TS}, s{sA} offen offset:{128*n}')
        A(f's_mov_b32 s{sC}, 0xffff0000')
        for which in range(2):
            for d in range(36):
                A(f'v_lshlrev_b32 v{F_+2*d}, 16, v{P+d}')
                A(f'v_and_b32 v{F_+2*d+1}, s{sC}, v{P+d}')
            def red8(r):
                A(f'v_add_f32_dpp v{r}, v{r}, v{r} quad_perm:[1,0,3,2] row_mask:0xf bank_mask:0xf')
                A(f'v_add_f32_dpp v{r}, v{r}, v{r} quad_perm:[2,3,0,1] row_mask:0xf bank_mask:0xf')
                A(f'v_add_f32_dpp v{r}, v{r}, v{r} row_half_mirror row_mask:0xf bank_mask:0xf')
            acc = [10, 11, 12, 13]
            for k in range(4): A(f'v_mov_b32 v{acc[k]}, v{F_+k}')
            for e in range(4, 72): A(f'v_add_f32 v{acc[e%4]}, v{acc[e%4]}, v{F_+e}')
            A('v_add_f32 v10, v10, v11'); A('v_add_f32 v12, v12, v13'); A('v_add_f32 v10, v10, v12')
            red8(10)
            A(f'v_mul_f32 v10, {fb(1.0/576):#x}, v10')
            for k in range(4): A(f'v_mov_b32 v{11+k}, 0')
            for e in range(72):
                A(f'v_sub_f32 v15, v{F_+e}, v10')
                A(f'v_fmac_f32 v{11+e%4}, v15, v15')
            A('v_add_f32 v11, v11, v12'); A('v_add_f32 v13, v13, v14'); A('v_add_f32 v11, v11, v13')
            red8(11)
            A(f'v_mul_f32 v11, {fb(1.0/576):#x}, v11')
            A('v_cvt_pk_bf16_f32 v10, v10, v11')
            A(f'v_and_b32 v11, s{sC}, v10')
            A('v_lshlrev_b32 v10, 16, v10')
            A(f'v_add_f32 v11, {fb(1e-5):#x}, v11')
            A('v_cvt_pk_bf16_f32 v11, v11, v11')
            A(f'v_and_b32 v11, s{sC}, v11')
            A('v_sqrt_f32 v11, v11')
            A('v_cvt_pk_bf16_f32 v11, v11, v11')
            A(f'v_and_b32 v11, s{sC}, v11')
            A('v_rcp_f32 v11, v11')
            for d in range(36):
                a0, a1 = F_+2*d, F_+2*d+1
                A(f'v_sub_f32 v{a0}, v{a0}, v10')
                A(f'v_sub_f32 v{a1}, v{a1}, v10')
                A(f'v_cvt_pk_bf16_f32 v15, v{a0}, v{a1}')
                A(f'v_lshlrev_b32 v{a0}, 16, v15')
                A(f'v_and_b32 v{a1}, s{sC}, v15')
                A(f'v_mul_f32 v{a0}, v11, v{a0}')
                A(f'v_mul_f32 v{a1}, v11, v{a1}')
                A(f'v_cvt_pk_bf16_f32 v{P+d}, v{a0}, v{a1}')
            base = OFF_XNF if which == 0 else OFF_YF
            for n in range(9):
                A(f's_add_u32 s{sTMP}, s{sB}, {base + n*8*512}')
                A(f'buffer_store_dwordx4 {v(P+4*n,4)}, v4, {WS}, s{sTMP} offen sc1')
            if which == 0: A('s_nop 1')
        A.wait(vm=0)
        A.label(done)
        A.wait(vm=0)
        A('s_barrier')
        self.dbg_add(sG, DBG_LN)
    def ring(self, blocks, nslots=9, depth=6):
        A = self.A
        pos = []; p = 0
        for b in blocks:
            ns = b.get('slots', 1)
            if p % nslots + ns > nslots: p += nslots - p % nslots
            pos.append(p % nslots); p += ns
        def issue(n):
            b = blocks[n]
            if b.get('setup'): b['setup']()
            for y, dm in enumerate(b['dmas']):
                voff, sbase, const, lds = dm[:4]
                lb = dm[4] if len(dm) > 4 else 42
                A(f's_add_u32 s43, s{sbase}, {const}')
                A(f's_add_u32 m0, s{lb}, {pos[n]*16384 + lds}')
                A(f'buffer_load_dwordx4 v{voff}, {TS}, s43 offen lds')
        N = len(blocks)
        issued = 0
        def can_issue(n, cur):
            sl = set(range(pos[n], pos[n] + blocks[n].get('slots', 1)))
            for q in range(cur, n):
                if sl & set(range(pos[q], pos[q] + blocks[q].get('slots', 1))): return False
            return n - cur < depth
        while issued < N and can_issue(issued, 0): issue(issued); issued += 1
        for n in range(N):
            left = sum(len(blocks[q]['dmas']) for q in range(n+1, issued))
            A.wait(vm=left, lgkm=0)
            A('s_barrier')
            while issued < N and can_issue(issued, n): issue(issued); issued += 1
            cur = {}
            for (dst, addr, imm) in blocks[n]['reads']:
                if addr not in cur:
                    t = 60 + len(cur); cur[addr] = t
                    A(f'v_add_u32 v{t}, {pos[n]*16384}, v{addr}')
                A(f'ds_read_b64_tr_b16 {dst}, v{cur[addr]} offset:{imm}')
        A.wait(lgkm=0)
        A('s_barrier')
    def seg_dma(self, base, seg_s, buf_s, vL16):
        A = self.A
        A(f's_mul_i32 s{sTMP}, s{seg_s}, {SEGB}')
        A(f's_mul_i32 s{sTMP+1}, s{sW}, {9*1024}')
        A(f's_add_u32 s{sTMP}, s{sTMP}, s{sTMP+1}')
        A(f's_add_u32 s{sTMP}, s{sTMP}, {base}')
        A(f's_add_u32 s{sTMP+1}, s{sTMP+1}, s{buf_s}')
        for y in range(9):
            A(f's_add_u32 m0, s{sTMP+1}, {(y//4)*4096}')
            if y % 4 == 0 and y: A(f's_add_u32 s{sTMP}, s{sTMP}, 4096')
            A(f'buffer_load_dwordx4 v{vL16}, {WS}, s{sTMP} offen offset:{(y%4)*1024} sc1 lds')
    def passA(self):
        A = self.A; opt = self.opt
        self.vT = 2
        C = {'wL16': 3, 'wDA': 4, 'wTA0': 5, 'wTA1': 6, 'wSTK': 7}
        self.consts(C)
        def fr(kp, tau, off=0, cnt=4):
            n = (2*kp + tau)*4 + off
            return f'a[{n}:{n+cnt-1}]' if n < 256 else f'v[{224+n-256}:{224+n-256+cnt-1}]'
        A(f's_load_dwordx2 s[{sP0}:{sP0+1}], s[0:1], 24')
        A(f's_load_dwordx2 s[{sP0+2}:{sP0+3}], s[0:1], 32')
        A.wait(lgkm=0)
        A(f's_cmp_lt_u32 s{sW}, 2')
        A(f's_cselect_b32 s{sT}, s{sP0}, s{sP0+2}')
        A(f's_cselect_b32 s{sT+1}, s{sP0+1}, s{sP0+3}')
        A(f's_and_b32 s{sT+1}, s{sT+1}, 0xffff')
        A(f's_mov_b32 s{sT+2}, {D*8192}')
        A(f's_mov_b32 s{sT+3}, 0x20000')
        A(f's_and_b32 s{sTMP}, s{sW}, 1')
        A(f's_mul_i32 s{sTMP}, s{sTMP}, {16*8192}')
        A(f's_lshl_b32 s{sA}, s{sM}, 8')
        A(f's_add_u32 s{sA}, s{sA}, s{sTMP}')
        A(f's_lshl_b32 s42, s{sW}, 12')
        blocks = []
        for b in range(18):
            dm = [(4, sA, (32*b + 4*y)*8192, y*1024) for y in range(4)]
            rd = []
            for kk in range(2):
                for tau in range(2):
                    for rr in range(2):
                        rd.append((fr(2*b+kk, tau, 2*rr, 2), 5+tau, kk*4096 + rr*1024))
            blocks.append(dict(dmas=dm, reads=rd))
        self.ring(blocks)
        self.dbg_wait(sG, DBG_LN, None, 32)
        self.dbg_wait(None, DBG_CHINIT, None, 32)
        A(f's_mov_b32 s{sK}, 0')
        A(f's_mov_b32 s{sSEG}, s{sG}')
        A(f's_mov_b32 s{sB}, {W_XT0}')
        self.seg_dma(OFF_XNF, sSEG, sB, 3)
        A(f'v_add_u32 v8, {W_XT0}, v3')
        A(f's_lshl_b32 s{sC}, s{sG}, 7')
        A(f's_lshl_b32 s{sTMP}, s{sM}, 2')
        A(f's_add_u32 s{sC}, s{sC}, s{sTMP}')
        A(f's_add_u32 s{sC}, s{sC}, {FL_KV + 128}')
        L = A.newlabel('pa_loop'); nonext = A.newlabel('pa_nn'); vw = A.newlabel('pa_v'); epi = A.newlabel('pa_e')
        A.label(L)
        A.wait(vm=0)
        A('s_barrier')
        lab = A.newlabel('pa_fl')
        A(f's_cmp_eq_u32 s{sK}, 0'); A(f's_cbranch_scc1 {lab}')
        A(f's_cmp_eq_u32 s{sW}, 0'); A(f's_cbranch_scc0 {lab}')
        A(f's_mov_b64 exec, 1'); A(f'v_mov_b32 v60, 0'); A(f'v_mov_b32 v61, s{sK}')
        A(f'buffer_store_dword v61, v60, {WS}, s{sC} offen sc1'); A(f's_mov_b64 exec, -1')
        A.label(lab)
        A(f's_add_u32 s{sD_}, s{sK}, 1')
        A(f's_cmp_lt_u32 s{sD_}, s{sN}')
        A(f's_cbranch_scc0 {nonext}')
        A(f's_add_u32 s{sD_}, s{sSEG}, 7')
        A(f's_xor_b32 s{sTMP+2}, s{sB}, {W_XT0 ^ W_XT1}')
        self.seg_dma(OFF_XNF, sD_, sTMP+2, 3)
        A.label(nonext)
        ACC = 64; XB = [96, 100, 104, 108]
        A(f's_cmp_lt_u32 s{sW}, 2')
        A(f's_cbranch_scc0 {vw}')
        for role in range(2):
            if role == 1: A.label(vw)
            for kp in range(3): A(f'ds_read_b128 {v(XB[kp],4)}, v8 offset:{kp*1024}')
            for kp in range(36):
                if kp + 3 < 36: A(f'ds_read_b128 {v(XB[(kp+3)%4],4)}, v8 offset:{(kp+3)*1024}')
                for tau in range(2):
                    d = v(ACC+16*tau, 16); c_ = d if kp else '0'
                    x_ = v(XB[kp % 4], 4)
                    if role == 0: A(f'v_mfma_f32_32x32x16_bf16 {d}, {fr(kp,tau)}, {x_}, {c_}')
                    else: A(f'v_mfma_f32_32x32x16_bf16 {d}, {x_}, {fr(kp,tau)}, {c_}')
            if role == 0: A(f's_branch {epi}')
        A.label(epi)
        A(f's_nop 15')
        A(f's_lshl_b32 s{sTMP}, s{sSEG}, 5')
        A(f's_add_u32 s{sTMP}, s{sTMP}, s{sM}')
        A(f's_lshl_b32 s{sTMP}, s{sTMP}, 13')
        A(f's_cmp_lt_u32 s{sW}, 2')
        A(f's_cselect_b32 s{sTMP+1}, 0, {OFF_VXF-OFF_KXF}')
        A(f's_add_u32 s{sTMP}, s{sTMP}, s{sTMP+1}')
        A(f's_add_u32 s{sTMP}, s{sTMP}, {OFF_KXF}')
        PK = 112
        for tau in range(2):
            for u in range(2):
                r0 = ACC + 16*tau + 8*u; p = PK + 8*tau + 4*u
                for k in range(4): A(f'v_cvt_pk_bf16_f32 v{p+k}, v{r0+2*k}, v{r0+2*k+1}')
                A(f'buffer_store_dwordx4 {v(p,4)}, v7, {WS}, s{sTMP} offen offset:{tau*2048+u*512} sc1')
        A(f's_xor_b32 s{sB}, s{sB}, {W_XT0 ^ W_XT1}')
        A(f'v_add_u32 v8, s{sB}, v3')
        A(f's_add_u32 s{sSEG}, s{sSEG}, 7')
        A(f's_add_u32 s{sK}, s{sK}, 1')
        A(f's_cmp_lt_u32 s{sK}, s{sN}')
        A(f's_cbranch_scc1 {L}')
        A.wait(vm=0)
        A('s_barrier')
        lab = A.newlabel('pa_fl')
        A(f's_cmp_eq_u32 s{sW}, 0'); A(f's_cbranch_scc0 {lab}')
        A(f's_mov_b64 exec, 1'); A(f'v_mov_b32 v60, 0'); A(f'v_mov_b32 v61, s{sK}')
        A(f'buffer_store_dword v61, v60, {WS}, s{sC} offen sc1'); A(f's_mov_b64 exec, -1')
        A.label(lab)

    def gemm2_blocks(self, fr2, nrb, mini, vDO, vTO, sbase, slds, setup):
        blocks = []
        first = True
        for q0 in (0, 2, 4, 6, 8):
            for rb in range(nrb):
                dm = [(vDO, sbase, (64*rb + 16*y)*1152 + q0*32, y*4096, slds) for y in range(4)]
                rd = []
                for kk in range(2):
                    for tau in range(2):
                        if q0 + tau > 8: continue
                        for rr in range(2):
                            rd.append((fr2(q0+tau, 2*rb+kk, 2*rr, 2), vTO+tau, (32*kk + 16*rr)*256))
                blocks.append(dict(dmas=dm, reads=rd, setup=setup if first else None)); first = False
            if mini:
                dm = [(vDO, sbase, (64*nrb)*1152 + q0*32, 0, slds)]
                rd = [(fr2(q0+tau, 4, 0, 2), vTO+tau, 0) for tau in range(2) if q0 + tau <= 8]
                blocks.append(dict(dmas=dm, reads=rd))
        return blocks
    def gemm2(self, fr2, k16, ACC, HF, PKD, vL16, vL8, vPS8, sPB):
        A = self.A
        for tt in range(2):
            for ko in range(4):
                A(f'ds_read_b128 {v(HF+4*ko,4)}, v{vL16} offset:{W_OEX + tt*4096 + ko*1024}')
            if k16: A(f'ds_read_b64 {v(HF+16,2)}, v{vL8} offset:{W_OEX + 8192 + tt*512}')
            for ko in range(4):
                for q in range(9):
                    d = v(ACC+4*q, 4)
                    A(f'v_mfma_f32_16x16x32_bf16 {d}, {fr2(q, ko)}, {v(HF+4*ko,4)}, {d if ko else 0}')
            if k16:
                for q in range(9):
                    d = v(ACC+4*q, 4)
                    A(f'v_mfma_f32_16x16x16_bf16 {d}, {fr2(q, 4, 0, 2)}, {v(HF+16,2)}, {d}')
            for a_ in range(4):
                p = PKD + 4*(a_ % 2)
                for t2 in range(2):
                    r0 = ACC + 4*(2*a_ + t2)
                    A(f'v_cvt_pk_bf16_f32 v{p+2*t2}, v{r0}, v{r0+1}')
                    A(f'v_cvt_pk_bf16_f32 v{p+2*t2+1}, v{r0+2}, v{r0+3}')
                self.mstore(f'buffer_store_dwordx4 {v(p,4)}, v{vL16}, {WS}, s{sPB} offen offset:{a_*1024}', tt*4608, sPB)
            p = PKD + 8
            A(f'v_cvt_pk_bf16_f32 v{p}, v{ACC+32}, v{ACC+33}')
            A(f'v_cvt_pk_bf16_f32 v{p+1}, v{ACC+34}, v{ACC+35}')
            A(f's_add_u32 s{sTMP}, s{sPB}, 4096')
            self.mstore(f'buffer_store_dwordx2 {v(p,2)}, v{vPS8}, {WS}, s{sTMP} offen', 0, None)
            if tt == 0: A(f's_add_u32 s{sPB}, s{sPB}, 4608')
        A(f's_sub_u32 s{sPB}, s{sPB}, 4608')
    def mstore(self, text, *_):
        A = self.A
        l1 = A.newlabel('ms'); l2 = A.newlabel('me')
        A(f's_cmp_eq_u32 s{sSLOW}, 0')
        A(f's_cbranch_scc0 {l1}')
        A(text)
        A.raw(f'  s_branch {l2}')
        A.raw(f'{l1}:')
        A.raw(f'  {text} sc1')
        A.raw(f'{l2}:')
    def reduce(self, which, R0, vRL, vSEL, vROb, vROf, vX0, vX1, vB2r, vB2x):
        A = self.A
        cnt = DBG_PC if which == 'C' else DBG_PD
        A.wait(vm=0)
        A('s_barrier')
        self.dbg_add(sG, cnt)
        A(f's_add_u32 s{sD_}, s{sK}, 1')
        A(f's_lshl_b32 s{sD_}, s{sD_}, 5')
        self.dbg_wait(sG, cnt, sD_, 0, sleep=1)
        LD = R0; AC = R0 + 32; XX = R0 + 36; BB = R0 + 40
        def task(extra):
            if not extra:
                A(f's_lshr_b32 s{sTMP}, s{sM}, 3')
                A(f's_bfe_u32 s{sTMP+1}, s{sM}, 0x10002')
                A(f's_and_b32 s{sTMP+2}, s{sM}, 3')
                A(f's_mul_i32 s{sTMP+3}, s{sTMP}, 9216')
                A(f's_mul_i32 s{sTMP+4}, s{sTMP+1}, 4608')
                A(f's_add_u32 s{sTMP+3}, s{sTMP+3}, s{sTMP+4}')
                A(f's_lshl_b32 s{sTMP+4}, s{sTMP+2}, 10')
                A(f's_add_u32 s{sTMP+3}, s{sTMP+3}, s{sTMP+4}')
                A(f's_lshl_b32 s{sTMP+4}, s{sW}, 8')
                A(f's_add_u32 s{sTMP+3}, s{sTMP+3}, s{sTMP+4}')
                A(f's_mul_i32 s{sTMP+5}, s{sTMP}, {9*32}')
                A(f's_lshl_b32 s{sTMP+4}, s{sTMP+2}, 6')
                A(f's_add_u32 s{sTMP+5}, s{sTMP+5}, s{sTMP+4}')
                A(f's_lshl_b32 s{sTMP+4}, s{sW}, 3')
                A(f's_add_u32 s{sTMP+5}, s{sTMP+5}, s{sTMP+4}')
            else:
                A(f's_lshr_b32 s{sTMP}, s{sM}, 2')
                A(f's_bfe_u32 s{sTMP+1}, s{sM}, 0x10001')
                A(f's_and_b32 s{sTMP+2}, s{sM}, 1')
                A(f's_mul_i32 s{sTMP+3}, s{sTMP}, 9216')
                A(f's_mul_i32 s{sTMP+4}, s{sTMP+1}, 4608')
                A(f's_add_u32 s{sTMP+3}, s{sTMP+3}, s{sTMP+4}')
                A(f's_lshl_b32 s{sTMP+4}, s{sTMP+2}, 8')
                A(f's_add_u32 s{sTMP+3}, s{sTMP+3}, s{sTMP+4}')
                A(f's_add_u32 s{sTMP+3}, s{sTMP+3}, 4096')
                A(f's_mul_i32 s{sTMP+5}, s{sTMP}, {9*32}')
                A(f's_lshl_b32 s{sTMP+4}, s{sTMP+2}, 4')
                A(f's_add_u32 s{sTMP+5}, s{sTMP+5}, s{sTMP+4}')
                A(f's_add_u32 s{sTMP+5}, s{sTMP+5}, {8*32}')
            A(f's_lshl_b32 s{sTMP+4}, s{sSEG}, 5')
            A(f's_lshl_b32 s{sTMP+1}, s{sTMP+1}, 4')
            A(f's_add_u32 s{sTMP+4}, s{sTMP+4}, s{sTMP+1}')
            A(f's_mul_i32 s{sTMP+4}, s{sTMP+4}, 1152')
            A(f's_add_u32 s{sTMP+4}, s{sTMP+4}, s{sTMP+5}')
            A(f's_add_u32 s{sTMP+3}, s{sTMP+3}, s{sA}')
            for n in range(8):
                A(f'buffer_load_dwordx4 {v(LD+4*n,4)}, v{vRL}, {WS}, s{sTMP+3} offen sc1')
                if n < 7: A(f's_add_u32 s{sTMP+3}, s{sTMP+3}, {4*WPB_M}')
            vo_b = vX0 if extra else vROb; vo_f = vX1 if extra else vROf
            A(f's_lshl_b32 s{sTMP+2}, s{sTMP+4}, 1')
            A(f's_add_u32 s{sTMP+2}, s{sTMP+2}, {OFF_BASE}')
            if which == 'C':
                self.srd_cached('x')
                A(f'buffer_load_dwordx2 {v(XX,2)}, v{vo_b}, {TS}, s{sTMP+4} offen')
                A(f'global_load_dwordx2 {v(BB,2)}, v{vB2x if extra else vB2r}, s[34:35]') if False else None
                A(f's_add_u32 s{sTMP}, s{sTMP+5}, 0')
                A(f'v_add_u32 v{BB+2}, s{sTMP+5}, v{vB2x if extra else vB2r}')
                A(f'global_load_dwordx2 {v(BB,2)}, v{BB+2}, s[34:35]')
            else:
                A(f'buffer_load_dwordx4 {v(XX,4)}, v{vo_f}, {WS}, s{sTMP+2} offen sc1')
            for n in range(8):
                A(f'v_mfma_f32_16x16x32_bf16 {v(AC,4)}, {v(vSEL,4)}, {v(LD+4*n,4)}, {v(AC,4) if n else 0}')
            if which == 'C':
                A(f's_mov_b32 s{sTMP}, 0xffff0000')
                for k, src in enumerate((XX, BB)):
                    t = LD + 4*k
                    A(f'v_lshlrev_b32 v{t}, 16, v{src}'); A(f'v_and_b32 v{t+1}, s{sTMP}, v{src}')
                    A(f'v_lshlrev_b32 v{t+2}, 16, v{src+1}'); A(f'v_and_b32 v{t+3}, s{sTMP}, v{src+1}')
                for r in range(4):
                    A(f'v_add_f32 v{LD+r}, v{LD+r}, v{LD+4+r}')
                    A(f'v_add_f32 v{AC+r}, v{AC+r}, v{LD+r}')
                A(f's_mov_b64 exec, s[{LO32}:{LO32+1}]')
                A(f'buffer_store_dwordx4 {v(AC,4)}, v{vo_f}, {WS}, s{sTMP+2} offen')
                A(f's_mov_b64 exec, -1')
            else:
                for r in range(4): A(f'v_add_f32 v{AC+r}, v{AC+r}, v{XX+r}')
                A(f'v_cvt_pk_bf16_f32 v{AC}, v{AC}, v{AC+1}')
                A(f'v_cvt_pk_bf16_f32 v{AC+1}, v{AC+2}, v{AC+3}')
                A(f's_mov_b64 exec, s[{LO32}:{LO32+1}]')
                A(f'buffer_store_dwordx2 {v(AC,2)}, v{vo_b}, {TS}, s{sTMP+4} offen')
                A(f's_mov_b64 exec, -1')
        task(False)
        lab = A.newlabel('rx')
        A(f's_cmp_eq_u32 s{sW}, 3'); A(f's_cbranch_scc0 {lab}')
        A(f's_cmp_lt_u32 s{sM}, 16'); A(f's_cbranch_scc0 {lab}')
        task(True)
        A.wait(vm=0, lgkm=0)
        A.label(lab)
    def srd_cached(self, which): pass
    def passC(self):
        A = self.A; opt = self.opt
        self.vT = 2
        C = {'wL16': 3, 'wDW1': 4, 'wD16': 5, 'wT1a': 6, 'wT1b': 7, 'wT1c': 8, 'wDO': 9, 'wTO0': 10, 'wTO1': 11,
             'wHW': 12, 'wHW8': 13, 'wRL': 14, 'wROb': 15, 'wROf': 16, 'wPS8': 17, 'wB1': 18, 'wYR': 19, 'wYR2': 20,
             'wX0': 21, 'wX1': 22, 'wL8': 23, 'wSEL0': 24, 'wSEL1': 25, 'wSEL2': 26, 'wSEL3': 27}
        self.consts(C)
        A('v_lshrrev_b32 v28, 8, v3'); A('v_and_b32 v28, 1, v28')
        A('v_lshlrev_b32 v29, 3, v28'); A('v_lshlrev_b32 v28, 5, v28')
        def w1(ti, kp, off=0, cnt=4):
            n = (ti*18 + kp)*4 + off
            return f'a[{n}:{n+cnt-1}]'
        f4 = [('a', 216 + 4*k) for k in range(10)] + [('v', 134 + 4*k) for k in range(26)]
        f2 = [('v', 238 + 2*k) for k in range(9)]
        def fr2(q, ko, off=0, cnt=4):
            if ko < 4: kd, n = f4[q*4 + ko]
            else: kd, n = f2[q]
            n += off
            return f'{kd}[{n}:{n+cnt-1}]'
        self.srd(64, D*9216)
        A(f's_mul_i32 s{sA}, s{sM}, 288')
        A(f's_mul_i32 s{sTMP}, s{sW}, {4*9216}')
        A(f's_add_u32 s{sB}, s{sA}, s{sTMP}')
        A(f's_mul_i32 s{sTMP}, s{sW}, {5*32*9216}')
        A(f's_add_u32 s{sC}, s{sA}, s{sTMP}')
        A(f's_add_u32 s{sC}, s{sC}, 256')
        A(f's_lshl_b32 s42, s{sW}, 10')
        A(f's_mul_i32 s45, s{sW}, 5120')
        blocks = []
        for b in range(9):
            dm = [(4, sB, (64*b + 16*y)*9216, y*4096) for y in range(4)]
            rd = [(w1(tau, 2*b+kk, 2*rr, 2), 6+tau, kk*8192 + rr*1024) for kk in range(2) for tau in range(2) for rr in range(2)]
            blocks.append(dict(dmas=dm, reads=rd))
        dm = [(5, sC, y*32*9216, y*1024, 45) for y in range(5)]
        rd = [(w1(2, kp, 2*rr, 2), 8, kp*1024 + rr*128) for kp in range(18) for rr in range(2)]
        blocks.append(dict(dmas=dm, reads=rd, slots=2))
        self.ring(blocks)
        self.srd(80, F*1152)
        A(f's_mul_i32 s{sA}, s{sM}, 144')
        A(f's_lshl_b32 s{sTMP}, s{sW}, 2')
        A(f's_add_u32 s{sA}, s{sA}, s{sTMP}')
        A(f's_mul_i32 s{sB}, s{sA}, 1152')
        self.ring(self.gemm2_blocks(fr2, 2, True, 9, 10, sB, 42, None))
        A(f's_load_dwordx2 s[{sP0}:{sP0+1}], s[0:1], 72')
        A(f's_load_dwordx2 s[34:35], s[0:1], 88')
        A.wait(lgkm=0)
        A(f's_mul_i32 s{sTMP}, s{sM}, 288')
        A(f's_lshl_b32 s{sTMP+1}, s{sW}, 6')
        A(f's_add_u32 s{sTMP+1}, s{sTMP+1}, s{sTMP}')
        A(f'v_add_u32 v60, s{sTMP+1}, v18')
        A(f'global_load_dwordx2 v[44:45], v60, s[{sP0}:{sP0+1}]')
        A(f'global_load_dwordx2 v[46:47], v60, s[{sP0}:{sP0+1}] offset:32')
        A(f's_add_u32 s{sTMP}, s{sTMP}, 256')
        A(f'v_add_u32 v60, s{sTMP}, v18')
        A(f'global_load_dwordx2 v[48:49], v60, s[{sP0}:{sP0+1}]')
        A(f's_mov_b32 s{sTMP}, 0xffff0000')
        BI = 30
        for ti in range(3):
            for hf in range(2):
                A(f'v_lshlrev_b32 v{BI+4*ti+2*hf}, 16, v{44+2*ti+hf}')
                A(f'v_and_b32 v{BI+4*ti+2*hf+1}, s{sTMP}, v{44+2*ti+hf}')
        self.srd(0, S*D*2)
        A(f's_mov_b32 s{LO32}, -1'); A(f's_mov_b32 s{LO32+1}, 0')
        A(f's_mov_b32 s{sK}, 0')
        A(f's_mov_b32 s{sSEG}, s{sG}')
        A(f's_mov_b32 s{sB}, {W_XT0}')
        self.seg_dma(OFF_YF, sSEG, sB, 3)
        L = A.newlabel('pc_loop'); nonext = A.newlabel('pc_nn')
        A.label(L)
        A(f'v_add_u32 v42, s{sB}, v19')
        A(f'v_add_u32 v43, s{sB}, v20')
        A.wait(vm=0)
        A('s_barrier')
        A(f's_add_u32 s{sD_}, s{sK}, 1')
        A(f's_cmp_lt_u32 s{sD_}, s{sN}')
        A(f's_cbranch_scc0 {nonext}')
        A(f's_add_u32 s{sD_}, s{sSEG}, 7')
        A(f's_xor_b32 s{sTMP+2}, s{sB}, {W_XT0 ^ W_XT1}')
        self.seg_dma(OFF_YF, sD_, sTMP+2, 3)
        A.label(nonext)
        AC1 = 44; YB = [64, 76, 88]
        def yread(kp):
            b = YB[kp % 3]
            return [f'ds_read_b128 {v(b,4)}, v42 offset:{kp*2048}', f'ds_read_b128 {v(b+4,4)}, v42 offset:{kp*2048+256}',
                    f'ds_read_b128 {v(b+8,4)}, v43 offset:{kp*2048}']
        for kp in range(2):
            for x in yread(kp): A(x)
        for kp in range(18):
            if kp + 2 < 18:
                for x in yread(kp+2): A(x)
            b = YB[kp % 3]
            for idx, (ti, yo) in enumerate([(0, 0), (0, 4), (1, 0), (1, 4), (2, 8)]):
                d = v(AC1+4*idx, 4)
                A(f'v_mfma_f32_16x16x32_bf16 {d}, {w1(ti,kp)}, {v(b+yo,4)}, {d if kp else 0}')
        c1 = -2.0*math.sqrt(2.0/math.pi)*math.log2(math.e); c2 = c1*0.044715
        A(f's_mov_b32 s{sTMP}, {fb(c1):#x}'); A(f's_mov_b32 s{sTMP+1}, {fb(c2):#x}')
        A(f'v_mov_b32 v100, s{sTMP}')
        for idx, ti in enumerate([0, 0, 1, 1, 2]):
            for r in range(4):
                x = AC1 + 4*idx + r; t = 64 + 4*idx + r
                A(f'v_add_f32 v{x}, v{x}, v{BI+4*ti+r}')
                A(f'v_mul_f32 v{t}, v{x}, v{x}')
                A(f'v_fma_f32 v{t}, v{t}, s{sTMP+1}, v100')
                A(f'v_mul_f32 v{t}, v{t}, v{x}')
            for r in range(4):
                t = 64 + 4*idx + r
                A(f'v_exp_f32 v{t}, v{t}')
            for r in range(4):
                t = 64 + 4*idx + r
                A(f'v_add_f32 v{t}, 1.0, v{t}')
            for r in range(4):
                t = 64 + 4*idx + r
                A(f'v_rcp_f32 v{t}, v{t}')
            for r in range(4):
                x = AC1 + 4*idx + r; t = 64 + 4*idx + r
                A(f'v_mul_f32 v{x}, v{x}, v{t}')
        for tt in range(2):
            p = 88 + 4*tt
            for t2 in range(2):
                r0 = AC1 + 4*(2*t2 + tt)
                A(f'v_cvt_pk_bf16_f32 v{p+2*t2}, v{r0}, v{r0+1}')
                A(f'v_cvt_pk_bf16_f32 v{p+2*t2+1}, v{r0+2}, v{r0+3}')
            A(f'ds_write_b128 v12, {v(p,4)} offset:{tt*4096}')
        A(f'v_cvt_pk_bf16_f32 v96, v{AC1+16}, v{AC1+17}')
        A(f'v_cvt_pk_bf16_f32 v97, v{AC1+18}, v{AC1+19}')
        A(f'ds_write_b64 v13, v[96:97]')
        A.wait(lgkm=0)
        A('s_barrier')
        A(f's_mul_i32 s{sA}, s{sG}, {WPB_GRP}')
        A(f's_and_b32 s{sTMP}, s{sK}, 1')
        A(f's_mul_i32 s{sTMP}, s{sTMP}, {WPB_SLOT}')
        A(f's_add_u32 s{sA}, s{sA}, s{sTMP}')
        A(f's_add_u32 s{sA}, s{sA}, {OFF_WPB}')
        A(f's_mul_i32 s{sC}, s{sM}, {WPB_M}')
        A(f's_mul_i32 s{sTMP}, s{sW}, 9216')
        A(f's_add_u32 s{sC}, s{sC}, s{sTMP}')
        A(f's_add_u32 s{sC}, s{sC}, s{sA}')
        self.gemm2(fr2, True, 44, 84, 104, 3, 23, 17, sC)
        self.reduce('C', 44, 14, 24, 15, 16, 21, 22, 28, 29)
        A(f's_xor_b32 s{sB}, s{sB}, {W_XT0 ^ W_XT1}')
        A(f's_add_u32 s{sSEG}, s{sSEG}, 7')
        A(f's_add_u32 s{sK}, s{sK}, 1')
        A(f's_cmp_lt_u32 s{sK}, s{sN}')
        A(f's_cbranch_scc1 {L}')
        A.wait(vm=0, lgkm=0)
        A('s_barrier')

    def passD(self):
        A = self.A; opt = self.opt
        self.vT = 2
        C = {'wL16': 3, 'wDA': 4, 'wTQ': 5, 'wDO': 9, 'wTO0': 10, 'wTO1': 11, 'wQW': 12, 'wOW': 13, 'wRL': 14, 'wROb': 15,
             'wROf': 16, 'wPS8': 17, 'wKW': 18, 'wKR': 19, 'wX0': 21, 'wX1': 22, 'wL8': 23,
             'wSEL0': 24, 'wSEL1': 25, 'wSEL2': 26, 'wSEL3': 27}
        for k in range(8): C[f'wM{k}'] = 28 + k
        self.consts(C)
        def wq(kp, off=0, cnt=4):
            n = kp*4 + off
            return f'a[{n}:{n+cnt-1}]'
        f4 = [('a', 144 + 4*k) for k in range(28)] + [('v', 224 + 4*k) for k in range(8)]
        def fr2(q, ko, off=0, cnt=4):
            kd, n = f4[q*4 + ko]; n += off
            return f'{kd}[{n}:{n+cnt-1}]'
        self.srd(16, D*8192)
        A(f's_lshl_b32 s{sA}, s{sM}, 8')
        A(f's_mul_i32 s{sTMP}, s{sW}, {16*8192}')
        A(f's_add_u32 s{sA}, s{sA}, s{sTMP}')
        A(f's_lshl_b32 s45, s{sW}, 12')
        A(f's_lshl_b32 s42, s{sW}, 10')
        blocks = []
        for b in range(9):
            dm = [(4, sA, (64*b + 4*y)*8192, y*1024, 45) for y in range(4)]
            rd = [(wq(4*b+kk, 2*rr, 2), 5, kk*4096 + rr*1024) for kk in range(4) for rr in range(2)]
            blocks.append(dict(dmas=dm, reads=rd))
        self.ring(blocks)
        self.srd(40, 4096*1152)
        A(f's_lshl_b32 s{sA}, s{sM}, 7')
        A(f's_lshl_b32 s{sTMP}, s{sW}, 2')
        A(f's_add_u32 s{sA}, s{sA}, s{sTMP}')
        A(f's_mul_i32 s{sB}, s{sA}, 1152')
        self.ring(self.gemm2_blocks(fr2, 2, False, 9, 10, sB, 42, None))
        self.srd(96, S*D*2)
        A(f's_mov_b32 s{LO32}, -1'); A(f's_mov_b32 s{LO32+1}, 0')
        c = DH**-0.5*math.log2(math.e)
        A(f's_mov_b32 s{sCv}, {fb(c):#x}'); A(f's_mov_b32 s{sCv+1}, {fb(c):#x}')
        A(f's_and_b32 s{sTMP}, s{sW}, 1'); A(f's_lshl_b32 s{sTMP}, s{sTMP}, 10')
        A(f'v_add_u32 v36, s{sTMP}, v3')
        sFL = 48; sKV = 49; sKM = 50
        A(f's_lshl_b32 s{sFL}, s{sM}, 2'); A(f's_add_u32 s{sFL}, s{sFL}, {FL_CH}')
        A(f's_mov_b32 s{sK}, 0')
        A(f's_mov_b32 s{sSEG}, s{sG}')
        A(f's_mov_b32 s{sB}, {W_XT0}')
        self.seg_dma(OFF_XNF, sSEG, sB, 3)
        L = A.newlabel('pd_loop'); nonext = A.newlabel('pd_nn')
        A.label(L)
        A(f'v_add_u32 v8, s{sB}, v3')
        A.wait(vm=0)
        A('s_barrier')
        A(f's_add_u32 s{sD_}, s{sK}, 1')
        A(f's_cmp_lt_u32 s{sD_}, s{sN}')
        A(f's_cbranch_scc0 {nonext}')
        A(f's_add_u32 s{sD_}, s{sSEG}, 7')
        A(f's_xor_b32 s{sTMP+2}, s{sB}, {W_XT0 ^ W_XT1}')
        self.seg_dma(OFF_XNF, sD_, sTMP+2, 3)
        A.label(nonext)
        KX = 128; VX = 160
        A(f's_lshl_b32 s{sKV}, s{sSEG}, 5'); A(f's_add_u32 s{sKV}, s{sKV}, s{sM}')
        A(f's_lshl_b32 s{sKM}, s{sKV}, 11')
        A(f's_lshl_b32 s{sKV}, s{sKV}, 13')
        A(f's_add_u32 s{sTMP}, s{sKV}, {OFF_KXF}')
        for f in range(8):
            if f == 4: A(f's_add_u32 s{sTMP}, s{sTMP}, 4096')
            A(f'buffer_load_dwordx4 {v(KX+4*f,4)}, v3, {WS}, s{sTMP} offen offset:{(f%4)*1024} sc1')
        A(f's_lshr_b32 s{sTMP+1}, s{sW}, 1'); A(f's_lshl_b32 s{sTMP+1}, s{sTMP+1}, 12')
        A(f's_add_u32 s{sTMP}, s{sKV}, s{sTMP+1}'); A(f's_add_u32 s{sTMP}, s{sTMP}, {OFF_VXF}')
        for f in range(4):
            A(f'buffer_load_dwordx4 {v(VX+4*f,4)}, v3, {WS}, s{sTMP} offen offset:{f*1024} sc1')
        ACC = 64; XB = [96, 100, 104, 108]
        for kp in range(3): A(f'ds_read_b128 {v(XB[kp],4)}, v8 offset:{kp*1024}')
        for kp in range(36):
            if kp + 3 < 36: A(f'ds_read_b128 {v(XB[(kp+3)%4],4)}, v8 offset:{(kp+3)*1024}')
            A(f'v_mfma_f32_32x32x16_bf16 {v(ACC,16)}, {wq(kp)}, {v(XB[kp%4],4)}, {v(ACC,16) if kp else 0}')
        for u in range(2):
            p = 112 + 4*u
            for k in range(4): A(f'v_cvt_pk_bf16_f32 v{p+k}, v{ACC+8*u+2*k}, v{ACC+8*u+2*k+1}')
            A(f'ds_write_b128 v12, {v(p,4)} offset:{u*512}')
        A(f's_add_u32 s{sD_}, s{sSEG}, 1')
        if not opt.get('nochain'): self.ws_wait(sFL, sD_, sleep=1)
        KM2 = 120; VM = 176
        A(f's_lshl_b32 s{sTMP+1}, s{sW}, 9')
        A(f's_add_u32 s{sTMP}, s{sKM}, s{sTMP+1}'); A(f's_add_u32 s{sTMP}, s{sTMP}, {OFF_KMF}')
        A(f'buffer_load_dwordx2 {v(KM2,2)}, v23, {WS}, s{sTMP} offen sc1')
        A(f's_lshr_b32 s{sTMP+1}, s{sW}, 1'); A(f's_lshl_b32 s{sTMP+1}, s{sTMP+1}, 10')
        A(f's_add_u32 s{sTMP}, s{sKM}, s{sTMP+1}'); A(f's_add_u32 s{sTMP}, s{sTMP}, {OFF_VMF}')
        A(f'buffer_load_dwordx2 {v(VM,2)}, v23, {WS}, s{sTMP} offen sc1')
        A(f'buffer_load_dwordx2 {v(VM+2,2)}, v23, {WS}, s{sTMP} offen offset:512 sc1')
        A(f'ds_write2_b32 v18, v{KM2}, v{KM2} offset0:0 offset1:1')
        A(f'ds_write2_b32 v18, v{KM2+1}, v{KM2+1} offset0:128 offset1:129')
        A.wait(lgkm=0)
        A('s_barrier')
        QF = 64; KMF_ = 80; S0, S1, SM = 96, 100, 104
        for k4 in range(4):
            A(f'ds_read_b128 {v(QF+4*k4,4)}, v36 offset:{W_QEX + k4*2048}')
            A(f'ds_read_b64_tr_b16 {v(KMF_+4*k4,2)}, v19 offset:{k4*1024}')
            A(f'ds_read_b64_tr_b16 {v(KMF_+4*k4+2,2)}, v19 offset:{k4*1024+256}')
        for k4 in range(4):
            c_ = lambda d: (v(d, 4) if k4 else '0')
            A(f'v_mfma_f32_16x16x32_bf16 {v(S0,4)}, {v(KX+8*k4,4)}, {v(QF+4*k4,4)}, {c_(S0)}')
            A(f'v_mfma_f32_16x16x32_bf16 {v(S1,4)}, {v(KX+8*k4+4,4)}, {v(QF+4*k4,4)}, {c_(S1)}')
            A(f'v_mfma_f32_16x16x32_bf16 {v(SM,4)}, {v(KMF_+4*k4,4)}, {v(QF+4*k4,4)}, {c_(SM)}')
        ONES = 108; PM = 112; PX = 116; MX = 61; TT = 62
        for k in range(4): A(f'v_mov_b32 v{ONES+k}, 0x3f803f80')
        A(f'v_mov_b32 v{PM+1}, 0'); A(f'v_mov_b32 v{PM+2}, 0')
        for r in range(4):
            A(f'v_add_f32 v{S0+r}, v{S0+r}, v{28+r}')
            A(f'v_add_f32 v{S1+r}, v{S1+r}, v{32+r}')
        A(f'v_max3_f32 v{MX}, v{S0}, v{S0+1}, v{S0+2}')
        A(f'v_max3_f32 v{TT}, v{S1}, v{S1+1}, v{S1+2}')
        A(f'v_max3_f32 v{MX}, v{MX}, v{S0+3}, v{S1+3}')
        A(f'v_max_f32 v{MX}, v{MX}, v{TT}')
        A(f'v_max3_f32 v{MX}, v{MX}, v{SM}, v{SM+1}')
        for sw in ('16', '32'):
            A(f'v_mov_b32 v{TT}, v{MX}')
            A(f'v_permlane{sw}_swap_b32 v{MX}, v{TT}')
            A(f'v_max_f32 v{MX}, v{MX}, v{TT}')
        A(f'v_mul_f32 v{TT}, s{sCv}, v{MX}')
        for r in (S0, S0+2, S1, S1+2, SM):
            A(f'v_pk_fma_f32 {v(r,2)}, {v(r,2)}, s[{sCv}:{sCv+1}], {v(TT,2)} op_sel_hi:[1,1,0] neg_lo:[0,0,1] neg_hi:[0,0,1]')
        for r in (S0, S0+1, S0+2, S0+3, S1, S1+1, S1+2, S1+3, SM, SM+1): A(f'v_exp_f32 v{r}, v{r}')
        cvt = lambda d, x, y: f'v_cvt_pk_bf16_f32 v{d}, v{x}, v{y}'
        A(cvt(PX, S0, S0+1)); A(cvt(PX+1, S0+2, S0+3)); A(cvt(PX+2, S1, S1+1)); A(cvt(PX+3, S1+2, S1+3))
        A(cvt(PM, SM, SM+1)); A(cvt(PM+3, SM, SM+1))
        O = 64; LL = 80
        A(f'v_mfma_f32_16x16x32_bf16 {v(LL,4)}, {v(ONES,4)}, {v(PX,4)}, 0')
        for e in range(4): A(f'v_mfma_f32_16x16x32_bf16 {v(O+4*e,4)}, {v(VX+4*e,4)}, {v(PX,4)}, 0')
        A(f'v_mfma_f32_16x16x16_bf16 {v(LL,4)}, {v(ONES,2)}, {v(PM,2)}, {v(LL,4)}')
        for e in range(4):
            A(f'v_mfma_f32_16x16x16_bf16 {v(O+4*e,4)}, {v(VM+2*(e>>1),2)}, {v(PM+2*(e&1),2)}, {v(O+4*e,4)}')
        A(f's_nop 7')
        A(f'v_rcp_f32 v{MX}, v{LL}')
        for r in range(16): A(f'v_mul_f32 v{O+r}, v{MX}, v{O+r}')
        for ko in range(2):
            p = 84 + 4*ko
            for t2 in range(2):
                r0 = O + 4*(2*ko + t2)
                A(cvt(p+2*t2, r0, r0+1)); A(cvt(p+2*t2+1, r0+2, r0+3))
            A(f'ds_write_b128 v13, {v(p,4)} offset:{ko*1024}')
        A.wait(lgkm=0)
        A('s_barrier')
        A(f's_mul_i32 s{sA}, s{sG}, {WPB_GRP}')
        A(f's_and_b32 s{sTMP}, s{sK}, 1')
        A(f's_mul_i32 s{sTMP}, s{sTMP}, {WPB_SLOT}')
        A(f's_add_u32 s{sA}, s{sA}, s{sTMP}')
        A(f's_add_u32 s{sA}, s{sA}, {OFF_WPB}')
        A(f's_mul_i32 s{sC}, s{sM}, {WPB_M}')
        A(f's_mul_i32 s{sTMP}, s{sW}, 9216')
        A(f's_add_u32 s{sC}, s{sC}, s{sTMP}')
        A(f's_add_u32 s{sC}, s{sC}, s{sA}')
        self.gemm2(fr2, False, 64, 100, 120, 3, 23, 17, sC)
        self.reduce('D', 64, 14, 24, 15, 16, 21, 22, None, None)
        A(f's_xor_b32 s{sB}, s{sB}, {W_XT0 ^ W_XT1}')
        A(f's_add_u32 s{sSEG}, s{sSEG}, 7')
        A(f's_add_u32 s{sK}, s{sK}, 1')
        A(f's_cmp_lt_u32 s{sK}, s{sN}')
        A(f's_cbranch_scc1 {L}')
```

```python
import sys, struct
from asmlib import *
from layout import *
import chain as CH
import worker as WK

NAME = 'parallel_sum__memory_aug_recurrent_mem_tr__mixer_channel_mlp__prompt'
KN = NAME + '_kernel'

def table_text():
    out = ['.section .rodata,"a"', '.p2align 8', 'chain_tab:']
    for tid in range(256):
        c = chain_consts(tid >> 6, tid & 63)
        vals = [c[n] for n in CH_CONSTS] + [0]*(32-len(CH_CONSTS))
        out.append('.long ' + ','.join(str(x) for x in vals))
    out += ['.p2align 8', 'worker_tab:']
    for tid in range(256):
        c = worker_consts(tid >> 6, tid & 63)
        vals = [c[n] for n in WK_CONSTS] + [0]*(48-len(WK_CONSTS))
        out.append('.long ' + ','.join(str(x) for x in vals))
    return '\n'.join(out) + '\n'

def build(opt):
    A = Asm()
    hdr = open('cdna_kernels/' + NAME + '.s.ref').read().split('; Override')[0]
    head = hdr + '; @launch grid=(256,1,1) block=(256,1,1) lds=163840\n'
    head += '.amdgcn_target "amdgcn-amd-amdhsa--gfx950"\n.text\n.globl %s\n.p2align 8\n.type %s,@function\n%s:\n' % (KN, KN, KN)
    A('s_cmp_ge_u32 s2, 256')
    A('s_cbranch_scc1 k_end')
    A('s_load_dwordx2 s[14:15], s[0:1], 104')
    A('s_load_dwordx2 s[12:13], s[0:1], 112')
    A('s_getreg_b32 s3, hwreg(HW_REG_XCC_ID, 0, 4)')
    A('s_getpc_b64 s[28:29]')
    A.raw('  s_add_u32 s28, s28, chain_tab@rel32@lo+4')
    A.raw('  s_addc_u32 s29, s29, chain_tab@rel32@hi+12')
    A('v_lshrrev_b32 v1, 6, v0')
    A.wait(lgkm=0)
    A(f'v_readfirstlane_b32 s{CH.sW}, v1')
    A(f's_mov_b32 s{CH.sWS}, s12')
    A(f's_and_b32 s{CH.sWS+1}, s13, 0xffff')
    A(f's_mov_b32 s{CH.sWS+2}, 0x10000000')
    A(f's_mov_b32 s{CH.sWS+3}, 0x20000')
    A('s_lshl_b32 s16, s3, 2')
    A('v_mov_b32 v2, s16')
    A('v_mov_b32 v3, 1')
    A(f's_cmp_eq_u32 s{CH.sW}, 0')
    A('s_cbranch_scc0 k_noticket')
    A('s_mov_b64 exec, 1')
    A('global_atomic_add v4, v2, v3, s[14:15] sc0')
    A('v_mov_b32 v5, 0x27f00')
    A.wait(vm=0)
    A('ds_write_b32 v5, v4')
    A('s_mov_b64 exec, -1')
    A.wait(lgkm=0)
    A.label('k_noticket')
    A('s_barrier')
    A('v_mov_b32 v5, 0x27f00')
    A('ds_read_b32 v4, v5')
    A.wait(lgkm=0)
    A(f'v_readfirstlane_b32 s{CH.sH}, v4')
    A('s_barrier')
    if opt.get('chain_only'):
        A('s_cmp_eq_u32 s3, 0')
        A('s_cbranch_scc0 k_end')
        A(f's_cmp_ge_u32 s{CH.sH}, 32')
        A('s_cbranch_scc1 k_end')
    else:
        A(f's_cmp_ge_u32 s{CH.sH}, 32')
        A('s_cbranch_scc1 k_end')
        A('s_cmp_eq_u32 s3, 0')
        A('s_cbranch_scc0 k_worker')
    ch = CH.Chain(A, opt)
    if opt.get('nochain'):
        ch.init(short=True)
    else:
        ch.init()
        ch.loop(False, 'f')
    A.wait(vm=0, lgkm=0)
    if opt.get('ts') or opt.get('tt'):
        A.raw('  s_memtime s[86:87]')
        A('s_waitcnt lgkmcnt(0)')
        A(f's_sub_u32 s{CH.sTS+19}, s86, s84')
        A(f's_lshl_b32 s27, s{CH.sH}, 2')
        A(f's_add_u32 s27, s27, s{CH.sW}')
        A(f's_lshl_b32 s27, s27, 7')
        A(f's_add_u32 s27, s27, {OFF_FLAG+0x8000}')
        A(f's_mov_b32 s{CH.sTS+18}, s{CH.sDEAD}')
        A('s_mov_b64 exec, 1')
        A('v_mov_b32 v2, 0')
        for k in range(20):
            A(f'v_mov_b32 v3, s{CH.sTS+k}')
            A(f'buffer_store_dword v3, v2, s[{CH.sWS}:{CH.sWS+3}], s27 offen offset:{4*k}')
        for k in range(8):
            A(f'v_mov_b32 v3, s{88+k}')
            A(f'buffer_store_dword v3, v2, s[{CH.sWS}:{CH.sWS+3}], s27 offen offset:{4*(20+k)}')
        A.wait(vm=0)
    if not opt.get('chain_only'):
        A('s_branch k_end')
        A.label('k_worker')
        A(f's_sub_u32 s{WK.sG}, s3, 1')
        A(f's_cmp_eq_u32 s{WK.sG}, 0')
        A(f's_cselect_b32 s{WK.sN}, 10, 9')
        A(f's_mov_b32 s{WK.sSLOW}, 0')
        A(f's_mov_b32 s{WK.sDEAD}, 0')
        A('s_getpc_b64 s[30:31]')
        A.raw('  s_add_u32 s30, s30, worker_tab@rel32@lo+4')
        A.raw('  s_addc_u32 s31, s31, worker_tab@rel32@hi+12')
        wk = WK.Worker(A, opt)
        wk.layernorm()
        if opt.get('passes', 15) & 1: wk.passA()
        if opt.get('passes', 15) & 2: wk.passC()
        if opt.get('passes', 15) & 4: wk.passD()
        A.wait(vm=0, lgkm=0)
    A.label('k_end')
    A('s_endpgm')
    tail = f'''
.section .rodata,"a"
.p2align 6
.amdhsa_kernel {KN}
  .amdhsa_next_free_vgpr 512
  .amdhsa_next_free_sgpr 102
  .amdhsa_accum_offset 256
  .amdhsa_group_segment_fixed_size 0
  .amdhsa_kernarg_size 120
  .amdhsa_user_sgpr_count 2
  .amdhsa_user_sgpr_kernarg_segment_ptr 1
  .amdhsa_system_sgpr_workgroup_id_x 1
.end_amdhsa_kernel
'''
    print('nops', A.nops, 'auto waits', A.nwaits, 'lines', len(A.out), file=sys.stderr)
    return head + A.text() + tail + table_text()

if __name__ == '__main__':
    opt = {}
    for a_ in sys.argv[2:]:
        k, _, val = a_.partition('=')
        opt[k] = int(val) if val else 1
    open(sys.argv[1], 'w').write(build(opt))
```

```python
import re

def _parse_regs(tok):
    tok = tok.strip()
    m = re.fullmatch(r'([vas])\[(\d+):(\d+)\]', tok)
    if m:
        return [(m.group(1), i) for i in range(int(m.group(2)), int(m.group(3)) + 1)]
    m = re.fullmatch(r'([vas])(\d+)', tok)
    if m:
        return [(m.group(1), int(m.group(2)))]
    if tok == 'vcc': return [('s', 'vcc')]
    if tok in ('exec', 'exec_lo', 'exec_hi'): return [('s', 'exec')]
    if tok == 'm0': return [('s', 'm0')]
    return []

def split_ops(s):
    out = []; depth = 0; cur = ''
    for ch in s:
        if ch == '[': depth += 1
        if ch == ']': depth -= 1
        if ch == ',' and depth == 0:
            out.append(cur); cur = ''
        else:
            cur += ch
    if cur.strip(): out.append(cur)
    return [o.strip() for o in out]

class I:
    def __init__(self, text):
        self.text = text
        t = text.split(';')[0].strip()
        parts = t.split(None, 1)
        self.op = parts[0]
        rest = parts[1] if len(parts) > 1 else ''
        ops = split_ops(rest)
        clean = []
        for o in ops:
            clean.append(o.split()[0] if o.split() else o)
        self.ops = clean
        self.mods = rest
        op = self.op
        R = lambda k: _parse_regs(clean[k]) if k < len(clean) else []
        self.rd = []; self.wr = []
        self.kind = 'other'
        if op.startswith('v_smfmac'):
            self.kind = 'mfma'; self.wr = R(0); self.rd = R(0) + R(1) + R(2) + R(3)
            self.srcC = R(0); self.srcAB = R(1) + R(2) + R(3)
            self.passes = 4 if '16x16' in op else 8
        elif op.startswith('v_mfma'):
            self.kind = 'mfma'; self.wr = R(0); self.rd = R(1) + R(2) + R(3)
            self.srcC = R(3); self.srcAB = R(1) + R(2)
            self.passes = 4 if '16x16' in op else 8
        elif op.startswith('ds_read') :
            self.kind = 'dsr'; self.wr = R(0); self.rd = R(1)
        elif op.startswith('ds_write') or op.startswith('ds_add'):
            self.kind = 'dsw'; self.rd = sum((R(k) for k in range(len(clean))), [])
        elif op.startswith('buffer_load'):
            if ' lds' in (' ' + rest):
                self.kind = 'vmemlds'; self.rd = R(0) + R(1) + R(2) + [('s', 'm0')]
            else:
                self.kind = 'vmemld'; self.wr = R(0); self.rd = R(1) + R(2) + R(3)
        elif op.startswith('buffer_store'):
            self.kind = 'vmemst'; self.rd = R(0) + R(1) + R(2) + R(3)
            self.wide = ('x4' in op or 'x3' in op)
            self.data = R(0)
        elif op.startswith('buffer_atomic') or op.startswith('global_atomic'):
            self.kind = 'vmemld' if 'sc0' in rest else 'vmemst'
            if self.kind == 'vmemld':
                self.wr = R(0); self.rd = sum((R(k) for k in range(1 if op.startswith('global') else 0, len(clean))), [])
            else:
                self.rd = sum((R(k) for k in range(len(clean))), []); self.wide = False; self.data = []
        elif op.startswith('global_load'):
            self.kind = 'vmemld'; self.wr = R(0); self.rd = R(1) + R(2)
        elif op.startswith('global_store'):
            self.kind = 'vmemst'; self.rd = R(0) + R(1) + R(2); self.wide = ('x4' in op or 'x3' in op); self.data = R(1)
        elif op.startswith('buffer_wbl2') or op.startswith('buffer_inv'):
            self.kind = 'vmemst'; self.wide = False; self.data = []
        elif op.startswith('s_load') or op in ('s_memtime', 's_memrealtime'):
            self.kind = 'smem'; self.wr = R(0); self.rd = R(1)
        elif op.startswith('v_cmp'):
            self.kind = 'valu'; self.wr = R(0); self.rd = R(1) + R(2)
            if op.startswith('v_cmpx'): self.wr += [('s', 'exec')]
        elif op.startswith('v_permlane'):
            self.kind = 'valu'; self.perm = True; self.wr = R(0) + R(1); self.rd = R(0) + R(1)
        elif op.startswith('v_readfirstlane') or op.startswith('v_readlane'):
            self.kind = 'valu'; self.rfl = True; self.wr = R(0); self.rd = R(1) + R(2)
        elif op.startswith('v_'):
            self.kind = 'valu'; self.wr = R(0)
            self.rd = sum((R(k) for k in range(1, len(clean))), [])
            if op.startswith('v_fmac') or op.startswith('v_pk_fmac') or op.startswith('v_writelane') or 'dpp' in op or 'row_' in rest or 'quad_perm' in rest:
                self.rd += R(0)
            if op.startswith('v_cndmask') and len(clean) == 3: self.rd += [('s', 'vcc')]
            if op.startswith('v_add_co') or op.startswith('v_addc_co') or op.startswith('v_sub_co'):
                self.wr += R(1)
            if op.startswith('v_div_fmas'): self.rd += [('s', 'vcc')]
            self.trans = any(op.startswith(x) for x in ('v_exp', 'v_log', 'v_rcp', 'v_rsq', 'v_sqrt', 'v_sin', 'v_cos'))
            self.dpp = ('dpp' in op or 'row_' in rest or 'quad_perm' in rest)
        elif op.startswith('s_'):
            self.kind = 'salu'
            if op in ('s_waitcnt', 's_nop', 's_barrier', 's_sleep', 's_setprio', 's_endpgm') or op.startswith('s_cbranch') or op == 's_branch':
                self.kind = 'ctl'
            elif op.startswith('s_cmp') or op.startswith('s_bitcmp'):
                self.rd = R(0) + R(1)
            else:
                self.wr = R(0); self.rd = sum((R(k) for k in range(1, len(clean))), [])
                if 'saveexec' in op: self.wr += [('s', 'exec')]; self.rd += [('s', 'exec')]
        for a in ('perm', 'rfl', 'trans', 'dpp', 'wide'):
            if not hasattr(self, a): setattr(self, a, False)

class Asm:
    def __init__(self, check=True):
        self.out = []
        self.hist = []
        self.lgk = []
        self.vm = []
        self.nops = 0
        self.nwaits = 0
        self.uid = 0
        self.smem_pending = False
    def label(self, name):
        self.out.append(name + ':')
        self.reset()
    def newlabel(self, base='L'):
        self.uid += 1
        return f'{base}_{self.uid}'
    def reset(self, assume_drained=True):
        self.hist = [None] * 0
        self.lgk = []; self.vm = []
        self.hist_unknown = True
    def comment(self, s):
        self.out.append('  ; ' + s)
    def raw(self, s):
        self.out.append(s)
    def wait(self, vm=None, lgkm=None):
        parts = []
        if vm is not None:
            parts.append(f'vmcnt({vm})')
            if vm < len(self.vm): self.vm = self.vm[len(self.vm) - vm:] if vm > 0 else []
        if lgkm is not None:
            parts.append(f'lgkmcnt({lgkm})')
            if lgkm < len(self.lgk): self.lgk = self.lgk[len(self.lgk) - lgkm:] if lgkm > 0 else []
            if lgkm == 0: self.smem_pending = False
        self._emit(I('s_waitcnt ' + ' '.join(parts)))
    def _emit(self, ins):
        self.out.append('  ' + ins.text)
        if getattr(self, 'cut', None) is not None:
            self.cutn += 1
            if self.cutn == self.cut:
                self.out.append('  s_waitcnt lgkmcnt(0)')
                self.out.append('  s_mov_b64 exec, -1')
                self.out.append('  s_branch ' + self.cutlab)
                self.cut = None
        n = 1
        if ins.op == 's_nop': n = int(ins.ops[0]) + 1
        for _ in range(n): self.hist.append(ins if _ == 0 else None)
        if len(self.hist) > 40: self.hist = self.hist[-40:]
    def _need_states(self, ins):
        need = 0
        rd = set(ins.rd); wr = set(ins.wr)
        H = self.hist
        for d in range(1, min(len(H), 24) + 1):
            p = H[-d]
            if p is None: continue
            gap = d - 1
            req = 0
            pw = set(p.wr)
            if p.kind == 'valu':
                vw = {r for r in pw if r[0] in 'va'}
                sw = {r for r in pw if r[0] == 's'}
                if ins.kind == 'mfma' and vw & rd: req = max(req, 2)
                if ins.kind == 'valu' and ins.perm and vw & rd: req = max(req, 2)
                if ins.kind == 'valu' and ins.dpp and vw & rd: req = max(req, 2)
                if ins.kind == 'valu' and ins.rfl and vw & rd: req = max(req, 1)
                if p.trans and ins.kind in ('valu', 'mfma', 'dsw', 'vmemst') and vw & rd: req = max(req, 1)
                if sw and ins.kind == 'valu' and (sw - {('s', 'exec')}) & rd: req = max(req, 2)
                if sw and ins.kind in ('vmemld', 'vmemst', 'vmemlds') and sw & rd: req = max(req, 5)
                if sw and ins.kind in ('salu', 'smem') and sw & rd: req = max(req, 4)
                if ('s', 'exec') in sw and ins.kind == 'mfma': req = max(req, 4)
                if ('s', 'exec') in sw and (ins.rfl or ins.perm): req = max(req, 4)
            if p.kind == 'mfma':
                np_ = p.passes
                tD = {4: 8, 8: 12, 16: 20}[np_]
                if ins.kind == 'mfma':
                    if pw & set(ins.srcAB): req = max(req, tD)
                    ov = pw & set(ins.srcC)
                    if ov:
                        same = (set(ins.srcC) == pw) and ins.passes == np_
                        if not same: req = max(req, {4: 6, 8: 10}[np_])
                    if (pw & wr) and not ov: req = max(req, tD)
                elif ins.kind in ('valu', 'dsw', 'vmemst', 'vmemld', 'dsr', 'vmemlds'):
                    if pw & (rd | wr): req = max(req, tD)
                if ins.kind == 'valu' and set(p.srcC) & wr: req = max(req, {4: 3, 8: 7}[np_])
            if p.kind == 'vmemst' and p.wide and ins.kind in ('valu', 'dsr', 'vmemld', 'mfma') and set(p.data) & wr: req = max(req, 2)
            if p.kind == 'salu' and ('s', 'm0') in pw and ins.kind == 'vmemlds': req = max(req, 1)
            if req > gap: need = max(need, req - gap)
        return need
    def __call__(self, text, nowait=False):
        for line in text.strip('\n').split('\n'):
            line = line.strip()
            if not line: continue
            if line.startswith(';'):
                self.out.append('  ' + line); continue
            if line.endswith(':'):
                self.label(line[:-1]); continue
            self.ins(line, nowait)
    def ins(self, text, nowait=False):
        ins = I(text)
        rw = set(ins.rd) | set(ins.wr)
        if not nowait:
            k = -1
            for idx, dst in enumerate(self.lgk):
                if dst & rw: k = idx
            if k >= 0:
                n = len(self.lgk) - 1 - k
                if self.smem_pending: n = 0
                self.wait(lgkm=min(n, 15)); self.nwaits += 1
            k = -1
            for idx, dst in enumerate(self.vm):
                if dst & rw: k = idx
            if k >= 0:
                n = len(self.vm) - 1 - k
                self.wait(vm=min(n, 63)); self.nwaits += 1
        need = self._need_states(ins)
        while need > 0:
            n = min(need, 16)
            self._emit(I(f's_nop {n-1}')); self.nops += n; need -= n
        self._emit(ins)
        if ins.kind == 'dsr': self.lgk.append(set(ins.wr))
        elif ins.kind == 'dsw': self.lgk.append(set())
        elif ins.kind == 'smem': self.lgk.append(set(ins.wr)); self.smem_pending = True
        elif ins.kind == 'vmemld': self.vm.append(set(ins.wr))
        elif ins.kind in ('vmemst', 'vmemlds'): self.vm.append(set())
        if ins.op in ('s_branch',) or ins.op.startswith('s_cbranch'):
            pass
    def text(self):
        return '\n'.join(self.out) + '\n'

def v(n, c=1):
    return f'v{n}' if c == 1 else f'v[{n}:{n+c-1}]'
def a(n, c=1):
    return f'a{n}' if c == 1 else f'a[{n}:{n+c-1}]'
def s(n, c=1):
    return f's{n}' if c == 1 else f's[{n}:{n+c-1}]'

def rt_stamp(A, opt, idx, sW, ws='s[4:7]', off=0):
    if not opt.get('rt'): return
    lab = A.newlabel('rt')
    A.raw(f'  s_cmp_eq_u32 s{sW}, 0')
    A.raw(f'  s_cbranch_scc0 {lab}')
    A.raw(f'  s_memrealtime s[96:97]')
    A.raw(f'  s_lshl_b32 s95, s2, 6')
    A.raw(f'  s_add_u32 s95, s95, {off + idx*4}')
    A.raw(f'  s_waitcnt lgkmcnt(0)')
    A.raw(f'  s_mov_b64 exec, 1')
    A.raw(f'  v_mov_b32 v62, s96')
    A.raw(f'  v_mov_b32 v63, 0')
    A.raw(f'  buffer_store_dword v62, v63, {ws}, s95 offen')
    A.raw(f'  s_mov_b64 exec, -1')
    A.raw(f'{lab}:')
```

```python
from asmlib import *
from layout import *
import math

vMS,vF0,vF1,vF2,vIDX,vQW,vKW,vQR,vKR,vOW,vRL,vRS = range(1,13)
T13,T14,T15 = 13,14,15
AB0,AB1 = 16,20
AQ0,AQ1,AK0,AK1,AV0,AV1 = 24,28,32,36,40,44
SB0,SB1,SB2 = 48,56,64
WV0 = 72
def frag_alloc():
    m = {}
    regs = [('v', WV0 + 8*k) for k in range((256-WV0)//8)] + [('a', 8*k) for k in range(32)]
    names = []
    for t in range(9):
        for tau in range(2): names.append(('Q',t,tau))
    for t in range(9):
        for tau in range(2): names.append(('V',t,tau))
    names.append(('K',8,1))
    for q in range(9):
        for tp in range(2): names.append(('O',tp,q))
    assert len(names) == len(regs) == 55, (len(names), len(regs))
    for n, r in zip(names, regs): m[n] = r
    return m
FR = frag_alloc()
LF = {}
for t in range(9):
    for tau in range(2):
        if (t, tau) != (8, 1): LF[('K',t,tau)] = 2*t+tau
def freg(name, off=0, cnt=8):
    k, n = FR[name]
    return f'{k}[{n+off}:{n+off+cnt-1}]'
def lf_addr(name, hh):
    f = LF[name]
    base = [vF0, vF1, vF2][f//8]
    return base, (f % 8)*8192 + hh*1024

sWS = 4
sT  = 8
sH, sW, sS = 16, 17, 18
sPBc, sPBn, sPBx = 21, 54, 55
sMBa, sMBb, sMBc = 22, 23, 24
sTASK = 25
sRSO  = 26
sTMP  = 27
sKX, sVX, sKM, sVM = 36, 37, 38, 39
sCv = 40
sMASK = 42
sDEAD = 44
sRL0 = 46
sPBr = 54
sFLAG = 55
sNEED = 56
sLO = 57
sPBl = 59
sWARM = 45
sKXW = 98
sFLC = 99
sR7 = 100
sK7 = 101
sPUB = 19
sCLR = 20
sHI = 56
sHP = 83
sKVF = 82
sKVB = 81
sSLOW = 80
sTS = 60
PBRING = [OFF_PB, OFF_PB+PBS, OFF_PB+2*PBS]

def smf(A_, d, a_reg, bname_or_reg):
    if isinstance(bname_or_reg, tuple): b = freg(bname_or_reg)
    else: b = v(bname_or_reg, 8)
    return f'v_smfmac_f32_16x16x64_bf16 {v(d,4)}, {v(a_reg,4)}, {b}, {v(vIDX)}'

def interleave(main, fill):
    out = []
    for k, m in enumerate(main):
        out.append(m)
        if k < len(fill): out += fill[k]
    for k in range(len(main), len(fill)): out += fill[k]
    return out

def lfread(dst, name):
    r = []
    for hh in range(2):
        b, off = lf_addr(name, hh)
        r.append(f'ds_read_b128 {v(dst+4*hh,4)}, {v(b)} offset:{off}')
    return r

def aread(dst, t):
    return f'ds_read_b128 {v(dst,4)}, {v(vMS)} offset:{L_MEMST-BASE_MS+t*1024}'

class Chain:
    def __init__(self, A, opt):
        self.A = A; self.opt = opt
    def ts(self, k):
        if self.opt.get('upto') == k+100 or self.opt.get('upto') == k:
            self.A.wait(vm=0, lgkm=0)
            self.A('s_branch ch_skip')
        if not self.opt.get('ts'): return
        A = self.A
        A.raw(f'  s_memtime s[{sTS}:{sTS+1}]')
        A.raw(f'  s_waitcnt lgkmcnt(0)')
        A.lgk = []
        A.raw(f'  s_sub_u32 s{sTS+2}, s{sTS}, s{sTS+3}')
        A.raw(f'  s_add_u32 s{sTS+4+k}, s{sTS+4+k}, s{sTS+2}')
        A.raw(f'  s_mov_b32 s{sTS+3}, s{sTS}')

    def at(self, k, adj=0):
        st = self.opt.get('abs')
        if st is None: return
        st += adj
        A = self.A
        lab = A.newlabel('abs')
        A.raw(f'  s_cmp_eq_u32 s{sS}, {st}')
        A.raw(f'  s_cbranch_scc0 {lab}')
        A.raw(f'  s_memtime s[96:97]')
        A.raw(f'  s_waitcnt lgkmcnt(0)')
        A.raw(f'  s_mov_b32 s{88+k}, s96')
        A.raw(f'{lab}:')
    def preload(self):
        A = self.A
        A(f'v_lshlrev_b32 v13, 7, v0')
        for k in range(6): A(f'global_load_dwordx4 v[{16+4*k}:{19+4*k}], v13, s[28:29] offset:{16*k}')
        A(f's_load_dwordx2 s[30:31], s[0:1], 16')
        A(f's_load_dwordx2 s[32:33], s[0:1], 24')
        A(f's_load_dwordx2 s[34:35], s[0:1], 32')
        A(f's_load_dwordx2 s[36:37], s[0:1], 40')
        A(f's_load_dwordx2 s[38:39], s[0:1], 8')
    def init(self, short=False):
        A = self.A; opt = self.opt
        A.wait(vm=0, lgkm=0)
        names = CH_CONSTS
        for k, n in enumerate(names[:12]):
            A(f'v_mov_b32 v{1+k}, v{16+k}')
        vDQ, vDO, vDO8, vTR0, vTR1, vM0 = 28, 29, 30, 31, 32, 33
        blocks = []
        for t in range(9): blocks.append(('Q', t))
        for t in range(9): blocks.append(('V', t))
        blocks += [('O', 0, 0), ('O', 0, 2), ('O', 0, 4), ('O', 0, 6), ('O', 1, 0), ('O', 1, 2), ('O', 1, 4), ('O', 1, 6), ('O8',)]
        for t in range(9): blocks.append(('K', t))
        assert len(blocks) == 36
        ptr = {'Q': 30, 'K': 32, 'V': 34, 'O': 36, 'O8': 36}
        size = {'Q': D*8192, 'K': D*8192, 'V': D*8192, 'O': 4096*1152, 'O8': 4096*1152}
        A(f's_lshl_b32 s40, s{sH}, 8')
        A(f's_mul_i32 s41, s{sH}, {128*1152}')
        A(f's_lshl_b32 s42, s{sW}, 10')
        cur = [None]
        def issue(n):
            b = blocks[n]; k = b[0]
            sl = n % 9
            if cur[0] != ptr[k]:
                A(f's_mov_b32 s{sT}, s{ptr[k]}')
                A(f's_and_b32 s{sT+1}, s{ptr[k]+1}, 0xffff')
                A(f's_mov_b32 s{sT+2}, {size[k]}')
                A(f's_mov_b32 s{sT+3}, 0x20000')
                cur[0] = ptr[k]
            for y in range(4):
                if k in 'QKV':
                    so = (64*b[1] + 16*y)*8192; base = 40; vo = vDQ
                elif k == 'O':
                    so = (64*b[1] + 32*(y >> 1) + 8*(y & 1))*1152 + b[2]*32; base = 41; vo = vDO
                else:
                    so = (32*(y >> 1) + 8*(y & 1))*1152 + 8*32; base = 41; vo = vDO8
                A(f's_add_u32 s43, s{base}, {so}')
                A(f's_add_u32 m0, s42, {sl*16384 + y*4096}')
                A(f'buffer_load_dwordx4 {v(vo)}, s[{sT}:{sT+3}], s43 offen lds')
        DEPTH = opt.get("depth", 6)
        if not short:
            for n in range(DEPTH): issue(n)
        nclr = 0
        A(f'ds_write_b128 {v(vMS)}, v[34:37] offset:{L_SPARE-BASE_MS}')
        A(f'v_mov_b64 v[40:41], 0')
        A(f'v_mov_b64 v[42:43], 0')
        A(f's_mul_i32 s{sTMP}, s{sH}, {HS}')
        A(f's_mul_i32 s{sTMP+1}, s{sW}, 2304')
        A(f's_add_u32 s{sTMP}, s{sTMP}, s{sTMP+1}')
        A(f's_lshl_b32 s{sLO}, s{sW}, 9')
        A(f's_add_u32 s{sLO}, s{sLO}, {L_QEX-BASE_MS-2048}')
        A(f's_add_u32 s{sPBc}, s{sTMP}, {PBRING[0]-BASE_MS}')
        A(f's_sub_u32 s{sPBl}, s{sPBc}, s{sLO}')
        self.clear_partial(sPBc, init=True); nclr += 3
        A(f'v_mov_b64 v[44:45], -1')
        A(f'v_mov_b64 v[46:47], -1')
        A(f's_mul_i32 s{sTMP}, s{sH}, 864')
        A(f's_add_u32 s{sTMP}, s{sTMP}, {OFF_MB-BASE_MS}')
        A(f's_mov_b32 exec_hi, 0x3fffff')
        A(f'buffer_store_dwordx4 v[44:47], {v(vMS)}, s[{sWS}:{sWS+3}], s{sTMP} offen sc1'); nclr += 1
        A(f's_mov_b64 exec, -1')
        if not opt.get('chain_only'):
            A(f'v_lshrrev_b32 v48, 4, {v(vMS)}')
            A(f'v_and_b32 v48, 63, v48')
            A(f'v_lshlrev_b32 v49, 7, v48')
            A(f'v_mov_b32 v50, 0x1000')
            A(f'v_cmp_eq_u32 vcc, 8, v48')
            A(f'v_cndmask_b32 v49, v49, v50, vcc')
            A(f'v_mov_b32 v50, 0')
            A(f's_lshl_b32 s{sTMP}, s{sH}, 2')
            A(f's_add_u32 s{sTMP}, s{sTMP}, {OFF_FLAG}')
            A(f's_mov_b64 exec, 0x1ff')
            A(f'buffer_store_dword v50, v49, s[{sWS}:{sWS+3}], s{sTMP} offen sc1'); nclr += 1
            A(f's_mov_b64 exec, -1')
        if short:
            A.wait(vm=0); A('s_barrier'); self.dbg_add(9)
            return
        TA, TB = 40, 56
        pend = None
        for n in range(36):
            b = blocks[n]; k = b[0]; sl = n % 9
            left = min(35, n + DEPTH - 1) - n
            extra = nclr if n < DEPTH else 0
            A.wait(vm=4*left + extra, lgkm=0)
            A('s_barrier')
            if n == DEPTH:
                self.dbg_add(9, nowait=True)
            if pend is not None:
                pn, treg = pend
                self.writeback(blocks[pn], treg); pend = None
            if n + DEPTH < 36: issue(n + DEPTH)
            inplace = n >= 27
            tmp = TA if (n % 2 == 0) else TB
            if k in 'QKV': names = [(k, b[1], 0), (k, b[1], 1)]
            elif k == 'O': names = [('O', b[1], b[2]), ('O', b[1], b[2]+1)]
            else: names = [('O', 0, 8), ('O', 1, 8)]
            for tau in range(2):
                A(f'v_add_u32 v{13+tau}, {sl*16384}, v{vTR0+tau}')
            for tau in range(2):
                nm = names[tau]
                for rr in range(4):
                    off = (32*(rr >> 1) + 4*(rr & 1))*256
                    if nm in FR: dst = freg(nm, 2*rr, 2)
                    else: dst = v(tmp + 8*tau + 2*rr, 2)
                    A(f'ds_read_b64_tr_b16 {dst}, v{13+tau} offset:{off}')
            if inplace: pend = (n, tmp)
        A.wait(lgkm=0)
        A('s_barrier')
        self.writeback(blocks[pend[0]], pend[1])
        A.wait(lgkm=0)
        A('s_barrier')
        rt_stamp(A, opt, 2, sW, off=OFF_RT)
        A(f's_mov_b32 s{sT}, s38')
        A(f's_and_b32 s{sT+1}, s39, 0xffff')
        A(f's_mov_b32 s{sT+2}, {8*1152}')
        A(f's_mov_b32 s{sT+3}, 0x20000')
        A(f's_lshl_b32 s43, s{sW}, 8')
        A(f'buffer_load_dwordx4 v[48:51], v{vM0}, s[{sT}:{sT+3}], s43 offen')
        A(f'buffer_load_dwordx4 v[52:55], v{vM0}, s[{sT}:{sT+3}], s43 offen offset:128')
        A(f's_mov_b32 s43, {8*128}')
        A(f'buffer_load_dwordx4 v[56:59], v{vM0}, s[{sT}:{sT+3}], s43 offen')
        A(f's_mov_b32 s40, 0x05040100'); A(f's_mov_b32 s41, 0x07060302')
        for q, r in enumerate((48, 52, 56)):
            d = 60 + 4*q
            A(f'v_perm_b32 v{d}, v{r+1}, v{r}, s40'); A(f'v_perm_b32 v{d+1}, v{r+3}, v{r+2}, s40')
            A(f'v_perm_b32 v{d+2}, v{r+1}, v{r}, s41'); A(f'v_perm_b32 v{d+3}, v{r+3}, v{r+2}, s41')
        A(f'ds_write_b128 {v(vF2)}, v[60:63] offset:{L_MEMST-BASE_MS}')
        A(f'ds_write_b128 {v(vF2)}, v[64:67] offset:{L_MEMST-BASE_MS+1024}')
        A(f'ds_write_b128 {v(vMS)}, v[68:71] offset:{L_MEMST-BASE_MS+8192}')
        A(f's_mov_b32 s{sS}, 0')
        A(f's_mov_b32 s{sMBa}, {OFF_MB-BASE_MS}')
        A(f's_mov_b32 s{sMBb}, {OFF_MB+MBS-BASE_MS}')
        A(f's_mov_b32 s{sMBc}, {OFF_MB+2*MBS-BASE_MS}')
        A(f's_mov_b32 s{sPBr}, {PBRING[0]}')
        A(f's_lshr_b32 s{sTMP}, s{sH}, 3')
        A(f's_mul_i32 s{sTMP+1}, s{sTMP}, 2304')
        A(f's_bfe_u32 s{sTMP+2}, s{sH}, 0x10002')
        A(f's_and_b32 s{sTMP+3}, s{sH}, 3')
        A(f's_lshl_b32 s{sTMP+4}, s{sTMP+2}, 10')
        A(f's_lshl_b32 s{sTMP+5}, s{sTMP+3}, 8')
        A(f's_add_u32 s{sTASK}, s{sTMP+1}, s{sTMP+4}')
        A(f's_add_u32 s{sTASK}, s{sTASK}, s{sTMP+5}')
        A(f's_lshl_b32 s{sTMP+5}, s{sW}, 7')
        A(f's_add_u32 s{sTASK}, s{sTASK}, s{sTMP+5}')
        A(f's_mul_i32 s{sRSO}, s{sTMP}, {9*256}')
        A(f's_add_u32 s{sRSO}, s{sRSO}, s{sTMP+4}')
        A(f's_lshl_b32 s{sTMP+5}, s{sTMP+3}, 6')
        A(f's_add_u32 s{sRSO}, s{sRSO}, s{sTMP+5}')
        A(f's_lshl_b32 s{sTMP+5}, s{sW}, 5')
        A(f's_add_u32 s{sRSO}, s{sRSO}, s{sTMP+5}')
        lab = A.newlabel('ch_t')
        A(f's_cmp_lt_u32 s{sW}, 2')
        A(f's_cbranch_scc1 {lab}')
        A(f's_mov_b32 s{sTASK}, -1')
        A(f's_cmp_eq_u32 s{sW}, 2')
        A(f's_cbranch_scc0 {lab}')
        A(f's_cmp_eq_u32 s{sTMP+3}, 0')
        A(f's_cbranch_scc0 {lab}')
        A(f's_lshl_b32 s{sTMP+5}, s{sTMP+2}, 7')
        A(f's_add_u32 s{sTASK}, s{sTMP+1}, s{sTMP+5}')
        A(f's_add_u32 s{sTASK}, s{sTASK}, 2048')
        A(f's_mul_i32 s{sRSO}, s{sTMP}, {9*256}')
        A(f's_lshl_b32 s{sTMP+5}, s{sTMP+2}, 5')
        A(f's_add_u32 s{sRSO}, s{sRSO}, s{sTMP+5}')
        A(f's_add_u32 s{sRSO}, s{sRSO}, {8*256}')
        A.wait(vm=0, lgkm=0)
        A.label(lab)
        A(f's_add_u32 s{sRL0}, s{sTASK}, {OFF_PB}')
        for n in range(1, 4): A(f's_add_u32 s{sRL0+n}, s{sRL0+n-1}, {8*HS}')
        A(f's_add_u32 s{sRSO}, s{sRSO}, {BASE_MS}')
        A(f's_lshl_b32 s{sHI}, s{sH}, 1'); A(f's_add_u32 s{sHI}, s{sHI}, s{sW}')
        A(f's_lshr_b32 s{sTMP}, s{sH}, 2'); A(f's_add_u32 s{sTMP}, s{sTMP}, 64')
        A(f's_cmp_eq_u32 s{sW}, 2'); A(f's_cselect_b32 s{sHI}, s{sTMP}, s{sHI}')
        A(f's_add_u32 s{sHI}, s{sHI}, {OFF_H2}')
        A(f's_and_b32 s{sHP}, s{sH}, {H2_REP-1}'); A(f's_mul_i32 s{sHP}, s{sHP}, {H2_STR}'); A(f's_add_u32 s{sHP}, s{sHP}, {OFF_H2}')
        A(f's_and_b32 s{sKXW}, s{sW}, 1')
        A(f's_lshl_b32 s{sKXW}, s{sKXW}, 12')
        A(f's_lshl_b32 s{sWARM}, s{sH}, 13')
        A(f's_add_u32 s{sWARM}, s{sWARM}, s{sKXW}')
        A(f's_add_u32 s{sWARM}, s{sWARM}, {OFF_KXF-BASE_MS+32*8192}')
        A(f's_cmp_ge_u32 s{sW}, 2')
        A(f's_cselect_b32 s{sTMP}, {OFF_VXF-OFF_KXF}, 0')
        A(f's_add_u32 s{sWARM}, s{sWARM}, s{sTMP}')
        A(f's_lshl_b32 s{sTMP}, s{sH}, 13')
        A(f's_add_u32 s{sKX}, s{sTMP}, {OFF_KXF-BASE_MS}')
        A(f's_lshl_b32 s{sTMP+1}, s{sW}, 11')
        A(f's_add_u32 s{sVX}, s{sTMP}, s{sTMP+1}')
        A(f's_add_u32 s{sVX}, s{sVX}, {OFF_VXF-BASE_MS}')
        A(f's_lshl_b32 s{sTMP}, s{sH}, 12')
        A(f's_lshl_b32 s{sTMP+1}, s{sW}, 10')
        A(f's_add_u32 s{sTMP}, s{sTMP}, s{sTMP+1}')
        A(f's_lshr_b32 s{sTMP}, s{sTMP}, 1')
        A(f's_add_u32 s{sKM}, s{sTMP}, {OFF_KMF-BASE_MS//2}')
        A(f's_add_u32 s{sVM}, s{sTMP}, {OFF_VMF-BASE_MS//2}')
        c = DH**-0.5*math.log2(math.e)
        import struct
        cb = struct.unpack('<I', struct.pack('<f', c))[0]
        A(f's_mov_b32 s{sCv}, {cb:#x}')
        A(f's_mov_b32 s{sCv+1}, {cb:#x}')
        A(f's_mov_b32 s{sMASK}, 0x00ff00ff')
        A(f's_mov_b32 s{sMASK+1}, 0x00ff00ff')
        A(f's_mov_b32 s{sDEAD}, 0')
        for k in range(20): A(f's_mov_b32 s{sTS+k}, 0')
        for k in range(8): A(f's_mov_b32 s{88+k}, 0')
        self.dbg_wait(9, 32)
        if not opt.get('chain_only'):
            A(f'v_mov_b32 v13, 0')
            A(f'global_load_dword v14, v13, s[14:15] sc1')
            A(f'v_readfirstlane_b32 s{sTMP}, v14')
            A(f's_cmp_lt_u32 s{sTMP}, 32')
            A(f's_cselect_b32 s{sSLOW}, 1, 0')
            if opt.get('fake') or opt.get('slow'): A(f's_mov_b32 s{sSLOW}, 1')
        A(f's_lshl_b32 s{sFLC}, s{sH}, 2')
        A(f's_add_u32 s{sFLC}, s{sFLC}, {FL_CH}')
        A(f's_mov_b32 s{sR7}, 0'); A(f's_mov_b32 s{sK7}, 0')
        if not opt.get('chain_only'):
            self.kv_wait(); A(f's_mov_b32 s{sR7}, 1'); self.kv_wait()
        A(f's_mov_b32 s{sR7}, 2')
        A(f's_lshl_b32 s{sKVB}, s{sH}, 2'); A(f's_add_u32 s{sKVB}, s{sKVB}, {FL_KV + 128}')
        A(f's_add_u32 s{sKVF}, s{sKVB}, 256')
        self.kx_dma(all_waves=True)
        A.wait(vm=0, lgkm=0)
        A('s_barrier')

    def dbg_add(self, idx, nowait=False):
        A = self.A
        if nowait:
            lab = A.newlabel('dbga'); R = A.raw
            R(f'  s_cmp_eq_u32 s{sW}, 0'); R(f'  s_cbranch_scc0 {lab}')
            R(f'  s_mov_b64 exec, 1'); R(f'  v_mov_b32 v13, {idx*4}'); R(f'  v_mov_b32 v14, 1')
            R(f'  global_atomic_add v13, v14, s[14:15]'); R(f'  s_mov_b64 exec, -1'); R(f'{lab}:')
            return
        lab = A.newlabel('dbga')
        A(f's_cmp_eq_u32 s{sW}, 0')
        A(f's_cbranch_scc0 {lab}')
        A(f's_load_dwordx2 s[{sTMP}:{sTMP+1}], s[0:1], 104') if False else None
        A(f's_mov_b64 exec, 1')
        A(f'v_mov_b32 v13, {idx*4}')
        A(f'v_mov_b32 v14, 1')
        A(f'global_atomic_add v13, v14, s[14:15]')
        A(f's_mov_b64 exec, -1')
        A.wait(vm=0)
        A.label(lab)
    def dbg_wait(self, idx, val):
        A = self.A
        lab = A.newlabel('dbgw'); done = A.newlabel('dbgd')
        A(f's_mov_b32 s{sTMP}, 0')
        A(f'v_mov_b32 v13, {idx*4}')
        A.label(lab)
        A(f'global_load_dword v14, v13, s[14:15] sc1')
        A(f's_add_u32 s{sTMP}, s{sTMP}, 1')
        A.wait(vm=0)
        A(f'v_readfirstlane_b32 s{sTMP+1}, v14')
        A(f's_cmp_ge_u32 s{sTMP+1}, {val}')
        A(f's_cbranch_scc1 {done}')
        A(f's_sleep 2')
        A(f's_cmp_lt_u32 s{sTMP}, 0x40000')
        A(f's_cbranch_scc1 {lab}')
        A(f's_mov_b32 s{sDEAD}, 1')
        A.label(done)
    def writeback(self, b, tmp):
        A = self.A
        k = b[0]
        if k in 'QKV': names = [(k, b[1], 0), (k, b[1], 1)]
        elif k == 'O': names = [('O', b[1], b[2]), ('O', b[1], b[2]+1)]
        else: names = [('O', 0, 8), ('O', 1, 8)]
        for tau in range(2):
            nm = names[tau]
            if nm in FR: continue
            for hh in range(2):
                bs, off = lf_addr(nm, hh)
                A(f'ds_write_b128 {v(bs)}, {v(tmp+8*tau+4*hh,4)} offset:{off}')
    def clear_partial(self, sreg, init=False, fl=None):
        A = self.A
        R = 40 if init else self.NEG
        fl = 'sc1' if init else self.stf
        A(f'buffer_store_dwordx4 {v(R,4)}, {v(vMS)}, s[{sWS}:{sWS+3}], s{sreg} offen {fl}')
        A(f'buffer_store_dwordx4 {v(R,4)}, {v(vMS)}, s[{sWS}:{sWS+3}], s{sreg} offen offset:1024 {fl}')
        A(f's_sub_u32 s{sTMP+1}, s{sreg}, s{sLO}')
        A(f'buffer_store_dword {v(R)}, {v(vQW)}, s[{sWS}:{sWS+3}], s{sTMP+1} offen {fl}')
    def kv_wait(self):
        A = self.A
        lab = A.newlabel('kvw'); done = A.newlabel('kvd')
        A(f's_lshl_b32 s{sTMP}, s{sR7}, 7')
        A(f's_lshl_b32 s{sTMP+1}, s{sH}, 2')
        A(f's_add_u32 s{sTMP}, s{sTMP}, s{sTMP+1}')
        A(f's_add_u32 s{sTMP}, s{sTMP}, {FL_KV + 128}')
        A(f's_mov_b32 s{sTMP+1}, 0')
        A(f'v_mov_b32 v13, 0')
        A.label(lab)
        A(f'buffer_load_dword v14, v13, s[{sWS}:{sWS+3}], s{sTMP} offen sc1')
        A(f's_add_u32 s{sTMP+1}, s{sTMP+1}, 1')
        A.wait(vm=0)
        A(f'v_readfirstlane_b32 s{sTMP+2}, v14')
        A(f's_cmp_gt_u32 s{sTMP+2}, s{sK7}')
        A(f's_cbranch_scc1 {done}')
        A(f's_sleep 2')
        A(f's_cmp_lg_u32 s{sDEAD}, 0')
        A(f's_cbranch_scc1 {done}')
        A(f's_cmp_lt_u32 s{sTMP+1}, 0x40000')
        A(f's_cbranch_scc1 {lab}')
        A(f's_mov_b32 s{sDEAD}, 1')
        A.label(done)
    def kx_dma(self, all_waves=False):
        A = self.A
        A(f's_lshl_b32 s{sTMP}, s{sW}, 11')
        A(f's_add_u32 s{sTMP+1}, s{sKX}, s{sTMP}')
        A(f's_add_u32 m0, s{sTMP}, {L_KXST}')
        A(f'buffer_load_dwordx4 {v(vMS)}, s[{sWS}:{sWS+3}], s{sTMP+1} offen sc1 lds')
        A(f's_add_u32 m0, s{sTMP}, {L_KXST}')
        A(f'buffer_load_dwordx4 {v(vMS)}, s[{sWS}:{sWS+3}], s{sTMP+1} offen offset:1024 sc1 lds')

    def loop(self, slow, tag):
        A = self.A; opt = self.opt
        self.stf = 'sc1' if slow else ''
        L = f'ch_loop_{tag}'
        self.pre_step()
        if opt.get('tt') or opt.get('ts'):
            A.raw('  s_memtime s[84:85]')
            A.raw(f'  s_memtime s[{sTS}:{sTS+1}]')
            A.raw('  s_waitcnt lgkmcnt(0)')
            A(f's_mov_b32 s{sTS+3}, s{sTS}')
        A.wait(lgkm=0)
        A.label(L)
        self.step(0, tag)
        if not opt.get('single'): self.step(1, tag)
        A(f's_cmp_lt_u32 s{sS}, {opt.get("nsteps", 64)}')
        A(f's_cbranch_scc1 {L}')
        if not opt.get('chain_only') and opt.get('nsteps', 64) == 64:
            WS = f's[{sWS}:{sWS+3}]'
            A.label(f'ch_last_{tag}')
            A.wait(vm=0, lgkm=0)
            A('s_barrier')
            pf = A.newlabel('pfl')
            A(f's_cmp_eq_u32 s{sW}, 3'); A(f's_cbranch_scc0 {pf}')
            A(f's_mov_b64 exec, 1'); A(f'v_mov_b32 v13, 0'); A(f'v_mov_b32 v14, 64')
            A(f'buffer_store_dword v14, v13, {WS}, s{sFLC} offen sc1'); A(f's_mov_b64 exec, -1')
            A.label(pf)
    def step(self, par, tag):
        A = self.A; opt = self.opt
        stf = self.stf
        WS = f's[{sWS}:{sWS+3}]'
        skip = f'ch_skip_{tag}_{par}'
        self.skip = skip
        if opt.get('cut') and par == 0: A.cut = opt['cut']; A.cutn = 0; A.cutlab = skip
        self.ts(0)
        self.at(0)
        kseq = [('K', t, tau) for t in range(9) for tau in range(2)][:17]
        SB = [SB0, SB1, SB2]
        kreg = {nm: SB[k % 3] for k, nm in enumerate(kseq)}
        Areg = {t: (AB0 if t % 2 == 0 else AB1) for t in range(9)}
        A(aread(Areg[0], 0))
        for x in lfread(SB2, ('K', 1, 0)): A(x)
        if not opt.get('chain_only'):
            kf = A.newlabel('kf')
            A.raw(f'  s_cmp_eq_u32 s{sW}, 3')
            A.raw(f'  s_cbranch_scc0 {kf}')
            A.raw(f'  buffer_load_dword {v(vRS)}, off, {WS}, s{sKVF} sc1')
            A.raw(f'{kf}:')
        seq = []
        def add(r, x, y): return f'v_add_f32 {v(r)}, {v(x)}, {v(y)}'
        def xread(dst, k4, tau):
            return f'ds_read_b128 {v(dst,4)}, {v(vMS)} offset:{L_KXST-BASE_MS+(k4*2+tau)*1024}'
        X0 = {0: SB0, 1: SB1, 2: SB2, 3: SB0}
        X1 = {0: SB0+4, 1: SB1+4, 2: SB2+4, 3: SB0+4}
        LAG = opt.get('lag', 4)
        for t in range(9):
            kb = lambda tau: (kreg[('K', t, tau)] if ('K', t, tau) in kreg else ('K', t, tau))
            m = [smf(A, AQ0, Areg[t], ('Q', t, 0)), smf(A, AQ1, Areg[t], ('Q', t, 1)),
                 smf(A, AK0, Areg[t], kb(0)), smf(A, AK1, Areg[t], kb(1))]
            f = [[], [], [], []]
            full = t < 9 - LAG
            if full:
                m += [smf(A, AV0, Areg[t], ('V', t, 0)), smf(A, AV1, Areg[t], ('V', t, 1))]
                f += [[], []]
            if t < 8: f[0].append(aread(Areg[t+1], t+1))
            i0 = 2*t
            if i0 + 3 < 17:
                r = lfread(kreg[kseq[i0]], kseq[i0+3])
                if full: f[2].append(r[0]); f[3].append(r[1])
                else: f[2] += r
            if i0 + 4 < 17:
                r = lfread(kreg[kseq[i0+1]], kseq[i0+4])
                if full: f[4].append(r[0]); f[5].append(r[1])
                else: f[3] += r
            if t < 4 and not opt.get('nokx'):
                f[1].append(f'buffer_load_dword v13, {v(vMS)}, {WS}, s{sWARM} offen offset:{1024*t} sc1')
            if t == 7 and LAG == 4:
                f[2].append(aread(SB2, 5)); f[3].append(aread(SB2+4, 6))
            seq += interleave(m, f)
        for x in seq: A(x, nowait=x.startswith('buffer_load_dword v13'))
        self.ts(1)
        cvt = lambda d, x, y: f'v_cvt_pk_bf16_f32 {v(d)}, {v(x)}, {v(y)}'
        sv = lambda acc, areg, t, tau: smf(A, acc, areg, ('V', t, tau))
        qe = [add(AQ0, AQ0, AQ0+2), add(AQ0+1, AQ0+1, AQ0+3), add(AQ1, AQ1, AQ1+2), add(AQ1+1, AQ1+1, AQ1+3),
              cvt(AQ0, AQ0, AQ0+1), cvt(AQ1, AQ1, AQ1+1),
              f'ds_write2_b32 {v(vQW)}, {v(AQ0)}, {v(AQ1)} offset0:0 offset1:64']
        ke = [add(AK0, AK0, AK0+2), add(AK0+1, AK0+1, AK0+3), add(AK1, AK1, AK1+2), add(AK1+1, AK1+1, AK1+3),
              cvt(T14, AK0, AK0+1), cvt(T15, AK1, AK1+1),
              f'ds_write2_b32 {v(vKW)}, {v(T14)}, {v(T14)} offset0:0 offset1:1',
              f'ds_write2_b32 {v(vKW)}, {v(T15)}, {v(T15)} offset0:128 offset1:129']
        prog = [sv(AV0, AB0, 8, 0), xread(X0[0], 0, 0), sv(AV1, AB0, 8, 1), xread(X1[0], 0, 1)]
        prog += qe[0:2] + [sv(AV0, AB1, 7, 0)] + qe[2:4] + [sv(AV1, AB1, 7, 1)] + qe[4:7] + ke
        prog += [xread(X0[1], 1, 0), xread(X1[1], 1, 1)]
        for x in prog: A(x)
        A.wait(lgkm=2)
        A('s_barrier')
        self.ts(2)
        S0, S1, SM = 24, 28, 32
        def qread(dst, k4):
            return [f'ds_read_b64_tr_b16 {v(dst,2)}, {v(vQR)} offset:{k4*512}',
                    f'ds_read_b64_tr_b16 {v(dst+2,2)}, {v(vQR)} offset:{k4*512+128}']
        def kmread(dst, k4):
            return [f'ds_read_b64_tr_b16 {v(dst,2)}, {v(vKR)} offset:{k4*1024}',
                    f'ds_read_b64_tr_b16 {v(dst+2,2)}, {v(vKR)} offset:{k4*1024+256}']
        Q_ = {0: AB0, 1: 36, 2: AB0, 3: 36}
        KM = {0: AB1, 1: 44, 2: AB1, 3: 44}
        for x in qread(Q_[0], 0) + kmread(KM[0], 0) + qread(Q_[1], 1): A(x)
        for x in [sv(AV0, SB2, 5, 0), sv(AV1, SB2, 5, 1), sv(AV0, SB2+4, 6, 0), sv(AV1, SB2+4, 6, 1)]: A(x)
        for x in [xread(X0[2], 2, 0), xread(X1[2], 2, 1)]: A(x)
        ONES = 16; PM = 20
        def smm(k4):
            c = lambda d: (v(d, 4) if k4 > 0 else '0')
            return [f'v_mfma_f32_16x16x32_bf16 {v(S0,4)}, {v(X0[k4],4)}, {v(Q_[k4],4)}, {c(S0)}',
                    f'v_mfma_f32_16x16x32_bf16 {v(S1,4)}, {v(X1[k4],4)}, {v(Q_[k4],4)}, {c(S1)}',
                    f'v_mfma_f32_16x16x32_bf16 {v(SM,4)}, {v(KM[k4],4)}, {v(Q_[k4],4)}, {c(SM)}']
        def pubk(k4): pass
        for x in smm(0): A(x)
        pubk(0)
        for x in qread(Q_[2], 2) + kmread(KM[2], 2) + [xread(X0[3], 3, 0), xread(X1[3], 3, 1)]: A(x)
        for x in [add(AV0, AV0, AV0+2), add(AV0+1, AV0+1, AV0+3), add(AV1, AV1, AV1+2), add(AV1+1, AV1+1, AV1+3),
                  cvt(AV0, AV0, AV0+1), cvt(AV0+1, AV1, AV1+1)]: A(x)
        for x in kmread(KM[1], 1): A(x)
        m1 = smm(1); m2 = smm(2); m3 = smm(3)
        A(m1[0]); A(m1[1]); A(m2[0]); A(m2[1])
        if not opt.get('nokx'):
            A(f'buffer_load_dwordx4 {v(SB1,4)}, {v(vMS)}, {WS}, s{sVX} offen sc1')
            A(f'buffer_load_dwordx4 {v(SB1+4,4)}, {v(vMS)}, {WS}, s{sVX} offen offset:1024 sc1')
        if not opt.get('nopub'):
            A(f'v_lshrrev_b32 {v(43)}, 1, {v(vMS)}')
            A(f'buffer_store_dwordx2 {v(T14,2)}, {v(43)}, {WS}, s{sKM} offen sc1')
            A(f'buffer_store_dwordx2 {v(AV0,2)}, {v(43)}, {WS}, s{sVM} offen sc1')
        if par == 1 and not opt.get('chain_only') and opt.get('nsteps', 64) == 64:
            A.raw(f'  s_cmp_eq_u32 s{sS}, 63')
            A.raw(f'  s_cbranch_scc1 ch_last_{tag}')
        A(m1[2]); pubk(1)
        for x in qread(Q_[3], 3) + kmread(KM[3], 3): A(x)
        A(m2[2]); pubk(2)
        A(f'v_mov_b32 {v(ONES)}, 0x3f803f80'); A(f'v_mov_b32 {v(ONES+1)}, 0x3f803f80')
        A(f'v_mov_b32 {v(ONES+2)}, 0x3f803f80'); A(f'v_mov_b32 {v(ONES+3)}, 0x3f803f80')
        A(m3[0]); A(f'v_mov_b32 {v(PM+1)}, 0'); A(m3[1]); A(f'v_mov_b32 {v(PM+2)}, 0'); A(m3[2]); pubk(3)
        self.ts(3)
        MX, TT = 42, 14
        A(f'v_max3_f32 {v(MX)}, {v(S0)}, {v(S0+1)}, {v(S0+2)}')
        A(f'v_max3_f32 {v(TT)}, {v(S1)}, {v(S1+1)}, {v(S1+2)}')
        A(f'v_max3_f32 {v(MX)}, {v(MX)}, {v(S0+3)}, {v(S1+3)}')
        A(f'v_max_f32 {v(MX)}, {v(MX)}, {v(TT)}')
        A(f'v_max3_f32 {v(MX)}, {v(MX)}, {v(SM)}, {v(SM+1)}')
        A(f'v_mov_b32 {v(TT)}, {v(MX)}')
        A(f'v_permlane16_swap_b32 {v(MX)}, {v(TT)}')
        A(f'v_max_f32 {v(MX)}, {v(MX)}, {v(TT)}')
        A(f'v_mov_b32 {v(TT)}, {v(MX)}')
        A(f'v_permlane32_swap_b32 {v(MX)}, {v(TT)}')
        A(f'v_max_f32 {v(MX)}, {v(MX)}, {v(TT)}')
        A(f'v_mul_f32 {v(TT)}, s{sCv}, {v(MX)}')
        for r in (S0, S0+2, S1, S1+2, SM):
            A(f'v_pk_fma_f32 {v(r,2)}, {v(r,2)}, s[{sCv}:{sCv+1}], {v(TT,2)} op_sel_hi:[1,1,0] neg_lo:[0,0,1] neg_hi:[0,0,1]')
        for r in (S0, S0+1, S0+2, S0+3, S1, S1+1, S1+2, S1+3, SM, SM+1):
            A(f'v_exp_f32 {v(r)}, {v(r)}')
        PX = 48
        A(cvt(PX, S0, S0+1)); A(cvt(PX+1, S0+2, S0+3)); A(cvt(PX+2, S1, S1+1)); A(cvt(PX+3, S1+2, S1+3))
        A(cvt(PM, SM, SM+1)); A(cvt(PM+3, SM, SM+1))
        self.ts(4)
        O0, O1, LL = 24, 28, 32
        VX = SB1
        if opt.get('nokx'):
            for r in range(VX, VX+8, 2): A(f'v_mov_b64 {v(r,2)}, 0')
        A(f'v_mfma_f32_16x16x32_bf16 {v(LL,4)}, {v(ONES,4)}, {v(PX,4)}, 0')
        A(f'v_mfma_f32_16x16x32_bf16 {v(O0,4)}, {v(VX,4)}, {v(PX,4)}, 0')
        A(f'v_mfma_f32_16x16x32_bf16 {v(O1,4)}, {v(VX+4,4)}, {v(PX,4)}, 0')
        A(f'v_mfma_f32_16x16x16_bf16 {v(LL,4)}, {v(ONES,2)}, {v(PM,2)}, {v(LL,4)}')
        A(f'v_mfma_f32_16x16x16_bf16 {v(O0,4)}, {v(AV0,2)}, {v(PM,2)}, {v(O0,4)}')
        A(f'v_mfma_f32_16x16x16_bf16 {v(O1,4)}, {v(AV0,2)}, {v(PM+2,2)}, {v(O1,4)}')
        WACC = 36
        MX = 13
        zero = [f'v_mov_b64 {v(WACC+2*k,2)}, 0' for k in range(18)]
        zq = list(zero)
        for x in zq[:6]: A(x)
        A(f'v_rcp_f32 {v(MX)}, {v(LL)}')
        A(zq[6])
        for r in range(4): A(f'v_mul_f32 {v(O0+r)}, {v(MX)}, {v(O0+r)}')
        A(cvt(O0, O0, O0+1)); A(cvt(O0+1, O0+2, O0+3))
        for r in range(4): A(f'v_mul_f32 {v(O1+r)}, {v(MX)}, {v(O1+r)}')
        A(cvt(O0+2, O1, O1+1)); A(cvt(O0+3, O1+2, O1+3))
        A(f's_mov_b64 exec, s[{sMASK}:{sMASK+1}]')
        A(f'ds_write_b128 {v(vOW)}, {v(O0,4)}')
        A(f's_mov_b64 exec, -1')
        for x in zq[7:]: A(x)
        A.wait(lgkm=0)
        A('s_barrier')
        self.ts(5)
        OA0, OA1 = 16, 20
        A(f'ds_read_b128 {v(OA0,4)}, {v(vMS)} offset:{L_OEX-BASE_MS}')
        A(f'ds_read_b128 {v(OA1,4)}, {v(vMS)} offset:{L_OEX-BASE_MS+1024}')
        acc = lambda q: WACC + 4*q
        def wo(q, tp):
            return f'v_smfmac_f32_16x16x64_bf16 {v(acc(q),4)}, {v(OA0 if tp == 0 else OA1,4)}, {freg(("O", tp, q))}, {v(vIDX)}'
        def epi(q):
            dst = 24 + q
            tagop = f'v_or_b32 {v(dst)}, 1, {v(dst)}' if par == 0 else f'v_and_b32 {v(dst)}, -2, {v(dst)}'
            return [add(acc(q), acc(q), acc(q)+2), add(acc(q)+1, acc(q)+1, acc(q)+3), cvt(dst, acc(q), acc(q)+1), tagop]
        st = lambda r, off: f'buffer_store_dwordx4 {v(r,4)}, {v(vMS)}, {WS}, s{sPBc} offen offset:{off} {stf}'
        prog = []; pend = []
        WV = opt.get('wov', 0)
        if WV == 0:
            for q in range(9):
                prog.append(wo(q, 0))
                if pend: prog.append(pend.pop(0))
                if q >= 2 and pend: prog.append(pend.pop(0))
                prog.append(wo(q, 1))
                if pend: prog.append(pend.pop(0))
                if q >= 2 and pend: prog.append(pend.pop(0))
                if q >= 2:
                    pend += epi(q-2)
                    if q-2 == 3: pend.append(st(24, 0))
            prog += [f'ds_read_b128 {v(16,4)}, {v(vMS)} offset:{L_SPARE-BASE_MS}']
            prog += pend
            prog += epi(7) + [st(28, 1024)] + epi(8)
            prog += [f'buffer_store_dword {v(32)}, {v(vQW)}, {WS}, s{sPBl} offen {stf}']
        else:
            order = [8, 0, 1, 2, 3, 4, 5, 6, 7]
            st2 = lambda r, off: f'buffer_store_dwordx2 {v(r,2)}, {v(vMS)}, {WS}, s{sPBc} offen offset:{off} {stf}'
            after = {8: [f'buffer_store_dword {v(32)}, {v(vQW)}, {WS}, s{sPBl} offen {stf}'], 3: [st(24, 0)], 5: [st2(28, 1024)], 7: [st2(30, 1024+8)]}
            for n, q in enumerate(order):
                prog.append(wo(q, 0))
                for _ in range(2):
                    if pend: prog.append(pend.pop(0))
                prog.append(wo(q, 1))
                for _ in range(2 if n < 8 else 0):
                    if pend: prog.append(pend.pop(0))
                if n >= 1:
                    qq = order[n-1]
                    pend += epi(qq) + after.get(qq, [])
            prog += [f'ds_read_b128 {v(16,4)}, {v(vMS)} offset:{L_SPARE-BASE_MS}']
            prog += pend + epi(7) + after[7]
        for x in prog: A(x)
        self.ts(6)
        self.at(1)
        if opt.get('log'):
            A.raw('  s_memrealtime s[90:91]')
            A.raw('  s_mov_b32 s92, 0')
        nored = A.newlabel('nored')
        gat = A.newlabel('gat')
        sG = 58
        def shadow():
            for r in range(AQ0, AV1+4, 2): A(f'v_mov_b64 {v(r,2)}, 0')
            A(f's_add_u32 s{sPUB}, s{sMBb}, s{sRSO}')
            A(f's_add_u32 s{sCLR}, s{sMBa}, s{sRSO}')
            A(f's_mov_b32 s{sG}, s{sMBb}')
            A(f's_mov_b32 s{sTMP}, s{sMBa}'); A(f's_mov_b32 s{sMBa}, s{sMBb}'); A(f's_mov_b32 s{sMBb}, s{sMBc}'); A(f's_mov_b32 s{sMBc}, s{sTMP}')
            A(f's_add_u32 s{sVX}, s{sVX}, {32*8192}')
            A(f's_add_u32 s{sWARM}, s{sWARM}, {32*8192}')
            A(f's_add_u32 s{sKM}, s{sKM}, {32*2048}')
            A(f's_add_u32 s{sVM}, s{sVM}, {32*2048}')
            A(f's_add_u32 s{sS}, s{sS}, 1')
            if opt.get('hint'):
                A(f'v_lshrrev_b32 {v(T15)}, 4, {v(vMS)}')
                A(f'v_and_b32 {v(T15)}, 63, {v(T15)}')
                A(f'v_lshlrev_b32 {v(T15)}, {H2_STR.bit_length()-1}, {v(T15)}')
        def shadow2():
            A(f's_add_u32 s{sR7}, s{sR7}, 1')
            A(f's_cmp_eq_u32 s{sR7}, 7')
            A(f's_cselect_b32 s{sR7}, 0, s{sR7}')
            A(f's_addc_u32 s{sK7}, s{sK7}, 0')
            A(f's_lshl_b32 s{sKVF}, s{sR7}, 7')
            A(f's_add_u32 s{sKVF}, s{sKVF}, s{sKVB}')
            A(f'v_mov_b64 {v(64,2)}, 0')
            A(f'v_mov_b64 {v(66,2)}, 0')
        def prefill(): pass
        if not opt.get('nohop'):
            A(f's_cmp_eq_u32 s{sTASK}, -1')
            A(f's_cbranch_scc1 {nored}')
            self.reducer(par, shadow, shadow2)
            prefill()
            A(f's_branch {gat}')
            A.label(nored)
            if not opt.get('chain_only'):
                nk = A.newlabel('nkv')
                A(f's_cmp_eq_u32 s{sW}, 3'); A(f's_cbranch_scc0 {nk}')
                A(f's_cmp_lt_u32 s{sS}, 62'); A(f's_cbranch_scc0 {nk}')
                A(f'v_readfirstlane_b32 s{sTMP+2}, {v(vRS)}')
                A(f's_cmp_gt_u32 s{sTMP+2}, s{sK7}'); A(f's_cbranch_scc1 {nk}')
                self.kv_wait()
                A.label(nk)
            if not opt.get('nokx'): self.next_kx()
            shadow(); shadow2(); prefill()
            if opt.get('hint'): self.hint_poll()
            A.label(gat)
        else:
            A.cut = None
            A.raw(f'{skip}:')
            shadow(); shadow2()
        for x in lfread(SB0, ('K', 0, 0)) + lfread(SB1, ('K', 0, 1)): A(x, nowait=True)
        if opt.get('gbar', 1) and not opt.get('nohop'): A('s_barrier')
        if not opt.get('nohop'): self.gather(sG)
        self.ts(8)
        A.wait(vm=0, lgkm=0)
        A('s_barrier')
        if opt.get('log'):
            A.raw('  s_memrealtime s[94:95]')
            A.raw(f'  s_lshl_b32 s96, s{sH}, 2')
            A.raw(f'  s_add_u32 s96, s96, s{sW}')
            A.raw(f'  s_lshl_b32 s96, s96, 6')
            A.raw(f'  s_add_u32 s96, s96, s{sS}')
            A.raw(f'  s_lshl_b32 s96, s96, 4')
            A.raw(f'  s_add_u32 s96, s96, {0x8000000 - 16}')
            A.raw('  s_waitcnt lgkmcnt(0)')
            A.raw('  s_mov_b64 exec, 1')
            A.raw('  v_mov_b32 v68, s90'); A.raw('  v_mov_b32 v69, s94'); A.raw('  v_mov_b32 v70, s92'); A.raw(f'  v_mov_b32 v71, s{sTMP+2}')
            A.raw('  v_mov_b32 v13, 0')
            A.raw(f'  buffer_store_dwordx4 v[68:71], v13, {WS}, s96 offen')
            A.raw('  s_mov_b64 exec, -1')
        if not opt.get('chain_only'):
            pf = A.newlabel('pf')
            A.raw(f'  s_cmp_eq_u32 s{sW}, 3')
            A.raw(f'  s_cbranch_scc0 {pf}')
            A.raw(f'  s_mov_b64 exec, 1')
            A.raw(f'  v_mov_b32 v13, 0')
            A.raw(f'  v_mov_b32 v14, s{sS}')
            A.raw(f'  buffer_store_dword v14, v13, {WS}, s{sFLC} offen sc1')
            A.raw(f'  s_mov_b64 exec, -1')
            A.raw(f'{pf}:')
    def next_kx(self):
        A = self.A
        lab = A.newlabel('nkx')
        R = A.raw
        WS = f's[{sWS}:{sWS+3}]'
        R(f'  s_cmp_eq_u32 s{sW}, 3')
        R(f'  s_cbranch_scc0 {lab}')
        R(f'  s_add_u32 s{sKX}, s{sKX}, {32*8192}')
        R(f'  s_mov_b32 m0, {L_KXST}')
        R(f'  s_add_u32 s{sTMP+2}, s{sKX}, 4096')
        for k in range(4):
            R(f'  buffer_load_dwordx4 {v(vMS)}, {WS}, s{sKX} offen offset:{1024*k} sc1 lds')
        R(f'  s_mov_b32 m0, {L_KXST+4096}')
        R(f'  s_nop 0')
        for k in range(4):
            R(f'  buffer_load_dwordx4 {v(vMS)}, {WS}, s{sTMP+2} offen offset:{1024*k} sc1 lds')
        R(f'{lab}:')
    def pre_step(self):
        A = self.A
        for r in range(AQ0, AV1+4, 2): A(f'v_mov_b64 {v(r,2)}, 0')
        for x in lfread(SB0, ('K', 0, 0)) + lfread(SB1, ('K', 0, 1)): A(x, nowait=True)
    def reducer(self, par, shadow, shadow2):
        A = self.A; opt = self.opt
        R = A.raw
        WS = f's[{sWS}:{sWS+3}]'
        SEL, ACC = 16, 20
        NL = 4
        ld = [48 + 4*n for n in range(NL)]
        bop = '0x80' if par == 0 else '0xfe'
        lab = A.newlabel('redp'); ok = A.newlabel('redok')
        spin = opt.get('rspin', 0)
        A(f's_mov_b32 s{sTMP+2}, 0')
        def issue(raw=False):
            for n in range(NL):
                t = f'buffer_load_dwordx4 {v(ld[n],4)}, {v(vRL)}, {WS}, s{sRL0+n} offen sc1'
                (R('  ' + t) if raw else A(t))
        flat = [ld[n] + k for n in range(NL) for k in range(4)]
        chk = [f'v_bitop3_b32 {v(T13)}, {v(flat[0])}, {v(flat[1])}, {v(flat[2])} bitop3:{bop}']
        k = 3
        while k < 4*NL:
            b = flat[k+1] if k + 1 < 4*NL else flat[k]
            chk.append(f'v_bitop3_b32 {v(T13)}, {v(T13)}, {v(flat[k])}, {v(b)} bitop3:{bop}')
            k += 2
        fin = [f'v_and_b32 {v(T13)}, 1, {v(T13)}', f'v_cmp_{"eq" if par == 0 else "ne"}_u32 vcc, 0, {v(T13)}']
        for _ in range(opt.get('nop_red', 0)): A(f's_nop 7')
        self.at(2)
        issue()
        shadow(); shadow2()
        A.wait(lgkm=0)
        ci = 0
        for n in range(NL):
            A(f'v_mfma_f32_16x16x32_bf16 {v(ACC,4)}, {v(ld[n],4)}, {v(SEL,4)}, {v(ACC,4) if n else 0}')
            while ci < len(chk) and max(r[1] for r in I(chk[ci]).rd if r[0] == 'v' and r[1] >= 48) <= ld[n] + 3:
                A(chk[ci]); ci += 1
        A(f's_add_u32 s{sTMP+2}, s{sTMP+2}, 1')
        for c in fin: A(c)
        A(f's_cbranch_vccz {ok}')
        R(f'{lab}:')
        issue(True)
        R(f'  s_add_u32 s{sTMP+2}, s{sTMP+2}, 1')
        if spin:
            for q in range(spin):
                for c in chk + fin: R('  ' + c)
                R(f'  s_cbranch_vccz {ok}_m')
        else:
            R(f'  s_waitcnt vmcnt(0)')
            for c in chk + fin: R('  ' + c)
            R(f'  s_cbranch_vccz {ok}_m')
        R(f'  s_cmp_lg_u32 s{sDEAD}, 0')
        R(f'  s_cbranch_scc1 {ok}_d')
        R(f'  s_cmp_lt_u32 s{sTMP+2}, 0x10000')
        R(f'  s_cbranch_scc1 {lab}')
        R(f'  s_mov_b32 s{sDEAD}, 1')
        R(f'{ok}_d:')
        R(f'  s_waitcnt vmcnt(0)')
        R(f'{ok}_m:')
        for n in range(NL):
            R(f'  v_mfma_f32_16x16x32_bf16 {v(ACC,4)}, {v(ld[n],4)}, {v(SEL,4)}, {v(ACC,4) if n else 0}')
        R(f'  s_nop 5')
        R(f'{ok}:')
        A(f's_nop 1')
        A(f'v_permlane32_swap_b32 {v(ACC)}, {v(ACC+1)}')
        A(f'v_permlane32_swap_b32 {v(ACC+2)}, {v(ACC+3)}')
        A(f'v_add_f32 {v(ACC)}, {v(ACC)}, {v(ACC+1)}')
        A(f'v_add_f32 {v(ACC+2)}, {v(ACC+2)}, {v(ACC+3)}')
        A(f'v_cvt_pk_bf16_f32 {v(ACC)}, {v(ACC)}, {v(ACC+2)}')
        A(f's_mov_b64 exec, s[{sMASK}:{sMASK+1}]')
        A(f'buffer_store_dword {v(ACC)}, {v(vRS)}, {WS}, s{sPUB} offen {self.stf}')
        A(f'v_mov_b32 {v(ACC+2)}, -1')
        A(f'buffer_store_dword {v(ACC+2)}, {v(vRS)}, {WS}, s{sCLR} offen {self.stf}')
        if opt.get('hint'):
            A(f's_mov_b64 exec, {(1<<H2_REP)-1}')
            A(f'v_mov_b32 {v(ACC+3)}, s{sS}')
            A(f'buffer_store_byte {v(ACC+3)}, {v(T15)}, {WS}, s{sHI} offen {self.stf}')
        A(f's_mov_b64 exec, -1')
        A(f's_waitcnt vmcnt({3 if opt.get("hint") else 2})')
        A.reset()
        A(f's_add_u32 s{sTS+16}, s{sTS+16}, s{sTMP+2}')
        if opt.get('log'): A.raw(f'  s_mov_b32 s92, s{sTMP+2}')
        self.at(3, 1)
        self.ts(7)
    def hint_poll(self):
        A = self.A; opt = self.opt; R = A.raw
        WS = f's[{sWS}:{sWS+3}]'
        skip = A.newlabel('hs'); lab = A.newlabel('hp'); ok = A.newlabel('hok')
        HR = [68, 69, 70, 71]
        R(f'  s_cmp_eq_u32 s{sW}, 3')
        R(f'  s_cbranch_scc0 {skip}')
        R(f'  s_and_b32 s{sTMP}, s{sS}, 0xff')
        R(f'  s_mul_i32 s{sTMP}, s{sTMP}, 0x01010101')
        R(f'  v_lshrrev_b32 v13, 2, {v(vMS)}')
        R(f'  v_and_b32 v13, 0xff, v13')
        R(f'  s_mov_b64 exec, 0x3ffff')
        R(f'  s_mov_b32 s{sTMP+1}, 0')
        for _ in range(opt.get('nop_hint', 0)): R('  s_nop 7')
        for k in range(3):
            R(f'  buffer_load_dword v{HR[k]}, v13, {WS}, s{sHP} offen sc1')
            R(f'  s_nop {opt.get("hgap", 7)}')
        R(f'{lab}:')
        for k in range(4):
            R(f'  buffer_load_dword v{HR[(k+3)%4]}, v13, {WS}, s{sHP} offen sc1')
            R(f'  s_waitcnt vmcnt(3)')
            R(f'  v_cmp_ne_u32 vcc, s{sTMP}, v{HR[k]}')
            R(f'  s_cbranch_vccz {ok}')
        R(f'  s_add_u32 s{sTMP+1}, s{sTMP+1}, 1')
        R(f'  s_cmp_lg_u32 s{sDEAD}, 0')
        R(f'  s_cbranch_scc1 {ok}')
        R(f'  s_cmp_lt_u32 s{sTMP+1}, 0x8000')
        R(f'  s_cbranch_scc1 {lab}')
        R(f'  s_mov_b32 s{sDEAD}, 1')
        R(f'{ok}:')
        R(f'  s_mov_b64 exec, -1')
        R(f'{skip}:')
        A.reset()
    def gather(self, sG):
        A = self.A; opt = self.opt
        WS = f's[{sWS}:{sWS+3}]'
        G0, G1, G2 = 16, 20, 64
        lab = A.newlabel('gatp'); ok = A.newlabel('gatok'); l3b = A.newlabel('gat3b')
        R = A.raw
        A(f's_mov_b32 s{sTMP+2}, 0')
        A(f's_add_u32 s{sTMP+1}, s{sG}, 8192')
        for _ in range(opt.get('nop_gat', 0)): A(f's_nop 7')
        self.at(4, 1)
        def issue():
            l3 = A.newlabel('gat3')
            R(f'  buffer_load_dwordx4 {v(G0,4)}, {v(vF2)}, {WS}, s{sG} offen sc1')
            R(f'  buffer_load_dwordx4 {v(G1,4)}, {v(vF2)}, {WS}, s{sG} offen offset:1024 sc1')
            R(f'  s_cmp_eq_u32 s{sW}, 3')
            R(f'  s_cbranch_scc0 {l3}')
            R(f'  buffer_load_dwordx4 {v(G2,4)}, {v(vMS)}, {WS}, s{sTMP+1} offen sc1')
            R(f'{l3}:')
        def check():
            R(f'  v_max3_u32 {v(T13)}, {v(G0)}, {v(G0+1)}, {v(G0+2)}')
            R(f'  v_max3_u32 {v(T14)}, {v(G1)}, {v(G1+1)}, {v(G1+2)}')
            R(f'  v_max3_u32 {v(T13)}, {v(T13)}, {v(G0+3)}, {v(G1+3)}')
            R(f'  v_max3_u32 {v(T14)}, {v(T14)}, {v(G2)}, {v(G2+1)}')
            R(f'  v_max3_u32 {v(T13)}, {v(T13)}, {v(G2+2)}, {v(G2+3)}')
            R(f'  v_max_u32 {v(T13)}, {v(T13)}, {v(T14)}')
            R(f'  v_cmp_eq_u32 vcc, -1, {v(T13)}')
            R(f'  s_cbranch_vccz {ok}')
        issue()
        R(f'  s_add_u32 s{sTMP+2}, s{sTMP+2}, 1')
        R(f'  s_waitcnt vmcnt(0)')
        check()
        R(f'{lab}:')
        issue()
        R(f'  s_add_u32 s{sTMP+2}, s{sTMP+2}, 1')
        if opt.get('gspin', 0):
            for k in range(opt.get('gspin', 0)):
                for _ in range(opt.get('gnop', 0)): R('  s_nop 3')
                check()
        else:
            R(f'  s_waitcnt vmcnt(0)')
            check()
        R(f'  s_cmp_lg_u32 s{sDEAD}, 0')
        R(f'  s_cbranch_scc1 {ok}_dead')
        R(f'  s_cmp_lt_u32 s{sTMP+2}, 0x10000')
        R(f'  s_cbranch_scc1 {lab}')
        R(f'  s_mov_b32 s{sDEAD}, 1')
        R(f'{ok}_dead:')
        R(f'  s_waitcnt vmcnt(0)')
        R(f'{ok}:')
        A.reset()
        A(f'ds_write_b128 {v(vF2)}, {v(G0,4)} offset:{L_MEMST-BASE_MS}')
        A(f'ds_write_b128 {v(vF2)}, {v(G1,4)} offset:{L_MEMST-BASE_MS+1024}')
        R(f'  s_cmp_eq_u32 s{sW}, 3')
        R(f'  s_cbranch_scc0 {l3b}')
        R(f'  ds_write_b128 {v(vMS)}, {v(G2,4)} offset:{L_MEMST-BASE_MS+8192}')
        R(f'{l3b}:')
        A(f's_add_u32 s{sTS+17}, s{sTS+17}, s{sTMP+2}')
        self.at(5, 1)
```

```python
S=2048; D=576; H=32; DH=128; NSEG=64; SEG=32; M=8; F=4608
HS   = 9472
PBS  = 32*HS
OFF_PB   = 0x0100000
OFF_MB   = 0x0200000
MBS      = 16384
MB_REP   = 9216
OFF_FLAG = 0x0210000
FL_KV    = OFF_FLAG
FL_CH    = OFF_FLAG + 0x1000
OFF_KXF  = 0x0400000
OFF_VXF  = 0x1400000
OFF_KMF  = 0x2400000
OFF_VMF  = 0x2C00000
OFF_XNF  = 0x3400000
OFF_YF   = 0x3700000
OFF_BASE = 0x3A00000
OFF_WPB  = 0x4000000
NLF      = 17
L_OTH    = NLF*8192
L_MEMST  = L_OTH
L_QEX    = L_MEMST + 9216
L_OEX    = L_MEMST
L_KEX    = L_QEX + 2048
L_KXST   = L_KEX + 4096
L_SPARE  = L_KXST + 8192
assert L_SPARE + 1024 == 163840
BASE_MS  = 131072

def slot(b, m): return 4*(m >> 1) + 2*b + (m & 1)
def kappa_bu(kappa):
    b = (kappa >> 1) & 1
    u = 2*(kappa >> 2) + (kappa & 1)
    return b, u
def pi16(kappa):
    b, u = kappa_bu(kappa)
    return 8*b + 2*(u & 3) + (u >> 2)

CH_CONSTS = ['vMS','vF0','vF1','vF2','vIDX','vQW','vKW','vQR','vKR','vOW','vRL','vRS',
             'vDQ','vDO','vDO8','vTR0','vTR1','vM0','vSEL0','vSEL1','vSEL2','vSEL3']
def chain_consts(w, l):
    i = l & 15; g = l >> 4
    c = {}
    c['vMS'] = BASE_MS + l*16
    c['vF0'] = l*16 + w*2048
    c['vF1'] = c['vF0'] + 65536
    c['vF2'] = c['vF0'] + 131072
    c['vIDX'] = 0xEEEE if (i & 2) else 0x4444
    c['vQW'] = L_QEX + (32*w + i)*16 + g*4
    c['vKW'] = L_KEX + (32*w + i)*32 + g*8
    u = g >> 1; hg = g & 1; rp = i >> 2; cc = i & 3
    c['vQR'] = L_QEX + (16*u + 4*hg + rp)*16 + (cc & 1)*8
    c['vKR'] = L_KEX + (16*u + 4*hg + rp)*32 + cc*8
    m = i & 7; tp = w >> 1; gp = 2*(w & 1) + (g >> 1); b = g & 1
    c['vOW'] = L_OEX + tp*1024 + (gp*16 + slot(b, m))*16
    c['vRL'] = (2*g + (i >> 3))*HS + (i & 7)*16
    vv = i & 7
    if w == 2:
        c['vRS'] = (4*(vv >> 1) + (vv & 1))*16 + g*4
    else:
        c['vRS'] = (vv >> 1)*256 + (vv & 1)*16 + g*4
    f = 2*(g + 4*(w >> 1))
    c16 = i ^ f
    kap = 4*w + g
    c['vDQ'] = pi16(kap)*8192 + c16*16
    b2, u2 = kappa_bu(kap)
    e_lane = 16*(u2 >> 2) + 4*b2 + (u2 & 3)
    wc = c16 >> 2; tau = (c16 >> 1) & 1; hf = c16 & 1
    c['vDO'] = e_lane*1152 + wc*288 + tau*32 + hf*16
    c['vDO8'] = e_lane*1152 + wc*288 + tau*(64*1152) + hf*16
    f2 = 2*(rp + 4*(g & 1))
    c['vTR0'] = (8*g + rp)*256 + ((4*w + 0) ^ f2)*16 + cc*8
    c['vTR1'] = (8*g + rp)*256 + ((4*w + 2) ^ f2)*16 + cc*8
    mm = 2*(i >> 2) + (i & 1); bm = (i >> 1) & 1
    c['vM0'] = mm*1152 + 32*g + 16*bm
    for r in range(4):
        c[f'vSEL{r}'] = (0x3F80 << (16*(i & 1))) if (i >> 1) == r and i < 8 else 0
    return c

SEGB = 36864
WPB_M = 36864
WPB_SLOT = 32*WPB_M
WPB_GRP = 2*WPB_SLOT
DBG_OVF = 8; DBG_CHINIT = 9; DBG_LN = 16; DBG_PC = 24; DBG_PD = 32
W_QEX = 0
W_OEX = 8192
W_KEX = 17408
W_XT0 = 22528; W_XT1 = W_XT0 + 36864
WK_CONSTS = ['wL16','wLNG','wLNS','wDA','wTA0','wTA1','wTQ','wDW1','wD16','wT1a','wT1b','wT1c',
             'wDO','wTO0','wTO1','wSTK','wQW','wHW','wHW8','wOW','wKW','wKR','wRL','wROb','wROf','wPS8','wB1',
             'wYR','wYR2','wX0','wX1','wL8',
             'wM0','wM1','wM2','wM3','wM4','wM5','wM6','wM7','wSEL0','wSEL1','wSEL2','wSEL3']
NEGBIG = 0xF149F2CA
def worker_consts(w, l):
    i = l & 15; g = l >> 4
    c = {}
    c['wL16'] = l*16
    tok = l >> 3; cc8 = l & 7
    c['wLNG'] = tok*1152 + cc8*16
    c['wLNS'] = cc8*512 + tok*16
    c['wDA'] = g*8192 + (i ^ (4*g))*16
    rp = i >> 2; cc = i & 3; q = g
    for tau in range(2):
        chunk = 8*(w & 1) + 4*tau + 2*(q & 1) + (cc >> 1)
        c[f'wTA{tau}'] = (w >> 1)*8192 + (8*(q >> 1) + rp)*256 + (chunk ^ (4*rp))*16 + (cc & 1)*8
    chunk = 4*w + 2*(q & 1) + (cc >> 1)
    c['wTQ'] = (8*(q >> 1) + rp)*256 + (chunk ^ (4*rp))*16 + (cc & 1)*8
    f = 2*(g + 4*(w >> 1))
    c['wDW1'] = g*9216 + (i ^ f)*16
    c['wD16'] = (l >> 1)*9216 + (l & 1)*16
    f2 = 2*(rp + 4*(g & 1))
    for tau, nm in enumerate(['wT1a', 'wT1b']):
        c[nm] = (8*g + rp)*256 + ((4*w + 2*tau) ^ f2)*16 + cc*8
    c['wT1c'] = (8*g + rp)*32 + cc*8
    f3 = 2*(4*(w & 1) + g)
    c16 = i ^ f3
    wc = c16 >> 2; tau = (c16 >> 1) & 1; hf = c16 & 1
    c['wDO'] = g*1152 + wc*288 + tau*32 + hf*16
    f4 = 2*(4*(g & 1) + rp)
    for tau in range(2):
        c[f'wTO{tau}'] = (4*g + rp)*256 + ((4*w + 2*tau) ^ f4)*16 + cc*8
    t = l & 31; hg = l >> 5
    if w < 2:
        c['wSTK'] = ((t >> 3) & 1)*1024 + hg*256 + (8*(t >> 4) + (t & 7))*16 + w*4096
    else:
        c['wSTK'] = (t >> 4)*1024 + hg*256 + (t & 15)*16 + (w - 2)*4096
    c['wQW'] = W_QEX + w*2048 + (t >> 4)*1024 + hg*256 + (t & 15)*16
    c['wHW'] = W_OEX + w*1024 + l*16
    c['wHW8'] = W_OEX + 8192 + (w & 1)*512 + l*8
    c['wOW'] = W_OEX + (w & 1)*4096 + (w >> 1)*2048 + l*16
    c['wYR'] = g*512 + i*16
    c['wYR2'] = g*512 + i*16 + (w & 1)*256
    c['wL8'] = l*8
    c['wKW'] = W_KEX + (32*w + i)*32 + g*8
    u = g >> 1; hg2 = g & 1
    c['wKR'] = W_KEX + (16*u + 4*hg2 + rp)*32 + cc*8
    c['wRL'] = g*WPB_M + i*16
    c['wROb'] = i*1152 + (g & 1)*32
    c['wROf'] = i*2304 + (g & 1)*64
    c['wPS8'] = ((g >> 1)*16 + i)*16 + (g & 1)*8
    c['wB1'] = g*8
    c['wX0'] = i*1152 + (g & 1)*8
    c['wX1'] = i*2304 + (g & 1)*16
    qtok = 16*(w & 1) + i
    for tau in range(2):
        for r in range(4):
            kt = 16*(g >> 1) + 8*tau + 4*(g & 1) + r
            c[f'wM{4*tau+r}'] = 0 if kt <= qtok else NEGBIG
    for r in range(4):
        c[f'wSEL{r}'] = (0x3F80 << (16*(i & 1))) if (i >> 1) == r and i < 8 else 0
    return c

OFF_RT = OFF_FLAG + 0xC000
FL_W = OFF_FLAG + 0x2000
OFF_H2 = OFF_MB + 0x8000
H2_REP = 4; H2_STR = 256
assert OFF_WPB + 15*WPB_SLOT < 0x8000000
```

```python
from asmlib import *
from layout import *
import math, struct
def fb(x): return struct.unpack('<I', struct.pack('<f', x))[0]

sWS = 4; sT = 8
sM, sW, sG, sK, sSEG, sN, sSLOW = 16, 17, 18, 19, 20, 21, 22
sTMP = 23
sTAB = 30
sP0 = 32
sA, sB, sC, sD_ = 36, 37, 38, 39
sDEAD = 44
sCv = 40
WS = f's[{sWS}:{sWS+3}]'
TS = f's[{sT}:{sT+3}]'
LO32 = 46
CIDX = {n: k for k, n in enumerate(WK_CONSTS)}

class Worker:
    def __init__(self, A, opt):
        self.A = A; self.opt = opt
    def consts(self, mp):
        A = self.A
        A('v_mul_u32_u24 v255, 192, v0') if False else None
        A(f'v_mov_b32 v{self.vT}, 192')
        A(f'v_mul_u32_u24 v{self.vT}, v{self.vT}, v0')
        for n, r in mp.items():
            A(f'global_load_dword v{r}, v{self.vT}, s[{sTAB}:{sTAB+1}] offset:{4*CIDX[n]}')
        A.wait(vm=0)
    def srd(self, kern_off, size):
        A = self.A
        A(f's_load_dwordx2 s[{sP0}:{sP0+1}], s[0:1], {kern_off}')
        A.wait(lgkm=0)
        A(f's_mov_b32 s{sT}, s{sP0}')
        A(f's_and_b32 s{sT+1}, s{sP0+1}, 0xffff')
        A(f's_mov_b32 s{sT+2}, {size}')
        A(f's_mov_b32 s{sT+3}, 0x20000')
    def dbg_add(self, idx_s=None, idx_c=0):
        A = self.A
        lab = A.newlabel('wda')
        A(f's_cmp_eq_u32 s{sW}, 0')
        A(f's_cbranch_scc0 {lab}')
        A(f's_add_u32 s{sTMP}, s{idx_s}, {idx_c}') if idx_s is not None else A(f's_mov_b32 s{sTMP}, {idx_c}')
        A(f's_lshl_b32 s{sTMP}, s{sTMP}, 2')
        A(f's_mov_b64 exec, 1')
        A(f'v_mov_b32 v60, s{sTMP}')
        A(f'v_mov_b32 v61, 1')
        A(f'global_atomic_add v60, v61, s[14:15]')
        A(f's_mov_b64 exec, -1')
        A.label(lab)
    def dbg_wait(self, idx_s, idx_c, val_s=None, val_c=0, sleep=2, barrier=True):
        A = self.A
        lab = A.newlabel('wdw'); done = A.newlabel('wdd'); skip = A.newlabel('wds')
        A(f's_cmp_eq_u32 s{sW}, 0')
        A(f's_cbranch_scc0 {skip}')
        if idx_s is not None: A(f's_add_u32 s{sTMP}, s{idx_s}, {idx_c}')
        else: A(f's_mov_b32 s{sTMP}, {idx_c}')
        A(f's_lshl_b32 s{sTMP}, s{sTMP}, 2')
        A(f'v_mov_b32 v60, s{sTMP}')
        if val_s is not None: A(f's_mov_b32 s{sTMP+2}, s{val_s}')
        else: A(f's_mov_b32 s{sTMP+2}, {val_c}')
        A(f's_mov_b32 s{sTMP}, 0')
        A.label(lab)
        A(f'global_load_dword v61, v60, s[14:15] sc1')
        A(f's_add_u32 s{sTMP}, s{sTMP}, 1')
        A.wait(vm=0)
        A(f'v_readfirstlane_b32 s{sTMP+1}, v61')
        A(f's_cmp_ge_u32 s{sTMP+1}, s{sTMP+2}')
        A(f's_cbranch_scc1 {done}')
        A(f's_sleep {sleep}')
        A(f's_cmp_lg_u32 s{sDEAD}, 0')
        A(f's_cbranch_scc1 {done}')
        A(f's_cmp_lt_u32 s{sTMP}, 0x40000')
        A(f's_cbranch_scc1 {lab}')
        A(f's_mov_b32 s{sDEAD}, 1')
        A.label(done)
        A.raw(f'{skip}:')
        A.reset()
        if barrier: A('s_barrier')
    def ws_wait(self, off_s, val_s, sleep=2):
        A = self.A
        lab = A.newlabel('www'); done = A.newlabel('wwd'); skip = A.newlabel('wws')
        A(f's_cmp_eq_u32 s{sW}, 0')
        A(f's_cbranch_scc0 {skip}')
        A(f'v_mov_b32 v60, 0')
        A(f's_mov_b32 s{sTMP}, 0')
        A.label(lab)
        A(f'buffer_load_dword v61, v60, {WS}, s{off_s} offen sc1')
        A(f's_add_u32 s{sTMP}, s{sTMP}, 1')
        A.wait(vm=0)
        A(f'v_readfirstlane_b32 s{sTMP+1}, v61')
        A(f's_cmp_ge_u32 s{sTMP+1}, s{val_s}')
        A(f's_cbranch_scc1 {done}')
        A(f's_sleep {sleep}')
        A(f's_cmp_lg_u32 s{sDEAD}, 0')
        A(f's_cbranch_scc1 {done}')
        A(f's_cmp_lt_u32 s{sTMP}, 0x40000')
        A(f's_cbranch_scc1 {lab}')
        A(f's_mov_b32 s{sDEAD}, 1')
        A.label(done)
        A.raw(f'{skip}:')
        A.reset()
        A('s_barrier')
    def group_sync(self, ps):
        A = self.A
        skip = A.newlabel('gs'); lab = A.newlabel('gsp'); done = A.newlabel('gsd')
        A(f's_cmp_eq_u32 s{sW}, 0')
        A(f's_cbranch_scc0 {skip}')
        A(f's_lshl_b32 s{sTMP}, s{sG}, 8')
        A(f's_add_u32 s{sTMP}, s{sTMP}, {FL_W + ps*128}')
        A(f's_add_u32 s{sTMP+2}, s{sK}, 1')
        A(f's_lshl_b32 s{sTMP+1}, s{sM}, 2')
        A(f's_mov_b64 exec, 1')
        A(f'v_mov_b32 v60, s{sTMP+1}')
        A(f'v_mov_b32 v61, s{sTMP+2}')
        self.mstore(f'buffer_store_dword v61, v60, {WS}, s{sTMP} offen')
        A(f's_mov_b64 exec, -1')
        A(f'v_mbcnt_lo_u32_b32 v60, -1, 0')
        A(f'v_mbcnt_hi_u32_b32 v60, -1, v60')
        A(f'v_and_b32 v60, 31, v60')
        A(f'v_lshlrev_b32 v60, 2, v60')
        A(f's_mov_b32 s{sTMP+1}, 0')
        A.label(lab)
        A(f'buffer_load_dword v61, v60, {WS}, s{sTMP} offen sc1')
        A(f's_add_u32 s{sTMP+1}, s{sTMP+1}, 1')
        A.wait(vm=0)
        A(f'v_cmp_gt_u32 vcc, s{sTMP+2}, v61')
        A(f's_cbranch_vccz {done}')
        A(f's_cmp_lg_u32 s{sDEAD}, 0')
        A(f's_cbranch_scc1 {done}')
        A(f's_cmp_lt_u32 s{sTMP+1}, 0x100000')
        A(f's_cbranch_scc1 {lab}')
        A(f's_mov_b32 s{sDEAD}, 1')
        A.label(done)
        A.raw(f'{skip}:')
        A.reset()
        A('s_barrier')
    def layernorm(self):
        A = self.A
        self.vT = 2
        self.consts({'wLNG': 3, 'wLNS': 4})
        A(f's_lshl_b32 s{sTMP}, s{sG}, 8')
        A(f's_lshl_b32 s{sTMP+1}, s{sM}, 2')
        A(f's_add_u32 s{sTMP}, s{sTMP}, s{sTMP+1}')
        A(f's_add_u32 s{sTMP}, s{sTMP}, {FL_W}')
        A(f'v_mov_b32 v60, 0')
        A(f'buffer_store_dword v60, v60, {WS}, s{sTMP} offen sc1')
        A(f'buffer_store_dword v60, v60, {WS}, s{sTMP} offen offset:128 sc1')
        done = A.newlabel('lnd')
        A(f's_lshl_b32 s{sTMP}, s{sW}, 5')
        A(f's_add_u32 s{sTMP}, s{sTMP}, s{sM}')
        A(f's_lshl_b32 s{sTMP+1}, s{sN}, 2')
        A(f's_cmp_lt_u32 s{sTMP}, s{sTMP+1}')
        A(f's_cbranch_scc0 {done}')
        A(f's_lshr_b32 s{sTMP+1}, s{sTMP}, 2')
        A(f's_mul_i32 s{sTMP+1}, s{sTMP+1}, 7')
        A(f's_add_u32 s{sTMP+1}, s{sTMP+1}, s{sG}')
        A(f's_and_b32 s{sTMP+2}, s{sTMP}, 3')
        A(f's_lshl_b32 s{sTMP+3}, s{sTMP+1}, 2')
        A(f's_add_u32 s{sTMP+3}, s{sTMP+3}, s{sTMP+2}')
        A(f's_mul_i32 s{sA}, s{sTMP+3}, {8*1152}')
        A(f's_mul_i32 s{sB}, s{sTMP+1}, {SEGB}')
        A(f's_lshl_b32 s{sTMP+2}, s{sTMP+2}, 7')
        A(f's_add_u32 s{sB}, s{sB}, s{sTMP+2}')
        self.srd(0, S*D*2)
        P = 64; F_ = 100
        for n in range(9):
            A(f'buffer_load_dwordx4 {v(P+4*n,4)}, v3, {TS}, s{sA} offen offset:{128*n}')
        A(f's_mov_b32 s{sC}, 0xffff0000')
        for which in range(2):
            for d in range(36):
                A(f'v_lshlrev_b32 v{F_+2*d}, 16, v{P+d}')
                A(f'v_and_b32 v{F_+2*d+1}, s{sC}, v{P+d}')
            def red8(r):
                A(f'v_add_f32_dpp v{r}, v{r}, v{r} quad_perm:[1,0,3,2] row_mask:0xf bank_mask:0xf')
                A(f'v_add_f32_dpp v{r}, v{r}, v{r} quad_perm:[2,3,0,1] row_mask:0xf bank_mask:0xf')
                A(f'v_add_f32_dpp v{r}, v{r}, v{r} row_half_mirror row_mask:0xf bank_mask:0xf')
            acc = [10, 11, 12, 13]
            for k in range(4): A(f'v_mov_b32 v{acc[k]}, v{F_+k}')
            for e in range(4, 72): A(f'v_add_f32 v{acc[e%4]}, v{acc[e%4]}, v{F_+e}')
            A('v_add_f32 v10, v10, v11'); A('v_add_f32 v12, v12, v13'); A('v_add_f32 v10, v10, v12')
            red8(10)
            A(f'v_mul_f32 v10, {fb(1.0/576):#x}, v10')
            for k in range(4): A(f'v_mov_b32 v{11+k}, 0')
            for e in range(72):
                A(f'v_sub_f32 v15, v{F_+e}, v10')
                A(f'v_fmac_f32 v{11+e%4}, v15, v15')
            A('v_add_f32 v11, v11, v12'); A('v_add_f32 v13, v13, v14'); A('v_add_f32 v11, v11, v13')
            red8(11)
            A(f'v_mul_f32 v11, {fb(1.0/576):#x}, v11')
            A('v_cvt_pk_bf16_f32 v10, v10, v11')
            A(f'v_and_b32 v11, s{sC}, v10')
            A('v_lshlrev_b32 v10, 16, v10')
            A(f'v_add_f32 v11, {fb(1e-5):#x}, v11')
            A('v_cvt_pk_bf16_f32 v11, v11, v11')
            A(f'v_and_b32 v11, s{sC}, v11')
            A('v_sqrt_f32 v11, v11')
            A('v_cvt_pk_bf16_f32 v11, v11, v11')
            A(f'v_and_b32 v11, s{sC}, v11')
            A('v_rcp_f32 v11, v11')
            for d in range(36):
                a0, a1 = F_+2*d, F_+2*d+1
                A(f'v_sub_f32 v{a0}, v{a0}, v10')
                A(f'v_sub_f32 v{a1}, v{a1}, v10')
                A(f'v_cvt_pk_bf16_f32 v15, v{a0}, v{a1}')
                A(f'v_lshlrev_b32 v{a0}, 16, v15')
                A(f'v_and_b32 v{a1}, s{sC}, v15')
                A(f'v_mul_f32 v{a0}, v11, v{a0}')
                A(f'v_mul_f32 v{a1}, v11, v{a1}')
                A(f'v_cvt_pk_bf16_f32 v{P+d}, v{a0}, v{a1}')
            base = OFF_XNF if which == 0 else OFF_YF
            for n in range(9):
                A(f's_add_u32 s{sTMP}, s{sB}, {base + n*8*512}')
                A(f'buffer_store_dwordx4 {v(P+4*n,4)}, v4, {WS}, s{sTMP} offen sc1')
            if which == 0: A('s_nop 1')
        A.wait(vm=0)
        A.label(done)
        A.wait(vm=0)
        A('s_barrier')
        self.dbg_add(sG, DBG_LN)
    def ring(self, blocks, nslots=9, depth=6):
        A = self.A
        pos = []; p = 0
        for b in blocks:
            ns = b.get('slots', 1)
            if p % nslots + ns > nslots: p += nslots - p % nslots
            pos.append(p % nslots); p += ns
        def issue(n):
            b = blocks[n]
            if b.get('setup'): b['setup']()
            for y, dm in enumerate(b['dmas']):
                voff, sbase, const, lds = dm[:4]
                lb = dm[4] if len(dm) > 4 else 42
                A(f's_add_u32 s43, s{sbase}, {const}')
                A(f's_add_u32 m0, s{lb}, {pos[n]*16384 + lds}')
                A(f'buffer_load_dwordx4 v{voff}, {TS}, s43 offen lds')
        N = len(blocks)
        issued = 0
        def can_issue(n, cur):
            sl = set(range(pos[n], pos[n] + blocks[n].get('slots', 1)))
            for q in range(cur, n):
                if sl & set(range(pos[q], pos[q] + blocks[q].get('slots', 1))): return False
            return n - cur < depth
        while issued < N and can_issue(issued, 0): issue(issued); issued += 1
        for n in range(N):
            left = sum(len(blocks[q]['dmas']) for q in range(n+1, issued))
            A.wait(vm=left, lgkm=0)
            A('s_barrier')
            while issued < N and can_issue(issued, n): issue(issued); issued += 1
            cur = {}
            for (dst, addr, imm) in blocks[n]['reads']:
                if addr not in cur:
                    t = 60 + len(cur); cur[addr] = t
                    A(f'v_add_u32 v{t}, {pos[n]*16384}, v{addr}')
                A(f'ds_read_b64_tr_b16 {dst}, v{cur[addr]} offset:{imm}')
        A.wait(lgkm=0)
        A('s_barrier')
    def seg_dma(self, base, seg_s, buf_s, vL16):
        A = self.A
        A(f's_mul_i32 s{sTMP}, s{seg_s}, {SEGB}')
        A(f's_mul_i32 s{sTMP+1}, s{sW}, {9*1024}')
        A(f's_add_u32 s{sTMP}, s{sTMP}, s{sTMP+1}')
        A(f's_add_u32 s{sTMP}, s{sTMP}, {base}')
        A(f's_add_u32 s{sTMP+1}, s{sTMP+1}, s{buf_s}')
        for y in range(9):
            A(f's_add_u32 m0, s{sTMP+1}, {(y//4)*4096}')
            if y % 4 == 0 and y: A(f's_add_u32 s{sTMP}, s{sTMP}, 4096')
            A(f'buffer_load_dwordx4 v{vL16}, {WS}, s{sTMP} offen offset:{(y%4)*1024} sc1 lds')
    def passA(self):
        A = self.A; opt = self.opt
        self.vT = 2
        sMA, sGA, sNA = 50, 51, 52
        A(f's_lshl_b32 s{sTMP}, s{sG}, 5'); A(f's_add_u32 s{sTMP}, s{sTMP}, s{sM}')
        A(f's_mul_i32 s{sMA}, s{sTMP}, 9363'); A(f's_lshr_b32 s{sMA}, s{sMA}, 16')
        A(f's_mul_i32 s{sTMP+1}, s{sMA}, 7'); A(f's_sub_u32 s{sGA}, s{sTMP}, s{sTMP+1}')
        A(f's_cmp_eq_u32 s{sGA}, 0'); A(f's_cselect_b32 s{sNA}, 10, 9')
        C = {'wL16': 3, 'wDA': 4, 'wTA0': 5, 'wTA1': 6, 'wSTK': 7}
        self.consts(C)
        def fr(kp, tau, off=0, cnt=4):
            n = (2*kp + tau)*4 + off
            return f'a[{n}:{n+cnt-1}]' if n < 256 else f'v[{224+n-256}:{224+n-256+cnt-1}]'
        A(f's_load_dwordx2 s[{sP0}:{sP0+1}], s[0:1], 24')
        A(f's_load_dwordx2 s[{sP0+2}:{sP0+3}], s[0:1], 32')
        A.wait(lgkm=0)
        A(f's_cmp_lt_u32 s{sW}, 2')
        A(f's_cselect_b32 s{sT}, s{sP0}, s{sP0+2}')
        A(f's_cselect_b32 s{sT+1}, s{sP0+1}, s{sP0+3}')
        A(f's_and_b32 s{sT+1}, s{sT+1}, 0xffff')
        A(f's_mov_b32 s{sT+2}, {D*8192}')
        A(f's_mov_b32 s{sT+3}, 0x20000')
        A(f's_and_b32 s{sTMP}, s{sW}, 1')
        A(f's_mul_i32 s{sTMP}, s{sTMP}, {16*8192}')
        A(f's_lshl_b32 s{sA}, s{sMA}, 8')
        A(f's_add_u32 s{sA}, s{sA}, s{sTMP}')
        A(f's_lshl_b32 s42, s{sW}, 12')
        blocks = []
        for b in range(18):
            dm = [(4, sA, (32*b + 4*y)*8192, y*1024) for y in range(4)]
            rd = []
            for kk in range(2):
                for tau in range(2):
                    for rr in range(2):
                        rd.append((fr(2*b+kk, tau, 2*rr, 2), 5+tau, kk*4096 + rr*1024))
            blocks.append(dict(dmas=dm, reads=rd))
        self.ring(blocks)
        rt_stamp(A, opt, 3, sW, off=OFF_RT)
        self.dbg_wait(sGA, DBG_LN, None, 32)
        self.dbg_wait(None, DBG_CHINIT, None, 32)
        rt_stamp(A, opt, 4, sW, off=OFF_RT)
        A(f's_mov_b32 s{sK}, 0')
        A(f's_mov_b32 s{sSEG}, s{sGA}')
        A(f's_mov_b32 s{sB}, {W_XT0}')
        self.seg_dma(OFF_XNF, sSEG, sB, 3)
        A(f'v_add_u32 v8, {W_XT0}, v3')
        A(f's_lshl_b32 s{sC}, s{sGA}, 7')
        A(f's_lshl_b32 s{sTMP}, s{sMA}, 2')
        A(f's_add_u32 s{sC}, s{sC}, s{sTMP}')
        A(f's_add_u32 s{sC}, s{sC}, {FL_KV + 128}')
        L = A.newlabel('pa_loop'); nonext = A.newlabel('pa_nn'); vw = A.newlabel('pa_v'); epi = A.newlabel('pa_e')
        A.label(L)
        A.wait(vm=0)
        A('s_barrier')
        lab = A.newlabel('pa_fl')
        A(f's_cmp_eq_u32 s{sK}, 0'); A(f's_cbranch_scc1 {lab}')
        A(f's_cmp_eq_u32 s{sW}, 0'); A(f's_cbranch_scc0 {lab}')
        A(f's_mov_b64 exec, 1'); A(f'v_mov_b32 v60, 0'); A(f'v_mov_b32 v61, s{sK}')
        A(f'buffer_store_dword v61, v60, {WS}, s{sC} offen sc1'); A(f's_mov_b64 exec, -1')
        A.label(lab)
        A(f's_add_u32 s{sD_}, s{sK}, 1')
        A(f's_cmp_lt_u32 s{sD_}, s{sNA}')
        A(f's_cbranch_scc0 {nonext}')
        A(f's_add_u32 s{sD_}, s{sSEG}, 7')
        A(f's_xor_b32 s{sTMP+2}, s{sB}, {W_XT0 ^ W_XT1}')
        self.seg_dma(OFF_XNF, sD_, sTMP+2, 3)
        A.label(nonext)
        ACC = 64; XB = [96, 100, 104, 108]
        A(f's_cmp_lt_u32 s{sW}, 2')
        A(f's_cbranch_scc0 {vw}')
        for role in range(2):
            if role == 1: A.label(vw)
            for kp in range(3): A(f'ds_read_b128 {v(XB[kp],4)}, v8 offset:{kp*1024}')
            for kp in range(36):
                if kp + 3 < 36: A(f'ds_read_b128 {v(XB[(kp+3)%4],4)}, v8 offset:{(kp+3)*1024}')
                for tau in range(2):
                    d = v(ACC+16*tau, 16); c_ = d if kp else '0'
                    x_ = v(XB[kp % 4], 4)
                    if role == 0: A(f'v_mfma_f32_32x32x16_bf16 {d}, {fr(kp,tau)}, {x_}, {c_}')
                    else: A(f'v_mfma_f32_32x32x16_bf16 {d}, {x_}, {fr(kp,tau)}, {c_}')
            if role == 0: A(f's_branch {epi}')
        A.label(epi)
        A(f's_nop 15')
        A(f's_lshl_b32 s{sTMP}, s{sSEG}, 5')
        A(f's_add_u32 s{sTMP}, s{sTMP}, s{sMA}')
        A(f's_lshl_b32 s{sTMP}, s{sTMP}, 13')
        A(f's_cmp_lt_u32 s{sW}, 2')
        A(f's_cselect_b32 s{sTMP+1}, 0, {OFF_VXF-OFF_KXF}')
        A(f's_add_u32 s{sTMP}, s{sTMP}, s{sTMP+1}')
        A(f's_add_u32 s{sTMP}, s{sTMP}, {OFF_KXF}')
        PK = 112
        for tau in range(2):
            for u in range(2):
                r0 = ACC + 16*tau + 8*u; p = PK + 8*tau + 4*u
                for k in range(4): A(f'v_cvt_pk_bf16_f32 v{p+k}, v{r0+2*k}, v{r0+2*k+1}')
                A(f'buffer_store_dwordx4 {v(p,4)}, v7, {WS}, s{sTMP} offen offset:{tau*2048+u*512} sc1')
        A(f's_xor_b32 s{sB}, s{sB}, {W_XT0 ^ W_XT1}')
        A(f'v_add_u32 v8, s{sB}, v3')
        A(f's_add_u32 s{sSEG}, s{sSEG}, 7')
        A(f's_add_u32 s{sK}, s{sK}, 1')
        A(f's_cmp_lt_u32 s{sK}, s{sNA}')
        A(f's_cbranch_scc1 {L}')
        A.wait(vm=0)
        A('s_barrier')
        lab = A.newlabel('pa_fl')
        A(f's_cmp_eq_u32 s{sW}, 0'); A(f's_cbranch_scc0 {lab}')
        A(f's_mov_b64 exec, 1'); A(f'v_mov_b32 v60, 0'); A(f'v_mov_b32 v61, s{sK}')
        A(f'buffer_store_dword v61, v60, {WS}, s{sC} offen sc1'); A(f's_mov_b64 exec, -1')
        A.label(lab)

    def gemm2_blocks(self, fr2, nrb, mini, vDO, vTO, sbase, slds, setup):
        blocks = []
        first = True
        for q0 in (0, 2, 4, 6, 8):
            for rb in range(nrb):
                dm = [(vDO, sbase, (64*rb + 16*y)*1152 + q0*32, y*4096, slds) for y in range(4)]
                rd = []
                for kk in range(2):
                    for tau in range(2):
                        if q0 + tau > 8: continue
                        for rr in range(2):
                            rd.append((fr2(q0+tau, 2*rb+kk, 2*rr, 2), vTO+tau, (32*kk + 16*rr)*256))
                blocks.append(dict(dmas=dm, reads=rd, setup=setup if first else None)); first = False
            if mini:
                dm = [(vDO, sbase, (64*nrb)*1152 + q0*32, 0, slds)]
                rd = [(fr2(q0+tau, 4, 0, 2), vTO+tau, 0) for tau in range(2) if q0 + tau <= 8]
                blocks.append(dict(dmas=dm, reads=rd))
        return blocks
    def gemm2(self, fr2, k16, ACC, HF, PKD, vL16, vL8, vPS8, sPB):
        A = self.A
        for tt in range(2):
            for ko in range(4):
                A(f'ds_read_b128 {v(HF+4*ko,4)}, v{vL16} offset:{W_OEX + tt*4096 + ko*1024}')
            if k16: A(f'ds_read_b64 {v(HF+16,2)}, v{vL8} offset:{W_OEX + 8192 + tt*512}')
            for ko in range(4):
                for q in range(9):
                    d = v(ACC+4*q, 4)
                    A(f'v_mfma_f32_16x16x32_bf16 {d}, {fr2(q, ko)}, {v(HF+4*ko,4)}, {d if ko else 0}')
            if k16:
                for q in range(9):
                    d = v(ACC+4*q, 4)
                    A(f'v_mfma_f32_16x16x16_bf16 {d}, {fr2(q, 4, 0, 2)}, {v(HF+16,2)}, {d}')
            for a_ in range(4):
                p = PKD + 4*(a_ % 2)
                for t2 in range(2):
                    r0 = ACC + 4*(2*a_ + t2)
                    A(f'v_cvt_pk_bf16_f32 v{p+2*t2}, v{r0}, v{r0+1}')
                    A(f'v_cvt_pk_bf16_f32 v{p+2*t2+1}, v{r0+2}, v{r0+3}')
                self.mstore(f'buffer_store_dwordx4 {v(p,4)}, v{vL16}, {WS}, s{sPB} offen offset:{a_*1024}', tt*4608, sPB)
            p = PKD + 8
            A(f'v_cvt_pk_bf16_f32 v{p}, v{ACC+32}, v{ACC+33}')
            A(f'v_cvt_pk_bf16_f32 v{p+1}, v{ACC+34}, v{ACC+35}')
            A(f's_add_u32 s{sTMP}, s{sPB}, 4096')
            self.mstore(f'buffer_store_dwordx2 {v(p,2)}, v{vPS8}, {WS}, s{sTMP} offen', 0, None)
            if tt == 0: A(f's_add_u32 s{sPB}, s{sPB}, 4608')
        A(f's_sub_u32 s{sPB}, s{sPB}, 4608')
    def mstore(self, text, *_):
        A = self.A
        l1 = A.newlabel('ms'); l2 = A.newlabel('me')
        A(f's_cmp_eq_u32 s{sSLOW}, 0')
        A(f's_cbranch_scc0 {l1}')
        A(text)
        A.raw(f'  s_branch {l2}')
        A.raw(f'{l1}:')
        A.raw(f'  {text} sc1')
        A.raw(f'{l2}:')
    def reduce(self, which, R0, vRL, vSEL, vROb, vROf, vX0, vX1, vB2r, vB2x):
        A = self.A
        A.wait(vm=0)
        A('s_barrier')
        self.group_sync(0 if which == 'C' else 1)
        LD = R0; AC = R0 + 32; XX = R0 + 36; BB = R0 + 40
        def task(extra):
            if not extra:
                A(f's_lshr_b32 s{sTMP}, s{sM}, 3')
                A(f's_bfe_u32 s{sTMP+1}, s{sM}, 0x10002')
                A(f's_and_b32 s{sTMP+2}, s{sM}, 3')
                A(f's_mul_i32 s{sTMP+3}, s{sTMP}, 9216')
                A(f's_mul_i32 s{sTMP+4}, s{sTMP+1}, 4608')
                A(f's_add_u32 s{sTMP+3}, s{sTMP+3}, s{sTMP+4}')
                A(f's_lshl_b32 s{sTMP+4}, s{sTMP+2}, 10')
                A(f's_add_u32 s{sTMP+3}, s{sTMP+3}, s{sTMP+4}')
                A(f's_lshl_b32 s{sTMP+4}, s{sW}, 8')
                A(f's_add_u32 s{sTMP+3}, s{sTMP+3}, s{sTMP+4}')
                A(f's_mul_i32 s{sTMP+5}, s{sTMP}, {9*32}')
                A(f's_lshl_b32 s{sTMP+4}, s{sTMP+2}, 6')
                A(f's_add_u32 s{sTMP+5}, s{sTMP+5}, s{sTMP+4}')
                A(f's_lshl_b32 s{sTMP+4}, s{sW}, 3')
                A(f's_add_u32 s{sTMP+5}, s{sTMP+5}, s{sTMP+4}')
            else:
                A(f's_lshr_b32 s{sTMP}, s{sM}, 2')
                A(f's_bfe_u32 s{sTMP+1}, s{sM}, 0x10001')
                A(f's_and_b32 s{sTMP+2}, s{sM}, 1')
                A(f's_mul_i32 s{sTMP+3}, s{sTMP}, 9216')
                A(f's_mul_i32 s{sTMP+4}, s{sTMP+1}, 4608')
                A(f's_add_u32 s{sTMP+3}, s{sTMP+3}, s{sTMP+4}')
                A(f's_lshl_b32 s{sTMP+4}, s{sTMP+2}, 8')
                A(f's_add_u32 s{sTMP+3}, s{sTMP+3}, s{sTMP+4}')
                A(f's_add_u32 s{sTMP+3}, s{sTMP+3}, 4096')
                A(f's_mul_i32 s{sTMP+5}, s{sTMP}, {9*32}')
                A(f's_lshl_b32 s{sTMP+4}, s{sTMP+2}, 4')
                A(f's_add_u32 s{sTMP+5}, s{sTMP+5}, s{sTMP+4}')
                A(f's_add_u32 s{sTMP+5}, s{sTMP+5}, {8*32}')
            A(f's_lshl_b32 s{sTMP+4}, s{sSEG}, 5')
            A(f's_lshl_b32 s{sTMP+1}, s{sTMP+1}, 4')
            A(f's_add_u32 s{sTMP+4}, s{sTMP+4}, s{sTMP+1}')
            A(f's_mul_i32 s{sTMP+4}, s{sTMP+4}, 1152')
            A(f's_add_u32 s{sTMP+4}, s{sTMP+4}, s{sTMP+5}')
            A(f's_add_u32 s{sTMP+3}, s{sTMP+3}, s{sA}')
            for n in range(8):
                A(f'buffer_load_dwordx4 {v(LD+4*n,4)}, v{vRL}, {WS}, s{sTMP+3} offen sc1')
                if n < 7: A(f's_add_u32 s{sTMP+3}, s{sTMP+3}, {4*WPB_M}')
            vo_b = vX0 if extra else vROb; vo_f = vX1 if extra else vROf
            A(f's_lshl_b32 s{sTMP+2}, s{sTMP+4}, 1')
            A(f's_add_u32 s{sTMP+2}, s{sTMP+2}, {OFF_BASE}')
            if which == 'C':
                self.srd_cached('x')
                A(f'buffer_load_dwordx2 {v(XX,2)}, v{vo_b}, {TS}, s{sTMP+4} offen')
                A(f'global_load_dwordx2 {v(BB,2)}, v{vB2x if extra else vB2r}, s[34:35]') if False else None
                A(f's_add_u32 s{sTMP}, s{sTMP+5}, 0')
                A(f'v_add_u32 v{BB+2}, s{sTMP+5}, v{vB2x if extra else vB2r}')
                A(f'global_load_dwordx2 {v(BB,2)}, v{BB+2}, s[34:35]')
            else:
                A(f'buffer_load_dwordx4 {v(XX,4)}, v{vo_f}, {WS}, s{sTMP+2} offen sc1')
            for n in range(8):
                A(f'v_mfma_f32_16x16x32_bf16 {v(AC,4)}, {v(vSEL,4)}, {v(LD+4*n,4)}, {v(AC,4) if n else 0}')
            if which == 'C':
                A(f's_mov_b32 s{sTMP}, 0xffff0000')
                for k, src in enumerate((XX, BB)):
                    t = LD + 4*k
                    A(f'v_lshlrev_b32 v{t}, 16, v{src}'); A(f'v_and_b32 v{t+1}, s{sTMP}, v{src}')
                    A(f'v_lshlrev_b32 v{t+2}, 16, v{src+1}'); A(f'v_and_b32 v{t+3}, s{sTMP}, v{src+1}')
                for r in range(4):
                    A(f'v_add_f32 v{LD+r}, v{LD+r}, v{LD+4+r}')
                    A(f'v_add_f32 v{AC+r}, v{AC+r}, v{LD+r}')
                A(f's_mov_b64 exec, s[{LO32}:{LO32+1}]')
                A(f'buffer_store_dwordx4 {v(AC,4)}, v{vo_f}, {WS}, s{sTMP+2} offen')
                A(f's_mov_b64 exec, -1')
            else:
                for r in range(4): A(f'v_add_f32 v{AC+r}, v{AC+r}, v{XX+r}')
                A(f'v_cvt_pk_bf16_f32 v{AC}, v{AC}, v{AC+1}')
                A(f'v_cvt_pk_bf16_f32 v{AC+1}, v{AC+2}, v{AC+3}')
                A(f's_mov_b64 exec, s[{LO32}:{LO32+1}]')
                A(f'buffer_store_dwordx2 {v(AC,2)}, v{vo_b}, {TS}, s{sTMP+4} offen')
                A(f's_mov_b64 exec, -1')
        task(False)
        lab = A.newlabel('rx')
        A(f's_cmp_eq_u32 s{sW}, 3'); A(f's_cbranch_scc0 {lab}')
        A(f's_cmp_lt_u32 s{sM}, 16'); A(f's_cbranch_scc0 {lab}')
        task(True)
        A.wait(vm=0, lgkm=0)
        A.label(lab)
    def srd_cached(self, which): pass
    def passC(self):
        A = self.A; opt = self.opt
        self.vT = 2
        C = {'wL16': 3, 'wDW1': 4, 'wD16': 5, 'wT1a': 6, 'wT1b': 7, 'wT1c': 8, 'wDO': 9, 'wTO0': 10, 'wTO1': 11,
             'wHW': 12, 'wHW8': 13, 'wRL': 14, 'wROb': 15, 'wROf': 16, 'wPS8': 17, 'wB1': 18, 'wYR': 19, 'wYR2': 20,
             'wX0': 21, 'wX1': 22, 'wL8': 23, 'wSEL0': 24, 'wSEL1': 25, 'wSEL2': 26, 'wSEL3': 27}
        self.consts(C)
        A('v_lshrrev_b32 v28, 8, v3'); A('v_and_b32 v28, 1, v28')
        A('v_lshlrev_b32 v29, 3, v28'); A('v_lshlrev_b32 v28, 5, v28')
        def w1(ti, kp, off=0, cnt=4):
            n = (ti*18 + kp)*4 + off
            return f'a[{n}:{n+cnt-1}]'
        f4 = [('a', 216 + 4*k) for k in range(10)] + [('v', 134 + 4*k) for k in range(26)]
        f2 = [('v', 238 + 2*k) for k in range(9)]
        def fr2(q, ko, off=0, cnt=4):
            if ko < 4: kd, n = f4[q*4 + ko]
            else: kd, n = f2[q]
            n += off
            return f'{kd}[{n}:{n+cnt-1}]'
        self.srd(64, D*9216)
        A(f's_mul_i32 s{sA}, s{sM}, 288')
        A(f's_mul_i32 s{sTMP}, s{sW}, {4*9216}')
        A(f's_add_u32 s{sB}, s{sA}, s{sTMP}')
        A(f's_mul_i32 s{sTMP}, s{sW}, {5*32*9216}')
        A(f's_add_u32 s{sC}, s{sA}, s{sTMP}')
        A(f's_add_u32 s{sC}, s{sC}, 256')
        A(f's_lshl_b32 s42, s{sW}, 10')
        A(f's_mul_i32 s45, s{sW}, 5120')
        blocks = []
        for b in range(9):
            dm = [(4, sB, (64*b + 16*y)*9216, y*4096) for y in range(4)]
            rd = [(w1(tau, 2*b+kk, 2*rr, 2), 6+tau, kk*8192 + rr*1024) for kk in range(2) for tau in range(2) for rr in range(2)]
            blocks.append(dict(dmas=dm, reads=rd))
        dm = [(5, sC, y*32*9216, y*1024, 45) for y in range(5)]
        rd = [(w1(2, kp, 2*rr, 2), 8, kp*1024 + rr*128) for kp in range(18) for rr in range(2)]
        blocks.append(dict(dmas=dm, reads=rd, slots=2))
        self.ring(blocks)
        self.srd(80, F*1152)
        A(f's_mul_i32 s{sA}, s{sM}, 144')
        A(f's_lshl_b32 s{sTMP}, s{sW}, 2')
        A(f's_add_u32 s{sA}, s{sA}, s{sTMP}')
        A(f's_mul_i32 s{sB}, s{sA}, 1152')
        self.ring(self.gemm2_blocks(fr2, 2, True, 9, 10, sB, 42, None))
        rt_stamp(A, opt, 6, sW, off=OFF_RT)
        A(f's_load_dwordx2 s[{sP0}:{sP0+1}], s[0:1], 72')
        A(f's_load_dwordx2 s[34:35], s[0:1], 88')
        A.wait(lgkm=0)
        A(f's_mul_i32 s{sTMP}, s{sM}, 288')
        A(f's_lshl_b32 s{sTMP+1}, s{sW}, 6')
        A(f's_add_u32 s{sTMP+1}, s{sTMP+1}, s{sTMP}')
        A(f'v_add_u32 v60, s{sTMP+1}, v18')
        A(f'global_load_dwordx2 v[44:45], v60, s[{sP0}:{sP0+1}]')
        A(f'global_load_dwordx2 v[46:47], v60, s[{sP0}:{sP0+1}] offset:32')
        A(f's_add_u32 s{sTMP}, s{sTMP}, 256')
        A(f'v_add_u32 v60, s{sTMP}, v18')
        A(f'global_load_dwordx2 v[48:49], v60, s[{sP0}:{sP0+1}]')
        A(f's_mov_b32 s{sTMP}, 0xffff0000')
        BI = 30
        for ti in range(3):
            for hf in range(2):
                A(f'v_lshlrev_b32 v{BI+4*ti+2*hf}, 16, v{44+2*ti+hf}')
                A(f'v_and_b32 v{BI+4*ti+2*hf+1}, s{sTMP}, v{44+2*ti+hf}')
        self.dbg_wait(sG, DBG_LN, None, 32)
        A(f's_lshl_b32 s{sTMP}, s53, 2')
        A(f'v_mov_b32 v60, s{sTMP}')
        A(f'global_load_dword v61, v60, s[14:15] sc1')
        A(f'v_readfirstlane_b32 s{sTMP}, v61')
        A(f's_cmp_lt_u32 s{sTMP}, 32')
        A(f's_cselect_b32 s{sSLOW}, 1, 0')
        if opt.get('fake') or opt.get('slow'): A(f's_mov_b32 s{sSLOW}, 1')
        self.srd(0, S*D*2)
        A(f's_mov_b32 s{LO32}, -1'); A(f's_mov_b32 s{LO32+1}, 0')
        A(f's_mov_b32 s{sK}, 0')
        A(f's_mov_b32 s{sSEG}, s{sG}')
        A(f's_mov_b32 s{sB}, {W_XT0}')
        self.seg_dma(OFF_YF, sSEG, sB, 3)
        L = A.newlabel('pc_loop'); nonext = A.newlabel('pc_nn')
        A.label(L)
        A(f'v_add_u32 v42, s{sB}, v19')
        A(f'v_add_u32 v43, s{sB}, v20')
        A.wait(vm=0)
        A('s_barrier')
        A(f's_add_u32 s{sD_}, s{sK}, 1')
        A(f's_cmp_lt_u32 s{sD_}, s{sN}')
        A(f's_cbranch_scc0 {nonext}')
        A(f's_add_u32 s{sD_}, s{sSEG}, 7')
        A(f's_xor_b32 s{sTMP+2}, s{sB}, {W_XT0 ^ W_XT1}')
        self.seg_dma(OFF_YF, sD_, sTMP+2, 3)
        A.label(nonext)
        AC1 = 44; YB = [64, 76, 88]
        def yread(kp):
            b = YB[kp % 3]
            return [f'ds_read_b128 {v(b,4)}, v42 offset:{kp*2048}', f'ds_read_b128 {v(b+4,4)}, v42 offset:{kp*2048+256}',
                    f'ds_read_b128 {v(b+8,4)}, v43 offset:{kp*2048}']
        for kp in range(2):
            for x in yread(kp): A(x)
        for kp in range(18):
            if kp + 2 < 18:
                for x in yread(kp+2): A(x)
            b = YB[kp % 3]
            for idx, (ti, yo) in enumerate([(0, 0), (0, 4), (1, 0), (1, 4), (2, 8)]):
                d = v(AC1+4*idx, 4)
                A(f'v_mfma_f32_16x16x32_bf16 {d}, {w1(ti,kp)}, {v(b+yo,4)}, {d if kp else 0}')
        c1 = -2.0*math.sqrt(2.0/math.pi)*math.log2(math.e); c2 = c1*0.044715
        A(f's_mov_b32 s{sTMP}, {fb(c1):#x}'); A(f's_mov_b32 s{sTMP+1}, {fb(c2):#x}')
        A(f'v_mov_b32 v100, s{sTMP}')
        for idx, ti in enumerate([0, 0, 1, 1, 2]):
            for r in range(4):
                x = AC1 + 4*idx + r; t = 64 + 4*idx + r
                A(f'v_add_f32 v{x}, v{x}, v{BI+4*ti+r}')
                A(f'v_mul_f32 v{t}, v{x}, v{x}')
                A(f'v_fma_f32 v{t}, v{t}, s{sTMP+1}, v100')
                A(f'v_mul_f32 v{t}, v{t}, v{x}')
            for r in range(4):
                t = 64 + 4*idx + r
                A(f'v_exp_f32 v{t}, v{t}')
            for r in range(4):
                t = 64 + 4*idx + r
                A(f'v_add_f32 v{t}, 1.0, v{t}')
            for r in range(4):
                t = 64 + 4*idx + r
                A(f'v_rcp_f32 v{t}, v{t}')
            for r in range(4):
                x = AC1 + 4*idx + r; t = 64 + 4*idx + r
                A(f'v_mul_f32 v{x}, v{x}, v{t}')
        for tt in range(2):
            p = 88 + 4*tt
            for t2 in range(2):
                r0 = AC1 + 4*(2*t2 + tt)
                A(f'v_cvt_pk_bf16_f32 v{p+2*t2}, v{r0}, v{r0+1}')
                A(f'v_cvt_pk_bf16_f32 v{p+2*t2+1}, v{r0+2}, v{r0+3}')
            A(f'ds_write_b128 v12, {v(p,4)} offset:{tt*4096}')
        A(f'v_cvt_pk_bf16_f32 v96, v{AC1+16}, v{AC1+17}')
        A(f'v_cvt_pk_bf16_f32 v97, v{AC1+18}, v{AC1+19}')
        A(f'ds_write_b64 v13, v[96:97]')
        A.wait(lgkm=0)
        A('s_barrier')
        A(f's_mul_i32 s{sA}, s{sG}, {WPB_GRP}')
        A(f's_and_b32 s{sTMP}, s{sK}, 1')
        A(f's_mul_i32 s{sTMP}, s{sTMP}, {WPB_SLOT}')
        A(f's_add_u32 s{sA}, s{sA}, s{sTMP}')
        A(f's_add_u32 s{sA}, s{sA}, {OFF_WPB}')
        A(f's_mul_i32 s{sC}, s{sM}, {WPB_M}')
        A(f's_mul_i32 s{sTMP}, s{sW}, 9216')
        A(f's_add_u32 s{sC}, s{sC}, s{sTMP}')
        A(f's_add_u32 s{sC}, s{sC}, s{sA}')
        self.gemm2(fr2, True, 44, 84, 104, 3, 23, 17, sC)
        self.reduce('C', 44, 14, 24, 15, 16, 21, 22, 28, 29)
        A(f's_xor_b32 s{sB}, s{sB}, {W_XT0 ^ W_XT1}')
        A(f's_add_u32 s{sSEG}, s{sSEG}, 7')
        A(f's_add_u32 s{sK}, s{sK}, 1')
        A(f's_cmp_lt_u32 s{sK}, s{sN}')
        A(f's_cbranch_scc1 {L}')
        A.wait(vm=0, lgkm=0)
        A('s_barrier')

    def passD(self):
        A = self.A; opt = self.opt
        self.vT = 2
        C = {'wL16': 3, 'wDA': 4, 'wTQ': 5, 'wDO': 9, 'wTO0': 10, 'wTO1': 11, 'wQW': 12, 'wOW': 13, 'wRL': 14, 'wROb': 15,
             'wROf': 16, 'wPS8': 17, 'wKW': 18, 'wKR': 19, 'wX0': 21, 'wX1': 22, 'wL8': 23,
             'wSEL0': 24, 'wSEL1': 25, 'wSEL2': 26, 'wSEL3': 27}
        for k in range(8): C[f'wM{k}'] = 28 + k
        self.consts(C)
        def wq(kp, off=0, cnt=4):
            n = kp*4 + off
            return f'a[{n}:{n+cnt-1}]'
        f4 = [('a', 144 + 4*k) for k in range(28)] + [('v', 224 + 4*k) for k in range(8)]
        def fr2(q, ko, off=0, cnt=4):
            kd, n = f4[q*4 + ko]; n += off
            return f'{kd}[{n}:{n+cnt-1}]'
        self.srd(16, D*8192)
        A(f's_lshl_b32 s{sA}, s{sM}, 8')
        A(f's_mul_i32 s{sTMP}, s{sW}, {16*8192}')
        A(f's_add_u32 s{sA}, s{sA}, s{sTMP}')
        A(f's_lshl_b32 s45, s{sW}, 12')
        A(f's_lshl_b32 s42, s{sW}, 10')
        blocks = []
        for b in range(9):
            dm = [(4, sA, (64*b + 4*y)*8192, y*1024, 45) for y in range(4)]
            rd = [(wq(4*b+kk, 2*rr, 2), 5, kk*4096 + rr*1024) for kk in range(4) for rr in range(2)]
            blocks.append(dict(dmas=dm, reads=rd))
        self.ring(blocks)
        self.srd(40, 4096*1152)
        A(f's_lshl_b32 s{sA}, s{sM}, 7')
        A(f's_lshl_b32 s{sTMP}, s{sW}, 2')
        A(f's_add_u32 s{sA}, s{sA}, s{sTMP}')
        A(f's_mul_i32 s{sB}, s{sA}, 1152')
        self.ring(self.gemm2_blocks(fr2, 2, False, 9, 10, sB, 42, None))
        rt_stamp(A, opt, 9, sW, off=OFF_RT)
        self.srd(96, S*D*2)
        A(f's_mov_b32 s{LO32}, -1'); A(f's_mov_b32 s{LO32+1}, 0')
        c = DH**-0.5*math.log2(math.e)
        A(f's_mov_b32 s{sCv}, {fb(c):#x}'); A(f's_mov_b32 s{sCv+1}, {fb(c):#x}')
        A(f's_and_b32 s{sTMP}, s{sW}, 1'); A(f's_lshl_b32 s{sTMP}, s{sTMP}, 10')
        A(f'v_add_u32 v36, s{sTMP}, v3')
        sFL = 48; sKV = 49; sKM = 50
        A(f's_lshl_b32 s{sFL}, s{sM}, 2'); A(f's_add_u32 s{sFL}, s{sFL}, {FL_CH}')
        A(f's_mov_b32 s{sK}, 0')
        A(f's_mov_b32 s{sSEG}, s{sG}')
        A(f's_mov_b32 s{sB}, {W_XT0}')
        self.seg_dma(OFF_XNF, sSEG, sB, 3)
        L = A.newlabel('pd_loop'); nonext = A.newlabel('pd_nn')
        A.label(L)
        A(f'v_add_u32 v8, s{sB}, v3')
        A.wait(vm=0)
        A('s_barrier')
        A(f's_add_u32 s{sD_}, s{sK}, 1')
        A(f's_cmp_lt_u32 s{sD_}, s{sN}')
        A(f's_cbranch_scc0 {nonext}')
        A(f's_add_u32 s{sD_}, s{sSEG}, 7')
        A(f's_xor_b32 s{sTMP+2}, s{sB}, {W_XT0 ^ W_XT1}')
        self.seg_dma(OFF_XNF, sD_, sTMP+2, 3)
        A.label(nonext)
        KX = 128; VX = 160
        A(f's_lshl_b32 s{sKV}, s{sSEG}, 5'); A(f's_add_u32 s{sKV}, s{sKV}, s{sM}')
        A(f's_lshl_b32 s{sKM}, s{sKV}, 11')
        A(f's_lshl_b32 s{sKV}, s{sKV}, 13')
        A(f's_add_u32 s{sTMP}, s{sKV}, {OFF_KXF}')
        for f in range(8):
            if f == 4: A(f's_add_u32 s{sTMP}, s{sTMP}, 4096')
            A(f'buffer_load_dwordx4 {v(KX+4*f,4)}, v3, {WS}, s{sTMP} offen offset:{(f%4)*1024} sc1')
        A(f's_lshr_b32 s{sTMP+1}, s{sW}, 1'); A(f's_lshl_b32 s{sTMP+1}, s{sTMP+1}, 12')
        A(f's_add_u32 s{sTMP}, s{sKV}, s{sTMP+1}'); A(f's_add_u32 s{sTMP}, s{sTMP}, {OFF_VXF}')
        for f in range(4):
            A(f'buffer_load_dwordx4 {v(VX+4*f,4)}, v3, {WS}, s{sTMP} offen offset:{f*1024} sc1')
        ACC = 64; XB = [96, 100, 104, 108]
        for kp in range(3): A(f'ds_read_b128 {v(XB[kp],4)}, v8 offset:{kp*1024}')
        for kp in range(36):
            if kp + 3 < 36: A(f'ds_read_b128 {v(XB[(kp+3)%4],4)}, v8 offset:{(kp+3)*1024}')
            A(f'v_mfma_f32_32x32x16_bf16 {v(ACC,16)}, {wq(kp)}, {v(XB[kp%4],4)}, {v(ACC,16) if kp else 0}')
        for u in range(2):
            p = 112 + 4*u
            for k in range(4): A(f'v_cvt_pk_bf16_f32 v{p+k}, v{ACC+8*u+2*k}, v{ACC+8*u+2*k+1}')
            A(f'ds_write_b128 v12, {v(p,4)} offset:{u*512}')
        A(f's_add_u32 s{sD_}, s{sSEG}, 1')
        if not opt.get('nochain'): self.ws_wait(sFL, sD_, sleep=1)
        KM2 = 120; VM = 176
        A(f's_lshl_b32 s{sTMP+1}, s{sW}, 9')
        A(f's_add_u32 s{sTMP}, s{sKM}, s{sTMP+1}'); A(f's_add_u32 s{sTMP}, s{sTMP}, {OFF_KMF}')
        A(f'buffer_load_dwordx2 {v(KM2,2)}, v23, {WS}, s{sTMP} offen sc1')
        A(f's_lshr_b32 s{sTMP+1}, s{sW}, 1'); A(f's_lshl_b32 s{sTMP+1}, s{sTMP+1}, 10')
        A(f's_add_u32 s{sTMP}, s{sKM}, s{sTMP+1}'); A(f's_add_u32 s{sTMP}, s{sTMP}, {OFF_VMF}')
        A(f'buffer_load_dwordx2 {v(VM,2)}, v23, {WS}, s{sTMP} offen sc1')
        A(f'buffer_load_dwordx2 {v(VM+2,2)}, v23, {WS}, s{sTMP} offen offset:512 sc1')
        A(f'ds_write2_b32 v18, v{KM2}, v{KM2} offset0:0 offset1:1')
        A(f'ds_write2_b32 v18, v{KM2+1}, v{KM2+1} offset0:128 offset1:129')
        A.wait(lgkm=0)
        A('s_barrier')
        QF = 64; KMF_ = 80; S0, S1, SM = 96, 100, 104
        for k4 in range(4):
            A(f'ds_read_b128 {v(QF+4*k4,4)}, v36 offset:{W_QEX + k4*2048}')
            A(f'ds_read_b64_tr_b16 {v(KMF_+4*k4,2)}, v19 offset:{k4*1024}')
            A(f'ds_read_b64_tr_b16 {v(KMF_+4*k4+2,2)}, v19 offset:{k4*1024+256}')
        for k4 in range(4):
            c_ = lambda d: (v(d, 4) if k4 else '0')
            A(f'v_mfma_f32_16x16x32_bf16 {v(S0,4)}, {v(KX+8*k4,4)}, {v(QF+4*k4,4)}, {c_(S0)}')
            A(f'v_mfma_f32_16x16x32_bf16 {v(S1,4)}, {v(KX+8*k4+4,4)}, {v(QF+4*k4,4)}, {c_(S1)}')
            A(f'v_mfma_f32_16x16x32_bf16 {v(SM,4)}, {v(KMF_+4*k4,4)}, {v(QF+4*k4,4)}, {c_(SM)}')
        ONES = 108; PM = 112; PX = 116; MX = 61; TT = 62
        for k in range(4): A(f'v_mov_b32 v{ONES+k}, 0x3f803f80')
        A(f'v_mov_b32 v{PM+1}, 0'); A(f'v_mov_b32 v{PM+2}, 0')
        for r in range(4):
            A(f'v_add_f32 v{S0+r}, v{S0+r}, v{28+r}')
            A(f'v_add_f32 v{S1+r}, v{S1+r}, v{32+r}')
        A(f'v_max3_f32 v{MX}, v{S0}, v{S0+1}, v{S0+2}')
        A(f'v_max3_f32 v{TT}, v{S1}, v{S1+1}, v{S1+2}')
        A(f'v_max3_f32 v{MX}, v{MX}, v{S0+3}, v{S1+3}')
        A(f'v_max_f32 v{MX}, v{MX}, v{TT}')
        A(f'v_max3_f32 v{MX}, v{MX}, v{SM}, v{SM+1}')
        for sw in ('16', '32'):
            A(f'v_mov_b32 v{TT}, v{MX}')
            A(f'v_permlane{sw}_swap_b32 v{MX}, v{TT}')
            A(f'v_max_f32 v{MX}, v{MX}, v{TT}')
        A(f'v_mul_f32 v{TT}, s{sCv}, v{MX}')
        for r in (S0, S0+2, S1, S1+2, SM):
            A(f'v_pk_fma_f32 {v(r,2)}, {v(r,2)}, s[{sCv}:{sCv+1}], {v(TT,2)} op_sel_hi:[1,1,0] neg_lo:[0,0,1] neg_hi:[0,0,1]')
        for r in (S0, S0+1, S0+2, S0+3, S1, S1+1, S1+2, S1+3, SM, SM+1): A(f'v_exp_f32 v{r}, v{r}')
        cvt = lambda d, x, y: f'v_cvt_pk_bf16_f32 v{d}, v{x}, v{y}'
        A(cvt(PX, S0, S0+1)); A(cvt(PX+1, S0+2, S0+3)); A(cvt(PX+2, S1, S1+1)); A(cvt(PX+3, S1+2, S1+3))
        A(cvt(PM, SM, SM+1)); A(cvt(PM+3, SM, SM+1))
        O = 64; LL = 80
        A(f'v_mfma_f32_16x16x32_bf16 {v(LL,4)}, {v(ONES,4)}, {v(PX,4)}, 0')
        for e in range(4): A(f'v_mfma_f32_16x16x32_bf16 {v(O+4*e,4)}, {v(VX+4*e,4)}, {v(PX,4)}, 0')
        A(f'v_mfma_f32_16x16x16_bf16 {v(LL,4)}, {v(ONES,2)}, {v(PM,2)}, {v(LL,4)}')
        for e in range(4):
            A(f'v_mfma_f32_16x16x16_bf16 {v(O+4*e,4)}, {v(VM+2*(e>>1),2)}, {v(PM+2*(e&1),2)}, {v(O+4*e,4)}')
        A(f's_nop 7')
        A(f'v_rcp_f32 v{MX}, v{LL}')
        for r in range(16): A(f'v_mul_f32 v{O+r}, v{MX}, v{O+r}')
        for ko in range(2):
            p = 84 + 4*ko
            for t2 in range(2):
                r0 = O + 4*(2*ko + t2)
                A(cvt(p+2*t2, r0, r0+1)); A(cvt(p+2*t2+1, r0+2, r0+3))
            A(f'ds_write_b128 v13, {v(p,4)} offset:{ko*1024}')
        A.wait(lgkm=0)
        A('s_barrier')
        A(f's_mul_i32 s{sA}, s{sG}, {WPB_GRP}')
        A(f's_and_b32 s{sTMP}, s{sK}, 1')
        A(f's_mul_i32 s{sTMP}, s{sTMP}, {WPB_SLOT}')
        A(f's_add_u32 s{sA}, s{sA}, s{sTMP}')
        A(f's_add_u32 s{sA}, s{sA}, {OFF_WPB}')
        A(f's_mul_i32 s{sC}, s{sM}, {WPB_M}')
        A(f's_mul_i32 s{sTMP}, s{sW}, 9216')
        A(f's_add_u32 s{sC}, s{sC}, s{sTMP}')
        A(f's_add_u32 s{sC}, s{sC}, s{sA}')
        self.gemm2(fr2, False, 64, 100, 120, 3, 23, 17, sC)
        self.reduce('D', 64, 14, 24, 15, 16, 21, 22, None, None)
        A(f's_xor_b32 s{sB}, s{sB}, {W_XT0 ^ W_XT1}')
        A(f's_add_u32 s{sSEG}, s{sSEG}, 7')
        A(f's_add_u32 s{sK}, s{sK}, 1')
        A(f's_cmp_lt_u32 s{sK}, s{sN}')
        A(f's_cbranch_scc1 {L}')
```

```python
import sys, struct
from asmlib import *
from layout import *
import chain as CH
import worker as WK

NAME = 'parallel_sum__memory_aug_recurrent_mem_tr__mixer_channel_mlp__prompt'
KN = NAME + '_kernel'

def table_text():
    out = ['.section .rodata,"a"', '.p2align 8', 'chain_tab:']
    for tid in range(256):
        c = chain_consts(tid >> 6, tid & 63)
        vals = [c[n] for n in CH_CONSTS] + [0]*(32-len(CH_CONSTS))
        out.append('.long ' + ','.join(str(x) for x in vals))
    out += ['.p2align 8', 'worker_tab:']
    for tid in range(256):
        c = worker_consts(tid >> 6, tid & 63)
        vals = [c[n] for n in WK_CONSTS] + [0]*(48-len(WK_CONSTS))
        out.append('.long ' + ','.join(str(x) for x in vals))
    return '\n'.join(out) + '\n'

def build(opt):
    A = Asm()
    hdr = open('cdna_kernels/' + NAME + '.s.ref').read().split('; Override')[0]
    head = hdr + '; @launch grid=(256,1,1) block=(256,1,1) lds=163840\n'
    head += '.amdgcn_target "amdgcn-amd-amdhsa--gfx950"\n.text\n.globl %s\n.p2align 8\n.type %s,@function\n%s:\n' % (KN, KN, KN)
    A('s_cmp_ge_u32 s2, 256')
    A('s_cbranch_scc1 k_end')
    A('s_load_dwordx2 s[14:15], s[0:1], 104')
    A('s_load_dwordx2 s[12:13], s[0:1], 112')
    A('s_getreg_b32 s3, hwreg(HW_REG_XCC_ID, 0, 4)')
    A('s_and_b32 s3, s3, 7')
    if opt.get('fake') == 1: A('s_lshr_b32 s3, s2, 5')
    if opt.get('fake') == 2: A('s_min_u32 s3, s3, 6')
    A('s_getpc_b64 s[28:29]')
    A.raw('  s_add_u32 s28, s28, chain_tab@rel32@lo+4')
    A.raw('  s_addc_u32 s29, s29, chain_tab@rel32@hi+12')
    ch = CH.Chain(A, opt)
    A('v_lshrrev_b32 v1, 6, v0')
    A.wait(lgkm=0)
    A(f'v_readfirstlane_b32 s{CH.sW}, v1')
    A(f's_mov_b32 s{CH.sWS}, s12')
    A(f's_and_b32 s{CH.sWS+1}, s13, 0xffff')
    A(f's_mov_b32 s{CH.sWS+2}, 0x10000000')
    A(f's_mov_b32 s{CH.sWS+3}, 0x20000')
    A('s_lshl_b32 s16, s3, 2')
    A('v_mov_b32 v2, s16')
    A('v_mov_b32 v3, 1')
    A(f's_cmp_eq_u32 s{CH.sW}, 0')
    A('s_cbranch_scc0 k_noatom')
    A('s_mov_b64 exec, 1')
    A.raw('  global_atomic_add v4, v2, v3, s[14:15] sc0')
    A('s_mov_b64 exec, -1')
    A.raw('k_noatom:')
    ch.preload()
    rt_stamp(A, opt, 0, CH.sW, off=OFF_RT)
    A(f's_cmp_eq_u32 s{CH.sW}, 0')
    A('s_cbranch_scc0 k_noticket')
    A('s_mov_b64 exec, 1')
    A('v_mov_b32 v5, 0x27f00')
    A.raw('  s_waitcnt vmcnt(%d)' % (7 if opt.get('rt') else 6))
    A('ds_write_b32 v5, v4')
    A('s_mov_b64 exec, -1')
    A.raw('  s_waitcnt lgkmcnt(0)')
    A.label('k_noticket')
    A('s_barrier')
    A('v_mov_b32 v5, 0x27f00')
    A('ds_read_b32 v4, v5')
    A.wait(lgkm=0)
    A(f'v_readfirstlane_b32 s{CH.sH}, v4')
    A('s_barrier')
    if opt.get('chain_only'):
        A('s_cmp_eq_u32 s3, 0')
        A('s_cbranch_scc0 k_end')
        A(f's_cmp_ge_u32 s{CH.sH}, 32')
        A('s_cbranch_scc1 k_end')
    else:
        A(f's_cmp_lt_u32 s{CH.sH}, 32')
        A('s_cbranch_scc1 k_role')
        A(f's_cmp_eq_u32 s{CH.sW}, 0')
        A('s_cbranch_scc0 k_ov_w')
        A('s_mov_b64 exec, 1')
        A(f'v_mov_b32 v2, {DBG_OVF*4}')
        A('v_mov_b32 v3, 1')
        A('global_atomic_add v4, v2, v3, s[14:15] sc0')
        A.wait(vm=0)
        A('v_readfirstlane_b32 s20, v4')
        A('s_mov_b64 exec, -1')
        A('v_and_b32 v2, 7, v0'); A('v_lshlrev_b32 v2, 2, v2')
        A('s_mov_b32 s21, 0')
        A.label('k_ov_poll')
        A('global_load_dword v3, v2, s[14:15] sc1')
        A('s_add_u32 s21, s21, 1')
        A.wait(vm=0)
        A('s_mov_b32 s22, 0')
        for x in range(8):
            A(f'v_readlane_b32 s{40+x}, v3, {x}')
        for x in range(8):
            A(f's_add_u32 s22, s22, s{40+x}')
        A('s_cmp_ge_u32 s22, 256')
        A('s_cbranch_scc1 k_ov_done')
        A('s_sleep 4')
        A('s_cmp_lt_u32 s21, 0x40000')
        A('s_cbranch_scc1 k_ov_poll')
        A.label('k_ov_done')
        A('s_mov_b32 s23, 0'); A('s_mov_b32 s24, 0')
        for x in range(7, -1, -1): pass
        A('s_mov_b32 s25, 0')
        for x in range(8):
            lab = A.newlabel('ovx')
            A(f's_cmp_lg_u32 s25, 0'); A(f's_cbranch_scc1 {lab}')
            A(f's_min_u32 s26, s{40+x}, 32'); A('s_sub_u32 s27, 32, s26')
            A('s_cmp_lt_u32 s20, s27')
            l2 = A.newlabel('ovy')
            A(f's_cbranch_scc0 {l2}')
            A(f's_mov_b32 s23, {x}'); A('s_add_u32 s24, s26, s20'); A('s_mov_b32 s25, 1')
            A(f's_branch {lab}')
            A.label(l2)
            A('s_sub_u32 s20, s20, s27')
            A.label(lab)
        A('s_lshl_b32 s23, s23, 8'); A('s_or_b32 s23, s23, s24')
        A('v_mov_b32 v4, s23'); A('v_mov_b32 v5, 0x27f00')
        A('ds_write_b32 v5, v4')
        A.wait(lgkm=0)
        A.label('k_ov_w')
        A('s_barrier')
        A('v_mov_b32 v5, 0x27f00')
        A('ds_read_b32 v4, v5')
        A.wait(lgkm=0)
        A('v_readfirstlane_b32 s20, v4')
        A('s_barrier')
        A('s_lshr_b32 s3, s20, 8')
        A(f's_and_b32 s{CH.sH}, s20, 31')
        A.label('k_role')
        A('s_cmp_eq_u32 s3, 0')
        A('s_cbranch_scc0 k_worker')
    if opt.get('nochain'):
        ch.init(short=True)
    else:
        rt_stamp(A, opt, 1, CH.sW, off=OFF_RT)
        ch.init()
        rt_stamp(A, opt, 3, CH.sW, off=OFF_RT)
        if opt.get('chain_only'):
            ch.loop(False, 'f')
        else:
            A(f's_cmp_lg_u32 s{CH.sSLOW}, 0')
            A('s_cbranch_scc1 ch_slow_entry')
            ch.loop(False, 'f')
            A('s_branch ch_done')
            A.label('ch_slow_entry')
            ch.loop(True, 's')
            A.label('ch_done')
        rt_stamp(A, opt, 4, CH.sW, off=OFF_RT)
    A.wait(vm=0, lgkm=0)
    if opt.get('ts') or opt.get('tt'):
        A.raw('  s_memtime s[86:87]')
        A('s_waitcnt lgkmcnt(0)')
        A(f's_sub_u32 s{CH.sTS+19}, s86, s84')
        A(f's_lshl_b32 s27, s{CH.sH}, 2')
        A(f's_add_u32 s27, s27, s{CH.sW}')
        A(f's_lshl_b32 s27, s27, 7')
        A(f's_add_u32 s27, s27, {OFF_FLAG+0x8000}')
        A(f's_mov_b32 s{CH.sTS+18}, s{CH.sDEAD}')
        A('s_mov_b64 exec, 1')
        A('v_mov_b32 v2, 0')
        for k in range(20):
            A(f'v_mov_b32 v3, s{CH.sTS+k}')
            A(f'buffer_store_dword v3, v2, s[{CH.sWS}:{CH.sWS+3}], s27 offen offset:{4*k}')
        for k in range(8):
            A(f'v_mov_b32 v3, s{88+k}')
            A(f'buffer_store_dword v3, v2, s[{CH.sWS}:{CH.sWS+3}], s27 offen offset:{4*(20+k)}')
        A.wait(vm=0)
    if not opt.get('chain_only'):
        A('s_branch k_end')
        A.label('k_worker')
        A(f's_sub_u32 s{WK.sG}, s3, 1')
        A(f's_cmp_eq_u32 s{WK.sG}, 0')
        A(f's_cselect_b32 s{WK.sN}, 10, 9')
        A(f's_mov_b32 s{WK.sSLOW}, 1')
        A(f's_mov_b32 s53, s3')
        A(f's_mov_b32 s{WK.sDEAD}, 0')
        A('s_getpc_b64 s[30:31]')
        A.raw('  s_add_u32 s30, s30, worker_tab@rel32@lo+4')
        A.raw('  s_addc_u32 s31, s31, worker_tab@rel32@hi+12')
        wk = WK.Worker(A, opt)
        rt_stamp(A, opt, 1, CH.sW, off=OFF_RT)
        wk.layernorm()
        rt_stamp(A, opt, 2, CH.sW, off=OFF_RT)
        if opt.get('passes', 15) & 1: wk.passA()
        rt_stamp(A, opt, 5, CH.sW, off=OFF_RT)
        if opt.get('passes', 15) & 2: wk.passC()
        rt_stamp(A, opt, 8, CH.sW, off=OFF_RT)
        if opt.get('passes', 15) & 4: wk.passD()
        rt_stamp(A, opt, 11, CH.sW, off=OFF_RT)
        A.wait(vm=0, lgkm=0)
    A.label('k_end')
    A('s_endpgm')
    tail = f'''
.section .rodata,"a"
.p2align 6
.amdhsa_kernel {KN}
  .amdhsa_next_free_vgpr 512
  .amdhsa_next_free_sgpr 102
  .amdhsa_accum_offset 256
  .amdhsa_group_segment_fixed_size 0
  .amdhsa_kernarg_size 120
  .amdhsa_user_sgpr_count 2
  .amdhsa_user_sgpr_kernarg_segment_ptr 1
  .amdhsa_system_sgpr_workgroup_id_x 1
.end_amdhsa_kernel
'''
    print('nops', A.nops, 'auto waits', A.nwaits, 'lines', len(A.out), file=sys.stderr)
    return head + A.text() + tail + table_text()

if __name__ == '__main__':
    opt = {}
    for a_ in sys.argv[2:]:
        k, _, val = a_.partition('=')
        opt[k] = int(val) if val else 1
    open(sys.argv[1], 'w').write(build(opt))
```

```python
import re

def _parse_regs(tok):
    tok = tok.strip()
    m = re.fullmatch(r'([vas])\[(\d+):(\d+)\]', tok)
    if m:
        return [(m.group(1), i) for i in range(int(m.group(2)), int(m.group(3)) + 1)]
    m = re.fullmatch(r'([vas])(\d+)', tok)
    if m:
        return [(m.group(1), int(m.group(2)))]
    if tok == 'vcc': return [('s', 'vcc')]
    if tok in ('exec', 'exec_lo', 'exec_hi'): return [('s', 'exec')]
    if tok == 'm0': return [('s', 'm0')]
    return []

def split_ops(s):
    out = []; depth = 0; cur = ''
    for ch in s:
        if ch == '[': depth += 1
        if ch == ']': depth -= 1
        if ch == ',' and depth == 0:
            out.append(cur); cur = ''
        else:
            cur += ch
    if cur.strip(): out.append(cur)
    return [o.strip() for o in out]

class I:
    def __init__(self, text):
        self.text = text
        t = text.split(';')[0].strip()
        parts = t.split(None, 1)
        self.op = parts[0]
        rest = parts[1] if len(parts) > 1 else ''
        ops = split_ops(rest)
        clean = []
        for o in ops:
            clean.append(o.split()[0] if o.split() else o)
        self.ops = clean
        self.mods = rest
        op = self.op
        R = lambda k: _parse_regs(clean[k]) if k < len(clean) else []
        self.rd = []; self.wr = []
        self.kind = 'other'
        if op.startswith('v_smfmac'):
            self.kind = 'mfma'; self.wr = R(0); self.rd = R(0) + R(1) + R(2) + R(3)
            self.srcC = R(0); self.srcAB = R(1) + R(2) + R(3)
            self.passes = 4 if '16x16' in op else 8
        elif op.startswith('v_mfma'):
            self.kind = 'mfma'; self.wr = R(0); self.rd = R(1) + R(2) + R(3)
            self.srcC = R(3); self.srcAB = R(1) + R(2)
            self.passes = 4 if '16x16' in op else 8
        elif op.startswith('ds_read') :
            self.kind = 'dsr'; self.wr = R(0); self.rd = R(1)
        elif op.startswith('ds_write') or op.startswith('ds_add'):
            self.kind = 'dsw'; self.rd = sum((R(k) for k in range(len(clean))), [])
        elif op.startswith('buffer_load'):
            if ' lds' in (' ' + rest):
                self.kind = 'vmemlds'; self.rd = R(0) + R(1) + R(2) + [('s', 'm0')]
            else:
                self.kind = 'vmemld'; self.wr = R(0); self.rd = R(1) + R(2) + R(3)
        elif op.startswith('buffer_store'):
            self.kind = 'vmemst'; self.rd = R(0) + R(1) + R(2) + R(3)
            self.wide = ('x4' in op or 'x3' in op)
            self.data = R(0)
        elif op.startswith('buffer_atomic') or op.startswith('global_atomic'):
            self.kind = 'vmemld' if 'sc0' in rest else 'vmemst'
            if self.kind == 'vmemld':
                self.wr = R(0); self.rd = sum((R(k) for k in range(1 if op.startswith('global') else 0, len(clean))), [])
            else:
                self.rd = sum((R(k) for k in range(len(clean))), []); self.wide = False; self.data = []
        elif op.startswith('global_load'):
            self.kind = 'vmemld'; self.wr = R(0); self.rd = R(1) + R(2)
        elif op.startswith('global_store'):
            self.kind = 'vmemst'; self.rd = R(0) + R(1) + R(2); self.wide = ('x4' in op or 'x3' in op); self.data = R(1)
        elif op.startswith('buffer_wbl2') or op.startswith('buffer_inv'):
            self.kind = 'vmemst'; self.wide = False; self.data = []
        elif op.startswith('s_load') or op in ('s_memtime', 's_memrealtime'):
            self.kind = 'smem'; self.wr = R(0); self.rd = R(1)
        elif op.startswith('v_cmp'):
            self.kind = 'valu'; self.wr = R(0); self.rd = R(1) + R(2)
            if op.startswith('v_cmpx'): self.wr += [('s', 'exec')]
        elif op.startswith('v_permlane'):
            self.kind = 'valu'; self.perm = True; self.wr = R(0) + R(1); self.rd = R(0) + R(1)
        elif op.startswith('v_readfirstlane') or op.startswith('v_readlane'):
            self.kind = 'valu'; self.rfl = True; self.wr = R(0); self.rd = R(1) + R(2)
        elif op.startswith('v_'):
            self.kind = 'valu'; self.wr = R(0)
            self.rd = sum((R(k) for k in range(1, len(clean))), [])
            if op.startswith('v_fmac') or op.startswith('v_pk_fmac') or op.startswith('v_writelane') or 'dpp' in op or 'row_' in rest or 'quad_perm' in rest:
                self.rd += R(0)
            if op.startswith('v_cndmask') and len(clean) == 3: self.rd += [('s', 'vcc')]
            if op.startswith('v_add_co') or op.startswith('v_addc_co') or op.startswith('v_sub_co'):
                self.wr += R(1)
            if op.startswith('v_div_fmas'): self.rd += [('s', 'vcc')]
            self.trans = any(op.startswith(x) for x in ('v_exp', 'v_log', 'v_rcp', 'v_rsq', 'v_sqrt', 'v_sin', 'v_cos'))
            self.dpp = ('dpp' in op or 'row_' in rest or 'quad_perm' in rest)
        elif op.startswith('s_'):
            self.kind = 'salu'
            if op in ('s_waitcnt', 's_nop', 's_barrier', 's_sleep', 's_setprio', 's_endpgm') or op.startswith('s_cbranch') or op == 's_branch':
                self.kind = 'ctl'
            elif op.startswith('s_cmp') or op.startswith('s_bitcmp'):
                self.rd = R(0) + R(1)
            else:
                self.wr = R(0); self.rd = sum((R(k) for k in range(1, len(clean))), [])
                if 'saveexec' in op: self.wr += [('s', 'exec')]; self.rd += [('s', 'exec')]
        for a in ('perm', 'rfl', 'trans', 'dpp', 'wide'):
            if not hasattr(self, a): setattr(self, a, False)

class Asm:
    def __init__(self, check=True):
        self.out = []
        self.hist = []
        self.lgk = []
        self.vm = []
        self.nops = 0
        self.nwaits = 0
        self.uid = 0
        self.smem_pending = False
    def label(self, name):
        self.out.append(name + ':')
        self.reset()
    def newlabel(self, base='L'):
        self.uid += 1
        return f'{base}_{self.uid}'
    def reset(self, assume_drained=True):
        self.hist = [None] * 0
        self.lgk = []; self.vm = []
        self.hist_unknown = True
    def comment(self, s):
        self.out.append('  ; ' + s)
    def raw(self, s):
        self.out.append(s)
    def mark_lgk(self):
        m = set(); m = self.lgk[-1] if self.lgk else None
        return m
    def wait_lgk_marker(self, m):
        for idx, d in enumerate(self.lgk):
            if d is m:
                self.wait(lgkm=min(len(self.lgk) - 1 - idx, 15)); return
    def wait(self, vm=None, lgkm=None):
        parts = []
        if vm is not None:
            parts.append(f'vmcnt({vm})')
            if vm < len(self.vm): self.vm = self.vm[len(self.vm) - vm:] if vm > 0 else []
        if lgkm is not None:
            parts.append(f'lgkmcnt({lgkm})')
            if lgkm < len(self.lgk): self.lgk = self.lgk[len(self.lgk) - lgkm:] if lgkm > 0 else []
            if lgkm == 0: self.smem_pending = False
        self._emit(I('s_waitcnt ' + ' '.join(parts)))
    def _emit(self, ins):
        self.out.append('  ' + ins.text)
        if getattr(self, 'cut', None) is not None:
            self.cutn += 1
            if self.cutn == self.cut:
                self.out.append('  s_waitcnt lgkmcnt(0)')
                self.out.append('  s_mov_b64 exec, -1')
                self.out.append('  s_branch ' + self.cutlab)
                self.cut = None
        n = 1
        if ins.op == 's_nop': n = int(ins.ops[0]) + 1
        for _ in range(n): self.hist.append(ins if _ == 0 else None)
        if len(self.hist) > 40: self.hist = self.hist[-40:]
    def _need_states(self, ins):
        need = 0
        rd = set(ins.rd); wr = set(ins.wr)
        H = self.hist
        for d in range(1, min(len(H), 24) + 1):
            p = H[-d]
            if p is None: continue
            gap = d - 1
            req = 0
            pw = set(p.wr)
            if p.kind == 'valu':
                vw = {r for r in pw if r[0] in 'va'}
                sw = {r for r in pw if r[0] == 's'}
                if ins.kind == 'mfma' and vw & rd: req = max(req, 2)
                if ins.kind == 'valu' and ins.perm and vw & rd: req = max(req, 2)
                if ins.kind == 'valu' and ins.dpp and vw & rd: req = max(req, 2)
                if ins.kind == 'valu' and ins.rfl and vw & rd: req = max(req, 1)
                if p.trans and ins.kind in ('valu', 'mfma', 'dsw', 'vmemst') and vw & rd: req = max(req, 1)
                if sw and ins.kind == 'valu' and (sw - {('s', 'exec')}) & rd: req = max(req, 2)
                if sw and ins.kind in ('vmemld', 'vmemst', 'vmemlds') and sw & rd: req = max(req, 5)
                if sw and ins.kind in ('salu', 'smem') and sw & rd: req = max(req, 4)
                if ('s', 'exec') in sw and ins.kind == 'mfma': req = max(req, 4)
                if ('s', 'exec') in sw and (ins.rfl or ins.perm): req = max(req, 4)
            if p.kind == 'mfma':
                np_ = p.passes
                tD = {4: 8, 8: 12, 16: 20}[np_]
                if ins.kind == 'mfma':
                    if pw & set(ins.srcAB): req = max(req, tD)
                    ov = pw & set(ins.srcC)
                    if ov:
                        same = (set(ins.srcC) == pw) and ins.passes == np_
                        if not same: req = max(req, {4: 6, 8: 10}[np_])
                    if (pw & wr) and not ov: req = max(req, tD)
                elif ins.kind in ('valu', 'dsw', 'vmemst', 'vmemld', 'dsr', 'vmemlds'):
                    if pw & (rd | wr): req = max(req, tD)
                if ins.kind == 'valu' and set(p.srcC) & wr: req = max(req, {4: 3, 8: 7}[np_])
            if p.kind == 'vmemst' and p.wide and ins.kind in ('valu', 'dsr', 'vmemld', 'mfma') and set(p.data) & wr: req = max(req, 2)
            if p.kind == 'salu' and ('s', 'm0') in pw and ins.kind == 'vmemlds': req = max(req, 1)
            if req > gap: need = max(need, req - gap)
        return need
    def __call__(self, text, nowait=False):
        for line in text.strip('\n').split('\n'):
            line = line.strip()
            if not line: continue
            if line.startswith(';'):
                self.out.append('  ' + line); continue
            if line.endswith(':'):
                self.label(line[:-1]); continue
            self.ins(line, nowait)
    def ins(self, text, nowait=False):
        ins = I(text)
        rw = set(ins.rd) | set(ins.wr)
        if not nowait:
            k = -1
            for idx, dst in enumerate(self.lgk):
                if dst & rw: k = idx
            if k >= 0:
                n = len(self.lgk) - 1 - k
                if self.smem_pending: n = 0
                self.wait(lgkm=min(n, 15)); self.nwaits += 1
            k = -1
            for idx, dst in enumerate(self.vm):
                if dst & rw: k = idx
            if k >= 0:
                n = len(self.vm) - 1 - k
                self.wait(vm=min(n, 63)); self.nwaits += 1
        need = self._need_states(ins)
        while need > 0:
            n = min(need, 16)
            self._emit(I(f's_nop {n-1}')); self.nops += n; need -= n
        self._emit(ins)
        if ins.kind == 'dsr': self.lgk.append(set(ins.wr))
        elif ins.kind == 'dsw': self.lgk.append(set())
        elif ins.kind == 'smem': self.lgk.append(set(ins.wr)); self.smem_pending = True
        elif ins.kind == 'vmemld': self.vm.append(set(ins.wr))
        elif ins.kind in ('vmemst', 'vmemlds'): self.vm.append(set())
        if ins.op in ('s_branch',) or ins.op.startswith('s_cbranch'):
            pass
    def text(self):
        return '\n'.join(self.out) + '\n'

def v(n, c=1):
    return f'v{n}' if c == 1 else f'v[{n}:{n+c-1}]'
def a(n, c=1):
    return f'a{n}' if c == 1 else f'a[{n}:{n+c-1}]'
def s(n, c=1):
    return f's{n}' if c == 1 else f's[{n}:{n+c-1}]'

def rt_stamp(A, opt, idx, sW, ws='s[4:7]', off=0):
    if not opt.get('rt'): return
    lab = A.newlabel('rt')
    A.raw(f'  s_cmp_eq_u32 s{sW}, 0')
    A.raw(f'  s_cbranch_scc0 {lab}')
    A.raw(f'  s_memrealtime s[96:97]')
    A.raw(f'  s_lshl_b32 s95, s2, 6')
    A.raw(f'  s_add_u32 s95, s95, {off + idx*4}')
    A.raw(f'  s_waitcnt lgkmcnt(0)')
    A.raw(f'  s_mov_b64 exec, 1')
    A.raw(f'  v_mov_b32 v62, s96')
    A.raw(f'  v_mov_b32 v63, 0')
    A.raw(f'  buffer_store_dword v62, v63, {ws}, s95 offen')
    A.raw(f'  s_mov_b64 exec, -1')
    A.raw(f'{lab}:')
```

```python
from asmlib import *
from layout import *
import math

vMS,vF0,vF1,vF2,vIDX,vQW,vKW,vQR,vKR,vOW,vRL,vRS = range(1,13)
T13,T14,T15 = 13,14,15
AB0,AB1 = 16,20
AQ0,AQ1,AK0,AK1,AV0,AV1 = 24,28,32,36,40,44
SB0,SB1,SB2 = 48,56,64
WV0 = 72
def frag_alloc():
    m = {}
    regs = [('v', WV0 + 8*k) for k in range((256-WV0)//8)] + [('a', 8*k) for k in range(32)]
    names = []
    for t in range(9):
        for tau in range(2): names.append(('Q',t,tau))
    for t in range(9):
        for tau in range(2): names.append(('V',t,tau))
    names.append(('K',8,1))
    for q in range(9):
        for tp in range(2): names.append(('O',tp,q))
    assert len(names) == len(regs) == 55, (len(names), len(regs))
    for n, r in zip(names, regs): m[n] = r
    return m
FR = frag_alloc()
LF = {}
for t in range(9):
    for tau in range(2):
        if (t, tau) != (8, 1): LF[('K',t,tau)] = 2*t+tau
def freg(name, off=0, cnt=8):
    k, n = FR[name]
    return f'{k}[{n+off}:{n+off+cnt-1}]'
def lf_addr(name, hh):
    f = LF[name]
    base = [vF0, vF1, vF2][f//8]
    return base, (f % 8)*8192 + hh*1024

sWS = 4
sT  = 8
sH, sW, sS = 16, 17, 18
sPBc, sPBn, sPBx = 21, 54, 55
sMBa, sMBb, sMBc = 22, 23, 24
sTASK = 25
sRSO  = 26
sTMP  = 27
sKX, sVX, sKM, sVM = 36, 37, 38, 39
sCv = 40
sMASK = 42
sDEAD = 44
sRL0 = 46
sPBr = 54
sFLAG = 55
sNEED = 56
sLO = 57
sPBl = 59
sWARM = 45
sKXW = 98
sFLC = 99
sR7 = 100
sK7 = 101
sPUB = 19
sCLR = 20
sHI = 56
sHP = 83
sKVF = 82
sKVB = 81
sSLOW = 80
sTS = 60
PBRING = [OFF_PB, OFF_PB+PBS, OFF_PB+2*PBS]

def smf(A_, d, a_reg, bname_or_reg):
    if isinstance(bname_or_reg, tuple): b = freg(bname_or_reg)
    else: b = v(bname_or_reg, 8)
    return f'v_smfmac_f32_16x16x64_bf16 {v(d,4)}, {v(a_reg,4)}, {b}, {v(vIDX)}'

def interleave(main, fill):
    out = []
    for k, m in enumerate(main):
        out.append(m)
        if k < len(fill): out += fill[k]
    for k in range(len(main), len(fill)): out += fill[k]
    return out

def lfread(dst, name):
    r = []
    for hh in range(2):
        b, off = lf_addr(name, hh)
        r.append(f'ds_read_b128 {v(dst+4*hh,4)}, {v(b)} offset:{off}')
    return r

def aread(dst, t):
    return f'ds_read_b128 {v(dst,4)}, {v(vMS)} offset:{L_MEMST-BASE_MS+t*1024}'

class Chain:
    def __init__(self, A, opt):
        self.A = A; self.opt = opt
    def ts(self, k):
        if self.opt.get('upto') == k+100 or self.opt.get('upto') == k:
            self.A.wait(vm=0, lgkm=0)
            self.A('s_branch ch_skip')
        if not self.opt.get('ts'): return
        A = self.A
        A.raw(f'  s_memtime s[{sTS}:{sTS+1}]')
        A.raw(f'  s_waitcnt lgkmcnt(0)')
        A.lgk = []
        A.raw(f'  s_sub_u32 s{sTS+2}, s{sTS}, s{sTS+3}')
        A.raw(f'  s_add_u32 s{sTS+4+k}, s{sTS+4+k}, s{sTS+2}')
        A.raw(f'  s_mov_b32 s{sTS+3}, s{sTS}')

    def at(self, k, adj=0):
        st = self.opt.get('abs')
        if st is None: return
        st += adj
        A = self.A
        lab = A.newlabel('abs')
        A.raw(f'  s_cmp_eq_u32 s{sS}, {st}')
        A.raw(f'  s_cbranch_scc0 {lab}')
        A.raw(f'  s_memtime s[96:97]')
        A.raw(f'  s_waitcnt lgkmcnt(0)')
        A.raw(f'  s_mov_b32 s{88+k}, s96')
        A.raw(f'{lab}:')
    def preload(self):
        A = self.A
        A(f'v_lshlrev_b32 v13, 7, v0')
        for k in range(6): A(f'global_load_dwordx4 v[{16+4*k}:{19+4*k}], v13, s[28:29] offset:{16*k}')
        A(f's_load_dwordx2 s[30:31], s[0:1], 16')
        A(f's_load_dwordx2 s[32:33], s[0:1], 24')
        A(f's_load_dwordx2 s[34:35], s[0:1], 32')
        A(f's_load_dwordx2 s[36:37], s[0:1], 40')
        A(f's_load_dwordx2 s[38:39], s[0:1], 8')
    def init(self, short=False):
        A = self.A; opt = self.opt
        A.wait(vm=0, lgkm=0)
        names = CH_CONSTS
        for k, n in enumerate(names[:12]):
            A(f'v_mov_b32 v{1+k}, v{16+k}')
        vDQ, vDO, vDO8, vTR0, vTR1, vM0 = 28, 29, 30, 31, 32, 33
        blocks = []
        for t in range(9): blocks.append(('Q', t))
        for t in range(9): blocks.append(('V', t))
        blocks += [('O', 0, 0), ('O', 0, 2), ('O', 0, 4), ('O', 0, 6), ('O', 1, 0), ('O', 1, 2), ('O', 1, 4), ('O', 1, 6), ('O8',)]
        for t in range(9): blocks.append(('K', t))
        assert len(blocks) == 36
        ptr = {'Q': 30, 'K': 32, 'V': 34, 'O': 36, 'O8': 36}
        size = {'Q': D*8192, 'K': D*8192, 'V': D*8192, 'O': 4096*1152, 'O8': 4096*1152}
        A(f's_lshl_b32 s40, s{sH}, 8')
        A(f's_mul_i32 s41, s{sH}, {128*1152}')
        A(f's_lshl_b32 s42, s{sW}, 10')
        cur = [None]
        def issue(n):
            b = blocks[n]; k = b[0]
            sl = n % 9
            if cur[0] != ptr[k]:
                A(f's_mov_b32 s{sT}, s{ptr[k]}')
                A(f's_and_b32 s{sT+1}, s{ptr[k]+1}, 0xffff')
                A(f's_mov_b32 s{sT+2}, {size[k]}')
                A(f's_mov_b32 s{sT+3}, 0x20000')
                cur[0] = ptr[k]
            for y in range(4):
                if k in 'QKV':
                    so = (64*b[1] + 16*y)*8192; base = 40; vo = vDQ
                elif k == 'O':
                    so = (64*b[1] + 32*(y >> 1) + 8*(y & 1))*1152 + b[2]*32; base = 41; vo = vDO
                else:
                    so = (32*(y >> 1) + 8*(y & 1))*1152 + 8*32; base = 41; vo = vDO8
                A(f's_add_u32 s43, s{base}, {so}')
                A(f's_add_u32 m0, s42, {sl*16384 + y*4096}')
                A(f'buffer_load_dwordx4 {v(vo)}, s[{sT}:{sT+3}], s43 offen lds')
        DEPTH = opt.get("depth", 6)
        if not short:
            for n in range(DEPTH): issue(n)
        nclr = 0
        A(f'ds_write_b128 {v(vMS)}, v[34:37] offset:{L_SPARE-BASE_MS}')
        A(f'v_mov_b64 v[40:41], 0')
        A(f'v_mov_b64 v[42:43], 0')
        A(f's_mul_i32 s{sTMP}, s{sH}, {HS}')
        A(f's_mul_i32 s{sTMP+1}, s{sW}, 2304')
        A(f's_add_u32 s{sTMP}, s{sTMP}, s{sTMP+1}')
        A(f's_lshl_b32 s{sLO}, s{sW}, 9')
        A(f's_add_u32 s{sLO}, s{sLO}, {L_QEX-BASE_MS-2048}')
        A(f's_add_u32 s{sPBc}, s{sTMP}, {PBRING[0]-BASE_MS}')
        A(f's_sub_u32 s{sPBl}, s{sPBc}, s{sLO}')
        self.clear_partial(sPBc, init=True); nclr += 3
        A(f'v_mov_b64 v[44:45], -1')
        A(f'v_mov_b64 v[46:47], -1')
        A(f's_mul_i32 s{sTMP}, s{sH}, 864')
        A(f's_add_u32 s{sTMP}, s{sTMP}, {OFF_MB-BASE_MS}')
        A(f's_mov_b32 exec_hi, 0x3fffff')
        A(f'buffer_store_dwordx4 v[44:47], {v(vMS)}, s[{sWS}:{sWS+3}], s{sTMP} offen sc1'); nclr += 1
        A(f's_mov_b64 exec, -1')
        if not opt.get('chain_only'):
            A(f'v_lshrrev_b32 v48, 4, {v(vMS)}')
            A(f'v_and_b32 v48, 63, v48')
            A(f'v_lshlrev_b32 v49, 7, v48')
            A(f's_mul_i32 s{sTMP}, s{sH}, 124'); A(f's_add_u32 s{sTMP}, s{sTMP}, 0x1000')
            A(f'v_mov_b32 v50, s{sTMP}')
            A(f'v_cmp_eq_u32 vcc, 8, v48')
            A(f'v_cndmask_b32 v49, v49, v50, vcc')
            A(f'v_mov_b32 v50, 0')
            A(f's_lshl_b32 s{sTMP}, s{sH}, 2')
            A(f's_add_u32 s{sTMP}, s{sTMP}, {OFF_FLAG}')
            A(f's_mov_b64 exec, 0x1ff')
            A(f'buffer_store_dword v50, v49, s[{sWS}:{sWS+3}], s{sTMP} offen sc1'); nclr += 1
            A(f's_mov_b64 exec, -1')
        if short:
            A.wait(vm=0); A('s_barrier'); self.dbg_add(9)
            return
        TA, TB = 40, 56
        pend = None
        NE = 36 - DEPTH; nearly = 5
        for n in range(36):
            b = blocks[n]; k = b[0]; sl = n % 9
            left = min(35, n + DEPTH - 1) - n
            extra = nclr if n < DEPTH else 0
            if n > NE: extra += nearly
            A.wait(vm=4*left + extra, lgkm=0)
            A('s_barrier')
            if n in (9, 18, 27): rt_stamp(A, opt, 7 + n//9 - 1, sW, off=OFF_RT)
            if n == DEPTH:
                self.dbg_add(9, nowait=True)
            if pend is not None:
                pn, treg = pend
                self.writeback(blocks[pn], treg); pend = None
            if n + DEPTH < 36: issue(n + DEPTH)
            if n == NE:
                A(f's_mov_b32 s44, s38'); A(f's_and_b32 s45, s39, 0xffff'); A(f's_mov_b32 s46, {8*1152}'); A(f's_mov_b32 s47, 0x20000')
                A(f's_lshl_b32 s43, s{sW}, 8')
                A(f'buffer_load_dwordx4 v[16:19], v{vM0}, s[44:47], s43 offen')
                A(f'buffer_load_dwordx4 v[20:23], v{vM0}, s[44:47], s43 offen offset:128')
                A(f's_mov_b32 s43, {8*128}')
                A(f'buffer_load_dwordx4 v[24:27], v{vM0}, s[44:47], s43 offen')
                A(f'v_lshrrev_b32 v38, 2, {v(vMS)}'); A(f'v_and_b32 v38, 60, v38')
                A(f'global_load_dword v38, v38, s[14:15] sc1')
                A(f'v_lshrrev_b32 v39, 4, {v(vMS)}'); A(f'v_and_b32 v39, 1, v39'); A(f'v_lshlrev_b32 v39, 7, v39')
                A(f's_lshl_b32 s43, s{sH}, 2'); A(f's_add_u32 s43, s43, {FL_KV + 128}')
                A(f'buffer_load_dword v39, v39, s[{sWS}:{sWS+3}], s43 offen sc1')
            inplace = n >= 27
            tmp = TA if (n % 2 == 0) else TB
            if k in 'QKV': names = [(k, b[1], 0), (k, b[1], 1)]
            elif k == 'O': names = [('O', b[1], b[2]), ('O', b[1], b[2]+1)]
            else: names = [('O', 0, 8), ('O', 1, 8)]
            for tau in range(2):
                A(f'v_add_u32 v{13+tau}, {sl*16384}, v{vTR0+tau}')
            for tau in range(2):
                nm = names[tau]
                for rr in range(4):
                    off = (32*(rr >> 1) + 4*(rr & 1))*256
                    if nm in FR: dst = freg(nm, 2*rr, 2)
                    else: dst = v(tmp + 8*tau + 2*rr, 2)
                    A(f'ds_read_b64_tr_b16 {dst}, v{13+tau} offset:{off}')
            if inplace: pend = (n, tmp)
        A.wait(lgkm=0)
        A('s_barrier')
        self.writeback(blocks[pend[0]], pend[1])
        A.wait(lgkm=0)
        A('s_barrier')
        rt_stamp(A, opt, 2, sW, off=OFF_RT)
        A.wait(vm=0)
        A(f's_mov_b32 s40, 0x05040100'); A(f's_mov_b32 s41, 0x07060302')
        for q, r in enumerate((16, 20, 24)):
            d = 60 + 4*q
            A(f'v_perm_b32 v{d}, v{r+1}, v{r}, s40'); A(f'v_perm_b32 v{d+1}, v{r+3}, v{r+2}, s40')
            A(f'v_perm_b32 v{d+2}, v{r+1}, v{r}, s41'); A(f'v_perm_b32 v{d+3}, v{r+3}, v{r+2}, s41')
        A(f'ds_write_b128 {v(vF2)}, v[60:63] offset:{L_MEMST-BASE_MS}')
        A(f'ds_write_b128 {v(vF2)}, v[64:67] offset:{L_MEMST-BASE_MS+1024}')
        A(f'ds_write_b128 {v(vMS)}, v[68:71] offset:{L_MEMST-BASE_MS+8192}')
        A(f'v_readlane_b32 s90, v38, 0'); A(f'v_readlane_b32 s91, v38, 9')
        A(f'v_readlane_b32 s92, v39, 0'); A(f'v_readlane_b32 s93, v39, 1')
        A(f's_mov_b32 s{sS}, 0')
        A(f's_mov_b32 s{sMBa}, {OFF_MB-BASE_MS}')
        A(f's_mov_b32 s{sMBb}, {OFF_MB+MBS-BASE_MS}')
        A(f's_mov_b32 s{sMBc}, {OFF_MB+2*MBS-BASE_MS}')
        A(f's_mov_b32 s{sPBr}, {PBRING[0]}')
        A(f's_lshr_b32 s{sTMP}, s{sH}, 3')
        A(f's_mul_i32 s{sTMP+1}, s{sTMP}, 2304')
        A(f's_bfe_u32 s{sTMP+2}, s{sH}, 0x10002')
        A(f's_and_b32 s{sTMP+3}, s{sH}, 3')
        A(f's_lshl_b32 s{sTMP+4}, s{sTMP+2}, 10')
        A(f's_lshl_b32 s{sTMP+5}, s{sTMP+3}, 8')
        A(f's_add_u32 s{sTASK}, s{sTMP+1}, s{sTMP+4}')
        A(f's_add_u32 s{sTASK}, s{sTASK}, s{sTMP+5}')
        A(f's_lshl_b32 s{sTMP+5}, s{sW}, 7')
        A(f's_add_u32 s{sTASK}, s{sTASK}, s{sTMP+5}')
        A(f's_mul_i32 s{sRSO}, s{sTMP}, {9*256}')
        A(f's_add_u32 s{sRSO}, s{sRSO}, s{sTMP+4}')
        A(f's_lshl_b32 s{sTMP+5}, s{sTMP+3}, 6')
        A(f's_add_u32 s{sRSO}, s{sRSO}, s{sTMP+5}')
        A(f's_lshl_b32 s{sTMP+5}, s{sW}, 5')
        A(f's_add_u32 s{sRSO}, s{sRSO}, s{sTMP+5}')
        lab = A.newlabel('ch_t')
        A(f's_cmp_lt_u32 s{sW}, 2')
        A(f's_cbranch_scc1 {lab}')
        A(f's_mov_b32 s{sTASK}, -1')
        A(f's_cmp_eq_u32 s{sW}, 2')
        A(f's_cbranch_scc0 {lab}')
        A(f's_cmp_eq_u32 s{sTMP+3}, 0')
        A(f's_cbranch_scc0 {lab}')
        A(f's_lshl_b32 s{sTMP+5}, s{sTMP+2}, 7')
        A(f's_add_u32 s{sTASK}, s{sTMP+1}, s{sTMP+5}')
        A(f's_add_u32 s{sTASK}, s{sTASK}, 2048')
        A(f's_mul_i32 s{sRSO}, s{sTMP}, {9*256}')
        A(f's_lshl_b32 s{sTMP+5}, s{sTMP+2}, 5')
        A(f's_add_u32 s{sRSO}, s{sRSO}, s{sTMP+5}')
        A(f's_add_u32 s{sRSO}, s{sRSO}, {8*256}')
        A.wait(vm=0, lgkm=0)
        A.label(lab)
        A(f's_add_u32 s{sRL0}, s{sTASK}, {OFF_PB}')
        for n in range(1, 4): A(f's_add_u32 s{sRL0+n}, s{sRL0+n-1}, {8*HS}')
        A(f's_add_u32 s{sRSO}, s{sRSO}, {BASE_MS}')
        A(f's_lshl_b32 s{sHI}, s{sH}, 1'); A(f's_add_u32 s{sHI}, s{sHI}, s{sW}')
        A(f's_lshr_b32 s{sTMP}, s{sH}, 2'); A(f's_add_u32 s{sTMP}, s{sTMP}, 64')
        A(f's_cmp_eq_u32 s{sW}, 2'); A(f's_cselect_b32 s{sHI}, s{sTMP}, s{sHI}')
        A(f's_add_u32 s{sHI}, s{sHI}, {OFF_H2}')
        A(f's_and_b32 s{sHP}, s{sH}, {H2_REP-1}'); A(f's_mul_i32 s{sHP}, s{sHP}, {H2_STR}'); A(f's_add_u32 s{sHP}, s{sHP}, {OFF_H2}')
        A(f's_and_b32 s{sKXW}, s{sW}, 1')
        A(f's_lshl_b32 s{sKXW}, s{sKXW}, 12')
        A(f's_lshl_b32 s{sWARM}, s{sH}, 13')
        A(f's_add_u32 s{sWARM}, s{sWARM}, s{sKXW}')
        A(f's_add_u32 s{sWARM}, s{sWARM}, {OFF_KXF-BASE_MS+32*8192}')
        A(f's_cmp_ge_u32 s{sW}, 2')
        A(f's_cselect_b32 s{sTMP}, {OFF_VXF-OFF_KXF}, 0')
        A(f's_add_u32 s{sWARM}, s{sWARM}, s{sTMP}')
        A(f's_lshl_b32 s{sTMP}, s{sH}, 13')
        A(f's_add_u32 s{sKX}, s{sTMP}, {OFF_KXF-BASE_MS}')
        A(f's_lshl_b32 s{sTMP+1}, s{sW}, 11')
        A(f's_add_u32 s{sVX}, s{sTMP}, s{sTMP+1}')
        A(f's_add_u32 s{sVX}, s{sVX}, {OFF_VXF-BASE_MS}')
        A(f's_lshl_b32 s{sTMP}, s{sH}, 12')
        A(f's_lshl_b32 s{sTMP+1}, s{sW}, 10')
        A(f's_add_u32 s{sTMP}, s{sTMP}, s{sTMP+1}')
        A(f's_lshr_b32 s{sTMP}, s{sTMP}, 1')
        A(f's_add_u32 s{sKM}, s{sTMP}, {OFF_KMF-BASE_MS//2}')
        A(f's_add_u32 s{sVM}, s{sTMP}, {OFF_VMF-BASE_MS//2}')
        c = DH**-0.5*math.log2(math.e)
        import struct
        cb = struct.unpack('<I', struct.pack('<f', c))[0]
        A(f's_mov_b32 s{sCv}, {cb:#x}')
        A(f's_mov_b32 s{sCv+1}, {cb:#x}')
        A(f's_mov_b32 s{sMASK}, 0x00ff00ff')
        A(f's_mov_b32 s{sMASK+1}, 0x00ff00ff')
        A(f's_mov_b32 s{sDEAD}, 0')
        for k in range(20): A(f's_mov_b32 s{sTS+k}, 0')
        l9 = A.newlabel('i9')
        A(f's_cmp_ge_u32 s91, 32'); A(f's_cbranch_scc1 {l9}')
        self.dbg_wait(9, 32)
        A(f'v_mov_b32 v13, 0')
        A(f'global_load_dword v14, v13, s[14:15] sc1')
        A(f'v_readfirstlane_b32 s90, v14')
        A.label(l9)
        A(f's_cmp_lt_u32 s90, 32')
        A(f's_cselect_b32 s{sSLOW}, 1, 0')
        if opt.get('fake') or opt.get('slow'): A(f's_mov_b32 s{sSLOW}, 1')
        A(f's_lshl_b32 s{sFLC}, s{sH}, 7')
        A(f's_add_u32 s{sFLC}, s{sFLC}, {FL_CH}')
        A(f's_mov_b32 s{sR7}, 0'); A(f's_mov_b32 s{sK7}, 0')
        if not opt.get('chain_only'):
            lk = A.newlabel('ikv')
            A(f's_min_u32 s92, s92, s93')
            A(f's_cmp_ge_u32 s92, 1'); A(f's_cbranch_scc1 {lk}')
            self.kv_wait(); A(f's_mov_b32 s{sR7}, 1'); self.kv_wait()
            A.label(lk)
        A(f's_mov_b32 s{sR7}, 2')
        A(f's_lshl_b32 s{sKVB}, s{sH}, 2'); A(f's_add_u32 s{sKVB}, s{sKVB}, {FL_KV + 128}')
        A(f's_add_u32 s{sKVF}, s{sKVB}, 256')
        for k in range(8): A(f's_mov_b32 s{88+k}, 0')
        self.kx_dma(all_waves=True)
        A.wait(vm=0, lgkm=0)
        A('s_barrier')

    def dbg_add(self, idx, nowait=False):
        A = self.A
        if nowait:
            lab = A.newlabel('dbga'); R = A.raw
            R(f'  s_cmp_eq_u32 s{sW}, 0'); R(f'  s_cbranch_scc0 {lab}')
            R(f'  s_mov_b64 exec, 1'); R(f'  v_mov_b32 v13, {idx*4}'); R(f'  v_mov_b32 v14, 1')
            R(f'  global_atomic_add v13, v14, s[14:15]'); R(f'  s_mov_b64 exec, -1'); R(f'{lab}:')
            return
        lab = A.newlabel('dbga')
        A(f's_cmp_eq_u32 s{sW}, 0')
        A(f's_cbranch_scc0 {lab}')
        A(f's_load_dwordx2 s[{sTMP}:{sTMP+1}], s[0:1], 104') if False else None
        A(f's_mov_b64 exec, 1')
        A(f'v_mov_b32 v13, {idx*4}')
        A(f'v_mov_b32 v14, 1')
        A(f'global_atomic_add v13, v14, s[14:15]')
        A(f's_mov_b64 exec, -1')
        A.wait(vm=0)
        A.label(lab)
    def dbg_wait(self, idx, val):
        A = self.A
        lab = A.newlabel('dbgw'); done = A.newlabel('dbgd')
        A(f's_mov_b32 s{sTMP}, 0')
        A(f'v_mov_b32 v13, {idx*4}')
        A.label(lab)
        A(f'global_load_dword v14, v13, s[14:15] sc1')
        A(f's_add_u32 s{sTMP}, s{sTMP}, 1')
        A.wait(vm=0)
        A(f'v_readfirstlane_b32 s{sTMP+1}, v14')
        A(f's_cmp_ge_u32 s{sTMP+1}, {val}')
        A(f's_cbranch_scc1 {done}')
        A(f's_sleep 2')
        A(f's_cmp_lt_u32 s{sTMP}, 0x40000')
        A(f's_cbranch_scc1 {lab}')
        A(f's_mov_b32 s{sDEAD}, 1')
        A.label(done)
    def writeback(self, b, tmp):
        A = self.A
        k = b[0]
        if k in 'QKV': names = [(k, b[1], 0), (k, b[1], 1)]
        elif k == 'O': names = [('O', b[1], b[2]), ('O', b[1], b[2]+1)]
        else: names = [('O', 0, 8), ('O', 1, 8)]
        for tau in range(2):
            nm = names[tau]
            if nm in FR: continue
            for hh in range(2):
                bs, off = lf_addr(nm, hh)
                A(f'ds_write_b128 {v(bs)}, {v(tmp+8*tau+4*hh,4)} offset:{off}')
    def clear_partial(self, sreg, init=False, fl=None):
        A = self.A
        R = 40 if init else self.NEG
        fl = 'sc1' if init else self.stf
        A(f'buffer_store_dwordx4 {v(R,4)}, {v(vMS)}, s[{sWS}:{sWS+3}], s{sreg} offen {fl}')
        A(f'buffer_store_dwordx4 {v(R,4)}, {v(vMS)}, s[{sWS}:{sWS+3}], s{sreg} offen offset:1024 {fl}')
        A(f's_sub_u32 s{sTMP+1}, s{sreg}, s{sLO}')
        A(f'buffer_store_dword {v(R)}, {v(vQW)}, s[{sWS}:{sWS+3}], s{sTMP+1} offen {fl}')
    def kv_wait(self):
        A = self.A
        lab = A.newlabel('kvw'); done = A.newlabel('kvd')
        A(f's_lshl_b32 s{sTMP}, s{sR7}, 7')
        A(f's_lshl_b32 s{sTMP+1}, s{sH}, 2')
        A(f's_add_u32 s{sTMP}, s{sTMP}, s{sTMP+1}')
        A(f's_add_u32 s{sTMP}, s{sTMP}, {FL_KV + 128}')
        A(f's_mov_b32 s{sTMP+1}, 0')
        A(f'v_mov_b32 v13, 0')
        A.label(lab)
        A(f'buffer_load_dword v14, v13, s[{sWS}:{sWS+3}], s{sTMP} offen sc1')
        A(f's_add_u32 s{sTMP+1}, s{sTMP+1}, 1')
        A.wait(vm=0)
        A(f'v_readfirstlane_b32 s{sTMP+2}, v14')
        A(f's_cmp_gt_u32 s{sTMP+2}, s{sK7}')
        A(f's_cbranch_scc1 {done}')
        A(f's_sleep 2')
        A(f's_cmp_lg_u32 s{sDEAD}, 0')
        A(f's_cbranch_scc1 {done}')
        A(f's_cmp_lt_u32 s{sTMP+1}, 0x40000')
        A(f's_cbranch_scc1 {lab}')
        A(f's_mov_b32 s{sDEAD}, 1')
        A.label(done)
    def kx_dma(self, all_waves=False):
        A = self.A
        A(f's_lshl_b32 s{sTMP}, s{sW}, 11')
        A(f's_add_u32 s{sTMP+1}, s{sKX}, s{sTMP}')
        A(f's_add_u32 m0, s{sTMP}, {L_KXST}')
        A(f'buffer_load_dwordx4 {v(vMS)}, s[{sWS}:{sWS+3}], s{sTMP+1} offen sc1 lds')
        A(f's_add_u32 m0, s{sTMP}, {L_KXST}')
        A(f'buffer_load_dwordx4 {v(vMS)}, s[{sWS}:{sWS+3}], s{sTMP+1} offen offset:1024 sc1 lds')

    def loop(self, slow, tag):
        A = self.A; opt = self.opt
        self.stf = 'sc1' if slow else ''
        L = f'ch_loop_{tag}'
        self.pre_step()
        if opt.get('es', 0):
            A(aread(AB0, 0)); A(aread(AB1, 1))
        self.wmark = None
        if opt.get('tt') or opt.get('ts'):
            A.raw('  s_memtime s[84:85]')
            A.raw(f'  s_memtime s[{sTS}:{sTS+1}]')
            A.raw('  s_waitcnt lgkmcnt(0)')
            A(f's_mov_b32 s{sTS+3}, s{sTS}')
        A.wait(lgkm=0)
        A.label(L)
        self.step(0, tag)
        if not opt.get('single'): self.step(1, tag)
        A(f's_cmp_lt_u32 s{sS}, {opt.get("nsteps", 64)}')
        A(f's_cbranch_scc1 {L}')
        if not opt.get('chain_only') and opt.get('nsteps', 64) == 64:
            WS = f's[{sWS}:{sWS+3}]'
            A.label(f'ch_last_{tag}')
            A.wait(vm=0, lgkm=0)
            A('s_barrier')
            pf = A.newlabel('pfl')
            A(f's_cmp_eq_u32 s{sW}, 3'); A(f's_cbranch_scc0 {pf}')
            A(f's_mov_b64 exec, 1'); A(f'v_mov_b32 v13, 0'); A(f'v_mov_b32 v14, 64')
            A(f'buffer_store_dword v14, v13, {WS}, s{sFLC} offen sc1'); A(f's_mov_b64 exec, -1')
            A.label(pf)
    def step(self, par, tag):
        A = self.A; opt = self.opt
        stf = self.stf
        WS = f's[{sWS}:{sWS+3}]'
        skip = f'ch_skip_{tag}_{par}'
        self.skip = skip
        if opt.get('cut') and par == 0: A.cut = opt['cut']; A.cutn = 0; A.cutlab = skip
        self.ts(0)
        self.at(0)
        if opt.get('rtsync'):
            A.raw('  s_memrealtime s[94:95]')
            A.raw('  s_waitcnt lgkmcnt(0)')
        for _ in range(opt.get('nop_start', 0)): A('s_nop 7')
        kseq = [('K', t, tau) for t in range(9) for tau in range(2)][:17]
        SB = [SB0, SB1, SB2]
        kreg = {nm: SB[k % 3] for k, nm in enumerate(kseq)}
        Areg = {t: (AB0 if t % 2 == 0 else AB1) for t in range(9)}
        ES = opt.get('es', 0)
        if not ES:
            A(aread(Areg[0], 0))
        for x in lfread(SB2, ('K', 1, 0)): A(x, nowait=bool(ES))
        nlds = 2
        if ES: A.raw('  s_waitcnt lgkmcnt(3)')
        if opt.get('gdbl'):
            for r in range(AV0, AV1+4, 2): A(f'v_mov_b64 {v(r,2)}, 0')
        if not opt.get('chain_only'):
            kf = A.newlabel('kf')
            A.raw(f'  s_cmp_eq_u32 s{sW}, 3')
            A.raw(f'  s_cbranch_scc0 {kf}')
            A.raw(f'  buffer_load_dword {v(vRS)}, off, {WS}, s{sKVF} sc1')
            A.raw(f'{kf}:')
        seq = []
        def add(r, x, y): return f'v_add_f32 {v(r)}, {v(x)}, {v(y)}'
        def xread(dst, k4, tau):
            return f'ds_read_b128 {v(dst,4)}, {v(vMS)} offset:{L_KXST-BASE_MS+(k4*2+tau)*1024}'
        if opt.get('ev', 2) == 2:
            X0 = {0: SB0, 1: SB1, 2: SB2, 3: SB1}
            X1 = {0: SB0+4, 1: SB1+4, 2: SB2+4, 3: SB1+4}
            VXR = SB0; PXR = SB1
        else:
            X0 = {0: SB0, 1: SB1, 2: SB2, 3: SB0}
            X1 = {0: SB0+4, 1: SB1+4, 2: SB2+4, 3: SB0+4}
            VXR = SB1; PXR = SB0
        LAG = opt.get('lag', 4)
        for t in range(9):
            kb = lambda tau: (kreg[('K', t, tau)] if ('K', t, tau) in kreg else ('K', t, tau))
            m = [smf(A, AQ0, Areg[t], ('Q', t, 0)), smf(A, AQ1, Areg[t], ('Q', t, 1)),
                 smf(A, AK0, Areg[t], kb(0)), smf(A, AK1, Areg[t], kb(1))]
            f = [[], [], [], []]
            full = t < 9 - LAG
            if full:
                m += [smf(A, AV0, Areg[t], ('V', t, 0)), smf(A, AV1, Areg[t], ('V', t, 1))]
                f += [[], []]
            if t < 8 and not (ES and t == 0):
                if ES and t == 1: f[0].append('@BAR')
                f[0].append(aread(Areg[t+1], t+1))
            i0 = 2*t
            if i0 + 3 < 17:
                r = lfread(kreg[kseq[i0]], kseq[i0+3])
                if full: f[2].append(r[0]); f[3].append(r[1])
                else: f[2] += r
            if i0 + 4 < 17:
                r = lfread(kreg[kseq[i0+1]], kseq[i0+4])
                if full: f[4].append(r[0]); f[5].append(r[1])
                else: f[3] += r
            if t < 4 and not opt.get('nokx'):
                f[1].append(f'buffer_load_dword v13, {v(vMS)}, {WS}, s{sWARM} offen offset:{1024*t} sc1')
            if t == 7 and LAG == 4:
                f[2].append(aread(SB2, 5)); f[3].append(aread(SB2+4, 6))
            seq += interleave(m, f)
        for x in seq:
            if x == '@BAR':
                A.wait(lgkm=nlds)
                A('s_barrier')
                self.progress_flag()
                continue
            if x.startswith('ds_'): nlds += 1
            A(x, nowait=x.startswith('buffer_load_dword v13'))
        self.ts(1)
        cvt = lambda d, x, y: f'v_cvt_pk_bf16_f32 {v(d)}, {v(x)}, {v(y)}'
        sv = lambda acc, areg, t, tau: smf(A, acc, areg, ('V', t, tau))
        qe = [add(AQ0, AQ0, AQ0+2), add(AQ0+1, AQ0+1, AQ0+3), add(AQ1, AQ1, AQ1+2), add(AQ1+1, AQ1+1, AQ1+3),
              cvt(AQ0, AQ0, AQ0+1), cvt(AQ1, AQ1, AQ1+1),
              f'ds_write2_b32 {v(vQW)}, {v(AQ0)}, {v(AQ1)} offset0:0 offset1:64']
        ke = [add(AK0, AK0, AK0+2), add(AK0+1, AK0+1, AK0+3), add(AK1, AK1, AK1+2), add(AK1+1, AK1+1, AK1+3),
              cvt(T14, AK0, AK0+1), cvt(T15, AK1, AK1+1),
              f'ds_write2_b32 {v(vKW)}, {v(T14)}, {v(T14)} offset0:0 offset1:1',
              f'ds_write2_b32 {v(vKW)}, {v(T15)}, {v(T15)} offset0:128 offset1:129']
        EV = opt.get('ev', 2)
        S0, S1, SM = 24, 28, 32
        def qread(dst, k4):
            return [f'ds_read_b64_tr_b16 {v(dst,2)}, {v(vQR)} offset:{k4*512}',
                    f'ds_read_b64_tr_b16 {v(dst+2,2)}, {v(vQR)} offset:{k4*512+128}']
        def kmread(dst, k4):
            return [f'ds_read_b64_tr_b16 {v(dst,2)}, {v(vKR)} offset:{k4*1024}',
                    f'ds_read_b64_tr_b16 {v(dst+2,2)}, {v(vKR)} offset:{k4*1024+256}']
        Q_ = {0: AB0, 1: 36, 2: AB0, 3: 36}
        KM = {0: AB1, 1: 44, 2: AB1, 3: 44}
        ONES = 16; PM = 20
        def smm(k4):
            c = lambda d: (v(d, 4) if k4 > 0 else '0')
            return [f'v_mfma_f32_16x16x32_bf16 {v(S0,4)}, {v(X0[k4],4)}, {v(Q_[k4],4)}, {c(S0)}',
                    f'v_mfma_f32_16x16x32_bf16 {v(S1,4)}, {v(X1[k4],4)}, {v(Q_[k4],4)}, {c(S1)}',
                    f'v_mfma_f32_16x16x32_bf16 {v(SM,4)}, {v(KM[k4],4)}, {v(Q_[k4],4)}, {c(SM)}']
        ve = [add(AV0, AV0, AV0+2), add(AV0+1, AV0+1, AV0+3), add(AV1, AV1, AV1+2), add(AV1+1, AV1+1, AV1+3),
              cvt(AV0, AV0, AV0+1), cvt(AV0+1, AV1, AV1+1)]
        def vxpub():
            if not opt.get('nokx'):
                A(f'buffer_load_dwordx4 {v(VXR,4)}, {v(vMS)}, {WS}, s{sVX} offen sc1')
                A(f'buffer_load_dwordx4 {v(VXR+4,4)}, {v(vMS)}, {WS}, s{sVX} offen offset:1024 sc1')
            if not opt.get('nopub'):
                A(f'v_lshrrev_b32 {v(43)}, 1, {v(vMS)}')
                A(f'buffer_store_dwordx2 {v(T14,2)}, {v(43)}, {WS}, s{sKM} offen sc1')
                A(f'buffer_store_dwordx2 {v(AV0,2)}, {v(43)}, {WS}, s{sVM} offen sc1')
            if par == 1 and not opt.get('chain_only') and opt.get('nsteps', 64) == 64:
                A.raw(f'  s_cmp_eq_u32 s{sS}, 63')
                A.raw(f'  s_cbranch_scc1 ch_last_{tag}')
        m0 = smm(0); m1 = smm(1); m2 = smm(2); m3 = smm(3)
        if EV == 0:
            prog = [sv(AV0, AB0, 8, 0), xread(X0[0], 0, 0), sv(AV1, AB0, 8, 1), xread(X1[0], 0, 1)]
            prog += qe[0:2] + [sv(AV0, AB1, 7, 0)] + qe[2:4] + [sv(AV1, AB1, 7, 1)] + qe[4:7] + ke
            prog += [xread(X0[1], 1, 0), xread(X1[1], 1, 1)]
            for x in prog: A(x)
            A.wait(lgkm=2)
            A('s_barrier')
            self.ts(2)
            for x in qread(Q_[0], 0) + kmread(KM[0], 0) + qread(Q_[1], 1): A(x)
            for x in [sv(AV0, SB2, 5, 0), sv(AV1, SB2, 5, 1), sv(AV0, SB2+4, 6, 0), sv(AV1, SB2+4, 6, 1)]: A(x)
            for x in [xread(X0[2], 2, 0), xread(X1[2], 2, 1)]: A(x)
            for x in m0: A(x)
            for x in qread(Q_[2], 2) + kmread(KM[2], 2) + [xread(X0[3], 3, 0), xread(X1[3], 3, 1)]: A(x)
            for x in ve: A(x)
            for x in kmread(KM[1], 1): A(x)
            A(m1[0]); A(m1[1]); A(m2[0]); A(m2[1])
            vxpub()
            A(m1[2])
            for x in qread(Q_[3], 3) + kmread(KM[3], 3): A(x)
            A(m2[2])
        elif EV == 2:
            prog = [sv(AV0, AB0, 8, 0), xread(X0[0], 0, 0), sv(AV1, AB0, 8, 1), xread(X1[0], 0, 1)]
            prog += qe + ke
            prog += [sv(AV0, AB1, 7, 0), xread(X0[1], 1, 0), sv(AV1, AB1, 7, 1), xread(X1[1], 1, 1),
                     sv(AV0, SB2, 5, 0), sv(AV1, SB2, 5, 1), sv(AV0, SB2+4, 6, 0), sv(AV1, SB2+4, 6, 1)]
            for x in prog: A(x)
            A.wait(lgkm=2)
            A('s_barrier')
            self.ts(2)
            for x in qread(Q_[0], 0) + kmread(KM[0], 0) + qread(Q_[1], 1) + [xread(X0[2], 2, 0), xread(X1[2], 2, 1)]: A(x)
            for x in ve: A(x)
            for x in kmread(KM[1], 1): A(x)
            for x in m0: A(x)
            vxpub()
            for x in qread(Q_[2], 2) + kmread(KM[2], 2): A(x)
            for x in m1: A(x)
            for x in [xread(X0[3], 3, 0), xread(X1[3], 3, 1)] + qread(Q_[3], 3) + kmread(KM[3], 3): A(x)
            for x in m2: A(x)
        else:
            prog = [sv(AV0, AB0, 8, 0), xread(X0[0], 0, 0), sv(AV1, AB0, 8, 1), xread(X1[0], 0, 1)]
            prog += qe + ke
            prog += [sv(AV0, AB1, 7, 0), xread(X0[1], 1, 0), sv(AV1, AB1, 7, 1), xread(X1[1], 1, 1),
                     sv(AV0, SB2, 5, 0), sv(AV1, SB2, 5, 1), sv(AV0, SB2+4, 6, 0), sv(AV1, SB2+4, 6, 1)]
            for x in prog: A(x)
            A.wait(lgkm=2)
            A('s_barrier')
            self.ts(2)
            for x in qread(Q_[0], 0) + kmread(KM[0], 0) + qread(Q_[1], 1) + [xread(X0[2], 2, 0), xread(X1[2], 2, 1)]: A(x)
            for x in ve: A(x)
            for x in kmread(KM[1], 1): A(x)
            for x in m0: A(x)
            for x in qread(Q_[2], 2) + kmread(KM[2], 2) + [xread(X0[3], 3, 0), xread(X1[3], 3, 1)]: A(x)
            for x in m1: A(x)
            for x in qread(Q_[3], 3) + kmread(KM[3], 3): A(x)
            vxpub()
            for x in m2: A(x)
        A(f'v_mov_b32 {v(ONES)}, 0x3f803f80'); A(f'v_mov_b32 {v(ONES+1)}, 0x3f803f80')
        A(f'v_mov_b32 {v(ONES+2)}, 0x3f803f80'); A(f'v_mov_b32 {v(ONES+3)}, 0x3f803f80')
        A(m3[0]); A(f'v_mov_b32 {v(PM+1)}, 0'); A(m3[1]); A(f'v_mov_b32 {v(PM+2)}, 0'); A(m3[2])
        self.ts(3)
        MX, TT = 42, 14
        A(f'v_max3_f32 {v(MX)}, {v(S0)}, {v(S0+1)}, {v(S0+2)}')
        A(f'v_max3_f32 {v(TT)}, {v(S1)}, {v(S1+1)}, {v(S1+2)}')
        A(f'v_max3_f32 {v(MX)}, {v(MX)}, {v(S0+3)}, {v(S1+3)}')
        A(f'v_max_f32 {v(MX)}, {v(MX)}, {v(TT)}')
        A(f'v_max3_f32 {v(MX)}, {v(MX)}, {v(SM)}, {v(SM+1)}')
        A(f'v_mov_b32 {v(TT)}, {v(MX)}')
        A(f'v_permlane16_swap_b32 {v(MX)}, {v(TT)}')
        A(f'v_max_f32 {v(MX)}, {v(MX)}, {v(TT)}')
        A(f'v_mov_b32 {v(TT)}, {v(MX)}')
        A(f'v_permlane32_swap_b32 {v(MX)}, {v(TT)}')
        A(f'v_max_f32 {v(MX)}, {v(MX)}, {v(TT)}')
        A(f'v_mul_f32 {v(TT)}, s{sCv}, {v(MX)}')
        for r in (S0, S0+2, S1, S1+2, SM):
            A(f'v_pk_fma_f32 {v(r,2)}, {v(r,2)}, s[{sCv}:{sCv+1}], {v(TT,2)} op_sel_hi:[1,1,0] neg_lo:[0,0,1] neg_hi:[0,0,1]')
        for r in (S0, S0+1, S0+2, S0+3, S1, S1+1, S1+2, S1+3, SM, SM+1):
            A(f'v_exp_f32 {v(r)}, {v(r)}')
        PX = PXR
        A(cvt(PX, S0, S0+1)); A(cvt(PX+1, S0+2, S0+3)); A(cvt(PX+2, S1, S1+1)); A(cvt(PX+3, S1+2, S1+3))
        A(cvt(PM, SM, SM+1)); A(cvt(PM+3, SM, SM+1))
        self.ts(4)
        O0, O1, LL = 24, 28, 32
        VX = VXR
        if opt.get('nokx'):
            for r in range(VX, VX+8, 2): A(f'v_mov_b64 {v(r,2)}, 0')
        A(f'v_mfma_f32_16x16x32_bf16 {v(LL,4)}, {v(ONES,4)}, {v(PX,4)}, 0')
        A(f'v_mfma_f32_16x16x32_bf16 {v(O0,4)}, {v(VX,4)}, {v(PX,4)}, 0')
        A(f'v_mfma_f32_16x16x32_bf16 {v(O1,4)}, {v(VX+4,4)}, {v(PX,4)}, 0')
        A(f'v_mfma_f32_16x16x16_bf16 {v(LL,4)}, {v(ONES,2)}, {v(PM,2)}, {v(LL,4)}')
        A(f'v_mfma_f32_16x16x16_bf16 {v(O0,4)}, {v(AV0,2)}, {v(PM,2)}, {v(O0,4)}')
        A(f'v_mfma_f32_16x16x16_bf16 {v(O1,4)}, {v(AV0,2)}, {v(PM+2,2)}, {v(O1,4)}')
        WACC = 36
        MX = 13
        zero = [f'v_mov_b64 {v(WACC+2*k,2)}, 0' for k in range(18)]
        zq = list(zero)
        for x in zq[:6]: A(x)
        A(f'v_rcp_f32 {v(MX)}, {v(LL)}')
        A(zq[6])
        for r in range(4): A(f'v_mul_f32 {v(O0+r)}, {v(MX)}, {v(O0+r)}')
        A(cvt(O0, O0, O0+1)); A(cvt(O0+1, O0+2, O0+3))
        for r in range(4): A(f'v_mul_f32 {v(O1+r)}, {v(MX)}, {v(O1+r)}')
        A(cvt(O0+2, O1, O1+1)); A(cvt(O0+3, O1+2, O1+3))
        A(f's_mov_b64 exec, s[{sMASK}:{sMASK+1}]')
        A(f'ds_write_b128 {v(vOW)}, {v(O0,4)}')
        A(f's_mov_b64 exec, -1')
        for x in zq[7:]: A(x)
        A.wait(lgkm=0)
        A('s_barrier')
        self.ts(5)
        OA0, OA1 = 16, 20
        A(f'ds_read_b128 {v(OA0,4)}, {v(vMS)} offset:{L_OEX-BASE_MS}')
        A(f'ds_read_b128 {v(OA1,4)}, {v(vMS)} offset:{L_OEX-BASE_MS+1024}')
        acc = lambda q: WACC + 4*q
        def wo(q, tp):
            return f'v_smfmac_f32_16x16x64_bf16 {v(acc(q),4)}, {v(OA0 if tp == 0 else OA1,4)}, {freg(("O", tp, q))}, {v(vIDX)}'
        def epi(q):
            dst = 24 + q
            tagop = f'v_or_b32 {v(dst)}, 1, {v(dst)}' if par == 0 else f'v_and_b32 {v(dst)}, -2, {v(dst)}'
            return [add(acc(q), acc(q), acc(q)+2), add(acc(q)+1, acc(q)+1, acc(q)+3), cvt(dst, acc(q), acc(q)+1), tagop]
        st = lambda r, off: f'buffer_store_dwordx4 {v(r,4)}, {v(vMS)}, {WS}, s{sPBc} offen offset:{off} {stf}'
        prog = []; pend = []
        WV = opt.get('wov', 0)
        if WV == 0:
            for q in range(9):
                prog.append(wo(q, 0))
                if pend: prog.append(pend.pop(0))
                if q >= 2 and pend: prog.append(pend.pop(0))
                prog.append(wo(q, 1))
                if pend: prog.append(pend.pop(0))
                if q >= 2 and pend: prog.append(pend.pop(0))
                if q >= 2:
                    pend += epi(q-2)
                    if q-2 == 3: pend.append(st(24, 0))
            prog += [f'ds_read_b128 {v(16,4)}, {v(vMS)} offset:{L_SPARE-BASE_MS}']
            prog += pend
            prog += epi(7) + [st(28, 1024)] + epi(8)
            prog += [f'buffer_store_dword {v(32)}, {v(vQW)}, {WS}, s{sPBl} offen {stf}']
        else:
            order = [8, 0, 1, 2, 3, 4, 5, 6, 7]
            st2 = lambda r, off: f'buffer_store_dwordx2 {v(r,2)}, {v(vMS)}, {WS}, s{sPBc} offen offset:{off} {stf}'
            after = {8: [f'buffer_store_dword {v(32)}, {v(vQW)}, {WS}, s{sPBl} offen {stf}'], 3: [st(24, 0)], 5: [st2(28, 1024)], 7: [st2(30, 1024+8)]}
            for n, q in enumerate(order):
                prog.append(wo(q, 0))
                for _ in range(2):
                    if pend: prog.append(pend.pop(0))
                prog.append(wo(q, 1))
                for _ in range(2 if n < 8 else 0):
                    if pend: prog.append(pend.pop(0))
                if n >= 1:
                    qq = order[n-1]
                    pend += epi(qq) + after.get(qq, [])
            prog += [f'ds_read_b128 {v(16,4)}, {v(vMS)} offset:{L_SPARE-BASE_MS}']
            prog += pend + epi(7) + after[7]
        for x in prog: A(x)
        self.ts(6)
        self.at(1)
        if opt.get('log') or opt.get('logtp'):
            A.raw('  s_memrealtime s[90:91]')
            A.raw('  s_mov_b32 s92, 0')
        nored = A.newlabel('nored')
        gat = A.newlabel('gat')
        sG = 58
        def shadow():
            for r in range(AQ0, (AV0 if opt.get('gdbl') else AV1+4), 2): A(f'v_mov_b64 {v(r,2)}, 0')
            A(f's_add_u32 s{sPUB}, s{sMBb}, s{sRSO}')
            A(f's_add_u32 s{sCLR}, s{sMBa}, s{sRSO}')
            A(f's_mov_b32 s{sG}, s{sMBb}')
            A(f's_mov_b32 s{sTMP}, s{sMBa}'); A(f's_mov_b32 s{sMBa}, s{sMBb}'); A(f's_mov_b32 s{sMBb}, s{sMBc}'); A(f's_mov_b32 s{sMBc}, s{sTMP}')
            A(f's_add_u32 s{sVX}, s{sVX}, {32*8192}')
            A(f's_add_u32 s{sWARM}, s{sWARM}, {32*8192}')
            A(f's_add_u32 s{sKM}, s{sKM}, {32*2048}')
            A(f's_add_u32 s{sVM}, s{sVM}, {32*2048}')
            A(f's_add_u32 s{sS}, s{sS}, 1')
            if opt.get('hint'):
                A(f'v_lshrrev_b32 {v(T15)}, 4, {v(vMS)}')
                A(f'v_and_b32 {v(T15)}, 63, {v(T15)}')
                A(f'v_lshlrev_b32 {v(T15)}, {H2_STR.bit_length()-1}, {v(T15)}')
        def shadow2():
            A(f's_add_u32 s{sR7}, s{sR7}, 1')
            A(f's_cmp_eq_u32 s{sR7}, 7')
            A(f's_cselect_b32 s{sR7}, 0, s{sR7}')
            A(f's_addc_u32 s{sK7}, s{sK7}, 0')
            A(f's_lshl_b32 s{sKVF}, s{sR7}, 7')
            A(f's_add_u32 s{sKVF}, s{sKVF}, s{sKVB}')
            zb = 68 if opt.get('es', 0) else 64
            A(f'v_mov_b64 {v(zb,2)}, 0')
            A(f'v_mov_b64 {v(zb+2,2)}, 0')
            if opt.get('gdbl'):
                A(f'v_mov_b64 {v(68,2)}, 0'); A(f'v_mov_b64 {v(70,2)}, 0')
        def prefill(): pass
        if not opt.get('nohop'):
            A(f's_cmp_eq_u32 s{sTASK}, -1')
            A(f's_cbranch_scc1 {nored}')
            self.reducer(par, shadow, shadow2)
            prefill()
            A(f's_branch {gat}')
            A.label(nored)
            if not opt.get('chain_only'):
                nk = A.newlabel('nkv')
                A(f's_cmp_eq_u32 s{sW}, 3'); A(f's_cbranch_scc0 {nk}')
                A(f's_cmp_lt_u32 s{sS}, 62'); A(f's_cbranch_scc0 {nk}')
                A(f'v_readfirstlane_b32 s{sTMP+2}, {v(vRS)}')
                A(f's_cmp_gt_u32 s{sTMP+2}, s{sK7}'); A(f's_cbranch_scc1 {nk}')
                self.kv_wait()
                A.label(nk)
            if not opt.get('nokx'): self.next_kx()
            shadow(); shadow2(); prefill()
            if opt.get('hint'): self.hint_poll()
            A.label(gat)
        else:
            A.cut = None
            A.raw(f'{skip}:')
            shadow(); shadow2()
        for x in lfread(SB0, ('K', 0, 0)) + lfread(SB1, ('K', 0, 1)): A(x, nowait=True)
        if opt.get('gbar', 1) and not opt.get('nohop'): A('s_barrier')
        ES = opt.get('es', 0)
        self.wmark = None
        if not opt.get('nohop'): self.gather(sG)
        elif ES:
            A(aread(AB0, 0)); A(aread(AB1, 1)); A.wait(lgkm=0)
        self.ts(8)
        if not ES:
            A.wait(vm=0, lgkm=0)
            A('s_barrier')
        if opt.get('log') or opt.get('logst'):
            A.raw('  s_memrealtime s[94:95]')
            A.raw(f'  s_lshl_b32 s96, s{sH}, 2')
            A.raw(f'  s_add_u32 s96, s96, s{sW}')
            A.raw(f'  s_lshl_b32 s96, s96, 6')
            A.raw(f'  s_add_u32 s96, s96, s{sS}')
            A.raw(f'  s_lshl_b32 s96, s96, 4')
            A.raw(f'  s_add_u32 s96, s96, {0x8000000 - 16}')
            A.raw('  s_waitcnt lgkmcnt(0)')
            A.raw('  s_mov_b64 exec, 1')
            A.raw('  v_mov_b32 v68, s90'); A.raw('  v_mov_b32 v69, s94'); A.raw('  v_mov_b32 v70, s92'); A.raw(f'  v_mov_b32 v71, s{sTMP+2}')
            A.raw('  v_mov_b32 v13, 0')
            A.raw(f'  buffer_store_dwordx4 v[68:71], v13, {WS}, s96 offen')
            A.raw('  s_mov_b64 exec, -1')
        if not opt.get('es', 0): self.progress_flag()
    def progress_flag(self):
        A = self.A; opt = self.opt
        WS = f's[{sWS}:{sWS+3}]'
        if not opt.get('chain_only'):
            pf = A.newlabel('pf')
            A.raw(f'  s_cmp_eq_u32 s{sW}, 3')
            A.raw(f'  s_cbranch_scc0 {pf}')
            A.raw(f'  s_mov_b64 exec, 1')
            A.raw(f'  v_mov_b32 v14, s{sS}')
            A.raw(f'  buffer_store_dword v14, off, {WS}, s{sFLC} sc1')
            A.raw(f'  s_mov_b64 exec, -1')
            A.raw(f'{pf}:')
    def next_kx(self):
        A = self.A
        lab = A.newlabel('nkx')
        R = A.raw
        WS = f's[{sWS}:{sWS+3}]'
        R(f'  s_cmp_eq_u32 s{sW}, 3')
        R(f'  s_cbranch_scc0 {lab}')
        R(f'  s_add_u32 s{sKX}, s{sKX}, {32*8192}')
        R(f'  s_mov_b32 m0, {L_KXST}')
        R(f'  s_add_u32 s{sTMP+2}, s{sKX}, 4096')
        for k in range(4):
            R(f'  buffer_load_dwordx4 {v(vMS)}, {WS}, s{sKX} offen offset:{1024*k} sc1 lds')
        R(f'  s_mov_b32 m0, {L_KXST+4096}')
        R(f'  s_nop 0')
        for k in range(4):
            R(f'  buffer_load_dwordx4 {v(vMS)}, {WS}, s{sTMP+2} offen offset:{1024*k} sc1 lds')
        R(f'{lab}:')
    def pre_step(self):
        A = self.A
        for r in range(AQ0, AV1+4, 2): A(f'v_mov_b64 {v(r,2)}, 0')
        for x in lfread(SB0, ('K', 0, 0)) + lfread(SB1, ('K', 0, 1)): A(x, nowait=True)
    def reducer(self, par, shadow, shadow2):
        A = self.A; opt = self.opt
        R = A.raw
        WS = f's[{sWS}:{sWS+3}]'
        SEL, ACC = 16, 20
        NL = 4
        ld = [48 + 4*n for n in range(NL)]
        bop = '0x80' if par == 0 else '0xfe'
        lab = A.newlabel('redp'); ok = A.newlabel('redok')
        spin = opt.get('rspin', 0)
        A(f's_mov_b32 s{sTMP+2}, 0')
        def issue(raw=False):
            for n in range(NL):
                t = f'buffer_load_dwordx4 {v(ld[n],4)}, {v(vRL)}, {WS}, s{sRL0+n} offen sc1'
                (R('  ' + t) if raw else A(t))
        flat = [ld[n] + k for n in range(NL) for k in range(4)]
        chk = [f'v_bitop3_b32 {v(T13)}, {v(flat[0])}, {v(flat[1])}, {v(flat[2])} bitop3:{bop}']
        k = 3
        while k < 4*NL:
            b = flat[k+1] if k + 1 < 4*NL else flat[k]
            chk.append(f'v_bitop3_b32 {v(T13)}, {v(T13)}, {v(flat[k])}, {v(b)} bitop3:{bop}')
            k += 2
        fin = [f'v_and_b32 {v(T13)}, 1, {v(T13)}', f'v_cmp_{"eq" if par == 0 else "ne"}_u32 vcc, 0, {v(T13)}']
        for _ in range(opt.get('nop_red', 0)): A(f's_nop 7')
        self.at(2)
        issue()
        shadow(); shadow2()
        A.wait(lgkm=0)
        ci = 0
        for n in range(NL):
            A(f'v_mfma_f32_16x16x32_bf16 {v(ACC,4)}, {v(ld[n],4)}, {v(SEL,4)}, {v(ACC,4) if n else 0}')
            while ci < len(chk) and max(r[1] for r in I(chk[ci]).rd if r[0] == 'v' and r[1] >= 48) <= ld[n] + 3:
                A(chk[ci]); ci += 1
        A(f's_add_u32 s{sTMP+2}, s{sTMP+2}, 1')
        for c in fin: A(c)
        A(f's_cbranch_vccz {ok}')
        R(f'{lab}:')
        issue(True)
        R(f'  s_add_u32 s{sTMP+2}, s{sTMP+2}, 1')
        if spin:
            for q in range(spin):
                for c in chk + fin: R('  ' + c)
                R(f'  s_cbranch_vccz {ok}_m')
        else:
            R(f'  s_waitcnt vmcnt(0)')
            for c in chk + fin: R('  ' + c)
            R(f'  s_cbranch_vccz {ok}_m')
        R(f'  s_cmp_lg_u32 s{sDEAD}, 0')
        R(f'  s_cbranch_scc1 {ok}_d')
        R(f'  s_cmp_lt_u32 s{sTMP+2}, 0x10000')
        R(f'  s_cbranch_scc1 {lab}')
        R(f'  s_mov_b32 s{sDEAD}, 1')
        R(f'{ok}_d:')
        R(f'  s_waitcnt vmcnt(0)')
        R(f'{ok}_m:')
        for n in range(NL):
            R(f'  v_mfma_f32_16x16x32_bf16 {v(ACC,4)}, {v(ld[n],4)}, {v(SEL,4)}, {v(ACC,4) if n else 0}')
        R(f'  s_nop 5')
        R(f'{ok}:')
        A(f's_nop 1')
        A(f'v_permlane32_swap_b32 {v(ACC)}, {v(ACC+1)}')
        A(f'v_permlane32_swap_b32 {v(ACC+2)}, {v(ACC+3)}')
        A(f'v_add_f32 {v(ACC)}, {v(ACC)}, {v(ACC+1)}')
        A(f'v_add_f32 {v(ACC+2)}, {v(ACC+2)}, {v(ACC+3)}')
        A(f'v_cvt_pk_bf16_f32 {v(ACC)}, {v(ACC)}, {v(ACC+2)}')
        A(f's_mov_b64 exec, s[{sMASK}:{sMASK+1}]')
        A(f'buffer_store_dword {v(ACC)}, {v(vRS)}, {WS}, s{sPUB} offen {self.stf}')
        A(f'v_mov_b32 {v(ACC+2)}, -1')
        A(f'buffer_store_dword {v(ACC+2)}, {v(vRS)}, {WS}, s{sCLR} offen {self.stf}')
        if opt.get('hint'):
            A(f's_mov_b64 exec, {(1<<H2_REP)-1}')
            A(f'v_mov_b32 {v(ACC+3)}, s{sS}')
            A(f'buffer_store_byte {v(ACC+3)}, {v(T15)}, {WS}, s{sHI} offen {self.stf}')
        A(f's_mov_b64 exec, -1')
        A(f's_waitcnt vmcnt({3 if opt.get("hint") else 2})')
        A.reset()
        A(f's_add_u32 s{sTS+16}, s{sTS+16}, s{sTMP+2}')
        if opt.get('log'): A.raw(f'  s_mov_b32 s92, s{sTMP+2}')
        self.at(3, 1)
        self.ts(7)
    def hint_poll(self):
        A = self.A; opt = self.opt; R = A.raw
        WS = f's[{sWS}:{sWS+3}]'
        skip = A.newlabel('hs'); lab = A.newlabel('hp'); ok = A.newlabel('hok')
        HR = [68, 69, 70, 71]
        R(f'  s_cmp_eq_u32 s{sW}, 3')
        R(f'  s_cbranch_scc0 {skip}')
        R(f'  s_and_b32 s{sTMP}, s{sS}, 0xff')
        R(f'  s_mul_i32 s{sTMP}, s{sTMP}, 0x01010101')
        R(f'  v_lshrrev_b32 v13, 2, {v(vMS)}')
        R(f'  v_and_b32 v13, 0xff, v13')
        R(f'  s_mov_b64 exec, 0x3ffff')
        R(f'  s_mov_b32 s{sTMP+1}, 0')
        for _ in range(opt.get('nop_hint', 0)): R('  s_nop 7')
        for k in range(3):
            R(f'  buffer_load_dword v{HR[k]}, v13, {WS}, s{sHP} offen sc1')
            R(f'  s_nop {opt.get("hgap", 7)}')
        R(f'{lab}:')
        for k in range(4):
            R(f'  buffer_load_dword v{HR[(k+3)%4]}, v13, {WS}, s{sHP} offen sc1')
            R(f'  s_waitcnt vmcnt(3)')
            R(f'  v_cmp_ne_u32 vcc, s{sTMP}, v{HR[k]}')
            R(f'  s_cbranch_vccz {ok}')
        R(f'  s_add_u32 s{sTMP+1}, s{sTMP+1}, 1')
        R(f'  s_cmp_lg_u32 s{sDEAD}, 0')
        R(f'  s_cbranch_scc1 {ok}')
        R(f'  s_cmp_lt_u32 s{sTMP+1}, 0x8000')
        R(f'  s_cbranch_scc1 {lab}')
        R(f'  s_mov_b32 s{sDEAD}, 1')
        R(f'{ok}:')
        R(f'  s_mov_b64 exec, -1')
        R(f'{skip}:')
        A.reset()
    def gather(self, sG):
        if self.opt.get('es', 0): return self.gather_es(sG)
        A = self.A; opt = self.opt
        WS = f's[{sWS}:{sWS+3}]'
        lab = A.newlabel('gatp'); ok = A.newlabel('gatok'); okb = A.newlabel('gatokb'); fin = A.newlabel('gatfin')
        R = A.raw
        DBL = opt.get('gdbl', 0)
        SA = (16, 20, 64); SBb = (40, 44, 68)
        A(f's_mov_b32 s{sTMP+2}, 0')
        A(f's_add_u32 s{sTMP+1}, s{sG}, 8192')
        for _ in range(opt.get('nop_gat', 0)): A(f's_nop 7')
        self.at(4, 1)
        def issue(G):
            l3 = A.newlabel('gat3')
            R(f'  buffer_load_dwordx4 {v(G[0],4)}, {v(vF2)}, {WS}, s{sG} offen sc1')
            R(f'  buffer_load_dwordx4 {v(G[1],4)}, {v(vF2)}, {WS}, s{sG} offen offset:1024 sc1')
            R(f'  s_cmp_eq_u32 s{sW}, 3')
            R(f'  s_cbranch_scc0 {l3}')
            R(f'  buffer_load_dwordx4 {v(G[2],4)}, {v(vMS)}, {WS}, s{sTMP+1} offen sc1')
            R(f'{l3}:')
        def check(G, target):
            G0, G1, G2 = G
            R(f'  v_max3_u32 {v(T13)}, {v(G0)}, {v(G0+1)}, {v(G0+2)}')
            R(f'  v_max3_u32 {v(T14)}, {v(G1)}, {v(G1+1)}, {v(G1+2)}')
            R(f'  v_max3_u32 {v(T13)}, {v(T13)}, {v(G0+3)}, {v(G1+3)}')
            R(f'  v_max3_u32 {v(T14)}, {v(T14)}, {v(G2)}, {v(G2+1)}')
            R(f'  v_max3_u32 {v(T13)}, {v(T13)}, {v(G2+2)}, {v(G2+3)}')
            R(f'  v_max_u32 {v(T13)}, {v(T13)}, {v(T14)}')
            R(f'  v_cmp_eq_u32 vcc, -1, {v(T13)}')
            R(f'  s_cbranch_vccz {target}')
        def writes(G):
            l3b = A.newlabel('gat3b')
            R(f'  ds_write_b128 {v(vF2)}, {v(G[0],4)} offset:{L_MEMST-BASE_MS}')
            R(f'  ds_write_b128 {v(vF2)}, {v(G[1],4)} offset:{L_MEMST-BASE_MS+1024}')
            R(f'  s_cmp_eq_u32 s{sW}, 3')
            R(f'  s_cbranch_scc0 {l3b}')
            R(f'  ds_write_b128 {v(vMS)}, {v(G[2],4)} offset:{L_MEMST-BASE_MS+8192}')
            R(f'{l3b}:')
        issue(SA)
        R(f'  s_add_u32 s{sTMP+2}, s{sTMP+2}, 1')
        if DBL:
            for _ in range(DBL): R('  s_nop 7')
            issue(SBb)
            l3 = A.newlabel('gw')
            R(f'  s_cmp_eq_u32 s{sW}, 3'); R(f'  s_cbranch_scc1 {l3}')
            R(f'  s_waitcnt vmcnt(2)'); R(f'  s_branch {l3}_j')
            R(f'{l3}:'); R(f'  s_waitcnt vmcnt(3)'); R(f'{l3}_j:')
            check(SA, ok)
            R(f'  s_add_u32 s{sTMP+2}, s{sTMP+2}, 1')
            R(f'  s_waitcnt vmcnt(0)')
            check(SBb, okb)
        else:
            R(f'  s_waitcnt vmcnt(0)')
            check(SA, ok)
        R(f'{lab}:')
        issue(SA)
        R(f'  s_add_u32 s{sTMP+2}, s{sTMP+2}, 1')
        R(f'  s_waitcnt vmcnt(0)')
        check(SA, ok)
        R(f'  s_cmp_lg_u32 s{sDEAD}, 0')
        R(f'  s_cbranch_scc1 {ok}')
        R(f'  s_cmp_lt_u32 s{sTMP+2}, 0x10000')
        R(f'  s_cbranch_scc1 {lab}')
        R(f'  s_mov_b32 s{sDEAD}, 1')
        R(f'{ok}:')
        writes(SA)
        if DBL:
            R(f'  s_branch {fin}')
            R(f'{okb}:')
            writes(SBb)
            R(f'{fin}:')
        A.reset()
        A(f's_add_u32 s{sTS+17}, s{sTS+17}, s{sTMP+2}')
        self.at(5, 1)

    def gather_es(self, sG):
        A = self.A; opt = self.opt
        WS = f's[{sWS}:{sWS+3}]'
        lab = A.newlabel('gatp'); ok = A.newlabel('gatok')
        R = A.raw
        E0, E1, G2, G3 = AB0, AB1, 64, 68
        A(f's_mov_b32 s{sTMP+2}, 0')
        A(f's_add_u32 s{sTMP+1}, s{sG}, 2048')
        for _ in range(opt.get('nop_gat', 0)): A(f's_nop 7')
        self.at(4, 1)
        def issue():
            l3 = A.newlabel('gat3')
            R(f'  buffer_load_dwordx4 {v(G2,4)}, {v(vF2)}, {WS}, s{sTMP+1} offen sc1')
            R(f'  buffer_load_dwordx4 {v(E0,4)}, {v(vMS)}, {WS}, s{sG} offen sc1')
            R(f'  buffer_load_dwordx4 {v(E1,4)}, {v(vMS)}, {WS}, s{sG} offen offset:1024 sc1')
            R(f'  s_cmp_eq_u32 s{sW}, 3')
            R(f'  s_cbranch_scc1 {l3}')
            R(f'  buffer_load_dwordx4 {v(G3,4)}, {v(vF2)}, {WS}, s{sTMP+1} offen offset:1024 sc1')
            R(f'{l3}:')
        def check():
            R(f'  s_waitcnt vmcnt(0)')
            R(f'  v_max3_u32 {v(T13)}, {v(E0)}, {v(E0+1)}, {v(E0+2)}')
            R(f'  v_max3_u32 {v(T14)}, {v(E1)}, {v(E1+1)}, {v(E1+2)}')
            R(f'  v_max3_u32 {v(T13)}, {v(T13)}, {v(E0+3)}, {v(E1+3)}')
            R(f'  v_max3_u32 {v(T14)}, {v(T14)}, {v(G2)}, {v(G2+1)}')
            R(f'  v_max3_u32 {v(T13)}, {v(T13)}, {v(G2+2)}, {v(G2+3)}')
            R(f'  v_max3_u32 {v(T14)}, {v(T14)}, {v(G3)}, {v(G3+1)}')
            R(f'  v_max3_u32 {v(T13)}, {v(T13)}, {v(G3+2)}, {v(G3+3)}')
            R(f'  v_max_u32 {v(T13)}, {v(T13)}, {v(T14)}')
            R(f'  v_cmp_eq_u32 vcc, -1, {v(T13)}')
            R(f'  s_cbranch_vccz {ok}')
        issue()
        R(f'  s_add_u32 s{sTMP+2}, s{sTMP+2}, 1')
        check()
        R(f'{lab}:')
        issue()
        R(f'  s_add_u32 s{sTMP+2}, s{sTMP+2}, 1')
        check()
        R(f'  s_cmp_lg_u32 s{sDEAD}, 0')
        R(f'  s_cbranch_scc1 {ok}')
        R(f'  s_cmp_lt_u32 s{sTMP+2}, 0x10000')
        R(f'  s_cbranch_scc1 {lab}')
        R(f'  s_mov_b32 s{sDEAD}, 1')
        R(f'{ok}:')
        A.reset()
        l3 = A.newlabel('gat3b')
        A(f'ds_write_b128 {v(vF2)}, {v(G2,4)} offset:{L_MEMST-BASE_MS+2048}')
        R(f'  s_cmp_eq_u32 s{sW}, 3')
        R(f'  s_cbranch_scc1 {l3}')
        R(f'  ds_write_b128 {v(vF2)}, {v(G3,4)} offset:{L_MEMST-BASE_MS+3072}')
        R(f'{l3}:')
        A.lgk.append(set())
        self.wmark = A.lgk[-1]
        A(f's_add_u32 s{sTS+17}, s{sTS+17}, s{sTMP+2}')
        self.at(5, 1)
```

```python
from asmlib import *
from layout import *
import math, struct
def fb(x): return struct.unpack('<I', struct.pack('<f', x))[0]

sWS = 4; sT = 8
sM, sW, sG, sK, sSEG, sN, sSLOW = 16, 17, 18, 19, 20, 21, 22
sTMP = 23
sTAB = 30
sP0 = 32
sA, sB, sC, sD_ = 36, 37, 38, 39
sDEAD = 44
sCv = 40
WS = f's[{sWS}:{sWS+3}]'
TS = f's[{sT}:{sT+3}]'
LO32 = 46
CIDX = {n: k for k, n in enumerate(WK_CONSTS)}

class Worker:
    def __init__(self, A, opt):
        self.A = A; self.opt = opt
    def consts(self, mp):
        A = self.A
        A('v_mul_u32_u24 v255, 192, v0') if False else None
        A(f'v_mov_b32 v{self.vT}, 192')
        A(f'v_mul_u32_u24 v{self.vT}, v{self.vT}, v0')
        for n, r in mp.items():
            A(f'global_load_dword v{r}, v{self.vT}, s[{sTAB}:{sTAB+1}] offset:{4*CIDX[n]}')
        A.wait(vm=0)
    def srd(self, kern_off, size):
        A = self.A
        A(f's_load_dwordx2 s[{sP0}:{sP0+1}], s[0:1], {kern_off}')
        A.wait(lgkm=0)
        A(f's_mov_b32 s{sT}, s{sP0}')
        A(f's_and_b32 s{sT+1}, s{sP0+1}, 0xffff')
        A(f's_mov_b32 s{sT+2}, {size}')
        A(f's_mov_b32 s{sT+3}, 0x20000')
    def dbg_add(self, idx_s=None, idx_c=0):
        A = self.A
        lab = A.newlabel('wda')
        A(f's_cmp_eq_u32 s{sW}, 0')
        A(f's_cbranch_scc0 {lab}')
        A(f's_add_u32 s{sTMP}, s{idx_s}, {idx_c}') if idx_s is not None else A(f's_mov_b32 s{sTMP}, {idx_c}')
        A(f's_lshl_b32 s{sTMP}, s{sTMP}, 2')
        A(f's_mov_b64 exec, 1')
        A(f'v_mov_b32 v60, s{sTMP}')
        A(f'v_mov_b32 v61, 1')
        A(f'global_atomic_add v60, v61, s[14:15]')
        A(f's_mov_b64 exec, -1')
        A.label(lab)
    def dbg_wait(self, idx_s, idx_c, val_s=None, val_c=0, sleep=2, barrier=True):
        A = self.A
        lab = A.newlabel('wdw'); done = A.newlabel('wdd'); skip = A.newlabel('wds')
        A(f's_cmp_eq_u32 s{sW}, 0')
        A(f's_cbranch_scc0 {skip}')
        if idx_s is not None: A(f's_add_u32 s{sTMP}, s{idx_s}, {idx_c}')
        else: A(f's_mov_b32 s{sTMP}, {idx_c}')
        A(f's_lshl_b32 s{sTMP}, s{sTMP}, 2')
        A(f'v_mov_b32 v60, s{sTMP}')
        if val_s is not None: A(f's_mov_b32 s{sTMP+2}, s{val_s}')
        else: A(f's_mov_b32 s{sTMP+2}, {val_c}')
        A(f's_mov_b32 s{sTMP}, 0')
        A.label(lab)
        A(f'global_load_dword v61, v60, s[14:15] sc1')
        A(f's_add_u32 s{sTMP}, s{sTMP}, 1')
        A.wait(vm=0)
        A(f'v_readfirstlane_b32 s{sTMP+1}, v61')
        A(f's_cmp_ge_u32 s{sTMP+1}, s{sTMP+2}')
        A(f's_cbranch_scc1 {done}')
        A(f's_sleep {sleep}')
        A(f's_cmp_lg_u32 s{sDEAD}, 0')
        A(f's_cbranch_scc1 {done}')
        A(f's_cmp_lt_u32 s{sTMP}, 0x40000')
        A(f's_cbranch_scc1 {lab}')
        A(f's_mov_b32 s{sDEAD}, 1')
        A.label(done)
        A.raw(f'{skip}:')
        A.reset()
        if barrier: A('s_barrier')
    def ws_wait(self, off_s, val_s, sleep=2):
        A = self.A
        lab = A.newlabel('www'); done = A.newlabel('wwd'); skip = A.newlabel('wws')
        A(f's_cmp_eq_u32 s{sW}, 0')
        A(f's_cbranch_scc0 {skip}')
        A(f'v_mov_b32 v60, 0')
        A(f's_mov_b32 s{sTMP}, 0')
        A.label(lab)
        A(f'buffer_load_dword v61, v60, {WS}, s{off_s} offen sc1')
        A(f's_add_u32 s{sTMP}, s{sTMP}, 1')
        A.wait(vm=0)
        A(f'v_readfirstlane_b32 s{sTMP+1}, v61')
        A(f's_cmp_ge_u32 s{sTMP+1}, s{val_s}')
        A(f's_cbranch_scc1 {done}')
        near = A.newlabel('wwn'); cont = A.newlabel('wwc')
        A(f's_add_u32 s{sTMP+1}, s{sTMP+1}, 1')
        A(f's_cmp_ge_u32 s{sTMP+1}, s{val_s}')
        A(f's_cbranch_scc1 {near}')
        A(f's_sleep {self.opt.get("farsleep", 24)}')
        A(f's_branch {cont}')
        A.raw(f'{near}:')
        A(f's_sleep {self.opt.get("nearsleep", 3)}')
        A.raw(f'{cont}:')
        A(f's_cmp_lg_u32 s{sDEAD}, 0')
        A(f's_cbranch_scc1 {done}')
        A(f's_cmp_lt_u32 s{sTMP}, 0x40000')
        A(f's_cbranch_scc1 {lab}')
        A(f's_mov_b32 s{sDEAD}, 1')
        A.label(done)
        A.raw(f'{skip}:')
        A.reset()
        A('s_barrier')
    def group_sync(self, ps):
        A = self.A
        skip = A.newlabel('gs'); lab = A.newlabel('gsp'); done = A.newlabel('gsd')
        A(f's_cmp_eq_u32 s{sW}, 0')
        A(f's_cbranch_scc0 {skip}')
        A(f's_lshl_b32 s{sTMP}, s{sG}, 8')
        A(f's_add_u32 s{sTMP}, s{sTMP}, {FL_W + ps*128}')
        A(f's_add_u32 s{sTMP+2}, s{sK}, 1')
        A(f's_lshl_b32 s{sTMP+1}, s{sM}, 2')
        A(f's_mov_b64 exec, 1')
        A(f'v_mov_b32 v60, s{sTMP+1}')
        A(f'v_mov_b32 v61, s{sTMP+2}')
        self.mstore(f'buffer_store_dword v61, v60, {WS}, s{sTMP} offen')
        A(f's_mov_b64 exec, -1')
        A(f'v_mbcnt_lo_u32_b32 v60, -1, 0')
        A(f'v_mbcnt_hi_u32_b32 v60, -1, v60')
        A(f'v_and_b32 v60, 31, v60')
        A(f'v_lshlrev_b32 v60, 2, v60')
        A(f's_mov_b32 s{sTMP+1}, 0')
        A.label(lab)
        A(f'buffer_load_dword v61, v60, {WS}, s{sTMP} offen sc1')
        A(f's_add_u32 s{sTMP+1}, s{sTMP+1}, 1')
        A.wait(vm=0)
        A(f'v_cmp_gt_u32 vcc, s{sTMP+2}, v61')
        A(f's_cbranch_vccz {done}')
        A(f's_cmp_lg_u32 s{sDEAD}, 0')
        A(f's_cbranch_scc1 {done}')
        A(f's_cmp_lt_u32 s{sTMP+1}, 0x100000')
        A(f's_cbranch_scc1 {lab}')
        A(f's_mov_b32 s{sDEAD}, 1')
        A.label(done)
        A.raw(f'{skip}:')
        A.reset()
        A('s_barrier')
    def warm_weights(self):
        A = self.A
        A(f's_load_dwordx2 s[32:33], s[0:1], 16')
        A(f's_load_dwordx2 s[34:35], s[0:1], 32')
        A(f's_load_dwordx2 s[36:37], s[0:1], 40')
        A(f's_load_dwordx2 s[38:39], s[0:1], 24')
        A(f's_lshl_b32 s{sTMP}, s{sG}, 5'); A(f's_add_u32 s{sTMP}, s{sTMP}, s{sM}')
        A(f's_lshl_b32 s{sTMP}, s{sTMP}, 15')
        A(f'v_lshlrev_b32 v10, 7, v0')
        A.wait(lgkm=0)
        for k, p in enumerate((32, 34, 36, 38)):
            A(f's_mov_b32 s{sT}, s{p}'); A(f's_and_b32 s{sT+1}, s{p+1}, 0xffff')
            A(f's_mov_b32 s{sT+2}, {D*8192}'); A(f's_mov_b32 s{sT+3}, 0x20000')
            A.raw(f'  buffer_load_dword v{11+k}, v10, {TS}, s{sTMP} offen')
    def layernorm(self):
        A = self.A
        self.vT = 2
        self.consts({'wLNG': 3, 'wLNS': 4})
        A(f's_lshl_b32 s{sTMP}, s{sG}, 8')
        A(f's_lshl_b32 s{sTMP+1}, s{sM}, 2')
        A(f's_add_u32 s{sTMP}, s{sTMP}, s{sTMP+1}')
        A(f's_add_u32 s{sTMP}, s{sTMP}, {FL_W}')
        A(f'v_mov_b32 v60, 0')
        A(f'buffer_store_dword v60, v60, {WS}, s{sTMP} offen sc1')
        A(f'buffer_store_dword v60, v60, {WS}, s{sTMP} offen offset:128 sc1')
        done = A.newlabel('lnd')
        A(f's_lshl_b32 s{sTMP}, s{sW}, 5')
        A(f's_add_u32 s{sTMP}, s{sTMP}, s{sM}')
        A(f's_lshl_b32 s{sTMP+1}, s{sN}, 2')
        A(f's_cmp_lt_u32 s{sTMP}, s{sTMP+1}')
        A(f's_cbranch_scc0 {done}')
        A(f's_lshr_b32 s{sTMP+1}, s{sTMP}, 2')
        A(f's_mul_i32 s{sTMP+1}, s{sTMP+1}, 7')
        A(f's_add_u32 s{sTMP+1}, s{sTMP+1}, s{sG}')
        A(f's_and_b32 s{sTMP+2}, s{sTMP}, 3')
        A(f's_lshl_b32 s{sTMP+3}, s{sTMP+1}, 2')
        A(f's_add_u32 s{sTMP+3}, s{sTMP+3}, s{sTMP+2}')
        A(f's_mul_i32 s{sA}, s{sTMP+3}, {8*1152}')
        A(f's_mul_i32 s{sB}, s{sTMP+1}, {SEGB}')
        A(f's_lshl_b32 s{sTMP+2}, s{sTMP+2}, 7')
        A(f's_add_u32 s{sB}, s{sB}, s{sTMP+2}')
        self.srd(0, S*D*2)
        P = 64; F_ = 100
        for n in range(9):
            A(f'buffer_load_dwordx4 {v(P+4*n,4)}, v3, {TS}, s{sA} offen offset:{128*n}')
        A(f's_mov_b32 s{sC}, 0xffff0000')
        for which in range(2):
            for d in range(36):
                A(f'v_lshlrev_b32 v{F_+2*d}, 16, v{P+d}')
                A(f'v_and_b32 v{F_+2*d+1}, s{sC}, v{P+d}')
            def red8(r):
                A(f'v_add_f32_dpp v{r}, v{r}, v{r} quad_perm:[1,0,3,2] row_mask:0xf bank_mask:0xf')
                A(f'v_add_f32_dpp v{r}, v{r}, v{r} quad_perm:[2,3,0,1] row_mask:0xf bank_mask:0xf')
                A(f'v_add_f32_dpp v{r}, v{r}, v{r} row_half_mirror row_mask:0xf bank_mask:0xf')
            acc = [10, 11, 12, 13]
            for k in range(4): A(f'v_mov_b32 v{acc[k]}, v{F_+k}')
            for e in range(4, 72): A(f'v_add_f32 v{acc[e%4]}, v{acc[e%4]}, v{F_+e}')
            A('v_add_f32 v10, v10, v11'); A('v_add_f32 v12, v12, v13'); A('v_add_f32 v10, v10, v12')
            red8(10)
            A(f'v_mul_f32 v10, {fb(1.0/576):#x}, v10')
            for k in range(4): A(f'v_mov_b32 v{11+k}, 0')
            for e in range(72):
                A(f'v_sub_f32 v15, v{F_+e}, v10')
                A(f'v_fmac_f32 v{11+e%4}, v15, v15')
            A('v_add_f32 v11, v11, v12'); A('v_add_f32 v13, v13, v14'); A('v_add_f32 v11, v11, v13')
            red8(11)
            A(f'v_mul_f32 v11, {fb(1.0/576):#x}, v11')
            A('v_cvt_pk_bf16_f32 v10, v10, v11')
            A(f'v_and_b32 v11, s{sC}, v10')
            A('v_lshlrev_b32 v10, 16, v10')
            A(f'v_add_f32 v11, {fb(1e-5):#x}, v11')
            A('v_cvt_pk_bf16_f32 v11, v11, v11')
            A(f'v_and_b32 v11, s{sC}, v11')
            A('v_sqrt_f32 v11, v11')
            A('v_cvt_pk_bf16_f32 v11, v11, v11')
            A(f'v_and_b32 v11, s{sC}, v11')
            A('v_rcp_f32 v11, v11')
            for d in range(36):
                a0, a1 = F_+2*d, F_+2*d+1
                A(f'v_sub_f32 v{a0}, v{a0}, v10')
                A(f'v_sub_f32 v{a1}, v{a1}, v10')
                A(f'v_cvt_pk_bf16_f32 v15, v{a0}, v{a1}')
                A(f'v_lshlrev_b32 v{a0}, 16, v15')
                A(f'v_and_b32 v{a1}, s{sC}, v15')
                A(f'v_mul_f32 v{a0}, v11, v{a0}')
                A(f'v_mul_f32 v{a1}, v11, v{a1}')
                A(f'v_cvt_pk_bf16_f32 v{P+d}, v{a0}, v{a1}')
            base = OFF_XNF if which == 0 else OFF_YF
            for n in range(9):
                A(f's_add_u32 s{sTMP}, s{sB}, {base + n*8*512}')
                A(f'buffer_store_dwordx4 {v(P+4*n,4)}, v4, {WS}, s{sTMP} offen sc1')
            if which == 0: A('s_nop 1')
        A.wait(vm=0)
        A.label(done)
        A.wait(vm=0)
        A('s_barrier')
        self.dbg_add(sG, DBG_LN)
    def ring(self, blocks, nslots=9, depth=6):
        A = self.A
        pos = []; p = 0
        for b in blocks:
            ns = b.get('slots', 1)
            if p % nslots + ns > nslots: p += nslots - p % nslots
            pos.append(p % nslots); p += ns
        def issue(n):
            b = blocks[n]
            if b.get('setup'): b['setup']()
            for y, dm in enumerate(b['dmas']):
                voff, sbase, const, lds = dm[:4]
                lb = dm[4] if len(dm) > 4 else 42
                A(f's_add_u32 s43, s{sbase}, {const}')
                A(f's_add_u32 m0, s{lb}, {pos[n]*16384 + lds}')
                A(f'buffer_load_dwordx4 v{voff}, {TS}, s43 offen lds')
        N = len(blocks)
        issued = 0
        def can_issue(n, cur):
            sl = set(range(pos[n], pos[n] + blocks[n].get('slots', 1)))
            for q in range(cur, n):
                if sl & set(range(pos[q], pos[q] + blocks[q].get('slots', 1))): return False
            return n - cur < depth
        while issued < N and can_issue(issued, 0): issue(issued); issued += 1
        for n in range(N):
            left = sum(len(blocks[q]['dmas']) for q in range(n+1, issued))
            A.wait(vm=left, lgkm=0)
            A('s_barrier')
            while issued < N and can_issue(issued, n): issue(issued); issued += 1
            cur = {}
            for (dst, addr, imm) in blocks[n]['reads']:
                if addr not in cur:
                    t = 60 + len(cur); cur[addr] = t
                    A(f'v_add_u32 v{t}, {pos[n]*16384}, v{addr}')
                A(f'ds_read_b64_tr_b16 {dst}, v{cur[addr]} offset:{imm}')
        A.wait(lgkm=0)
        A('s_barrier')
    def seg_dma(self, base, seg_s, buf_s, vL16):
        A = self.A
        A(f's_mul_i32 s{sTMP}, s{seg_s}, {SEGB}')
        A(f's_mul_i32 s{sTMP+1}, s{sW}, {9*1024}')
        A(f's_add_u32 s{sTMP}, s{sTMP}, s{sTMP+1}')
        A(f's_add_u32 s{sTMP}, s{sTMP}, {base}')
        A(f's_add_u32 s{sTMP+1}, s{sTMP+1}, s{buf_s}')
        for y in range(9):
            A(f's_add_u32 m0, s{sTMP+1}, {(y//4)*4096}')
            if y % 4 == 0 and y: A(f's_add_u32 s{sTMP}, s{sTMP}, 4096')
            A(f'buffer_load_dwordx4 v{vL16}, {WS}, s{sTMP} offen offset:{(y%4)*1024} sc1 lds')
    def passA(self):
        A = self.A; opt = self.opt
        self.vT = 2
        sMA, sGA, sNA = 50, 51, 52
        A(f's_lshl_b32 s{sTMP}, s{sG}, 5'); A(f's_add_u32 s{sTMP}, s{sTMP}, s{sM}')
        A(f's_mul_i32 s{sMA}, s{sTMP}, 9363'); A(f's_lshr_b32 s{sMA}, s{sMA}, 16')
        A(f's_mul_i32 s{sTMP+1}, s{sMA}, 7'); A(f's_sub_u32 s{sGA}, s{sTMP}, s{sTMP+1}')
        A(f's_cmp_eq_u32 s{sGA}, 0'); A(f's_cselect_b32 s{sNA}, 10, 9')
        C = {'wL16': 3, 'wDA': 4, 'wTA0': 5, 'wTA1': 6, 'wSTK': 7}
        self.consts(C)
        def fr(kp, tau, off=0, cnt=4):
            n = (2*kp + tau)*4 + off
            return f'a[{n}:{n+cnt-1}]' if n < 256 else f'v[{224+n-256}:{224+n-256+cnt-1}]'
        A(f's_load_dwordx2 s[{sP0}:{sP0+1}], s[0:1], 24')
        A(f's_load_dwordx2 s[{sP0+2}:{sP0+3}], s[0:1], 32')
        A.wait(lgkm=0)
        A(f's_cmp_lt_u32 s{sW}, 2')
        A(f's_cselect_b32 s{sT}, s{sP0}, s{sP0+2}')
        A(f's_cselect_b32 s{sT+1}, s{sP0+1}, s{sP0+3}')
        A(f's_and_b32 s{sT+1}, s{sT+1}, 0xffff')
        A(f's_mov_b32 s{sT+2}, {D*8192}')
        A(f's_mov_b32 s{sT+3}, 0x20000')
        A(f's_and_b32 s{sTMP}, s{sW}, 1')
        A(f's_mul_i32 s{sTMP}, s{sTMP}, {16*8192}')
        A(f's_lshl_b32 s{sA}, s{sMA}, 8')
        A(f's_add_u32 s{sA}, s{sA}, s{sTMP}')
        A(f's_lshl_b32 s42, s{sW}, 12')
        blocks = []
        for b in range(18):
            dm = [(4, sA, (32*b + 4*y)*8192, y*1024) for y in range(4)]
            rd = []
            for kk in range(2):
                for tau in range(2):
                    for rr in range(2):
                        rd.append((fr(2*b+kk, tau, 2*rr, 2), 5+tau, kk*4096 + rr*1024))
            blocks.append(dict(dmas=dm, reads=rd))
        self.ring(blocks)
        rt_stamp(A, opt, 3, sW, off=OFF_RT)
        self.dbg_wait(sGA, DBG_LN, None, 32)
        self.dbg_wait(None, DBG_CHINIT, None, 32)
        rt_stamp(A, opt, 4, sW, off=OFF_RT)
        A(f's_mov_b32 s{sK}, 0')
        A(f's_mov_b32 s{sSEG}, s{sGA}')
        A(f's_mov_b32 s{sB}, {W_XT0}')
        self.seg_dma(OFF_XNF, sSEG, sB, 3)
        A(f'v_add_u32 v8, {W_XT0}, v3')
        A(f's_lshl_b32 s{sC}, s{sGA}, 7')
        A(f's_lshl_b32 s{sTMP}, s{sMA}, 2')
        A(f's_add_u32 s{sC}, s{sC}, s{sTMP}')
        A(f's_add_u32 s{sC}, s{sC}, {FL_KV + 128}')
        L = A.newlabel('pa_loop'); nonext = A.newlabel('pa_nn'); vw = A.newlabel('pa_v'); epi = A.newlabel('pa_e')
        A.label(L)
        A.wait(vm=0)
        A('s_barrier')
        lab = A.newlabel('pa_fl')
        A(f's_cmp_eq_u32 s{sK}, 0'); A(f's_cbranch_scc1 {lab}')
        A(f's_cmp_eq_u32 s{sW}, 0'); A(f's_cbranch_scc0 {lab}')
        A(f's_mov_b64 exec, 1'); A(f'v_mov_b32 v60, 0'); A(f'v_mov_b32 v61, s{sK}')
        A(f'buffer_store_dword v61, v60, {WS}, s{sC} offen sc1'); A(f's_mov_b64 exec, -1')
        A.label(lab)
        A(f's_add_u32 s{sD_}, s{sK}, 1')
        A(f's_cmp_lt_u32 s{sD_}, s{sNA}')
        A(f's_cbranch_scc0 {nonext}')
        A(f's_add_u32 s{sD_}, s{sSEG}, 7')
        A(f's_xor_b32 s{sTMP+2}, s{sB}, {W_XT0 ^ W_XT1}')
        self.seg_dma(OFF_XNF, sD_, sTMP+2, 3)
        A.label(nonext)
        ACC = 64; XB = [96, 100, 104, 108]
        A(f's_cmp_lt_u32 s{sW}, 2')
        A(f's_cbranch_scc0 {vw}')
        for role in range(2):
            if role == 1: A.label(vw)
            for kp in range(3): A(f'ds_read_b128 {v(XB[kp],4)}, v8 offset:{kp*1024}')
            for kp in range(36):
                if kp + 3 < 36: A(f'ds_read_b128 {v(XB[(kp+3)%4],4)}, v8 offset:{(kp+3)*1024}')
                for tau in range(2):
                    d = v(ACC+16*tau, 16); c_ = d if kp else '0'
                    x_ = v(XB[kp % 4], 4)
                    if role == 0: A(f'v_mfma_f32_32x32x16_bf16 {d}, {fr(kp,tau)}, {x_}, {c_}')
                    else: A(f'v_mfma_f32_32x32x16_bf16 {d}, {x_}, {fr(kp,tau)}, {c_}')
            if role == 0: A(f's_branch {epi}')
        A.label(epi)
        A(f's_nop 15')
        A(f's_lshl_b32 s{sTMP}, s{sSEG}, 5')
        A(f's_add_u32 s{sTMP}, s{sTMP}, s{sMA}')
        A(f's_lshl_b32 s{sTMP}, s{sTMP}, 13')
        A(f's_cmp_lt_u32 s{sW}, 2')
        A(f's_cselect_b32 s{sTMP+1}, 0, {OFF_VXF-OFF_KXF}')
        A(f's_add_u32 s{sTMP}, s{sTMP}, s{sTMP+1}')
        A(f's_add_u32 s{sTMP}, s{sTMP}, {OFF_KXF}')
        PK = 112
        for tau in range(2):
            for u in range(2):
                r0 = ACC + 16*tau + 8*u; p = PK + 8*tau + 4*u
                for k in range(4): A(f'v_cvt_pk_bf16_f32 v{p+k}, v{r0+2*k}, v{r0+2*k+1}')
                A(f'buffer_store_dwordx4 {v(p,4)}, v7, {WS}, s{sTMP} offen offset:{tau*2048+u*512} sc1')
        A(f's_xor_b32 s{sB}, s{sB}, {W_XT0 ^ W_XT1}')
        A(f'v_add_u32 v8, s{sB}, v3')
        A(f's_add_u32 s{sSEG}, s{sSEG}, 7')
        A(f's_add_u32 s{sK}, s{sK}, 1')
        A(f's_cmp_lt_u32 s{sK}, s{sNA}')
        A(f's_cbranch_scc1 {L}')
        A.wait(vm=0)
        A('s_barrier')
        lab = A.newlabel('pa_fl')
        A(f's_cmp_eq_u32 s{sW}, 0'); A(f's_cbranch_scc0 {lab}')
        A(f's_mov_b64 exec, 1'); A(f'v_mov_b32 v60, 0'); A(f'v_mov_b32 v61, s{sK}')
        A(f'buffer_store_dword v61, v60, {WS}, s{sC} offen sc1'); A(f's_mov_b64 exec, -1')
        A.label(lab)

    def gemm2_blocks(self, fr2, nrb, mini, vDO, vTO, sbase, slds, setup):
        blocks = []
        first = True
        for q0 in (0, 2, 4, 6, 8):
            for rb in range(nrb):
                dm = [(vDO, sbase, (64*rb + 16*y)*1152 + q0*32, y*4096, slds) for y in range(4)]
                rd = []
                for kk in range(2):
                    for tau in range(2):
                        if q0 + tau > 8: continue
                        for rr in range(2):
                            rd.append((fr2(q0+tau, 2*rb+kk, 2*rr, 2), vTO+tau, (32*kk + 16*rr)*256))
                blocks.append(dict(dmas=dm, reads=rd, setup=setup if first else None)); first = False
            if mini:
                dm = [(vDO, sbase, (64*nrb)*1152 + q0*32, 0, slds)]
                rd = [(fr2(q0+tau, 4, 0, 2), vTO+tau, 0) for tau in range(2) if q0 + tau <= 8]
                blocks.append(dict(dmas=dm, reads=rd))
        return blocks
    def gemm2(self, fr2, k16, ACC, HF, PKD, vL16, vL8, vPS8, sPB):
        A = self.A
        for tt in range(2):
            for ko in range(4):
                A(f'ds_read_b128 {v(HF+4*ko,4)}, v{vL16} offset:{W_OEX + tt*4096 + ko*1024}')
            if k16: A(f'ds_read_b64 {v(HF+16,2)}, v{vL8} offset:{W_OEX + 8192 + tt*512}')
            for ko in range(4):
                for q in range(9):
                    d = v(ACC+4*q, 4)
                    A(f'v_mfma_f32_16x16x32_bf16 {d}, {fr2(q, ko)}, {v(HF+4*ko,4)}, {d if ko else 0}')
            if k16:
                for q in range(9):
                    d = v(ACC+4*q, 4)
                    A(f'v_mfma_f32_16x16x16_bf16 {d}, {fr2(q, 4, 0, 2)}, {v(HF+16,2)}, {d}')
            for a_ in range(4):
                p = PKD + 4*(a_ % 2)
                for t2 in range(2):
                    r0 = ACC + 4*(2*a_ + t2)
                    A(f'v_cvt_pk_bf16_f32 v{p+2*t2}, v{r0}, v{r0+1}')
                    A(f'v_cvt_pk_bf16_f32 v{p+2*t2+1}, v{r0+2}, v{r0+3}')
                self.mstore(f'buffer_store_dwordx4 {v(p,4)}, v{vL16}, {WS}, s{sPB} offen offset:{a_*1024}', tt*4608, sPB)
            p = PKD + 8
            A(f'v_cvt_pk_bf16_f32 v{p}, v{ACC+32}, v{ACC+33}')
            A(f'v_cvt_pk_bf16_f32 v{p+1}, v{ACC+34}, v{ACC+35}')
            A(f's_add_u32 s{sTMP}, s{sPB}, 4096')
            self.mstore(f'buffer_store_dwordx2 {v(p,2)}, v{vPS8}, {WS}, s{sTMP} offen', 0, None)
            if tt == 0: A(f's_add_u32 s{sPB}, s{sPB}, 4608')
        A(f's_sub_u32 s{sPB}, s{sPB}, 4608')
    def mstore(self, text, *_):
        A = self.A
        l1 = A.newlabel('ms'); l2 = A.newlabel('me')
        A(f's_cmp_eq_u32 s{sSLOW}, 0')
        A(f's_cbranch_scc0 {l1}')
        A(text)
        A.raw(f'  s_branch {l2}')
        A.raw(f'{l1}:')
        A.raw(f'  {text} sc1')
        A.raw(f'{l2}:')
    def reduce(self, which, R0, vRL, vSEL, vROb, vROf, vX0, vX1, vB2r, vB2x):
        A = self.A
        A.wait(vm=0)
        A('s_barrier')
        self.group_sync(0 if which == 'C' else 1)
        LD = R0; AC = R0 + 32; XX = R0 + 36; BB = R0 + 40
        def task(extra):
            if not extra:
                A(f's_lshr_b32 s{sTMP}, s{sM}, 3')
                A(f's_bfe_u32 s{sTMP+1}, s{sM}, 0x10002')
                A(f's_and_b32 s{sTMP+2}, s{sM}, 3')
                A(f's_mul_i32 s{sTMP+3}, s{sTMP}, 9216')
                A(f's_mul_i32 s{sTMP+4}, s{sTMP+1}, 4608')
                A(f's_add_u32 s{sTMP+3}, s{sTMP+3}, s{sTMP+4}')
                A(f's_lshl_b32 s{sTMP+4}, s{sTMP+2}, 10')
                A(f's_add_u32 s{sTMP+3}, s{sTMP+3}, s{sTMP+4}')
                A(f's_lshl_b32 s{sTMP+4}, s{sW}, 8')
                A(f's_add_u32 s{sTMP+3}, s{sTMP+3}, s{sTMP+4}')
                A(f's_mul_i32 s{sTMP+5}, s{sTMP}, {9*32}')
                A(f's_lshl_b32 s{sTMP+4}, s{sTMP+2}, 6')
                A(f's_add_u32 s{sTMP+5}, s{sTMP+5}, s{sTMP+4}')
                A(f's_lshl_b32 s{sTMP+4}, s{sW}, 3')
                A(f's_add_u32 s{sTMP+5}, s{sTMP+5}, s{sTMP+4}')
            else:
                A(f's_lshr_b32 s{sTMP}, s{sM}, 2')
                A(f's_bfe_u32 s{sTMP+1}, s{sM}, 0x10001')
                A(f's_and_b32 s{sTMP+2}, s{sM}, 1')
                A(f's_mul_i32 s{sTMP+3}, s{sTMP}, 9216')
                A(f's_mul_i32 s{sTMP+4}, s{sTMP+1}, 4608')
                A(f's_add_u32 s{sTMP+3}, s{sTMP+3}, s{sTMP+4}')
                A(f's_lshl_b32 s{sTMP+4}, s{sTMP+2}, 8')
                A(f's_add_u32 s{sTMP+3}, s{sTMP+3}, s{sTMP+4}')
                A(f's_add_u32 s{sTMP+3}, s{sTMP+3}, 4096')
                A(f's_mul_i32 s{sTMP+5}, s{sTMP}, {9*32}')
                A(f's_lshl_b32 s{sTMP+4}, s{sTMP+2}, 4')
                A(f's_add_u32 s{sTMP+5}, s{sTMP+5}, s{sTMP+4}')
                A(f's_add_u32 s{sTMP+5}, s{sTMP+5}, {8*32}')
            A(f's_lshl_b32 s{sTMP+4}, s{sSEG}, 5')
            A(f's_lshl_b32 s{sTMP+1}, s{sTMP+1}, 4')
            A(f's_add_u32 s{sTMP+4}, s{sTMP+4}, s{sTMP+1}')
            A(f's_mul_i32 s{sTMP+4}, s{sTMP+4}, 1152')
            A(f's_add_u32 s{sTMP+4}, s{sTMP+4}, s{sTMP+5}')
            A(f's_add_u32 s{sTMP+3}, s{sTMP+3}, s{sA}')
            for n in range(8):
                A(f'buffer_load_dwordx4 {v(LD+4*n,4)}, v{vRL}, {WS}, s{sTMP+3} offen sc1')
                if n < 7: A(f's_add_u32 s{sTMP+3}, s{sTMP+3}, {4*WPB_M}')
            vo_b = vX0 if extra else vROb; vo_f = vX1 if extra else vROf
            A(f's_lshl_b32 s{sTMP+2}, s{sTMP+4}, 1')
            A(f's_add_u32 s{sTMP+2}, s{sTMP+2}, {OFF_BASE}')
            if which == 'C':
                self.srd_cached('x')
                A(f'buffer_load_dwordx2 {v(XX,2)}, v{vo_b}, {TS}, s{sTMP+4} offen')
                A(f'global_load_dwordx2 {v(BB,2)}, v{vB2x if extra else vB2r}, s[34:35]') if False else None
                A(f's_add_u32 s{sTMP}, s{sTMP+5}, 0')
                A(f'v_add_u32 v{BB+2}, s{sTMP+5}, v{vB2x if extra else vB2r}')
                A(f'global_load_dwordx2 {v(BB,2)}, v{BB+2}, s[34:35]')
            else:
                A(f'buffer_load_dwordx4 {v(XX,4)}, v{vo_f}, {WS}, s{sTMP+2} offen sc1')
            for n in range(8):
                A(f'v_mfma_f32_16x16x32_bf16 {v(AC,4)}, {v(vSEL,4)}, {v(LD+4*n,4)}, {v(AC,4) if n else 0}')
            if which == 'C':
                A(f's_mov_b32 s{sTMP}, 0xffff0000')
                for k, src in enumerate((XX, BB)):
                    t = LD + 4*k
                    A(f'v_lshlrev_b32 v{t}, 16, v{src}'); A(f'v_and_b32 v{t+1}, s{sTMP}, v{src}')
                    A(f'v_lshlrev_b32 v{t+2}, 16, v{src+1}'); A(f'v_and_b32 v{t+3}, s{sTMP}, v{src+1}')
                for r in range(4):
                    A(f'v_add_f32 v{LD+r}, v{LD+r}, v{LD+4+r}')
                    A(f'v_add_f32 v{AC+r}, v{AC+r}, v{LD+r}')
                A(f's_mov_b64 exec, s[{LO32}:{LO32+1}]')
                A(f'buffer_store_dwordx4 {v(AC,4)}, v{vo_f}, {WS}, s{sTMP+2} offen' + (' sc1' if self.opt.get('wt') else ''))
                A(f's_mov_b64 exec, -1')
            else:
                for r in range(4): A(f'v_add_f32 v{AC+r}, v{AC+r}, v{XX+r}')
                A(f'v_cvt_pk_bf16_f32 v{AC}, v{AC}, v{AC+1}')
                A(f'v_cvt_pk_bf16_f32 v{AC+1}, v{AC+2}, v{AC+3}')
                A(f's_mov_b64 exec, s[{LO32}:{LO32+1}]')
                A(f'buffer_store_dwordx2 {v(AC,2)}, v{vo_b}, {TS}, s{sTMP+4} offen' + (' sc1' if self.opt.get('wt') else ''))
                A(f's_mov_b64 exec, -1')
        task(False)
        lab = A.newlabel('rx')
        A(f's_cmp_eq_u32 s{sW}, 3'); A(f's_cbranch_scc0 {lab}')
        A(f's_cmp_lt_u32 s{sM}, 16'); A(f's_cbranch_scc0 {lab}')
        task(True)
        A.wait(vm=0, lgkm=0)
        A.label(lab)
    def srd_cached(self, which): pass
    def passC(self):
        A = self.A; opt = self.opt
        self.vT = 2
        C = {'wL16': 3, 'wDW1': 4, 'wD16': 5, 'wT1a': 6, 'wT1b': 7, 'wT1c': 8, 'wDO': 9, 'wTO0': 10, 'wTO1': 11,
             'wHW': 12, 'wHW8': 13, 'wRL': 14, 'wROb': 15, 'wROf': 16, 'wPS8': 17, 'wB1': 18, 'wYR': 19, 'wYR2': 20,
             'wX0': 21, 'wX1': 22, 'wL8': 23, 'wSEL0': 24, 'wSEL1': 25, 'wSEL2': 26, 'wSEL3': 27}
        self.consts(C)
        A('v_lshrrev_b32 v28, 8, v3'); A('v_and_b32 v28, 1, v28')
        A('v_lshlrev_b32 v29, 3, v28'); A('v_lshlrev_b32 v28, 5, v28')
        def w1(ti, kp, off=0, cnt=4):
            n = (ti*18 + kp)*4 + off
            return f'a[{n}:{n+cnt-1}]'
        f4 = [('a', 216 + 4*k) for k in range(10)] + [('v', 134 + 4*k) for k in range(26)]
        f2 = [('v', 238 + 2*k) for k in range(9)]
        def fr2(q, ko, off=0, cnt=4):
            if ko < 4: kd, n = f4[q*4 + ko]
            else: kd, n = f2[q]
            n += off
            return f'{kd}[{n}:{n+cnt-1}]'
        self.srd(64, D*9216)
        A(f's_mul_i32 s{sA}, s{sM}, 288')
        A(f's_mul_i32 s{sTMP}, s{sW}, {4*9216}')
        A(f's_add_u32 s{sB}, s{sA}, s{sTMP}')
        A(f's_mul_i32 s{sTMP}, s{sW}, {5*32*9216}')
        A(f's_add_u32 s{sC}, s{sA}, s{sTMP}')
        A(f's_add_u32 s{sC}, s{sC}, 256')
        A(f's_lshl_b32 s42, s{sW}, 10')
        A(f's_mul_i32 s45, s{sW}, 5120')
        blocks = []
        for b in range(9):
            dm = [(4, sB, (64*b + 16*y)*9216, y*4096) for y in range(4)]
            rd = [(w1(tau, 2*b+kk, 2*rr, 2), 6+tau, kk*8192 + rr*1024) for kk in range(2) for tau in range(2) for rr in range(2)]
            blocks.append(dict(dmas=dm, reads=rd))
        dm = [(5, sC, y*32*9216, y*1024, 45) for y in range(5)]
        rd = [(w1(2, kp, 2*rr, 2), 8, kp*1024 + rr*128) for kp in range(18) for rr in range(2)]
        blocks.append(dict(dmas=dm, reads=rd, slots=2))
        self.ring(blocks)
        self.srd(80, F*1152)
        A(f's_mul_i32 s{sA}, s{sM}, 144')
        A(f's_lshl_b32 s{sTMP}, s{sW}, 2')
        A(f's_add_u32 s{sA}, s{sA}, s{sTMP}')
        A(f's_mul_i32 s{sB}, s{sA}, 1152')
        self.ring(self.gemm2_blocks(fr2, 2, True, 9, 10, sB, 42, None))
        rt_stamp(A, opt, 6, sW, off=OFF_RT)
        A(f's_load_dwordx2 s[{sP0}:{sP0+1}], s[0:1], 72')
        A(f's_load_dwordx2 s[34:35], s[0:1], 88')
        A.wait(lgkm=0)
        A(f's_mul_i32 s{sTMP}, s{sM}, 288')
        A(f's_lshl_b32 s{sTMP+1}, s{sW}, 6')
        A(f's_add_u32 s{sTMP+1}, s{sTMP+1}, s{sTMP}')
        A(f'v_add_u32 v60, s{sTMP+1}, v18')
        A(f'global_load_dwordx2 v[44:45], v60, s[{sP0}:{sP0+1}]')
        A(f'global_load_dwordx2 v[46:47], v60, s[{sP0}:{sP0+1}] offset:32')
        A(f's_add_u32 s{sTMP}, s{sTMP}, 256')
        A(f'v_add_u32 v60, s{sTMP}, v18')
        A(f'global_load_dwordx2 v[48:49], v60, s[{sP0}:{sP0+1}]')
        A(f's_mov_b32 s{sTMP}, 0xffff0000')
        BI = 30
        for ti in range(3):
            for hf in range(2):
                A(f'v_lshlrev_b32 v{BI+4*ti+2*hf}, 16, v{44+2*ti+hf}')
                A(f'v_and_b32 v{BI+4*ti+2*hf+1}, s{sTMP}, v{44+2*ti+hf}')
        self.dbg_wait(sG, DBG_LN, None, 32)
        A(f's_lshl_b32 s{sTMP}, s53, 2')
        A(f'v_mov_b32 v60, s{sTMP}')
        A(f'global_load_dword v61, v60, s[14:15] sc1')
        A(f'v_readfirstlane_b32 s{sTMP}, v61')
        A(f's_cmp_lt_u32 s{sTMP}, 32')
        A(f's_cselect_b32 s{sSLOW}, 1, 0')
        if opt.get('fake') or opt.get('slow') or opt.get('wslow'): A(f's_mov_b32 s{sSLOW}, 1')
        self.srd(0, S*D*2)
        A(f's_mov_b32 s{LO32}, -1'); A(f's_mov_b32 s{LO32+1}, 0')
        A(f's_mov_b32 s{sK}, 0')
        A(f's_mov_b32 s{sSEG}, s{sG}')
        A(f's_mov_b32 s{sB}, {W_XT0}')
        self.seg_dma(OFF_YF, sSEG, sB, 3)
        L = A.newlabel('pc_loop'); nonext = A.newlabel('pc_nn')
        A.label(L)
        A(f'v_add_u32 v42, s{sB}, v19')
        A(f'v_add_u32 v43, s{sB}, v20')
        A.wait(vm=0)
        A('s_barrier')
        A(f's_add_u32 s{sD_}, s{sK}, 1')
        A(f's_cmp_lt_u32 s{sD_}, s{sN}')
        A(f's_cbranch_scc0 {nonext}')
        A(f's_add_u32 s{sD_}, s{sSEG}, 7')
        A(f's_xor_b32 s{sTMP+2}, s{sB}, {W_XT0 ^ W_XT1}')
        self.seg_dma(OFF_YF, sD_, sTMP+2, 3)
        A.label(nonext)
        AC1 = 44; YB = [64, 76, 88]
        def yread(kp):
            b = YB[kp % 3]
            return [f'ds_read_b128 {v(b,4)}, v42 offset:{kp*2048}', f'ds_read_b128 {v(b+4,4)}, v42 offset:{kp*2048+256}',
                    f'ds_read_b128 {v(b+8,4)}, v43 offset:{kp*2048}']
        for kp in range(2):
            for x in yread(kp): A(x)
        for kp in range(18):
            if kp + 2 < 18:
                for x in yread(kp+2): A(x)
            b = YB[kp % 3]
            for idx, (ti, yo) in enumerate([(0, 0), (0, 4), (1, 0), (1, 4), (2, 8)]):
                d = v(AC1+4*idx, 4)
                A(f'v_mfma_f32_16x16x32_bf16 {d}, {w1(ti,kp)}, {v(b+yo,4)}, {d if kp else 0}')
        c1 = -2.0*math.sqrt(2.0/math.pi)*math.log2(math.e); c2 = c1*0.044715
        A(f's_mov_b32 s{sTMP}, {fb(c1):#x}'); A(f's_mov_b32 s{sTMP+1}, {fb(c2):#x}')
        A(f'v_mov_b32 v100, s{sTMP}')
        for idx, ti in enumerate([0, 0, 1, 1, 2]):
            for r in range(4):
                x = AC1 + 4*idx + r; t = 64 + 4*idx + r
                A(f'v_add_f32 v{x}, v{x}, v{BI+4*ti+r}')
                A(f'v_mul_f32 v{t}, v{x}, v{x}')
                A(f'v_fma_f32 v{t}, v{t}, s{sTMP+1}, v100')
                A(f'v_mul_f32 v{t}, v{t}, v{x}')
            for r in range(4):
                t = 64 + 4*idx + r
                A(f'v_exp_f32 v{t}, v{t}')
            for r in range(4):
                t = 64 + 4*idx + r
                A(f'v_add_f32 v{t}, 1.0, v{t}')
            for r in range(4):
                t = 64 + 4*idx + r
                A(f'v_rcp_f32 v{t}, v{t}')
            for r in range(4):
                x = AC1 + 4*idx + r; t = 64 + 4*idx + r
                A(f'v_mul_f32 v{x}, v{x}, v{t}')
        for tt in range(2):
            p = 88 + 4*tt
            for t2 in range(2):
                r0 = AC1 + 4*(2*t2 + tt)
                A(f'v_cvt_pk_bf16_f32 v{p+2*t2}, v{r0}, v{r0+1}')
                A(f'v_cvt_pk_bf16_f32 v{p+2*t2+1}, v{r0+2}, v{r0+3}')
            A(f'ds_write_b128 v12, {v(p,4)} offset:{tt*4096}')
        A(f'v_cvt_pk_bf16_f32 v96, v{AC1+16}, v{AC1+17}')
        A(f'v_cvt_pk_bf16_f32 v97, v{AC1+18}, v{AC1+19}')
        A(f'ds_write_b64 v13, v[96:97]')
        A.wait(lgkm=0)
        A('s_barrier')
        A(f's_mul_i32 s{sA}, s{sG}, {WPB_GRP}')
        A(f's_and_b32 s{sTMP}, s{sK}, 1')
        A(f's_mul_i32 s{sTMP}, s{sTMP}, {WPB_SLOT}')
        A(f's_add_u32 s{sA}, s{sA}, s{sTMP}')
        A(f's_add_u32 s{sA}, s{sA}, {OFF_WPB}')
        A(f's_mul_i32 s{sC}, s{sM}, {WPB_M}')
        A(f's_mul_i32 s{sTMP}, s{sW}, 9216')
        A(f's_add_u32 s{sC}, s{sC}, s{sTMP}')
        A(f's_add_u32 s{sC}, s{sC}, s{sA}')
        self.gemm2(fr2, True, 44, 84, 104, 3, 23, 17, sC)
        self.reduce('C', 44, 14, 24, 15, 16, 21, 22, 28, 29)
        A(f's_xor_b32 s{sB}, s{sB}, {W_XT0 ^ W_XT1}')
        A(f's_add_u32 s{sSEG}, s{sSEG}, 7')
        A(f's_add_u32 s{sK}, s{sK}, 1')
        A(f's_cmp_lt_u32 s{sK}, s{sN}')
        A(f's_cbranch_scc1 {L}')
        A.wait(vm=0, lgkm=0)
        A('s_barrier')

    def passD(self):
        A = self.A; opt = self.opt
        self.vT = 2
        C = {'wL16': 3, 'wDA': 4, 'wTQ': 5, 'wDO': 9, 'wTO0': 10, 'wTO1': 11, 'wQW': 12, 'wOW': 13, 'wRL': 14, 'wROb': 15,
             'wROf': 16, 'wPS8': 17, 'wKW': 18, 'wKR': 19, 'wX0': 21, 'wX1': 22, 'wL8': 23,
             'wSEL0': 24, 'wSEL1': 25, 'wSEL2': 26, 'wSEL3': 27}
        for k in range(8): C[f'wM{k}'] = 28 + k
        self.consts(C)
        def wq(kp, off=0, cnt=4):
            n = kp*4 + off
            return f'a[{n}:{n+cnt-1}]'
        f4 = [('a', 144 + 4*k) for k in range(28)] + [('v', 224 + 4*k) for k in range(8)]
        def fr2(q, ko, off=0, cnt=4):
            kd, n = f4[q*4 + ko]; n += off
            return f'{kd}[{n}:{n+cnt-1}]'
        self.srd(16, D*8192)
        A(f's_lshl_b32 s{sA}, s{sM}, 8')
        A(f's_mul_i32 s{sTMP}, s{sW}, {16*8192}')
        A(f's_add_u32 s{sA}, s{sA}, s{sTMP}')
        A(f's_lshl_b32 s45, s{sW}, 12')
        A(f's_lshl_b32 s42, s{sW}, 10')
        blocks = []
        for b in range(9):
            dm = [(4, sA, (64*b + 4*y)*8192, y*1024, 45) for y in range(4)]
            rd = [(wq(4*b+kk, 2*rr, 2), 5, kk*4096 + rr*1024) for kk in range(4) for rr in range(2)]
            blocks.append(dict(dmas=dm, reads=rd))
        self.ring(blocks)
        self.srd(40, 4096*1152)
        A(f's_lshl_b32 s{sA}, s{sM}, 7')
        A(f's_lshl_b32 s{sTMP}, s{sW}, 2')
        A(f's_add_u32 s{sA}, s{sA}, s{sTMP}')
        A(f's_mul_i32 s{sB}, s{sA}, 1152')
        self.ring(self.gemm2_blocks(fr2, 2, False, 9, 10, sB, 42, None))
        rt_stamp(A, opt, 9, sW, off=OFF_RT)
        self.srd(96, S*D*2)
        A(f's_mov_b32 s{LO32}, -1'); A(f's_mov_b32 s{LO32+1}, 0')
        c = DH**-0.5*math.log2(math.e)
        A(f's_mov_b32 s{sCv}, {fb(c):#x}'); A(f's_mov_b32 s{sCv+1}, {fb(c):#x}')
        A(f's_and_b32 s{sTMP}, s{sW}, 1'); A(f's_lshl_b32 s{sTMP}, s{sTMP}, 10')
        A(f'v_add_u32 v36, s{sTMP}, v3')
        sFL = 48; sKV = 49; sKM = 50
        A(f's_lshl_b32 s{sFL}, s{sM}, 7'); A(f's_add_u32 s{sFL}, s{sFL}, {FL_CH}')
        A(f's_mov_b32 s{sK}, 0')
        A(f's_mov_b32 s{sSEG}, s{sG}')
        A(f's_mov_b32 s{sB}, {W_XT0}')
        self.seg_dma(OFF_XNF, sSEG, sB, 3)
        L = A.newlabel('pd_loop'); nonext = A.newlabel('pd_nn')
        A.label(L)
        A(f'v_add_u32 v8, s{sB}, v3')
        A.wait(vm=0)
        A('s_barrier')
        A(f's_add_u32 s{sD_}, s{sK}, 1')
        A(f's_cmp_lt_u32 s{sD_}, s{sN}')
        A(f's_cbranch_scc0 {nonext}')
        A(f's_add_u32 s{sD_}, s{sSEG}, 7')
        A(f's_xor_b32 s{sTMP+2}, s{sB}, {W_XT0 ^ W_XT1}')
        self.seg_dma(OFF_XNF, sD_, sTMP+2, 3)
        A.label(nonext)
        KX = 128; VX = 160
        A(f's_lshl_b32 s{sKV}, s{sSEG}, 5'); A(f's_add_u32 s{sKV}, s{sKV}, s{sM}')
        A(f's_lshl_b32 s{sKM}, s{sKV}, 11')
        A(f's_lshl_b32 s{sKV}, s{sKV}, 13')
        A(f's_add_u32 s{sTMP}, s{sKV}, {OFF_KXF}')
        for f in range(8):
            if f == 4: A(f's_add_u32 s{sTMP}, s{sTMP}, 4096')
            A(f'buffer_load_dwordx4 {v(KX+4*f,4)}, v3, {WS}, s{sTMP} offen offset:{(f%4)*1024} sc1')
        A(f's_lshr_b32 s{sTMP+1}, s{sW}, 1'); A(f's_lshl_b32 s{sTMP+1}, s{sTMP+1}, 12')
        A(f's_add_u32 s{sTMP}, s{sKV}, s{sTMP+1}'); A(f's_add_u32 s{sTMP}, s{sTMP}, {OFF_VXF}')
        for f in range(4):
            A(f'buffer_load_dwordx4 {v(VX+4*f,4)}, v3, {WS}, s{sTMP} offen offset:{f*1024} sc1')
        ACC = 64; XB = [96, 100, 104, 108]
        for kp in range(3): A(f'ds_read_b128 {v(XB[kp],4)}, v8 offset:{kp*1024}')
        for kp in range(36):
            if kp + 3 < 36: A(f'ds_read_b128 {v(XB[(kp+3)%4],4)}, v8 offset:{(kp+3)*1024}')
            A(f'v_mfma_f32_32x32x16_bf16 {v(ACC,16)}, {wq(kp)}, {v(XB[kp%4],4)}, {v(ACC,16) if kp else 0}')
        for u in range(2):
            p = 112 + 4*u
            for k in range(4): A(f'v_cvt_pk_bf16_f32 v{p+k}, v{ACC+8*u+2*k}, v{ACC+8*u+2*k+1}')
            A(f'ds_write_b128 v12, {v(p,4)} offset:{u*512}')
        A(f's_add_u32 s{sD_}, s{sSEG}, 1')
        if not opt.get('nochain'): self.ws_wait(sFL, sD_, sleep=1)
        KM2 = 120; VM = 176
        A(f's_lshl_b32 s{sTMP+1}, s{sW}, 9')
        A(f's_add_u32 s{sTMP}, s{sKM}, s{sTMP+1}'); A(f's_add_u32 s{sTMP}, s{sTMP}, {OFF_KMF}')
        A(f'buffer_load_dwordx2 {v(KM2,2)}, v23, {WS}, s{sTMP} offen sc1')
        A(f's_lshr_b32 s{sTMP+1}, s{sW}, 1'); A(f's_lshl_b32 s{sTMP+1}, s{sTMP+1}, 10')
        A(f's_add_u32 s{sTMP}, s{sKM}, s{sTMP+1}'); A(f's_add_u32 s{sTMP}, s{sTMP}, {OFF_VMF}')
        A(f'buffer_load_dwordx2 {v(VM,2)}, v23, {WS}, s{sTMP} offen sc1')
        A(f'buffer_load_dwordx2 {v(VM+2,2)}, v23, {WS}, s{sTMP} offen offset:512 sc1')
        A(f'ds_write2_b32 v18, v{KM2}, v{KM2} offset0:0 offset1:1')
        A(f'ds_write2_b32 v18, v{KM2+1}, v{KM2+1} offset0:128 offset1:129')
        A.wait(lgkm=0)
        A('s_barrier')
        QF = 64; KMF_ = 80; S0, S1, SM = 96, 100, 104
        for k4 in range(4):
            A(f'ds_read_b128 {v(QF+4*k4,4)}, v36 offset:{W_QEX + k4*2048}')
            A(f'ds_read_b64_tr_b16 {v(KMF_+4*k4,2)}, v19 offset:{k4*1024}')
            A(f'ds_read_b64_tr_b16 {v(KMF_+4*k4+2,2)}, v19 offset:{k4*1024+256}')
        for k4 in range(4):
            c_ = lambda d: (v(d, 4) if k4 else '0')
            A(f'v_mfma_f32_16x16x32_bf16 {v(S0,4)}, {v(KX+8*k4,4)}, {v(QF+4*k4,4)}, {c_(S0)}')
            A(f'v_mfma_f32_16x16x32_bf16 {v(S1,4)}, {v(KX+8*k4+4,4)}, {v(QF+4*k4,4)}, {c_(S1)}')
            A(f'v_mfma_f32_16x16x32_bf16 {v(SM,4)}, {v(KMF_+4*k4,4)}, {v(QF+4*k4,4)}, {c_(SM)}')
        ONES = 108; PM = 112; PX = 116; MX = 61; TT = 62
        for k in range(4): A(f'v_mov_b32 v{ONES+k}, 0x3f803f80')
        A(f'v_mov_b32 v{PM+1}, 0'); A(f'v_mov_b32 v{PM+2}, 0')
        for r in range(4):
            A(f'v_add_f32 v{S0+r}, v{S0+r}, v{28+r}')
            A(f'v_add_f32 v{S1+r}, v{S1+r}, v{32+r}')
        A(f'v_max3_f32 v{MX}, v{S0}, v{S0+1}, v{S0+2}')
        A(f'v_max3_f32 v{TT}, v{S1}, v{S1+1}, v{S1+2}')
        A(f'v_max3_f32 v{MX}, v{MX}, v{S0+3}, v{S1+3}')
        A(f'v_max_f32 v{MX}, v{MX}, v{TT}')
        A(f'v_max3_f32 v{MX}, v{MX}, v{SM}, v{SM+1}')
        for sw in ('16', '32'):
            A(f'v_mov_b32 v{TT}, v{MX}')
            A(f'v_permlane{sw}_swap_b32 v{MX}, v{TT}')
            A(f'v_max_f32 v{MX}, v{MX}, v{TT}')
        A(f'v_mul_f32 v{TT}, s{sCv}, v{MX}')
        for r in (S0, S0+2, S1, S1+2, SM):
            A(f'v_pk_fma_f32 {v(r,2)}, {v(r,2)}, s[{sCv}:{sCv+1}], {v(TT,2)} op_sel_hi:[1,1,0] neg_lo:[0,0,1] neg_hi:[0,0,1]')
        for r in (S0, S0+1, S0+2, S0+3, S1, S1+1, S1+2, S1+3, SM, SM+1): A(f'v_exp_f32 v{r}, v{r}')
        cvt = lambda d, x, y: f'v_cvt_pk_bf16_f32 v{d}, v{x}, v{y}'
        A(cvt(PX, S0, S0+1)); A(cvt(PX+1, S0+2, S0+3)); A(cvt(PX+2, S1, S1+1)); A(cvt(PX+3, S1+2, S1+3))
        A(cvt(PM, SM, SM+1)); A(cvt(PM+3, SM, SM+1))
        O = 64; LL = 80
        A(f'v_mfma_f32_16x16x32_bf16 {v(LL,4)}, {v(ONES,4)}, {v(PX,4)}, 0')
        for e in range(4): A(f'v_mfma_f32_16x16x32_bf16 {v(O+4*e,4)}, {v(VX+4*e,4)}, {v(PX,4)}, 0')
        A(f'v_mfma_f32_16x16x16_bf16 {v(LL,4)}, {v(ONES,2)}, {v(PM,2)}, {v(LL,4)}')
        for e in range(4):
            A(f'v_mfma_f32_16x16x16_bf16 {v(O+4*e,4)}, {v(VM+2*(e>>1),2)}, {v(PM+2*(e&1),2)}, {v(O+4*e,4)}')
        A(f's_nop 7')
        A(f'v_rcp_f32 v{MX}, v{LL}')
        for r in range(16): A(f'v_mul_f32 v{O+r}, v{MX}, v{O+r}')
        for ko in range(2):
            p = 84 + 4*ko
            for t2 in range(2):
                r0 = O + 4*(2*ko + t2)
                A(cvt(p+2*t2, r0, r0+1)); A(cvt(p+2*t2+1, r0+2, r0+3))
            A(f'ds_write_b128 v13, {v(p,4)} offset:{ko*1024}')
        A.wait(lgkm=0)
        A('s_barrier')
        A(f's_mul_i32 s{sA}, s{sG}, {WPB_GRP}')
        A(f's_and_b32 s{sTMP}, s{sK}, 1')
        A(f's_mul_i32 s{sTMP}, s{sTMP}, {WPB_SLOT}')
        A(f's_add_u32 s{sA}, s{sA}, s{sTMP}')
        A(f's_add_u32 s{sA}, s{sA}, {OFF_WPB}')
        A(f's_mul_i32 s{sC}, s{sM}, {WPB_M}')
        A(f's_mul_i32 s{sTMP}, s{sW}, 9216')
        A(f's_add_u32 s{sC}, s{sC}, s{sTMP}')
        A(f's_add_u32 s{sC}, s{sC}, s{sA}')
        self.gemm2(fr2, False, 64, 100, 120, 3, 23, 17, sC)
        self.reduce('D', 64, 14, 24, 15, 16, 21, 22, None, None)
        A(f's_xor_b32 s{sB}, s{sB}, {W_XT0 ^ W_XT1}')
        A(f's_add_u32 s{sSEG}, s{sSEG}, 7')
        A(f's_add_u32 s{sK}, s{sK}, 1')
        A(f's_cmp_lt_u32 s{sK}, s{sN}')
        A(f's_cbranch_scc1 {L}')
```

```python
import sys, struct
from asmlib import *
from layout import *
import chain as CH
import worker as WK

NAME = 'parallel_sum__memory_aug_recurrent_mem_tr__mixer_channel_mlp__prompt'
KN = NAME + '_kernel'

def table_text():
    out = ['.section .rodata,"a"', '.p2align 8', 'chain_tab:']
    for tid in range(256):
        c = chain_consts(tid >> 6, tid & 63)
        vals = [c[n] for n in CH_CONSTS] + [0]*(32-len(CH_CONSTS))
        out.append('.long ' + ','.join(str(x) for x in vals))
    out += ['.p2align 8', 'worker_tab:']
    for tid in range(256):
        c = worker_consts(tid >> 6, tid & 63)
        vals = [c[n] for n in WK_CONSTS] + [0]*(48-len(WK_CONSTS))
        out.append('.long ' + ','.join(str(x) for x in vals))
    return '\n'.join(out) + '\n'

def build(opt):
    A = Asm()
    hdr = open('cdna_kernels/' + NAME + '.s.ref').read().split('; Override')[0]
    head = hdr + '; @launch grid=(256,1,1) block=(256,1,1) lds=163840\n'
    head += '.amdgcn_target "amdgcn-amd-amdhsa--gfx950"\n.text\n.globl %s\n.p2align 8\n.type %s,@function\n%s:\n' % (KN, KN, KN)
    A('s_cmp_ge_u32 s2, 256')
    A('s_cbranch_scc1 k_end')
    A('s_load_dwordx2 s[14:15], s[0:1], 104')
    A('s_load_dwordx2 s[12:13], s[0:1], 112')
    A('s_getreg_b32 s3, hwreg(HW_REG_XCC_ID, 0, 4)')
    A('s_and_b32 s3, s3, 7')
    if opt.get('fake') == 1: A('s_lshr_b32 s3, s2, 5')
    if opt.get('fake') == 2: A('s_min_u32 s3, s3, 6')
    A('s_getpc_b64 s[28:29]')
    A.raw('  s_add_u32 s28, s28, chain_tab@rel32@lo+4')
    A.raw('  s_addc_u32 s29, s29, chain_tab@rel32@hi+12')
    ch = CH.Chain(A, opt)
    A('v_lshrrev_b32 v1, 6, v0')
    A.wait(lgkm=0)
    A(f'v_readfirstlane_b32 s{CH.sW}, v1')
    A(f's_mov_b32 s{CH.sWS}, s12')
    A(f's_and_b32 s{CH.sWS+1}, s13, 0xffff')
    A(f's_mov_b32 s{CH.sWS+2}, 0x10000000')
    A(f's_mov_b32 s{CH.sWS+3}, 0x20000')
    A('s_lshl_b32 s16, s3, 2')
    A('v_mov_b32 v2, s16')
    A('v_mov_b32 v3, 1')
    A(f's_cmp_eq_u32 s{CH.sW}, 0')
    A('s_cbranch_scc0 k_noatom')
    A('s_mov_b64 exec, 1')
    A.raw('  global_atomic_add v4, v2, v3, s[14:15] sc0')
    A('s_mov_b64 exec, -1')
    A.raw('k_noatom:')
    ch.preload()
    rt_stamp(A, opt, 0, CH.sW, off=OFF_RT)
    A(f's_cmp_eq_u32 s{CH.sW}, 0')
    A('s_cbranch_scc0 k_noticket')
    A('s_mov_b64 exec, 1')
    A('v_mov_b32 v5, 0x27f00')
    A.raw('  s_waitcnt vmcnt(%d)' % (7 if opt.get('rt') else 6))
    A('ds_write_b32 v5, v4')
    A('s_mov_b64 exec, -1')
    A.raw('  s_waitcnt lgkmcnt(0)')
    A.label('k_noticket')
    A('s_barrier')
    A('v_mov_b32 v5, 0x27f00')
    A('ds_read_b32 v4, v5')
    A.wait(lgkm=0)
    A(f'v_readfirstlane_b32 s{CH.sH}, v4')
    A('s_barrier')
    if opt.get('chain_only'):
        A('s_cmp_eq_u32 s3, 0')
        A('s_cbranch_scc0 k_end')
        A(f's_cmp_ge_u32 s{CH.sH}, 32')
        A('s_cbranch_scc1 k_end')
    else:
        A(f's_cmp_lt_u32 s{CH.sH}, 32')
        A('s_cbranch_scc1 k_role')
        A(f's_cmp_eq_u32 s{CH.sW}, 0')
        A('s_cbranch_scc0 k_ov_w')
        A('s_mov_b64 exec, 1')
        A(f'v_mov_b32 v2, {DBG_OVF*4}')
        A('v_mov_b32 v3, 1')
        A('global_atomic_add v4, v2, v3, s[14:15] sc0')
        A.wait(vm=0)
        A('v_readfirstlane_b32 s20, v4')
        A('s_mov_b64 exec, -1')
        A('v_and_b32 v2, 7, v0'); A('v_lshlrev_b32 v2, 2, v2')
        A('s_mov_b32 s21, 0')
        A.label('k_ov_poll')
        A('global_load_dword v3, v2, s[14:15] sc1')
        A('s_add_u32 s21, s21, 1')
        A.wait(vm=0)
        A('s_mov_b32 s22, 0')
        for x in range(8):
            A(f'v_readlane_b32 s{40+x}, v3, {x}')
        for x in range(8):
            A(f's_add_u32 s22, s22, s{40+x}')
        A('s_cmp_ge_u32 s22, 256')
        A('s_cbranch_scc1 k_ov_done')
        A('s_sleep 4')
        A('s_cmp_lt_u32 s21, 0x40000')
        A('s_cbranch_scc1 k_ov_poll')
        A.label('k_ov_done')
        A('s_mov_b32 s23, 0'); A('s_mov_b32 s24, 0')
        for x in range(7, -1, -1): pass
        A('s_mov_b32 s25, 0')
        for x in range(8):
            lab = A.newlabel('ovx')
            A(f's_cmp_lg_u32 s25, 0'); A(f's_cbranch_scc1 {lab}')
            A(f's_min_u32 s26, s{40+x}, 32'); A('s_sub_u32 s27, 32, s26')
            A('s_cmp_lt_u32 s20, s27')
            l2 = A.newlabel('ovy')
            A(f's_cbranch_scc0 {l2}')
            A(f's_mov_b32 s23, {x}'); A('s_add_u32 s24, s26, s20'); A('s_mov_b32 s25, 1')
            A(f's_branch {lab}')
            A.label(l2)
            A('s_sub_u32 s20, s20, s27')
            A.label(lab)
        A('s_lshl_b32 s23, s23, 8'); A('s_or_b32 s23, s23, s24')
        A('v_mov_b32 v4, s23'); A('v_mov_b32 v5, 0x27f00')
        A('ds_write_b32 v5, v4')
        A.wait(lgkm=0)
        A.label('k_ov_w')
        A('s_barrier')
        A('v_mov_b32 v5, 0x27f00')
        A('ds_read_b32 v4, v5')
        A.wait(lgkm=0)
        A('v_readfirstlane_b32 s20, v4')
        A('s_barrier')
        A('s_lshr_b32 s3, s20, 8')
        A(f's_and_b32 s{CH.sH}, s20, 31')
        A.label('k_role')
        if opt.get('hxor'): A(f's_xor_b32 s{CH.sH}, s{CH.sH}, {opt["hxor"]}')
        A('s_cmp_eq_u32 s3, 0')
        A('s_cbranch_scc0 k_worker')
    if opt.get('nochain'):
        ch.init(short=True)
    else:
        rt_stamp(A, opt, 1, CH.sW, off=OFF_RT)
        ch.init()
        rt_stamp(A, opt, 3, CH.sW, off=OFF_RT)
        if opt.get('rt'):
            A.raw(f'  s_lshl_b32 s95, s2, 6'); A.raw(f'  s_add_u32 s95, s95, {OFF_RT + 6*4}')
            A.raw(f'  v_mov_b32 v62, s{CH.sH}'); A.raw('  v_mov_b32 v63, 0')
            A.raw('  buffer_store_dword v62, v63, s[4:7], s95 offen')
        if opt.get('chain_only'):
            ch.loop(False, 'f')
        else:
            A(f's_cmp_lg_u32 s{CH.sSLOW}, 0')
            A('s_cbranch_scc1 ch_slow_entry')
            ch.loop(False, 'f')
            A('s_branch ch_done')
            A.label('ch_slow_entry')
            ch.loop(True, 's')
            A.label('ch_done')
        rt_stamp(A, opt, 4, CH.sW, off=OFF_RT)
    A.wait(vm=0, lgkm=0)
    if opt.get('ts') or opt.get('tt'):
        A.raw('  s_memtime s[86:87]')
        A('s_waitcnt lgkmcnt(0)')
        A(f's_sub_u32 s{CH.sTS+19}, s86, s84')
        A(f's_lshl_b32 s27, s{CH.sH}, 2')
        A(f's_add_u32 s27, s27, s{CH.sW}')
        A(f's_lshl_b32 s27, s27, 7')
        A(f's_add_u32 s27, s27, {OFF_FLAG+0x8000}')
        A(f's_mov_b32 s{CH.sTS+18}, s{CH.sDEAD}')
        A('s_mov_b64 exec, 1')
        A('v_mov_b32 v2, 0')
        for k in range(20):
            A(f'v_mov_b32 v3, s{CH.sTS+k}')
            A(f'buffer_store_dword v3, v2, s[{CH.sWS}:{CH.sWS+3}], s27 offen offset:{4*k}')
        for k in range(8):
            A(f'v_mov_b32 v3, s{88+k}')
            A(f'buffer_store_dword v3, v2, s[{CH.sWS}:{CH.sWS+3}], s27 offen offset:{4*(20+k)}')
        A.wait(vm=0)
    if not opt.get('chain_only'):
        A('s_branch k_end')
        A.label('k_worker')
        A(f's_sub_u32 s{WK.sG}, s3, 1')
        A(f's_cmp_eq_u32 s{WK.sG}, 0')
        A(f's_cselect_b32 s{WK.sN}, 10, 9')
        A(f's_mov_b32 s{WK.sSLOW}, 1')
        A(f's_mov_b32 s53, s3')
        A(f's_mov_b32 s{WK.sDEAD}, 0')
        A('s_getpc_b64 s[30:31]')
        A.raw('  s_add_u32 s30, s30, worker_tab@rel32@lo+4')
        A.raw('  s_addc_u32 s31, s31, worker_tab@rel32@hi+12')
        wk = WK.Worker(A, opt)
        rt_stamp(A, opt, 1, CH.sW, off=OFF_RT)
        if opt.get('warmw', 0): wk.warm_weights()
        wk.layernorm()
        rt_stamp(A, opt, 2, CH.sW, off=OFF_RT)
        if opt.get('passes', 15) & 1: wk.passA()
        rt_stamp(A, opt, 5, CH.sW, off=OFF_RT)
        if opt.get('passes', 15) & 2: wk.passC()
        rt_stamp(A, opt, 8, CH.sW, off=OFF_RT)
        if opt.get('passes', 15) & 4: wk.passD()
        rt_stamp(A, opt, 11, CH.sW, off=OFF_RT)
        A.wait(vm=0, lgkm=0)
    A.label('k_end')
    A('s_endpgm')
    tail = f'''
.section .rodata,"a"
.p2align 6
.amdhsa_kernel {KN}
  .amdhsa_next_free_vgpr 512
  .amdhsa_next_free_sgpr 102
  .amdhsa_accum_offset 256
  .amdhsa_group_segment_fixed_size 0
  .amdhsa_kernarg_size 120
  .amdhsa_user_sgpr_count 2
  .amdhsa_user_sgpr_kernarg_segment_ptr 1
  .amdhsa_system_sgpr_workgroup_id_x 1
.end_amdhsa_kernel
'''
    print('nops', A.nops, 'auto waits', A.nwaits, 'lines', len(A.out), file=sys.stderr)
    return head + A.text() + tail + table_text()

if __name__ == '__main__':
    opt = {}
    for a_ in sys.argv[2:]:
        k, _, val = a_.partition('=')
        opt[k] = int(val) if val else 1
    open(sys.argv[1], 'w').write(build(opt))
```

```python
import sys, struct
from asmlib import *
from layout import *
import chain as CH
import worker as WK

NAME = 'parallel_sum__memory_aug_recurrent_mem_tr__mixer_channel_mlp__prompt'
KN = NAME + '_kernel'

def table_text():
    out = ['.section .rodata,"a"', '.p2align 8', 'chain_tab:']
    for tid in range(256):
        c = chain_consts(tid >> 6, tid & 63)
        vals = [c[n] for n in CH_CONSTS] + [0]*(32-len(CH_CONSTS))
        out.append('.long ' + ','.join(str(x) for x in vals))
    out += ['.p2align 8', 'worker_tab:']
    for tid in range(256):
        c = worker_consts(tid >> 6, tid & 63)
        vals = [c[n] for n in WK_CONSTS] + [0]*(48-len(WK_CONSTS))
        out.append('.long ' + ','.join(str(x) for x in vals))
    return '\n'.join(out) + '\n'

def build(opt):
    A = Asm()
    hdr = open('cdna_kernels/' + NAME + '.s.ref').read().split('; Override')[0]
    head = hdr + '; @launch grid=(256,1,1) block=(256,1,1) lds=163840\n'
    head += '.amdgcn_target "amdgcn-amd-amdhsa--gfx950"\n.text\n.globl %s\n.p2align 8\n.type %s,@function\n%s:\n' % (KN, KN, KN)
    A('s_cmp_ge_u32 s2, 256')
    A('s_cbranch_scc1 k_end')
    A('s_load_dwordx2 s[14:15], s[0:1], 104')
    A('s_load_dwordx2 s[12:13], s[0:1], 112')
    A('s_getreg_b32 s3, hwreg(HW_REG_XCC_ID, 0, 4)')
    A('s_and_b32 s3, s3, 7')
    if opt.get('fake') == 1: A('s_lshr_b32 s3, s2, 5')
    if opt.get('fake') == 2: A('s_min_u32 s3, s3, 6')
    A('s_getpc_b64 s[28:29]')
    A.raw('  s_add_u32 s28, s28, chain_tab@rel32@lo+4')
    A.raw('  s_addc_u32 s29, s29, chain_tab@rel32@hi+12')
    ch = CH.Chain(A, opt)
    A('v_lshrrev_b32 v1, 6, v0')
    A.wait(lgkm=0)
    A(f'v_readfirstlane_b32 s{CH.sW}, v1')
    A(f's_mov_b32 s{CH.sWS}, s12')
    A(f's_and_b32 s{CH.sWS+1}, s13, 0xffff')
    A(f's_mov_b32 s{CH.sWS+2}, 0x10000000')
    A(f's_mov_b32 s{CH.sWS+3}, 0x20000')
    A('s_lshl_b32 s16, s3, 2')
    A('v_mov_b32 v2, s16')
    A('v_mov_b32 v3, 1')
    A(f's_cmp_eq_u32 s{CH.sW}, 0')
    A('s_cbranch_scc0 k_noatom')
    A('s_mov_b64 exec, 1')
    A.raw('  global_atomic_add v4, v2, v3, s[14:15] sc0')
    A('s_mov_b64 exec, -1')
    A.raw('k_noatom:')
    ch.preload()
    NPF = opt.get('codepf', 3)
    if NPF:
        A.raw('  s_getpc_b64 s[40:41]')
        A.raw('k_pc_ref:')
        A.raw(f'  s_sub_u32 s40, s40, k_pc_ref-{KN}')
        A.raw('  s_subb_u32 s41, s41, 0')
        A.raw('  s_and_b32 s41, s41, 0xffff')
        A.raw(f'  s_mov_b32 s42, k_code_end-{KN}')
        A.raw('  s_mov_b32 s43, 0x20000')
        A.raw('  v_lshlrev_b32 v6, 7, v0')
        for k in range(NPF):
            A.raw(f'  s_mov_b32 s44, {k*32768}')
            A.raw(f'  buffer_load_dword v{7+k}, v6, s[40:43], s44 offen')
    rt_stamp(A, opt, 0, CH.sW, off=OFF_RT)
    A(f's_cmp_eq_u32 s{CH.sW}, 0')
    A('s_cbranch_scc0 k_noticket')
    A('s_mov_b64 exec, 1')
    A('v_mov_b32 v5, 0x27f00')
    A.raw('  s_waitcnt vmcnt(%d)' % ((7 if opt.get('rt') else 6) + NPF))
    A('ds_write_b32 v5, v4')
    A('s_mov_b64 exec, -1')
    A.raw('  s_waitcnt lgkmcnt(0)')
    A.label('k_noticket')
    A('s_barrier')
    A('v_mov_b32 v5, 0x27f00')
    A('ds_read_b32 v4, v5')
    A.wait(lgkm=0)
    A(f'v_readfirstlane_b32 s{CH.sH}, v4')
    A('s_barrier')
    if opt.get('chain_only'):
        A('s_cmp_eq_u32 s3, 0')
        A('s_cbranch_scc0 k_end')
        A(f's_cmp_ge_u32 s{CH.sH}, 32')
        A('s_cbranch_scc1 k_end')
    else:
        A(f's_cmp_lt_u32 s{CH.sH}, 32')
        A('s_cbranch_scc1 k_role')
        A(f's_cmp_eq_u32 s{CH.sW}, 0')
        A('s_cbranch_scc0 k_ov_w')
        A('s_mov_b64 exec, 1')
        A(f'v_mov_b32 v2, {DBG_OVF*4}')
        A('v_mov_b32 v3, 1')
        A('global_atomic_add v4, v2, v3, s[14:15] sc0')
        A.wait(vm=0)
        A('v_readfirstlane_b32 s20, v4')
        A('s_mov_b64 exec, -1')
        A('v_and_b32 v2, 7, v0'); A('v_lshlrev_b32 v2, 2, v2')
        A('s_mov_b32 s21, 0')
        A.label('k_ov_poll')
        A('global_load_dword v3, v2, s[14:15] sc1')
        A('s_add_u32 s21, s21, 1')
        A.wait(vm=0)
        A('s_mov_b32 s22, 0')
        for x in range(8):
            A(f'v_readlane_b32 s{40+x}, v3, {x}')
        for x in range(8):
            A(f's_add_u32 s22, s22, s{40+x}')
        A('s_cmp_ge_u32 s22, 256')
        A('s_cbranch_scc1 k_ov_done')
        A('s_sleep 4')
        A('s_cmp_lt_u32 s21, 0x40000')
        A('s_cbranch_scc1 k_ov_poll')
        A.label('k_ov_done')
        A('s_mov_b32 s23, 0'); A('s_mov_b32 s24, 0')
        for x in range(7, -1, -1): pass
        A('s_mov_b32 s25, 0')
        for x in range(8):
            lab = A.newlabel('ovx')
            A(f's_cmp_lg_u32 s25, 0'); A(f's_cbranch_scc1 {lab}')
            A(f's_min_u32 s26, s{40+x}, 32'); A('s_sub_u32 s27, 32, s26')
            A('s_cmp_lt_u32 s20, s27')
            l2 = A.newlabel('ovy')
            A(f's_cbranch_scc0 {l2}')
            A(f's_mov_b32 s23, {x}'); A('s_add_u32 s24, s26, s20'); A('s_mov_b32 s25, 1')
            A(f's_branch {lab}')
            A.label(l2)
            A('s_sub_u32 s20, s20, s27')
            A.label(lab)
        A('s_lshl_b32 s23, s23, 8'); A('s_or_b32 s23, s23, s24')
        A('v_mov_b32 v4, s23'); A('v_mov_b32 v5, 0x27f00')
        A('ds_write_b32 v5, v4')
        A.wait(lgkm=0)
        A.label('k_ov_w')
        A('s_barrier')
        A('v_mov_b32 v5, 0x27f00')
        A('ds_read_b32 v4, v5')
        A.wait(lgkm=0)
        A('v_readfirstlane_b32 s20, v4')
        A('s_barrier')
        A('s_lshr_b32 s3, s20, 8')
        A(f's_and_b32 s{CH.sH}, s20, 31')
        A.label('k_role')
        if opt.get('hxor'): A(f's_xor_b32 s{CH.sH}, s{CH.sH}, {opt["hxor"]}')
        A('s_cmp_eq_u32 s3, 0')
        A('s_cbranch_scc0 k_worker')
    if opt.get('nochain'):
        ch.init(short=True)
    else:
        rt_stamp(A, opt, 1, CH.sW, off=OFF_RT)
        ch.init()
        rt_stamp(A, opt, 3, CH.sW, off=OFF_RT)
        if opt.get('rt'):
            A.raw(f'  s_lshl_b32 s95, s2, 6'); A.raw(f'  s_add_u32 s95, s95, {OFF_RT + 6*4}')
            A.raw(f'  v_mov_b32 v62, s{CH.sH}'); A.raw('  v_mov_b32 v63, 0')
            A.raw('  buffer_store_dword v62, v63, s[4:7], s95 offen')
        if opt.get('chain_only'):
            ch.loop(False, 'f')
        else:
            A(f's_cmp_lg_u32 s{CH.sSLOW}, 0')
            A('s_cbranch_scc1 ch_slow_entry')
            ch.loop(False, 'f')
            A('s_branch ch_done')
            A.label('ch_slow_entry')
            ch.loop(True, 's')
            A.label('ch_done')
        rt_stamp(A, opt, 4, CH.sW, off=OFF_RT)
    A.wait(vm=0, lgkm=0)
    if opt.get('ts') or opt.get('tt'):
        A.raw('  s_memtime s[86:87]')
        A('s_waitcnt lgkmcnt(0)')
        A(f's_sub_u32 s{CH.sTS+19}, s86, s84')
        A(f's_lshl_b32 s27, s{CH.sH}, 2')
        A(f's_add_u32 s27, s27, s{CH.sW}')
        A(f's_lshl_b32 s27, s27, 7')
        A(f's_add_u32 s27, s27, {OFF_FLAG+0x8000}')
        A(f's_mov_b32 s{CH.sTS+18}, s{CH.sDEAD}')
        A('s_mov_b64 exec, 1')
        A('v_mov_b32 v2, 0')
        for k in range(20):
            A(f'v_mov_b32 v3, s{CH.sTS+k}')
            A(f'buffer_store_dword v3, v2, s[{CH.sWS}:{CH.sWS+3}], s27 offen offset:{4*k}')
        for k in range(8):
            A(f'v_mov_b32 v3, s{88+k}')
            A(f'buffer_store_dword v3, v2, s[{CH.sWS}:{CH.sWS+3}], s27 offen offset:{4*(20+k)}')
        A.wait(vm=0)
    if not opt.get('chain_only'):
        A('s_branch k_end')
        A.label('k_worker')
        A(f's_sub_u32 s{WK.sG}, s3, 1')
        A(f's_cmp_eq_u32 s{WK.sG}, 0')
        A(f's_cselect_b32 s{WK.sN}, 10, 9')
        A(f's_mov_b32 s{WK.sSLOW}, 1')
        A(f's_mov_b32 s53, s3')
        A(f's_mov_b32 s{WK.sDEAD}, 0')
        A('s_getpc_b64 s[30:31]')
        A.raw('  s_add_u32 s30, s30, worker_tab@rel32@lo+4')
        A.raw('  s_addc_u32 s31, s31, worker_tab@rel32@hi+12')
        wk = WK.Worker(A, opt)
        rt_stamp(A, opt, 1, CH.sW, off=OFF_RT)
        if opt.get('warmw', 0): wk.warm_weights()
        wk.layernorm()
        rt_stamp(A, opt, 2, CH.sW, off=OFF_RT)
        if opt.get('passes', 15) & 1: wk.passA()
        rt_stamp(A, opt, 5, CH.sW, off=OFF_RT)
        if opt.get('passes', 15) & 2: wk.passC()
        rt_stamp(A, opt, 8, CH.sW, off=OFF_RT)
        if opt.get('passes', 15) & 4: wk.passD()
        rt_stamp(A, opt, 11, CH.sW, off=OFF_RT)
        A.wait(vm=0, lgkm=0)
    A.label('k_end')
    A('s_endpgm')
    A.raw('k_code_end:')
    tail = f'''
.section .rodata,"a"
.p2align 6
.amdhsa_kernel {KN}
  .amdhsa_next_free_vgpr 512
  .amdhsa_next_free_sgpr 102
  .amdhsa_accum_offset 256
  .amdhsa_group_segment_fixed_size 0
  .amdhsa_kernarg_size 120
  .amdhsa_user_sgpr_count 2
  .amdhsa_user_sgpr_kernarg_segment_ptr 1
  .amdhsa_system_sgpr_workgroup_id_x 1
.end_amdhsa_kernel
'''
    print('nops', A.nops, 'auto waits', A.nwaits, 'lines', len(A.out), file=sys.stderr)
    return head + A.text() + tail + table_text()

if __name__ == '__main__':
    opt = {}
    for a_ in sys.argv[2:]:
        k, _, val = a_.partition('=')
        opt[k] = int(val) if val else 1
    open(sys.argv[1], 'w').write(build(opt))
```

```python
from asmlib import *
from layout import *
import math

vMS,vF0,vF1,vF2,vIDX,vQW,vKW,vQR,vKR,vOW,vRL,vRS = range(1,13)
T13,T14,T15 = 13,14,15
AB0,AB1 = 16,20
AQ0,AQ1,AK0,AK1,AV0,AV1 = 24,28,32,36,40,44
SB0,SB1,SB2 = 48,56,64
WV0 = 72
def frag_alloc():
    m = {}
    regs = [('v', WV0 + 8*k) for k in range((256-WV0)//8)] + [('a', 8*k) for k in range(32)]
    names = []
    for t in range(9):
        for tau in range(2): names.append(('Q',t,tau))
    for t in range(9):
        for tau in range(2): names.append(('V',t,tau))
    names.append(('K',8,1))
    for q in range(9):
        for tp in range(2): names.append(('O',tp,q))
    assert len(names) == len(regs) == 55, (len(names), len(regs))
    for n, r in zip(names, regs): m[n] = r
    return m
FR = frag_alloc()
LF = {}
for t in range(9):
    for tau in range(2):
        if (t, tau) != (8, 1): LF[('K',t,tau)] = 2*t+tau
def freg(name, off=0, cnt=8):
    k, n = FR[name]
    return f'{k}[{n+off}:{n+off+cnt-1}]'
def lf_addr(name, hh):
    f = LF[name]
    base = [vF0, vF1, vF2][f//8]
    return base, (f % 8)*8192 + hh*1024

sWS = 4
sT  = 8
sH, sW, sS = 16, 17, 18
sPBc, sPBn, sPBx = 21, 54, 55
sMBa, sMBb, sMBc = 22, 23, 24
sTASK = 25
sRSO  = 26
sTMP  = 27
sKX, sVX, sKM, sVM = 36, 37, 38, 39
sCv = 40
sMASK = 42
sDEAD = 44
sRL0 = 46
sPBr = 54
sFLAG = 55
sNEED = 56
sLO = 57
sPBl = 59
sWARM = 45
sKXW = 98
sFLC = 99
sR7 = 100
sK7 = 101
sPUB = 19
sCLR = 20
sHI = 56
sHP = 83
sKVF = 82
sKVB = 81
sSLOW = 80
sREP = 55
sTS = 60
PBRING = [OFF_PB, OFF_PB+PBS, OFF_PB+2*PBS]

def smf(A_, d, a_reg, bname_or_reg):
    if isinstance(bname_or_reg, tuple): b = freg(bname_or_reg)
    else: b = v(bname_or_reg, 8)
    return f'v_smfmac_f32_16x16x64_bf16 {v(d,4)}, {v(a_reg,4)}, {b}, {v(vIDX)}'

def interleave(main, fill):
    out = []
    for k, m in enumerate(main):
        out.append(m)
        if k < len(fill): out += fill[k]
    for k in range(len(main), len(fill)): out += fill[k]
    return out

def lfread(dst, name):
    r = []
    for hh in range(2):
        b, off = lf_addr(name, hh)
        r.append(f'ds_read_b128 {v(dst+4*hh,4)}, {v(b)} offset:{off}')
    return r

def aread(dst, t):
    return f'ds_read_b128 {v(dst,4)}, {v(vMS)} offset:{L_MEMST-BASE_MS+t*1024}'

class Chain:
    def __init__(self, A, opt):
        self.A = A; self.opt = opt
    def ts(self, k):
        if self.opt.get('upto') == k+100 or self.opt.get('upto') == k:
            self.A.wait(vm=0, lgkm=0)
            self.A('s_branch ch_skip')
        if not self.opt.get('ts'): return
        A = self.A
        A.raw(f'  s_memtime s[{sTS}:{sTS+1}]')
        A.raw(f'  s_waitcnt lgkmcnt(0)')
        A.lgk = []
        A.raw(f'  s_sub_u32 s{sTS+2}, s{sTS}, s{sTS+3}')
        A.raw(f'  s_add_u32 s{sTS+4+k}, s{sTS+4+k}, s{sTS+2}')
        A.raw(f'  s_mov_b32 s{sTS+3}, s{sTS}')

    def at(self, k, adj=0):
        st = self.opt.get('abs')
        if st is None: return
        st += adj
        A = self.A
        lab = A.newlabel('abs')
        A.raw(f'  s_cmp_eq_u32 s{sS}, {st}')
        A.raw(f'  s_cbranch_scc0 {lab}')
        A.raw(f'  s_memtime s[96:97]')
        A.raw(f'  s_waitcnt lgkmcnt(0)')
        A.raw(f'  s_mov_b32 s{88+k}, s96')
        A.raw(f'{lab}:')
    def preload(self):
        A = self.A
        A(f'v_lshlrev_b32 v13, 7, v0')
        for k in range(6): A(f'global_load_dwordx4 v[{16+4*k}:{19+4*k}], v13, s[28:29] offset:{16*k}')
        A(f's_load_dwordx2 s[30:31], s[0:1], 16')
        A(f's_load_dwordx2 s[32:33], s[0:1], 24')
        A(f's_load_dwordx2 s[34:35], s[0:1], 32')
        A(f's_load_dwordx2 s[36:37], s[0:1], 40')
        A(f's_load_dwordx2 s[38:39], s[0:1], 8')
    def init(self, short=False):
        A = self.A; opt = self.opt
        A.wait(vm=0, lgkm=0)
        names = CH_CONSTS
        for k, n in enumerate(names[:12]):
            A(f'v_mov_b32 v{1+k}, v{16+k}')
        vDQ, vDO, vDO8, vTR0, vTR1, vM0 = 28, 29, 30, 31, 32, 33
        ob = [('O', 0, 0), ('O', 0, 2), ('O', 0, 4), ('O', 0, 6), ('O', 1, 0), ('O', 1, 2), ('O', 1, 4), ('O', 1, 6), ('O8',)]
        blocks = []
        if opt.get('ilv', 0):
            for t in range(9): blocks += [('Q', t), ('V', t), ob[t]]
        else:
            for t in range(9): blocks.append(('Q', t))
            for t in range(9): blocks.append(('V', t))
            blocks += ob
        for t in range(9): blocks.append(('K', t))
        assert len(blocks) == 36
        ptr = {'Q': 30, 'K': 32, 'V': 34, 'O': 36, 'O8': 36}
        size = {'Q': D*8192, 'K': D*8192, 'V': D*8192, 'O': 4096*1152, 'O8': 4096*1152}
        A(f's_lshl_b32 s40, s{sH}, 8')
        A(f's_mul_i32 s41, s{sH}, {128*1152}')
        A(f's_lshl_b32 s42, s{sW}, 10')
        cur = [None]
        def issue(n):
            b = blocks[n]; k = b[0]
            sl = n % 9
            if cur[0] != ptr[k]:
                A(f's_mov_b32 s{sT}, s{ptr[k]}')
                A(f's_and_b32 s{sT+1}, s{ptr[k]+1}, 0xffff')
                A(f's_mov_b32 s{sT+2}, {size[k]}')
                A(f's_mov_b32 s{sT+3}, 0x20000')
                cur[0] = ptr[k]
            for y in range(4):
                if k in 'QKV':
                    so = (64*b[1] + 16*y)*8192; base = 40; vo = vDQ
                elif k == 'O':
                    so = (64*b[1] + 32*(y >> 1) + 8*(y & 1))*1152 + b[2]*32; base = 41; vo = vDO
                else:
                    so = (32*(y >> 1) + 8*(y & 1))*1152 + 8*32; base = 41; vo = vDO8
                A(f's_add_u32 s43, s{base}, {so}')
                A(f's_add_u32 m0, s42, {sl*16384 + y*4096}')
                A(f'buffer_load_dwordx4 {v(vo)}, s[{sT}:{sT+3}], s43 offen lds')
        DEPTH = opt.get("depth", 6)
        if not short:
            for n in range(DEPTH): issue(n)
        nclr = 0
        A(f'ds_write_b128 {v(vMS)}, v[34:37] offset:{L_SPARE-BASE_MS}')
        A(f'v_mov_b64 v[40:41], 0')
        A(f'v_mov_b64 v[42:43], 0')
        A(f's_mul_i32 s{sTMP}, s{sH}, {HS}')
        A(f's_mul_i32 s{sTMP+1}, s{sW}, 2304')
        A(f's_add_u32 s{sTMP}, s{sTMP}, s{sTMP+1}')
        A(f's_lshl_b32 s{sLO}, s{sW}, 9')
        A(f's_add_u32 s{sLO}, s{sLO}, {L_QEX-BASE_MS-2048}')
        A(f's_add_u32 s{sPBc}, s{sTMP}, {PBRING[0]-BASE_MS}')
        A(f's_sub_u32 s{sPBl}, s{sPBc}, s{sLO}')
        self.clear_partial(sPBc, init=True); nclr += 3
        A(f'v_mov_b64 v[44:45], -1')
        A(f'v_mov_b64 v[46:47], -1')
        A(f's_mul_i32 s{sTMP}, s{sH}, 1536')
        A(f's_min_u32 s{sTMP+1}, s{sW}, 1'); A(f's_lshl_b32 s{sTMP+1}, s{sTMP+1}, 9')
        A(f's_add_u32 s{sTMP}, s{sTMP}, s{sTMP+1}')
        A(f's_add_u32 s{sTMP}, s{sTMP}, {OFF_MB-BASE_MS}')
        A(f'buffer_store_dwordx4 v[44:47], {v(vMS)}, s[{sWS}:{sWS+3}], s{sTMP} offen sc1'); nclr += 1
        if not opt.get('chain_only'):
            A(f'v_lshrrev_b32 v48, 4, {v(vMS)}')
            A(f'v_and_b32 v48, 63, v48')
            A(f'v_lshlrev_b32 v49, 7, v48')
            A(f's_mul_i32 s{sTMP}, s{sH}, 124'); A(f's_add_u32 s{sTMP}, s{sTMP}, 0x1000')
            A(f'v_mov_b32 v50, s{sTMP}')
            A(f'v_cmp_eq_u32 vcc, 8, v48')
            A(f'v_cndmask_b32 v49, v49, v50, vcc')
            A(f'v_mov_b32 v50, 0')
            A(f's_lshl_b32 s{sTMP}, s{sH}, 2')
            A(f's_add_u32 s{sTMP}, s{sTMP}, {OFF_FLAG}')
            A(f's_mov_b64 exec, 0x1ff')
            A(f'buffer_store_dword v50, v49, s[{sWS}:{sWS+3}], s{sTMP} offen sc1'); nclr += 1
            A(f's_mov_b64 exec, -1')
        if short:
            A.wait(vm=0); A('s_barrier'); self.dbg_add(9)
            return
        TA, TB = 40, 56
        pend = None
        NE = 36 - DEPTH; nearly = 5
        for n in range(36):
            b = blocks[n]; k = b[0]; sl = n % 9
            left = min(35, n + DEPTH - 1) - n
            extra = nclr if n < DEPTH else 0
            if n > NE: extra += nearly
            A.wait(vm=4*left + extra, lgkm=0)
            A('s_barrier')
            if n in (9, 18, 27): rt_stamp(A, opt, 7 + n//9 - 1, sW, off=OFF_RT)
            if n == DEPTH:
                self.dbg_add(9, nowait=True)
            if pend is not None:
                pn, treg = pend
                self.writeback(blocks[pn], treg); pend = None
            if n + DEPTH < 36: issue(n + DEPTH)
            if n == NE:
                A(f's_mov_b32 s44, s38'); A(f's_and_b32 s45, s39, 0xffff'); A(f's_mov_b32 s46, {8*1152}'); A(f's_mov_b32 s47, 0x20000')
                A(f's_lshl_b32 s43, s{sW}, 8')
                A(f'buffer_load_dwordx4 v[16:19], v{vM0}, s[44:47], s43 offen')
                A(f'buffer_load_dwordx4 v[20:23], v{vM0}, s[44:47], s43 offen offset:128')
                A(f's_mov_b32 s43, {8*128}')
                A(f'buffer_load_dwordx4 v[24:27], v{vM0}, s[44:47], s43 offen')
                A(f'v_lshrrev_b32 v38, 2, {v(vMS)}'); A(f'v_and_b32 v38, 60, v38')
                A(f'global_load_dword v38, v38, s[14:15] sc1')
                A(f'v_lshrrev_b32 v39, 4, {v(vMS)}'); A(f'v_and_b32 v39, 1, v39'); A(f'v_lshlrev_b32 v39, 7, v39')
                A(f's_lshl_b32 s43, s{sH}, 2'); A(f's_add_u32 s43, s43, {FL_KV + 128}')
                A(f'buffer_load_dword v39, v39, s[{sWS}:{sWS+3}], s43 offen sc1')
            inplace = n >= 27
            tmp = TA if (n % 2 == 0) else TB
            if k in 'QKV': names = [(k, b[1], 0), (k, b[1], 1)]
            elif k == 'O': names = [('O', b[1], b[2]), ('O', b[1], b[2]+1)]
            else: names = [('O', 0, 8), ('O', 1, 8)]
            for tau in range(2):
                A(f'v_add_u32 v{13+tau}, {sl*16384}, v{vTR0+tau}')
            for tau in range(2):
                nm = names[tau]
                for rr in range(4):
                    off = (32*(rr >> 1) + 4*(rr & 1))*256
                    if nm in FR: dst = freg(nm, 2*rr, 2)
                    else: dst = v(tmp + 8*tau + 2*rr, 2)
                    A(f'ds_read_b64_tr_b16 {dst}, v{13+tau} offset:{off}')
            if inplace: pend = (n, tmp)
        A.wait(lgkm=0)
        A('s_barrier')
        self.writeback(blocks[pend[0]], pend[1])
        A.wait(lgkm=0)
        A('s_barrier')
        rt_stamp(A, opt, 2, sW, off=OFF_RT)
        A.wait(vm=0)
        A(f's_mov_b32 s40, 0x05040100'); A(f's_mov_b32 s41, 0x07060302')
        for q, r in enumerate((16, 20, 24)):
            d = 60 + 4*q
            A(f'v_perm_b32 v{d}, v{r+1}, v{r}, s40'); A(f'v_perm_b32 v{d+1}, v{r+3}, v{r+2}, s40')
            A(f'v_perm_b32 v{d+2}, v{r+1}, v{r}, s41'); A(f'v_perm_b32 v{d+3}, v{r+3}, v{r+2}, s41')
        A(f'ds_write_b128 {v(vF2)}, v[60:63] offset:{L_MEMST-BASE_MS}')
        A(f'ds_write_b128 {v(vF2)}, v[64:67] offset:{L_MEMST-BASE_MS+1024}')
        A(f'ds_write_b128 {v(vMS)}, v[68:71] offset:{L_MEMST-BASE_MS+8192}')
        A(f'v_readlane_b32 s90, v38, 0'); A(f'v_readlane_b32 s91, v38, 9')
        A(f'v_readlane_b32 s92, v39, 0'); A(f'v_readlane_b32 s93, v39, 1')
        A(f's_mov_b32 s{sS}, 0')
        A(f's_mov_b32 s{sMBa}, {OFF_MB-BASE_MS}')
        A(f's_mov_b32 s{sMBb}, {OFF_MB+MBS-BASE_MS}')
        A(f's_mov_b32 s{sMBc}, {OFF_MB+2*MBS-BASE_MS}')
        A(f's_mov_b32 s{sPBr}, {PBRING[0]}')
        A(f's_lshr_b32 s{sTMP}, s{sH}, 3')
        A(f's_mul_i32 s{sTMP+1}, s{sTMP}, 2304')
        A(f's_bfe_u32 s{sTMP+2}, s{sH}, 0x10002')
        A(f's_and_b32 s{sTMP+3}, s{sH}, 3')
        A(f's_lshl_b32 s{sTMP+4}, s{sTMP+2}, 10')
        A(f's_lshl_b32 s{sTMP+5}, s{sTMP+3}, 8')
        A(f's_add_u32 s{sTASK}, s{sTMP+1}, s{sTMP+4}')
        A(f's_add_u32 s{sTASK}, s{sTASK}, s{sTMP+5}')
        A(f's_lshl_b32 s{sTMP+5}, s{sW}, 7')
        A(f's_add_u32 s{sTASK}, s{sTASK}, s{sTMP+5}')
        A(f's_mul_i32 s{sRSO}, s{sTMP}, {9*256}')
        A(f's_add_u32 s{sRSO}, s{sRSO}, s{sTMP+4}')
        A(f's_lshl_b32 s{sTMP+5}, s{sTMP+3}, 6')
        A(f's_add_u32 s{sRSO}, s{sRSO}, s{sTMP+5}')
        A(f's_lshl_b32 s{sTMP+5}, s{sW}, 5')
        A(f's_add_u32 s{sRSO}, s{sRSO}, s{sTMP+5}')
        lab = A.newlabel('ch_t')
        A(f's_cmp_lt_u32 s{sW}, 2')
        A(f's_cbranch_scc1 {lab}')
        A(f's_mov_b32 s{sTASK}, -1')
        A(f's_cmp_eq_u32 s{sW}, 2')
        A(f's_cbranch_scc0 {lab}')
        A(f's_cmp_eq_u32 s{sTMP+3}, 0')
        A(f's_cbranch_scc0 {lab}')
        A(f's_lshl_b32 s{sTMP+5}, s{sTMP+2}, 7')
        A(f's_add_u32 s{sTASK}, s{sTMP+1}, s{sTMP+5}')
        A(f's_add_u32 s{sTASK}, s{sTASK}, 2048')
        A(f's_mul_i32 s{sRSO}, s{sTMP}, {9*256}')
        A(f's_lshl_b32 s{sTMP+5}, s{sTMP+2}, 5')
        A(f's_add_u32 s{sRSO}, s{sRSO}, s{sTMP+5}')
        A(f's_add_u32 s{sRSO}, s{sRSO}, {8*256}')
        A.wait(vm=0, lgkm=0)
        A.label(lab)
        A(f's_add_u32 s{sRL0}, s{sTASK}, {OFF_PB}')
        for n in range(1, 4): A(f's_add_u32 s{sRL0+n}, s{sRL0+n-1}, {8*HS}')
        A(f's_add_u32 s{sRSO}, s{sRSO}, {BASE_MS}')
        A(f's_lshl_b32 s{sHI}, s{sH}, 1'); A(f's_add_u32 s{sHI}, s{sHI}, s{sW}')
        A(f's_lshr_b32 s{sTMP}, s{sH}, 2'); A(f's_add_u32 s{sTMP}, s{sTMP}, 64')
        A(f's_cmp_eq_u32 s{sW}, 2'); A(f's_cselect_b32 s{sHI}, s{sTMP}, s{sHI}')
        A(f's_add_u32 s{sHI}, s{sHI}, {OFF_H2}')
        A(f's_and_b32 s{sHP}, s{sH}, {H2_REP-1}'); A(f's_mul_i32 s{sHP}, s{sHP}, {H2_STR}'); A(f's_add_u32 s{sHP}, s{sHP}, {OFF_H2}')
        A(f's_sub_u32 s{sREP}, s{sW}, 1'); A(f's_lshl_b32 s{sREP}, s{sREP}, 11'); A(f's_add_u32 s{sREP}, s{sREP}, {MB_REP}')
        A(f's_cmp_eq_u32 s{sW}, 0'); A(f's_cselect_b32 s{sREP}, 0, s{sREP}')
        A(f's_and_b32 s{sKXW}, s{sW}, 1')
        A(f's_lshl_b32 s{sKXW}, s{sKXW}, 12')
        A(f's_lshl_b32 s{sWARM}, s{sH}, 13')
        A(f's_add_u32 s{sWARM}, s{sWARM}, s{sKXW}')
        A(f's_add_u32 s{sWARM}, s{sWARM}, {OFF_KXF-BASE_MS+32*8192}')
        A(f's_cmp_ge_u32 s{sW}, 2')
        A(f's_cselect_b32 s{sTMP}, {OFF_VXF-OFF_KXF}, 0')
        A(f's_add_u32 s{sWARM}, s{sWARM}, s{sTMP}')
        A(f's_lshl_b32 s{sTMP}, s{sH}, 13')
        A(f's_add_u32 s{sKX}, s{sTMP}, {OFF_KXF-BASE_MS}')
        A(f's_lshl_b32 s{sTMP+1}, s{sW}, 11')
        A(f's_add_u32 s{sVX}, s{sTMP}, s{sTMP+1}')
        A(f's_add_u32 s{sVX}, s{sVX}, {OFF_VXF-BASE_MS}')
        A(f's_lshl_b32 s{sTMP}, s{sH}, 12')
        A(f's_lshl_b32 s{sTMP+1}, s{sW}, 10')
        A(f's_add_u32 s{sTMP}, s{sTMP}, s{sTMP+1}')
        A(f's_lshr_b32 s{sTMP}, s{sTMP}, 1')
        A(f's_add_u32 s{sKM}, s{sTMP}, {OFF_KMF-BASE_MS//2}')
        A(f's_add_u32 s{sVM}, s{sTMP}, {OFF_VMF-BASE_MS//2}')
        c = DH**-0.5*math.log2(math.e)
        import struct
        cb = struct.unpack('<I', struct.pack('<f', c))[0]
        A(f's_mov_b32 s{sCv}, {cb:#x}')
        A(f's_mov_b32 s{sCv+1}, {cb:#x}')
        A(f's_mov_b32 s{sMASK}, 0x00ff00ff')
        A(f's_mov_b32 s{sMASK+1}, 0x00ff00ff')
        A(f's_mov_b32 s{sDEAD}, 0')
        for k in range(20): A(f's_mov_b32 s{sTS+k}, 0')
        l9 = A.newlabel('i9')
        A(f's_cmp_ge_u32 s91, 32'); A(f's_cbranch_scc1 {l9}')
        self.dbg_wait(9, 32)
        A(f'v_mov_b32 v13, 0')
        A(f'global_load_dword v14, v13, s[14:15] sc1')
        A(f'v_readfirstlane_b32 s90, v14')
        A.label(l9)
        A(f's_cmp_lt_u32 s90, 32')
        A(f's_cselect_b32 s{sSLOW}, 1, 0')
        if opt.get('fake') or opt.get('slow'): A(f's_mov_b32 s{sSLOW}, 1')
        A(f's_lshl_b32 s{sFLC}, s{sH}, 7')
        A(f's_add_u32 s{sFLC}, s{sFLC}, {FL_CH}')
        A(f's_mov_b32 s{sR7}, 0'); A(f's_mov_b32 s{sK7}, 0')
        if not opt.get('chain_only'):
            lk = A.newlabel('ikv')
            A(f's_min_u32 s92, s92, s93')
            A(f's_cmp_ge_u32 s92, 1'); A(f's_cbranch_scc1 {lk}')
            self.kv_wait(); A(f's_mov_b32 s{sR7}, 1'); self.kv_wait()
            A.label(lk)
        A(f's_mov_b32 s{sR7}, 2')
        A(f's_lshl_b32 s{sKVB}, s{sH}, 2'); A(f's_add_u32 s{sKVB}, s{sKVB}, {FL_KV + 128}')
        A(f's_add_u32 s{sKVF}, s{sKVB}, 256')
        for k in range(8): A(f's_mov_b32 s{88+k}, 0')
        self.kx_dma(all_waves=True)
        A.wait(vm=0, lgkm=0)
        A('s_barrier')

    def dbg_add(self, idx, nowait=False):
        A = self.A
        if nowait:
            lab = A.newlabel('dbga'); R = A.raw
            R(f'  s_cmp_eq_u32 s{sW}, 0'); R(f'  s_cbranch_scc0 {lab}')
            R(f'  s_mov_b64 exec, 1'); R(f'  v_mov_b32 v13, {idx*4}'); R(f'  v_mov_b32 v14, 1')
            R(f'  global_atomic_add v13, v14, s[14:15]'); R(f'  s_mov_b64 exec, -1'); R(f'{lab}:')
            return
        lab = A.newlabel('dbga')
        A(f's_cmp_eq_u32 s{sW}, 0')
        A(f's_cbranch_scc0 {lab}')
        A(f's_load_dwordx2 s[{sTMP}:{sTMP+1}], s[0:1], 104') if False else None
        A(f's_mov_b64 exec, 1')
        A(f'v_mov_b32 v13, {idx*4}')
        A(f'v_mov_b32 v14, 1')
        A(f'global_atomic_add v13, v14, s[14:15]')
        A(f's_mov_b64 exec, -1')
        A.wait(vm=0)
        A.label(lab)
    def dbg_wait(self, idx, val):
        A = self.A
        lab = A.newlabel('dbgw'); done = A.newlabel('dbgd')
        A(f's_mov_b32 s{sTMP}, 0')
        A(f'v_mov_b32 v13, {idx*4}')
        A.label(lab)
        A(f'global_load_dword v14, v13, s[14:15] sc1')
        A(f's_add_u32 s{sTMP}, s{sTMP}, 1')
        A.wait(vm=0)
        A(f'v_readfirstlane_b32 s{sTMP+1}, v14')
        A(f's_cmp_ge_u32 s{sTMP+1}, {val}')
        A(f's_cbranch_scc1 {done}')
        A(f's_sleep 2')
        A(f's_cmp_lt_u32 s{sTMP}, 0x40000')
        A(f's_cbranch_scc1 {lab}')
        A(f's_mov_b32 s{sDEAD}, 1')
        A.label(done)
    def writeback(self, b, tmp):
        A = self.A
        k = b[0]
        if k in 'QKV': names = [(k, b[1], 0), (k, b[1], 1)]
        elif k == 'O': names = [('O', b[1], b[2]), ('O', b[1], b[2]+1)]
        else: names = [('O', 0, 8), ('O', 1, 8)]
        for tau in range(2):
            nm = names[tau]
            if nm in FR: continue
            for hh in range(2):
                bs, off = lf_addr(nm, hh)
                A(f'ds_write_b128 {v(bs)}, {v(tmp+8*tau+4*hh,4)} offset:{off}')
    def clear_partial(self, sreg, init=False, fl=None):
        A = self.A
        R = 40 if init else self.NEG
        fl = 'sc1' if init else self.stf
        A(f'buffer_store_dwordx4 {v(R,4)}, {v(vMS)}, s[{sWS}:{sWS+3}], s{sreg} offen {fl}')
        A(f'buffer_store_dwordx4 {v(R,4)}, {v(vMS)}, s[{sWS}:{sWS+3}], s{sreg} offen offset:1024 {fl}')
        A(f's_sub_u32 s{sTMP+1}, s{sreg}, s{sLO}')
        A(f'buffer_store_dword {v(R)}, {v(vQW)}, s[{sWS}:{sWS+3}], s{sTMP+1} offen {fl}')
    def kv_wait(self):
        A = self.A
        lab = A.newlabel('kvw'); done = A.newlabel('kvd')
        A(f's_lshl_b32 s{sTMP}, s{sR7}, 7')
        A(f's_lshl_b32 s{sTMP+1}, s{sH}, 2')
        A(f's_add_u32 s{sTMP}, s{sTMP}, s{sTMP+1}')
        A(f's_add_u32 s{sTMP}, s{sTMP}, {FL_KV + 128}')
        A(f's_mov_b32 s{sTMP+1}, 0')
        A(f'v_mov_b32 v13, 0')
        A.label(lab)
        A(f'buffer_load_dword v14, v13, s[{sWS}:{sWS+3}], s{sTMP} offen sc1')
        A(f's_add_u32 s{sTMP+1}, s{sTMP+1}, 1')
        A.wait(vm=0)
        A(f'v_readfirstlane_b32 s{sTMP+2}, v14')
        A(f's_cmp_gt_u32 s{sTMP+2}, s{sK7}')
        A(f's_cbranch_scc1 {done}')
        A(f's_sleep 2')
        A(f's_cmp_lg_u32 s{sDEAD}, 0')
        A(f's_cbranch_scc1 {done}')
        A(f's_cmp_lt_u32 s{sTMP+1}, 0x40000')
        A(f's_cbranch_scc1 {lab}')
        A(f's_mov_b32 s{sDEAD}, 1')
        A.label(done)
    def kx_dma(self, all_waves=False):
        A = self.A
        A(f's_lshl_b32 s{sTMP}, s{sW}, 11')
        A(f's_add_u32 s{sTMP+1}, s{sKX}, s{sTMP}')
        A(f's_add_u32 m0, s{sTMP}, {L_KXST}')
        A(f'buffer_load_dwordx4 {v(vMS)}, s[{sWS}:{sWS+3}], s{sTMP+1} offen sc1 lds')
        A(f's_add_u32 m0, s{sTMP}, {L_KXST}')
        A(f'buffer_load_dwordx4 {v(vMS)}, s[{sWS}:{sWS+3}], s{sTMP+1} offen offset:1024 sc1 lds')

    def loop(self, slow, tag):
        A = self.A; opt = self.opt
        self.stf = 'sc1' if slow else ''
        L = f'ch_loop_{tag}'
        self.pre_step()
        if opt.get('es', 0):
            A(aread(AB0, 0)); A(aread(AB1, 1))
        self.wmark = None
        if opt.get('tt') or opt.get('ts'):
            A.raw('  s_memtime s[84:85]')
            A.raw(f'  s_memtime s[{sTS}:{sTS+1}]')
            A.raw('  s_waitcnt lgkmcnt(0)')
            A(f's_mov_b32 s{sTS+3}, s{sTS}')
        A.wait(lgkm=0)
        A.label(L)
        self.step(0, tag)
        if not opt.get('single'): self.step(1, tag)
        A(f's_cmp_lt_u32 s{sS}, {opt.get("nsteps", 64)}')
        A(f's_cbranch_scc1 {L}')
        if not opt.get('chain_only') and opt.get('nsteps', 64) == 64:
            WS = f's[{sWS}:{sWS+3}]'
            A.label(f'ch_last_{tag}')
            A.wait(vm=0, lgkm=0)
            A('s_barrier')
            pf = A.newlabel('pfl')
            A(f's_cmp_eq_u32 s{sW}, 3'); A(f's_cbranch_scc0 {pf}')
            A(f's_mov_b64 exec, 1'); A(f'v_mov_b32 v13, 0'); A(f'v_mov_b32 v14, 64')
            A(f'buffer_store_dword v14, v13, {WS}, s{sFLC} offen sc1'); A(f's_mov_b64 exec, -1')
            A.label(pf)
    def step(self, par, tag):
        A = self.A; opt = self.opt
        stf = self.stf
        WS = f's[{sWS}:{sWS+3}]'
        skip = f'ch_skip_{tag}_{par}'
        self.skip = skip
        if opt.get('cut') and par == 0: A.cut = opt['cut']; A.cutn = 0; A.cutlab = skip
        self.ts(0)
        self.at(0)
        if opt.get('rtsync'):
            A.raw('  s_memrealtime s[94:95]')
            A.raw('  s_waitcnt lgkmcnt(0)')
        for _ in range(opt.get('nop_start', 0)): A('s_nop 7')
        kseq = [('K', t, tau) for t in range(9) for tau in range(2)][:17]
        SB = [SB0, SB1, SB2]
        kreg = {nm: SB[k % 3] for k, nm in enumerate(kseq)}
        Areg = {t: (AB0 if t % 2 == 0 else AB1) for t in range(9)}
        ES = opt.get('es', 0)
        if not ES:
            A(aread(Areg[0], 0))
        for x in lfread(SB2, ('K', 1, 0)): A(x, nowait=bool(ES))
        nlds = 2
        if ES: A.raw('  s_waitcnt lgkmcnt(3)')
        if opt.get('gdbl'):
            for r in range(AV0, AV1+4, 2): A(f'v_mov_b64 {v(r,2)}, 0')
        if not opt.get('chain_only'):
            kf = A.newlabel('kf')
            A.raw(f'  s_cmp_eq_u32 s{sW}, 3')
            A.raw(f'  s_cbranch_scc0 {kf}')
            A.raw(f'  buffer_load_dword {v(vRS)}, off, {WS}, s{sKVF} sc1')
            A.raw(f'{kf}:')
        seq = []
        def add(r, x, y): return f'v_add_f32 {v(r)}, {v(x)}, {v(y)}'
        def xread(dst, k4, tau):
            return f'ds_read_b128 {v(dst,4)}, {v(vMS)} offset:{L_KXST-BASE_MS+(k4*2+tau)*1024}'
        if opt.get('ev', 2) == 2:
            X0 = {0: SB0, 1: SB1, 2: SB2, 3: SB1}
            X1 = {0: SB0+4, 1: SB1+4, 2: SB2+4, 3: SB1+4}
            VXR = SB0; PXR = SB1
        else:
            X0 = {0: SB0, 1: SB1, 2: SB2, 3: SB0}
            X1 = {0: SB0+4, 1: SB1+4, 2: SB2+4, 3: SB0+4}
            VXR = SB1; PXR = SB0
        LAG = opt.get('lag', 4)
        for t in range(9):
            kb = lambda tau: (kreg[('K', t, tau)] if ('K', t, tau) in kreg else ('K', t, tau))
            m = [smf(A, AQ0, Areg[t], ('Q', t, 0)), smf(A, AQ1, Areg[t], ('Q', t, 1)),
                 smf(A, AK0, Areg[t], kb(0)), smf(A, AK1, Areg[t], kb(1))]
            f = [[], [], [], []]
            full = t < 9 - LAG
            if full:
                m += [smf(A, AV0, Areg[t], ('V', t, 0)), smf(A, AV1, Areg[t], ('V', t, 1))]
                f += [[], []]
            if t < 8 and not (ES and t == 0):
                if ES and t == 1: f[0].append('@BAR')
                f[0].append(aread(Areg[t+1], t+1))
            i0 = 2*t
            if i0 + 3 < 17:
                r = lfread(kreg[kseq[i0]], kseq[i0+3])
                if full: f[2].append(r[0]); f[3].append(r[1])
                else: f[2] += r
            if i0 + 4 < 17:
                r = lfread(kreg[kseq[i0+1]], kseq[i0+4])
                if full: f[4].append(r[0]); f[5].append(r[1])
                else: f[3] += r
            if t < 4 and not opt.get('nokx'):
                f[1].append(f'buffer_load_dword v13, {v(vMS)}, {WS}, s{sWARM} offen offset:{1024*t} sc1')
            if t == 7 and LAG == 4:
                f[2].append(aread(SB2, 5)); f[3].append(aread(SB2+4, 6))
            seq += interleave(m, f)
        for x in seq:
            if x == '@BAR':
                A.wait(lgkm=nlds)
                A('s_barrier')
                self.progress_flag()
                continue
            if x.startswith('ds_'): nlds += 1
            A(x, nowait=x.startswith('buffer_load_dword v13'))
        self.ts(1)
        cvt = lambda d, x, y: f'v_cvt_pk_bf16_f32 {v(d)}, {v(x)}, {v(y)}'
        sv = lambda acc, areg, t, tau: smf(A, acc, areg, ('V', t, tau))
        qe = [add(AQ0, AQ0, AQ0+2), add(AQ0+1, AQ0+1, AQ0+3), add(AQ1, AQ1, AQ1+2), add(AQ1+1, AQ1+1, AQ1+3),
              cvt(AQ0, AQ0, AQ0+1), cvt(AQ1, AQ1, AQ1+1),
              f'ds_write2_b32 {v(vQW)}, {v(AQ0)}, {v(AQ1)} offset0:0 offset1:64']
        ke = [add(AK0, AK0, AK0+2), add(AK0+1, AK0+1, AK0+3), add(AK1, AK1, AK1+2), add(AK1+1, AK1+1, AK1+3),
              cvt(T14, AK0, AK0+1), cvt(T15, AK1, AK1+1),
              f'ds_write2_b32 {v(vKW)}, {v(T14)}, {v(T14)} offset0:0 offset1:1',
              f'ds_write2_b32 {v(vKW)}, {v(T15)}, {v(T15)} offset0:128 offset1:129']
        EV = opt.get('ev', 2)
        S0, S1, SM = 24, 28, 32
        def qread(dst, k4):
            return [f'ds_read_b64_tr_b16 {v(dst,2)}, {v(vQR)} offset:{k4*512}',
                    f'ds_read_b64_tr_b16 {v(dst+2,2)}, {v(vQR)} offset:{k4*512+128}']
        def kmread(dst, k4):
            return [f'ds_read_b64_tr_b16 {v(dst,2)}, {v(vKR)} offset:{k4*1024}',
                    f'ds_read_b64_tr_b16 {v(dst+2,2)}, {v(vKR)} offset:{k4*1024+256}']
        Q_ = {0: AB0, 1: 36, 2: AB0, 3: 36}
        KM = {0: AB1, 1: 44, 2: AB1, 3: 44}
        ONES = 16; PM = 20
        def smm(k4):
            c = lambda d: (v(d, 4) if k4 > 0 else '0')
            return [f'v_mfma_f32_16x16x32_bf16 {v(S0,4)}, {v(X0[k4],4)}, {v(Q_[k4],4)}, {c(S0)}',
                    f'v_mfma_f32_16x16x32_bf16 {v(S1,4)}, {v(X1[k4],4)}, {v(Q_[k4],4)}, {c(S1)}',
                    f'v_mfma_f32_16x16x32_bf16 {v(SM,4)}, {v(KM[k4],4)}, {v(Q_[k4],4)}, {c(SM)}']
        ve = [add(AV0, AV0, AV0+2), add(AV0+1, AV0+1, AV0+3), add(AV1, AV1, AV1+2), add(AV1+1, AV1+1, AV1+3),
              cvt(AV0, AV0, AV0+1), cvt(AV0+1, AV1, AV1+1)]
        def vxpub():
            if not opt.get('nokx'):
                A(f'buffer_load_dwordx4 {v(VXR,4)}, {v(vMS)}, {WS}, s{sVX} offen sc1')
                A(f'buffer_load_dwordx4 {v(VXR+4,4)}, {v(vMS)}, {WS}, s{sVX} offen offset:1024 sc1')
            if not opt.get('nopub'):
                A(f'v_lshrrev_b32 {v(43)}, 1, {v(vMS)}')
                A(f'buffer_store_dwordx2 {v(T14,2)}, {v(43)}, {WS}, s{sKM} offen sc1')
                A(f'buffer_store_dwordx2 {v(AV0,2)}, {v(43)}, {WS}, s{sVM} offen sc1')
            if par == 1 and not opt.get('chain_only') and opt.get('nsteps', 64) == 64:
                A.raw(f'  s_cmp_eq_u32 s{sS}, 63')
                A.raw(f'  s_cbranch_scc1 ch_last_{tag}')
        m0 = smm(0); m1 = smm(1); m2 = smm(2); m3 = smm(3)
        if EV == 0:
            prog = [sv(AV0, AB0, 8, 0), xread(X0[0], 0, 0), sv(AV1, AB0, 8, 1), xread(X1[0], 0, 1)]
            prog += qe[0:2] + [sv(AV0, AB1, 7, 0)] + qe[2:4] + [sv(AV1, AB1, 7, 1)] + qe[4:7] + ke
            prog += [xread(X0[1], 1, 0), xread(X1[1], 1, 1)]
            for x in prog: A(x)
            A.wait(lgkm=2)
            A('s_barrier')
            self.ts(2)
            for x in qread(Q_[0], 0) + kmread(KM[0], 0) + qread(Q_[1], 1): A(x)
            for x in [sv(AV0, SB2, 5, 0), sv(AV1, SB2, 5, 1), sv(AV0, SB2+4, 6, 0), sv(AV1, SB2+4, 6, 1)]: A(x)
            for x in [xread(X0[2], 2, 0), xread(X1[2], 2, 1)]: A(x)
            for x in m0: A(x)
            for x in qread(Q_[2], 2) + kmread(KM[2], 2) + [xread(X0[3], 3, 0), xread(X1[3], 3, 1)]: A(x)
            for x in ve: A(x)
            for x in kmread(KM[1], 1): A(x)
            A(m1[0]); A(m1[1]); A(m2[0]); A(m2[1])
            vxpub()
            A(m1[2])
            for x in qread(Q_[3], 3) + kmread(KM[3], 3): A(x)
            A(m2[2])
        elif EV == 2:
            prog = [sv(AV0, AB0, 8, 0), xread(X0[0], 0, 0), sv(AV1, AB0, 8, 1), xread(X1[0], 0, 1)]
            prog += qe + ke
            prog += [sv(AV0, AB1, 7, 0), xread(X0[1], 1, 0), sv(AV1, AB1, 7, 1), xread(X1[1], 1, 1),
                     sv(AV0, SB2, 5, 0), sv(AV1, SB2, 5, 1), sv(AV0, SB2+4, 6, 0), sv(AV1, SB2+4, 6, 1)]
            for x in prog: A(x)
            A.wait(lgkm=2)
            A('s_barrier')
            self.ts(2)
            for x in qread(Q_[0], 0) + kmread(KM[0], 0) + qread(Q_[1], 1) + [xread(X0[2], 2, 0), xread(X1[2], 2, 1)]: A(x)
            for x in ve: A(x)
            for x in kmread(KM[1], 1): A(x)
            for x in m0: A(x)
            vxpub()
            for x in qread(Q_[2], 2) + kmread(KM[2], 2): A(x)
            for x in m1: A(x)
            for x in [xread(X0[3], 3, 0), xread(X1[3], 3, 1)] + qread(Q_[3], 3) + kmread(KM[3], 3): A(x)
            for x in m2: A(x)
        else:
            prog = [sv(AV0, AB0, 8, 0), xread(X0[0], 0, 0), sv(AV1, AB0, 8, 1), xread(X1[0], 0, 1)]
            prog += qe + ke
            prog += [sv(AV0, AB1, 7, 0), xread(X0[1], 1, 0), sv(AV1, AB1, 7, 1), xread(X1[1], 1, 1),
                     sv(AV0, SB2, 5, 0), sv(AV1, SB2, 5, 1), sv(AV0, SB2+4, 6, 0), sv(AV1, SB2+4, 6, 1)]
            for x in prog: A(x)
            A.wait(lgkm=2)
            A('s_barrier')
            self.ts(2)
            for x in qread(Q_[0], 0) + kmread(KM[0], 0) + qread(Q_[1], 1) + [xread(X0[2], 2, 0), xread(X1[2], 2, 1)]: A(x)
            for x in ve: A(x)
            for x in kmread(KM[1], 1): A(x)
            for x in m0: A(x)
            for x in qread(Q_[2], 2) + kmread(KM[2], 2) + [xread(X0[3], 3, 0), xread(X1[3], 3, 1)]: A(x)
            for x in m1: A(x)
            for x in qread(Q_[3], 3) + kmread(KM[3], 3): A(x)
            vxpub()
            for x in m2: A(x)
        A(f'v_mov_b32 {v(ONES)}, 0x3f803f80'); A(f'v_mov_b32 {v(ONES+1)}, 0x3f803f80')
        A(f'v_mov_b32 {v(ONES+2)}, 0x3f803f80'); A(f'v_mov_b32 {v(ONES+3)}, 0x3f803f80')
        A(m3[0]); A(f'v_mov_b32 {v(PM+1)}, 0'); A(m3[1]); A(f'v_mov_b32 {v(PM+2)}, 0'); A(m3[2])
        self.ts(3)
        MX, TT = 42, 14
        early0 = [36, 38, 44, 46, 64, 66, 68, 70] if opt.get('ev', 2) == 2 and opt.get('zfill', 1) else []
        ez = [f'v_mov_b64 {v(r,2)}, 0' for r in early0]
        def zf(n):
            for _ in range(n):
                if ez: A(ez.pop(0))
        zf(3)
        A(f'v_max3_f32 {v(MX)}, {v(S0)}, {v(S0+1)}, {v(S0+2)}')
        A(f'v_max3_f32 {v(TT)}, {v(S1)}, {v(S1+1)}, {v(S1+2)}')
        A(f'v_max3_f32 {v(MX)}, {v(MX)}, {v(S0+3)}, {v(S1+3)}')
        A(f'v_max_f32 {v(MX)}, {v(MX)}, {v(TT)}')
        zf(1)
        A(f'v_max3_f32 {v(MX)}, {v(MX)}, {v(SM)}, {v(SM+1)}')
        A(f'v_mov_b32 {v(TT)}, {v(MX)}')
        zf(2)
        A(f'v_permlane16_swap_b32 {v(MX)}, {v(TT)}')
        A(f'v_max_f32 {v(MX)}, {v(MX)}, {v(TT)}')
        A(f'v_mov_b32 {v(TT)}, {v(MX)}')
        zf(2)
        A(f'v_permlane32_swap_b32 {v(MX)}, {v(TT)}')
        A(f'v_max_f32 {v(MX)}, {v(MX)}, {v(TT)}')
        A(f'v_mul_f32 {v(TT)}, s{sCv}, {v(MX)}')
        for r in (S0, S0+2, S1, S1+2, SM):
            A(f'v_pk_fma_f32 {v(r,2)}, {v(r,2)}, s[{sCv}:{sCv+1}], {v(TT,2)} op_sel_hi:[1,1,0] neg_lo:[0,0,1] neg_hi:[0,0,1]')
        for r in (S0, S0+1, S0+2, S0+3, S1, S1+1, S1+2, S1+3, SM, SM+1):
            A(f'v_exp_f32 {v(r)}, {v(r)}')
        PX = PXR
        A(cvt(PX, S0, S0+1)); A(cvt(PX+1, S0+2, S0+3)); A(cvt(PX+2, S1, S1+1)); A(cvt(PX+3, S1+2, S1+3))
        A(cvt(PM, SM, SM+1)); A(cvt(PM+3, SM, SM+1))
        self.ts(4)
        O0, O1, LL = 24, 28, 32
        VX = VXR
        if opt.get('nokx'):
            for r in range(VX, VX+8, 2): A(f'v_mov_b64 {v(r,2)}, 0')
        A(f'v_mfma_f32_16x16x32_bf16 {v(LL,4)}, {v(ONES,4)}, {v(PX,4)}, 0')
        A(f'v_mfma_f32_16x16x32_bf16 {v(O0,4)}, {v(VX,4)}, {v(PX,4)}, 0')
        A(f'v_mfma_f32_16x16x32_bf16 {v(O1,4)}, {v(VX+4,4)}, {v(PX,4)}, 0')
        A(f'v_mfma_f32_16x16x16_bf16 {v(LL,4)}, {v(ONES,2)}, {v(PM,2)}, {v(LL,4)}')
        A(f'v_mfma_f32_16x16x16_bf16 {v(O0,4)}, {v(AV0,2)}, {v(PM,2)}, {v(O0,4)}')
        A(f'v_mfma_f32_16x16x16_bf16 {v(O1,4)}, {v(AV0,2)}, {v(PM+2,2)}, {v(O1,4)}')
        WACC = 36
        MX = 13
        zero = [f'v_mov_b64 {v(WACC+2*k,2)}, 0' for k in range(18) if (WACC+2*k) not in early0]
        zq = list(zero)
        for x in zq[:6]: A(x)
        A(f'v_rcp_f32 {v(MX)}, {v(LL)}')
        A(zq[6])
        for r in range(4): A(f'v_mul_f32 {v(O0+r)}, {v(MX)}, {v(O0+r)}')
        A(cvt(O0, O0, O0+1)); A(cvt(O0+1, O0+2, O0+3))
        for r in range(4): A(f'v_mul_f32 {v(O1+r)}, {v(MX)}, {v(O1+r)}')
        A(cvt(O0+2, O1, O1+1)); A(cvt(O0+3, O1+2, O1+3))
        A(f's_mov_b64 exec, s[{sMASK}:{sMASK+1}]')
        A(f'ds_write_b128 {v(vOW)}, {v(O0,4)}')
        A(f's_mov_b64 exec, -1')
        for x in zq[7:]: A(x)
        A.wait(lgkm=0)
        A('s_barrier')
        self.ts(5)
        OA0, OA1 = 16, 20
        A(f'ds_read_b128 {v(OA0,4)}, {v(vMS)} offset:{L_OEX-BASE_MS}')
        A(f'ds_read_b128 {v(OA1,4)}, {v(vMS)} offset:{L_OEX-BASE_MS+1024}')
        acc = lambda q: WACC + 4*q
        def wo(q, tp):
            return f'v_smfmac_f32_16x16x64_bf16 {v(acc(q),4)}, {v(OA0 if tp == 0 else OA1,4)}, {freg(("O", tp, q))}, {v(vIDX)}'
        def epi(q):
            dst = 24 + q
            tagop = f'v_or_b32 {v(dst)}, 1, {v(dst)}' if par == 0 else f'v_and_b32 {v(dst)}, -2, {v(dst)}'
            return [add(acc(q), acc(q), acc(q)+2), add(acc(q)+1, acc(q)+1, acc(q)+3), cvt(dst, acc(q), acc(q)+1), tagop]
        st = lambda r, off: f'buffer_store_dwordx4 {v(r,4)}, {v(vMS)}, {WS}, s{sPBc} offen offset:{off} {stf}'
        prog = []; pend = []
        WV = opt.get('wov', 0)
        if WV == 0:
            for q in range(9):
                prog.append(wo(q, 0))
                if pend: prog.append(pend.pop(0))
                if q >= 2 and pend: prog.append(pend.pop(0))
                prog.append(wo(q, 1))
                if pend: prog.append(pend.pop(0))
                if q >= 2 and pend: prog.append(pend.pop(0))
                if q >= 2:
                    pend += epi(q-2)
                    if q-2 == 3: pend.append(st(24, 0))
            prog += [f'ds_read_b128 {v(16,4)}, {v(vMS)} offset:{L_SPARE-BASE_MS}']
            prog += pend
            prog += epi(7) + [st(28, 1024)] + epi(8)
            prog += [f'buffer_store_dword {v(32)}, {v(vQW)}, {WS}, s{sPBl} offen {stf}']
        else:
            order = [8, 0, 1, 2, 3, 4, 5, 6, 7]
            st2 = lambda r, off: f'buffer_store_dwordx2 {v(r,2)}, {v(vMS)}, {WS}, s{sPBc} offen offset:{off} {stf}'
            after = {8: [f'buffer_store_dword {v(32)}, {v(vQW)}, {WS}, s{sPBl} offen {stf}'], 3: [st(24, 0)], 5: [st2(28, 1024)], 7: [st2(30, 1024+8)]}
            for n, q in enumerate(order):
                prog.append(wo(q, 0))
                for _ in range(2):
                    if pend: prog.append(pend.pop(0))
                prog.append(wo(q, 1))
                for _ in range(2 if n < 8 else 0):
                    if pend: prog.append(pend.pop(0))
                if n >= 1:
                    qq = order[n-1]
                    pend += epi(qq) + after.get(qq, [])
            prog += [f'ds_read_b128 {v(16,4)}, {v(vMS)} offset:{L_SPARE-BASE_MS}']
            prog += pend + epi(7) + after[7]
        for x in prog: A(x)
        self.ts(6)
        self.at(1)
        if opt.get('log') or opt.get('logtp'):
            A.raw('  s_memrealtime s[90:91]')
            A.raw('  s_mov_b32 s92, 0')
        nored = A.newlabel('nored')
        gat = A.newlabel('gat')
        sG = 58
        def shadow():
            for r in range(AQ0, (AV0 if opt.get('gdbl') else AV1+4), 2): A(f'v_mov_b64 {v(r,2)}, 0')
            A(f's_add_u32 s{sPUB}, s{sMBb}, s{sRSO}')
            A(f's_add_u32 s{sCLR}, s{sMBa}, s{sRSO}')
            A(f's_mov_b32 s{sG}, s{sMBb}')
            A(f's_mov_b32 s{sTMP}, s{sMBa}'); A(f's_mov_b32 s{sMBa}, s{sMBb}'); A(f's_mov_b32 s{sMBb}, s{sMBc}'); A(f's_mov_b32 s{sMBc}, s{sTMP}')
            A(f's_add_u32 s{sVX}, s{sVX}, {32*8192}')
            A(f's_add_u32 s{sWARM}, s{sWARM}, {32*8192}')
            A(f's_add_u32 s{sKM}, s{sKM}, {32*2048}')
            A(f's_add_u32 s{sVM}, s{sVM}, {32*2048}')
            A(f's_add_u32 s{sS}, s{sS}, 1')
            if opt.get('hint'):
                A(f'v_lshrrev_b32 {v(T15)}, 4, {v(vMS)}')
                A(f'v_and_b32 {v(T15)}, 63, {v(T15)}')
                A(f'v_lshlrev_b32 {v(T15)}, {H2_STR.bit_length()-1}, {v(T15)}')
        def shadow2():
            A(f's_add_u32 s{sR7}, s{sR7}, 1')
            A(f's_cmp_eq_u32 s{sR7}, 7')
            A(f's_cselect_b32 s{sR7}, 0, s{sR7}')
            A(f's_addc_u32 s{sK7}, s{sK7}, 0')
            A(f's_lshl_b32 s{sKVF}, s{sR7}, 7')
            A(f's_add_u32 s{sKVF}, s{sKVF}, s{sKVB}')
            zb = 68 if opt.get('es', 0) else 64
            A(f'v_mov_b64 {v(zb,2)}, 0')
            A(f'v_mov_b64 {v(zb+2,2)}, 0')
            if opt.get('gdbl'):
                A(f'v_mov_b64 {v(68,2)}, 0'); A(f'v_mov_b64 {v(70,2)}, 0')
        def prefill(): pass
        if not opt.get('nohop'):
            A(f's_cmp_eq_u32 s{sTASK}, -1')
            A(f's_cbranch_scc1 {nored}')
            self.reducer(par, shadow, shadow2)
            prefill()
            A(f's_branch {gat}')
            A.label(nored)
            if not opt.get('chain_only'):
                nk = A.newlabel('nkv')
                A(f's_cmp_eq_u32 s{sW}, 3'); A(f's_cbranch_scc0 {nk}')
                A(f's_cmp_lt_u32 s{sS}, 62'); A(f's_cbranch_scc0 {nk}')
                A(f'v_readfirstlane_b32 s{sTMP+2}, {v(vRS)}')
                A(f's_cmp_gt_u32 s{sTMP+2}, s{sK7}'); A(f's_cbranch_scc1 {nk}')
                self.kv_wait()
                A.label(nk)
            if not opt.get('nokx'): self.next_kx()
            shadow(); shadow2(); prefill()
            if opt.get('hint'): self.hint_poll()
            A.label(gat)
        else:
            A.cut = None
            A.raw(f'{skip}:')
            shadow(); shadow2()
        for x in lfread(SB0, ('K', 0, 0)) + lfread(SB1, ('K', 0, 1)): A(x, nowait=True)
        if opt.get('gbar', 1) and not opt.get('nohop'): A('s_barrier')
        ES = opt.get('es', 0)
        self.wmark = None
        if not opt.get('nohop'): self.gather(sG)
        elif ES:
            A(aread(AB0, 0)); A(aread(AB1, 1)); A.wait(lgkm=0)
        self.ts(8)
        if not ES:
            A.wait(vm=0, lgkm=0)
            A('s_barrier')
        if opt.get('log') or opt.get('logst'):
            A.raw('  s_memrealtime s[94:95]')
            A.raw(f'  s_lshl_b32 s96, s{sH}, 2')
            A.raw(f'  s_add_u32 s96, s96, s{sW}')
            A.raw(f'  s_lshl_b32 s96, s96, 6')
            A.raw(f'  s_add_u32 s96, s96, s{sS}')
            A.raw(f'  s_lshl_b32 s96, s96, 4')
            A.raw(f'  s_add_u32 s96, s96, {0x8000000 - 16}')
            A.raw('  s_waitcnt lgkmcnt(0)')
            A.raw('  s_mov_b64 exec, 1')
            A.raw('  v_mov_b32 v68, s90'); A.raw('  v_mov_b32 v69, s94'); A.raw('  v_mov_b32 v70, s92'); A.raw(f'  v_mov_b32 v71, s{sTMP+2}')
            A.raw('  v_mov_b32 v13, 0')
            A.raw(f'  buffer_store_dwordx4 v[68:71], v13, {WS}, s96 offen')
            A.raw('  s_mov_b64 exec, -1')
        if not opt.get('es', 0): self.progress_flag()
    def progress_flag(self):
        A = self.A; opt = self.opt
        WS = f's[{sWS}:{sWS+3}]'
        if not opt.get('chain_only'):
            pf = A.newlabel('pf')
            A.raw(f'  s_cmp_eq_u32 s{sW}, 3')
            A.raw(f'  s_cbranch_scc0 {pf}')
            A.raw(f'  s_mov_b64 exec, 1')
            A.raw(f'  v_mov_b32 v14, s{sS}')
            A.raw(f'  buffer_store_dword v14, off, {WS}, s{sFLC} sc1')
            A.raw(f'  s_mov_b64 exec, -1')
            A.raw(f'{pf}:')
    def next_kx(self):
        A = self.A
        lab = A.newlabel('nkx')
        R = A.raw
        WS = f's[{sWS}:{sWS+3}]'
        R(f'  s_cmp_eq_u32 s{sW}, 3')
        R(f'  s_cbranch_scc0 {lab}')
        R(f'  s_add_u32 s{sKX}, s{sKX}, {32*8192}')
        R(f'  s_mov_b32 m0, {L_KXST}')
        R(f'  s_add_u32 s{sTMP+2}, s{sKX}, 4096')
        for k in range(4):
            R(f'  buffer_load_dwordx4 {v(vMS)}, {WS}, s{sKX} offen offset:{1024*k} sc1 lds')
        R(f'  s_mov_b32 m0, {L_KXST+4096}')
        R(f'  s_nop 0')
        for k in range(4):
            R(f'  buffer_load_dwordx4 {v(vMS)}, {WS}, s{sTMP+2} offen offset:{1024*k} sc1 lds')
        R(f'{lab}:')
    def pre_step(self):
        A = self.A
        for r in range(AQ0, AV1+4, 2): A(f'v_mov_b64 {v(r,2)}, 0')
        for x in lfread(SB0, ('K', 0, 0)) + lfread(SB1, ('K', 0, 1)): A(x, nowait=True)
    def reducer(self, par, shadow, shadow2):
        A = self.A; opt = self.opt
        R = A.raw
        WS = f's[{sWS}:{sWS+3}]'
        SEL, ACC = 16, 20
        NL = 4
        ld = [48 + 4*n for n in range(NL)]
        bop = '0x80' if par == 0 else '0xfe'
        lab = A.newlabel('redp'); ok = A.newlabel('redok')
        spin = opt.get('rspin', 0)
        A(f's_mov_b32 s{sTMP+2}, 0')
        def issue(raw=False):
            for n in range(NL):
                t = f'buffer_load_dwordx4 {v(ld[n],4)}, {v(vRL)}, {WS}, s{sRL0+n} offen sc1'
                (R('  ' + t) if raw else A(t))
        flat = [ld[n] + k for n in range(NL) for k in range(4)]
        chk = [f'v_bitop3_b32 {v(T13)}, {v(flat[0])}, {v(flat[1])}, {v(flat[2])} bitop3:{bop}']
        k = 3
        while k < 4*NL:
            b = flat[k+1] if k + 1 < 4*NL else flat[k]
            chk.append(f'v_bitop3_b32 {v(T13)}, {v(T13)}, {v(flat[k])}, {v(b)} bitop3:{bop}')
            k += 2
        fin = [f'v_and_b32 {v(T13)}, 1, {v(T13)}', f'v_cmp_{"eq" if par == 0 else "ne"}_u32 vcc, 0, {v(T13)}']
        if opt.get('shfirst', 1):
            shadow(); shadow2()
            for _ in range(opt.get('nop_red', 0)): A(f's_nop 7')
            self.at(2, 1)
            issue()
        else:
            for _ in range(opt.get('nop_red', 0)): A(f's_nop 7')
            self.at(2)
            issue()
            shadow(); shadow2()
        A.wait(lgkm=0)
        ci = 0
        for n in range(NL):
            A(f'v_mfma_f32_16x16x32_bf16 {v(ACC,4)}, {v(ld[n],4)}, {v(SEL,4)}, {v(ACC,4) if n else 0}')
            while ci < len(chk) and max(r[1] for r in I(chk[ci]).rd if r[0] == 'v' and r[1] >= 48) <= ld[n] + 3:
                A(chk[ci]); ci += 1
        A(f's_add_u32 s{sTMP+2}, s{sTMP+2}, 1')
        for c in fin: A(c)
        A(f's_cbranch_vccz {ok}')
        R(f'{lab}:')
        issue(True)
        R(f'  s_add_u32 s{sTMP+2}, s{sTMP+2}, 1')
        if spin:
            for q in range(spin):
                for c in chk + fin: R('  ' + c)
                R(f'  s_cbranch_vccz {ok}_m')
        elif opt.get('rfast', 1):
            ci = 0
            for n in range(NL):
                R(f'  s_waitcnt vmcnt({NL-1-n})')
                R(f'  v_mfma_f32_16x16x32_bf16 {v(ACC,4)}, {v(ld[n],4)}, {v(SEL,4)}, {v(ACC,4) if n else 0}')
                while ci < len(chk) and max(r[1] for r in I(chk[ci]).rd if r[0] == 'v' and r[1] >= 48) <= ld[n] + 3:
                    R('  ' + chk[ci]); ci += 1
            R('  s_nop 0')
            for c in fin: R('  ' + c)
            R(f'  s_cbranch_vccz {ok}')
        else:
            R(f'  s_waitcnt vmcnt(0)')
            for c in chk + fin: R('  ' + c)
            R(f'  s_cbranch_vccz {ok}_m')
        R(f'  s_cmp_lg_u32 s{sDEAD}, 0')
        R(f'  s_cbranch_scc1 {ok}_d')
        R(f'  s_cmp_lt_u32 s{sTMP+2}, 0x10000')
        R(f'  s_cbranch_scc1 {lab}')
        R(f'  s_mov_b32 s{sDEAD}, 1')
        R(f'{ok}_d:')
        R(f'  s_waitcnt vmcnt(0)')
        R(f'{ok}_m:')
        for n in range(NL):
            R(f'  v_mfma_f32_16x16x32_bf16 {v(ACC,4)}, {v(ld[n],4)}, {v(SEL,4)}, {v(ACC,4) if n else 0}')
        R(f'  s_nop 5')
        R(f'{ok}:')
        A(f's_nop 1')
        A(f'v_permlane32_swap_b32 {v(ACC)}, {v(ACC+1)}')
        A(f'v_permlane32_swap_b32 {v(ACC+2)}, {v(ACC+3)}')
        A(f'v_add_f32 {v(ACC)}, {v(ACC)}, {v(ACC+1)}')
        A(f'v_add_f32 {v(ACC+2)}, {v(ACC+2)}, {v(ACC+3)}')
        A(f'v_cvt_pk_bf16_f32 {v(ACC)}, {v(ACC)}, {v(ACC+2)}')
        A(f's_mov_b64 exec, s[{sMASK}:{sMASK+1}]')
        A(f'buffer_store_dword {v(ACC)}, {v(vRS)}, {WS}, s{sPUB} offen {self.stf}')
        if opt.get('es', 0):
            lr = A.newlabel('rep')
            R(f'  s_cmp_lt_u32 s{sH}, 8'); R(f'  s_cbranch_scc0 {lr}')
            R(f'  s_cmp_lt_u32 s{sW}, 2'); R(f'  s_cbranch_scc0 {lr}')
            R(f'  s_add_u32 s{sTMP}, s{sPUB}, {MB_REP}')
            R(f'  buffer_store_dword {v(ACC)}, {v(vRS)}, {WS}, s{sTMP} offen {self.stf}')
            R(f'  buffer_store_dword {v(ACC)}, {v(vRS)}, {WS}, s{sTMP} offen offset:2048 {self.stf}')
            R(f'  s_add_u32 s{sTMP}, s{sTMP}, 4096')
            R(f'  buffer_store_dword {v(ACC)}, {v(vRS)}, {WS}, s{sTMP} offen {self.stf}')
            R(f'{lr}:')
        A(f'v_mov_b32 {v(ACC+2)}, -1')
        A(f'buffer_store_dword {v(ACC+2)}, {v(vRS)}, {WS}, s{sCLR} offen {self.stf}')
        if opt.get('es', 0):
            lr = A.newlabel('repc')
            R(f'  s_cmp_lt_u32 s{sH}, 8'); R(f'  s_cbranch_scc0 {lr}')
            R(f'  s_cmp_lt_u32 s{sW}, 2'); R(f'  s_cbranch_scc0 {lr}')
            R(f'  s_add_u32 s{sTMP}, s{sCLR}, {MB_REP}')
            R(f'  buffer_store_dword {v(ACC+2)}, {v(vRS)}, {WS}, s{sTMP} offen {self.stf}')
            R(f'  buffer_store_dword {v(ACC+2)}, {v(vRS)}, {WS}, s{sTMP} offen offset:2048 {self.stf}')
            R(f'  s_add_u32 s{sTMP}, s{sTMP}, 4096')
            R(f'  buffer_store_dword {v(ACC+2)}, {v(vRS)}, {WS}, s{sTMP} offen {self.stf}')
            R(f'{lr}:')
        if opt.get('hint'):
            A(f's_mov_b64 exec, {(1<<H2_REP)-1}')
            A(f'v_mov_b32 {v(ACC+3)}, s{sS}')
            A(f'buffer_store_byte {v(ACC+3)}, {v(T15)}, {WS}, s{sHI} offen {self.stf}')
        A(f's_mov_b64 exec, -1')
        A(f's_waitcnt vmcnt({3 if opt.get("hint") else 2})')
        A.reset()
        A(f's_add_u32 s{sTS+16}, s{sTS+16}, s{sTMP+2}')
        if opt.get('log'): A.raw(f'  s_mov_b32 s92, s{sTMP+2}')
        self.at(3, 1)
        self.ts(7)
    def hint_poll(self):
        A = self.A; opt = self.opt; R = A.raw
        WS = f's[{sWS}:{sWS+3}]'
        skip = A.newlabel('hs'); lab = A.newlabel('hp'); ok = A.newlabel('hok')
        HR = [68, 69, 70, 71]
        R(f'  s_cmp_eq_u32 s{sW}, 3')
        R(f'  s_cbranch_scc0 {skip}')
        R(f'  s_and_b32 s{sTMP}, s{sS}, 0xff')
        R(f'  s_mul_i32 s{sTMP}, s{sTMP}, 0x01010101')
        R(f'  v_lshrrev_b32 v13, 2, {v(vMS)}')
        R(f'  v_and_b32 v13, 0xff, v13')
        R(f'  s_mov_b64 exec, 0x3ffff')
        R(f'  s_mov_b32 s{sTMP+1}, 0')
        for _ in range(opt.get('nop_hint', 0)): R('  s_nop 7')
        for k in range(3):
            R(f'  buffer_load_dword v{HR[k]}, v13, {WS}, s{sHP} offen sc1')
            R(f'  s_nop {opt.get("hgap", 7)}')
        R(f'{lab}:')
        for k in range(4):
            R(f'  buffer_load_dword v{HR[(k+3)%4]}, v13, {WS}, s{sHP} offen sc1')
            R(f'  s_waitcnt vmcnt(3)')
            R(f'  v_cmp_ne_u32 vcc, s{sTMP}, v{HR[k]}')
            R(f'  s_cbranch_vccz {ok}')
        R(f'  s_add_u32 s{sTMP+1}, s{sTMP+1}, 1')
        R(f'  s_cmp_lg_u32 s{sDEAD}, 0')
        R(f'  s_cbranch_scc1 {ok}')
        R(f'  s_cmp_lt_u32 s{sTMP+1}, 0x8000')
        R(f'  s_cbranch_scc1 {lab}')
        R(f'  s_mov_b32 s{sDEAD}, 1')
        R(f'{ok}:')
        R(f'  s_mov_b64 exec, -1')
        R(f'{skip}:')
        A.reset()
    def gather(self, sG):
        if self.opt.get('es', 0): return self.gather_es(sG)
        A = self.A; opt = self.opt
        WS = f's[{sWS}:{sWS+3}]'
        lab = A.newlabel('gatp'); ok = A.newlabel('gatok'); okb = A.newlabel('gatokb'); fin = A.newlabel('gatfin')
        R = A.raw
        DBL = opt.get('gdbl', 0)
        SA = (16, 20, 64); SBb = (40, 44, 68)
        A(f's_mov_b32 s{sTMP+2}, 0')
        A(f's_add_u32 s{sTMP+1}, s{sG}, 8192')
        for _ in range(opt.get('nop_gat', 0)): A(f's_nop 7')
        self.at(4, 1)
        def issue(G):
            l3 = A.newlabel('gat3')
            R(f'  buffer_load_dwordx4 {v(G[0],4)}, {v(vF2)}, {WS}, s{sG} offen sc1')
            R(f'  buffer_load_dwordx4 {v(G[1],4)}, {v(vF2)}, {WS}, s{sG} offen offset:1024 sc1')
            R(f'  s_cmp_eq_u32 s{sW}, 3')
            R(f'  s_cbranch_scc0 {l3}')
            R(f'  buffer_load_dwordx4 {v(G[2],4)}, {v(vMS)}, {WS}, s{sTMP+1} offen sc1')
            R(f'{l3}:')
        def check(G, target):
            G0, G1, G2 = G
            R(f'  v_max3_u32 {v(T13)}, {v(G0)}, {v(G0+1)}, {v(G0+2)}')
            R(f'  v_max3_u32 {v(T14)}, {v(G1)}, {v(G1+1)}, {v(G1+2)}')
            R(f'  v_max3_u32 {v(T13)}, {v(T13)}, {v(G0+3)}, {v(G1+3)}')
            R(f'  v_max3_u32 {v(T14)}, {v(T14)}, {v(G2)}, {v(G2+1)}')
            R(f'  v_max3_u32 {v(T13)}, {v(T13)}, {v(G2+2)}, {v(G2+3)}')
            R(f'  v_max_u32 {v(T13)}, {v(T13)}, {v(T14)}')
            R(f'  v_cmp_eq_u32 vcc, -1, {v(T13)}')
            R(f'  s_cbranch_vccz {target}')
        def writes(G):
            l3b = A.newlabel('gat3b')
            R(f'  ds_write_b128 {v(vF2)}, {v(G[0],4)} offset:{L_MEMST-BASE_MS}')
            R(f'  ds_write_b128 {v(vF2)}, {v(G[1],4)} offset:{L_MEMST-BASE_MS+1024}')
            R(f'  s_cmp_eq_u32 s{sW}, 3')
            R(f'  s_cbranch_scc0 {l3b}')
            R(f'  ds_write_b128 {v(vMS)}, {v(G[2],4)} offset:{L_MEMST-BASE_MS+8192}')
            R(f'{l3b}:')
        issue(SA)
        R(f'  s_add_u32 s{sTMP+2}, s{sTMP+2}, 1')
        if DBL:
            for _ in range(DBL): R('  s_nop 7')
            issue(SBb)
            l3 = A.newlabel('gw')
            R(f'  s_cmp_eq_u32 s{sW}, 3'); R(f'  s_cbranch_scc1 {l3}')
            R(f'  s_waitcnt vmcnt(2)'); R(f'  s_branch {l3}_j')
            R(f'{l3}:'); R(f'  s_waitcnt vmcnt(3)'); R(f'{l3}_j:')
            check(SA, ok)
            R(f'  s_add_u32 s{sTMP+2}, s{sTMP+2}, 1')
            R(f'  s_waitcnt vmcnt(0)')
            check(SBb, okb)
        else:
            R(f'  s_waitcnt vmcnt(0)')
            check(SA, ok)
        R(f'{lab}:')
        issue(SA)
        R(f'  s_add_u32 s{sTMP+2}, s{sTMP+2}, 1')
        R(f'  s_waitcnt vmcnt(0)')
        check(SA, ok)
        R(f'  s_cmp_lg_u32 s{sDEAD}, 0')
        R(f'  s_cbranch_scc1 {ok}')
        R(f'  s_cmp_lt_u32 s{sTMP+2}, 0x10000')
        R(f'  s_cbranch_scc1 {lab}')
        R(f'  s_mov_b32 s{sDEAD}, 1')
        R(f'{ok}:')
        writes(SA)
        if DBL:
            R(f'  s_branch {fin}')
            R(f'{okb}:')
            writes(SBb)
            R(f'{fin}:')
        A.reset()
        A(f's_add_u32 s{sTS+17}, s{sTS+17}, s{sTMP+2}')
        self.at(5, 1)

    def gather_es(self, sG):
        A = self.A; opt = self.opt
        WS = f's[{sWS}:{sWS+3}]'
        lab = A.newlabel('gatp'); ok = A.newlabel('gatok')
        R = A.raw
        E0, E1, G2, G3 = AB0, AB1, 64, 68
        A(f's_mov_b32 s{sTMP+2}, 0')
        A(f's_add_u32 s{sTMP+1}, s{sG}, 2048')
        A(f's_add_u32 s{sTMP+3}, s{sG}, s{sREP}')
        for _ in range(opt.get('nop_gat', 0)): A(f's_nop 7')
        self.at(4, 1)
        def issue():
            l3 = A.newlabel('gat3')
            R(f'  buffer_load_dwordx4 {v(E0,4)}, {v(vMS)}, {WS}, s{sTMP+3} offen sc1')
            R(f'  buffer_load_dwordx4 {v(E1,4)}, {v(vMS)}, {WS}, s{sTMP+3} offen offset:1024 sc1')
            R(f'  buffer_load_dwordx4 {v(G2,4)}, {v(vF2)}, {WS}, s{sTMP+1} offen sc1')
            R(f'  s_cmp_eq_u32 s{sW}, 3')
            R(f'  s_cbranch_scc1 {l3}')
            R(f'  buffer_load_dwordx4 {v(G3,4)}, {v(vF2)}, {WS}, s{sTMP+1} offen offset:1024 sc1')
            R(f'{l3}:')
        def check():
            R(f'  s_waitcnt vmcnt(0)')
            R(f'  v_max3_u32 {v(T13)}, {v(E0)}, {v(E0+1)}, {v(E0+2)}')
            R(f'  v_max3_u32 {v(T14)}, {v(E1)}, {v(E1+1)}, {v(E1+2)}')
            R(f'  v_max3_u32 {v(T13)}, {v(T13)}, {v(E0+3)}, {v(E1+3)}')
            R(f'  v_max3_u32 {v(T14)}, {v(T14)}, {v(G2)}, {v(G2+1)}')
            R(f'  v_max3_u32 {v(T13)}, {v(T13)}, {v(G2+2)}, {v(G2+3)}')
            R(f'  v_max3_u32 {v(T14)}, {v(T14)}, {v(G3)}, {v(G3+1)}')
            R(f'  v_max3_u32 {v(T13)}, {v(T13)}, {v(G3+2)}, {v(G3+3)}')
            R(f'  v_max_u32 {v(T13)}, {v(T13)}, {v(T14)}')
            R(f'  v_cmp_eq_u32 vcc, -1, {v(T13)}')
            R(f'  s_cbranch_vccz {ok}')
        issue()
        R(f'  s_add_u32 s{sTMP+2}, s{sTMP+2}, 1')
        check()
        R(f'{lab}:')
        issue()
        R(f'  s_add_u32 s{sTMP+2}, s{sTMP+2}, 1')
        check()
        R(f'  s_cmp_lg_u32 s{sDEAD}, 0')
        R(f'  s_cbranch_scc1 {ok}')
        R(f'  s_cmp_lt_u32 s{sTMP+2}, 0x10000')
        R(f'  s_cbranch_scc1 {lab}')
        R(f'  s_mov_b32 s{sDEAD}, 1')
        R(f'{ok}:')
        A.reset()
        l3 = A.newlabel('gat3b')
        A(f'ds_write_b128 {v(vF2)}, {v(G2,4)} offset:{L_MEMST-BASE_MS+2048}')
        R(f'  s_cmp_eq_u32 s{sW}, 3')
        R(f'  s_cbranch_scc1 {l3}')
        R(f'  ds_write_b128 {v(vF2)}, {v(G3,4)} offset:{L_MEMST-BASE_MS+3072}')
        R(f'{l3}:')
        A.lgk.append(set())
        self.wmark = A.lgk[-1]
        A(f's_add_u32 s{sTS+17}, s{sTS+17}, s{sTMP+2}')
        self.at(5, 1)
```

```python
from asmlib import *
from layout import *
import math, struct
def fb(x): return struct.unpack('<I', struct.pack('<f', x))[0]

sWS = 4; sT = 8
sM, sW, sG, sK, sSEG, sN, sSLOW = 16, 17, 18, 19, 20, 21, 22
sTMP = 23
sTAB = 30
sP0 = 32
sA, sB, sC, sD_ = 36, 37, 38, 39
sDEAD = 44
sCv = 40
WS = f's[{sWS}:{sWS+3}]'
TS = f's[{sT}:{sT+3}]'
LO32 = 46
CIDX = {n: k for k, n in enumerate(WK_CONSTS)}

class Worker:
    def __init__(self, A, opt):
        self.A = A; self.opt = opt
    def consts(self, mp):
        A = self.A
        A('v_mul_u32_u24 v255, 192, v0') if False else None
        A(f'v_mov_b32 v{self.vT}, 192')
        A(f'v_mul_u32_u24 v{self.vT}, v{self.vT}, v0')
        for n, r in mp.items():
            A(f'global_load_dword v{r}, v{self.vT}, s[{sTAB}:{sTAB+1}] offset:{4*CIDX[n]}')
        A.wait(vm=0)
    def srd(self, kern_off, size):
        A = self.A
        A(f's_load_dwordx2 s[{sP0}:{sP0+1}], s[0:1], {kern_off}')
        A.wait(lgkm=0)
        A(f's_mov_b32 s{sT}, s{sP0}')
        A(f's_and_b32 s{sT+1}, s{sP0+1}, 0xffff')
        A(f's_mov_b32 s{sT+2}, {size}')
        A(f's_mov_b32 s{sT+3}, 0x20000')
    def dbg_add(self, idx_s=None, idx_c=0):
        A = self.A
        lab = A.newlabel('wda')
        A(f's_cmp_eq_u32 s{sW}, 0')
        A(f's_cbranch_scc0 {lab}')
        A(f's_add_u32 s{sTMP}, s{idx_s}, {idx_c}') if idx_s is not None else A(f's_mov_b32 s{sTMP}, {idx_c}')
        A(f's_lshl_b32 s{sTMP}, s{sTMP}, 2')
        A(f's_mov_b64 exec, 1')
        A(f'v_mov_b32 v60, s{sTMP}')
        A(f'v_mov_b32 v61, 1')
        A(f'global_atomic_add v60, v61, s[14:15]')
        A(f's_mov_b64 exec, -1')
        A.label(lab)
    def dbg_wait(self, idx_s, idx_c, val_s=None, val_c=0, sleep=2, barrier=True):
        A = self.A
        lab = A.newlabel('wdw'); done = A.newlabel('wdd'); skip = A.newlabel('wds')
        A(f's_cmp_eq_u32 s{sW}, 0')
        A(f's_cbranch_scc0 {skip}')
        if idx_s is not None: A(f's_add_u32 s{sTMP}, s{idx_s}, {idx_c}')
        else: A(f's_mov_b32 s{sTMP}, {idx_c}')
        A(f's_lshl_b32 s{sTMP}, s{sTMP}, 2')
        A(f'v_mov_b32 v60, s{sTMP}')
        if val_s is not None: A(f's_mov_b32 s{sTMP+2}, s{val_s}')
        else: A(f's_mov_b32 s{sTMP+2}, {val_c}')
        A(f's_mov_b32 s{sTMP}, 0')
        A.label(lab)
        A(f'global_load_dword v61, v60, s[14:15] sc1')
        A(f's_add_u32 s{sTMP}, s{sTMP}, 1')
        A.wait(vm=0)
        A(f'v_readfirstlane_b32 s{sTMP+1}, v61')
        A(f's_cmp_ge_u32 s{sTMP+1}, s{sTMP+2}')
        A(f's_cbranch_scc1 {done}')
        A(f's_sleep {sleep}')
        A(f's_cmp_lg_u32 s{sDEAD}, 0')
        A(f's_cbranch_scc1 {done}')
        A(f's_cmp_lt_u32 s{sTMP}, 0x40000')
        A(f's_cbranch_scc1 {lab}')
        A(f's_mov_b32 s{sDEAD}, 1')
        A.label(done)
        A.raw(f'{skip}:')
        A.reset()
        if barrier: A('s_barrier')
    def ws_wait(self, off_s, val_s, sleep=2):
        A = self.A
        lab = A.newlabel('www'); done = A.newlabel('wwd'); skip = A.newlabel('wws')
        A(f's_cmp_eq_u32 s{sW}, 0')
        A(f's_cbranch_scc0 {skip}')
        A(f'v_mov_b32 v60, 0')
        A(f's_mov_b32 s{sTMP}, 0')
        A.label(lab)
        A(f'buffer_load_dword v61, v60, {WS}, s{off_s} offen sc1')
        A(f's_add_u32 s{sTMP}, s{sTMP}, 1')
        A.wait(vm=0)
        A(f'v_readfirstlane_b32 s{sTMP+1}, v61')
        A(f's_cmp_ge_u32 s{sTMP+1}, s{val_s}')
        A(f's_cbranch_scc1 {done}')
        near = A.newlabel('wwn'); cont = A.newlabel('wwc')
        A(f's_add_u32 s{sTMP+1}, s{sTMP+1}, 1')
        A(f's_cmp_ge_u32 s{sTMP+1}, s{val_s}')
        A(f's_cbranch_scc1 {near}')
        A(f's_sleep {self.opt.get("farsleep", 24)}')
        A(f's_branch {cont}')
        A.raw(f'{near}:')
        A(f's_sleep {self.opt.get("nearsleep", 3)}')
        A.raw(f'{cont}:')
        A(f's_cmp_lg_u32 s{sDEAD}, 0')
        A(f's_cbranch_scc1 {done}')
        A(f's_cmp_lt_u32 s{sTMP}, 0x40000')
        A(f's_cbranch_scc1 {lab}')
        A(f's_mov_b32 s{sDEAD}, 1')
        A.label(done)
        A.raw(f'{skip}:')
        A.reset()
        A('s_barrier')
    def group_sync(self, ps):
        A = self.A
        skip = A.newlabel('gs'); lab = A.newlabel('gsp'); done = A.newlabel('gsd')
        A(f's_cmp_eq_u32 s{sW}, 0')
        A(f's_cbranch_scc0 {skip}')
        A(f's_lshl_b32 s{sTMP}, s{sG}, 8')
        A(f's_add_u32 s{sTMP}, s{sTMP}, {FL_W + ps*128}')
        A(f's_add_u32 s{sTMP+2}, s{sK}, 1')
        A(f's_lshl_b32 s{sTMP+1}, s{sM}, 2')
        A(f's_mov_b64 exec, 1')
        A(f'v_mov_b32 v60, s{sTMP+1}')
        A(f'v_mov_b32 v61, s{sTMP+2}')
        self.mstore(f'buffer_store_dword v61, v60, {WS}, s{sTMP} offen')
        A(f's_mov_b64 exec, -1')
        A(f'v_mbcnt_lo_u32_b32 v60, -1, 0')
        A(f'v_mbcnt_hi_u32_b32 v60, -1, v60')
        A(f'v_and_b32 v60, 31, v60')
        A(f'v_lshlrev_b32 v60, 2, v60')
        A(f's_mov_b32 s{sTMP+1}, 0')
        A.label(lab)
        A(f'buffer_load_dword v61, v60, {WS}, s{sTMP} offen sc1')
        A(f's_add_u32 s{sTMP+1}, s{sTMP+1}, 1')
        A.wait(vm=0)
        A(f'v_cmp_gt_u32 vcc, s{sTMP+2}, v61')
        A(f's_cbranch_vccz {done}')
        A(f's_cmp_lg_u32 s{sDEAD}, 0')
        A(f's_cbranch_scc1 {done}')
        A(f's_cmp_lt_u32 s{sTMP+1}, 0x100000')
        A(f's_cbranch_scc1 {lab}')
        A(f's_mov_b32 s{sDEAD}, 1')
        A.label(done)
        A.raw(f'{skip}:')
        A.reset()
        A('s_barrier')
    def warm_weights(self):
        A = self.A
        A(f's_load_dwordx2 s[32:33], s[0:1], 16')
        A(f's_load_dwordx2 s[34:35], s[0:1], 32')
        A(f's_load_dwordx2 s[36:37], s[0:1], 40')
        A(f's_load_dwordx2 s[38:39], s[0:1], 24')
        A(f's_lshl_b32 s{sTMP}, s{sG}, 5'); A(f's_add_u32 s{sTMP}, s{sTMP}, s{sM}')
        A(f's_lshl_b32 s{sTMP}, s{sTMP}, 15')
        A(f'v_lshlrev_b32 v10, 7, v0')
        A.wait(lgkm=0)
        sel = {1: (32, 34, 36, 38), 2: (36,), 3: (36, 34)}[self.opt.get('warmw', 1)]
        for k, p in enumerate(sel):
            A(f's_mov_b32 s{sT}, s{p}'); A(f's_and_b32 s{sT+1}, s{p+1}, 0xffff')
            A(f's_mov_b32 s{sT+2}, {D*8192}'); A(f's_mov_b32 s{sT+3}, 0x20000')
            A.raw(f'  buffer_load_dword v{11+k}, v10, {TS}, s{sTMP} offen')
    def layernorm(self):
        A = self.A
        self.vT = 2
        self.consts({'wLNG': 3, 'wLNS': 4})
        A(f's_lshl_b32 s{sTMP}, s{sG}, 8')
        A(f's_lshl_b32 s{sTMP+1}, s{sM}, 2')
        A(f's_add_u32 s{sTMP}, s{sTMP}, s{sTMP+1}')
        A(f's_add_u32 s{sTMP}, s{sTMP}, {FL_W}')
        A(f'v_mov_b32 v60, 0')
        A(f'buffer_store_dword v60, v60, {WS}, s{sTMP} offen sc1')
        A(f'buffer_store_dword v60, v60, {WS}, s{sTMP} offen offset:128 sc1')
        if self.opt.get('fasttail', 1):
            lab = A.newlabel('ftc')
            A(f's_cmp_eq_u32 s{sG}, 0'); A(f's_cbranch_scc0 {lab}')
            A(f'v_mov_b64 v[8:9], -1'); A(f'v_mov_b64 v[10:11], -1')
            A(f'v_lshlrev_b32 v12, 3, v0')
            A(f's_add_u32 s{sTMP}, s{sM}, {63*32}'); A(f's_lshl_b32 s{sTMP}, s{sTMP}, 11')
            A(f's_add_u32 s{sTMP+1}, s{sTMP}, {OFF_KMF}')
            A(f'buffer_store_dwordx2 v[8:9], v12, {WS}, s{sTMP+1} offen sc1')
            A(f's_add_u32 s{sTMP+1}, s{sTMP}, {OFF_VMF}')
            A(f'buffer_store_dwordx2 v[8:9], v12, {WS}, s{sTMP+1} offen sc1')
            A(f'v_lshlrev_b32 v12, 4, v0')
            A(f's_mul_i32 s{sTMP}, s{sM}, {WPB_M}'); A(f's_add_u32 s{sTMP}, s{sTMP}, {OFF_WPB + 14*WPB_SLOT}')
            for k in range(9):
                A(f'buffer_store_dwordx4 v[8:11], v12, {WS}, s{sTMP} offen sc1')
                if k < 8: A(f's_add_u32 s{sTMP}, s{sTMP}, 4096')
            A.raw(f'{lab}:')
        done = A.newlabel('lnd')
        A(f's_lshl_b32 s{sTMP}, s{sW}, 5')
        A(f's_add_u32 s{sTMP}, s{sTMP}, s{sM}')
        A(f's_lshl_b32 s{sTMP+1}, s{sN}, 2')
        A(f's_cmp_lt_u32 s{sTMP}, s{sTMP+1}')
        A(f's_cbranch_scc0 {done}')
        A(f's_lshr_b32 s{sTMP+1}, s{sTMP}, 2')
        A(f's_mul_i32 s{sTMP+1}, s{sTMP+1}, 7')
        A(f's_add_u32 s{sTMP+1}, s{sTMP+1}, s{sG}')
        A(f's_and_b32 s{sTMP+2}, s{sTMP}, 3')
        A(f's_lshl_b32 s{sTMP+3}, s{sTMP+1}, 2')
        A(f's_add_u32 s{sTMP+3}, s{sTMP+3}, s{sTMP+2}')
        A(f's_mul_i32 s{sA}, s{sTMP+3}, {8*1152}')
        A(f's_mul_i32 s{sB}, s{sTMP+1}, {SEGB}')
        A(f's_lshl_b32 s{sTMP+2}, s{sTMP+2}, 7')
        A(f's_add_u32 s{sB}, s{sB}, s{sTMP+2}')
        self.srd(0, S*D*2)
        P = 64; F_ = 100
        for n in range(9):
            A(f'buffer_load_dwordx4 {v(P+4*n,4)}, v3, {TS}, s{sA} offen offset:{128*n}')
        A(f's_mov_b32 s{sC}, 0xffff0000')
        for which in range(2):
            for d in range(36):
                A(f'v_lshlrev_b32 v{F_+2*d}, 16, v{P+d}')
                A(f'v_and_b32 v{F_+2*d+1}, s{sC}, v{P+d}')
            def red8(r):
                A(f'v_add_f32_dpp v{r}, v{r}, v{r} quad_perm:[1,0,3,2] row_mask:0xf bank_mask:0xf')
                A(f'v_add_f32_dpp v{r}, v{r}, v{r} quad_perm:[2,3,0,1] row_mask:0xf bank_mask:0xf')
                A(f'v_add_f32_dpp v{r}, v{r}, v{r} row_half_mirror row_mask:0xf bank_mask:0xf')
            acc = [10, 11, 12, 13]
            for k in range(4): A(f'v_mov_b32 v{acc[k]}, v{F_+k}')
            for e in range(4, 72): A(f'v_add_f32 v{acc[e%4]}, v{acc[e%4]}, v{F_+e}')
            A('v_add_f32 v10, v10, v11'); A('v_add_f32 v12, v12, v13'); A('v_add_f32 v10, v10, v12')
            red8(10)
            A(f'v_mul_f32 v10, {fb(1.0/576):#x}, v10')
            for k in range(4): A(f'v_mov_b32 v{11+k}, 0')
            for e in range(72):
                A(f'v_sub_f32 v15, v{F_+e}, v10')
                A(f'v_fmac_f32 v{11+e%4}, v15, v15')
            A('v_add_f32 v11, v11, v12'); A('v_add_f32 v13, v13, v14'); A('v_add_f32 v11, v11, v13')
            red8(11)
            A(f'v_mul_f32 v11, {fb(1.0/576):#x}, v11')
            A('v_cvt_pk_bf16_f32 v10, v10, v11')
            A(f'v_and_b32 v11, s{sC}, v10')
            A('v_lshlrev_b32 v10, 16, v10')
            A(f'v_add_f32 v11, {fb(1e-5):#x}, v11')
            A('v_cvt_pk_bf16_f32 v11, v11, v11')
            A(f'v_and_b32 v11, s{sC}, v11')
            A('v_sqrt_f32 v11, v11')
            A('v_cvt_pk_bf16_f32 v11, v11, v11')
            A(f'v_and_b32 v11, s{sC}, v11')
            A('v_rcp_f32 v11, v11')
            for d in range(36):
                a0, a1 = F_+2*d, F_+2*d+1
                A(f'v_sub_f32 v{a0}, v{a0}, v10')
                A(f'v_sub_f32 v{a1}, v{a1}, v10')
                A(f'v_cvt_pk_bf16_f32 v15, v{a0}, v{a1}')
                A(f'v_lshlrev_b32 v{a0}, 16, v15')
                A(f'v_and_b32 v{a1}, s{sC}, v15')
                A(f'v_mul_f32 v{a0}, v11, v{a0}')
                A(f'v_mul_f32 v{a1}, v11, v{a1}')
                A(f'v_cvt_pk_bf16_f32 v{P+d}, v{a0}, v{a1}')
            base = OFF_XNF if which == 0 else OFF_YF
            for n in range(9):
                A(f's_add_u32 s{sTMP}, s{sB}, {base + n*8*512}')
                A(f'buffer_store_dwordx4 {v(P+4*n,4)}, v4, {WS}, s{sTMP} offen sc1')
            if which == 0: A('s_nop 1')
        A.wait(vm=0)
        A.label(done)
        A.wait(vm=0)
        A('s_barrier')
        self.dbg_add(sG, DBG_LN)
    def ring(self, blocks, nslots=9, depth=6):
        A = self.A
        pos = []; p = 0
        for b in blocks:
            ns = b.get('slots', 1)
            if p % nslots + ns > nslots: p += nslots - p % nslots
            pos.append(p % nslots); p += ns
        def issue(n):
            b = blocks[n]
            if b.get('setup'): b['setup']()
            for y, dm in enumerate(b['dmas']):
                voff, sbase, const, lds = dm[:4]
                lb = dm[4] if len(dm) > 4 else 42
                A(f's_add_u32 s43, s{sbase}, {const}')
                A(f's_add_u32 m0, s{lb}, {pos[n]*16384 + lds}')
                A(f'buffer_load_dwordx4 v{voff}, {TS}, s43 offen lds')
        N = len(blocks)
        issued = 0
        def can_issue(n, cur):
            sl = set(range(pos[n], pos[n] + blocks[n].get('slots', 1)))
            for q in range(cur, n):
                if sl & set(range(pos[q], pos[q] + blocks[q].get('slots', 1))): return False
            return n - cur < depth
        while issued < N and can_issue(issued, 0): issue(issued); issued += 1
        for n in range(N):
            left = sum(len(blocks[q]['dmas']) for q in range(n+1, issued))
            A.wait(vm=left, lgkm=0)
            A('s_barrier')
            while issued < N and can_issue(issued, n): issue(issued); issued += 1
            cur = {}
            for (dst, addr, imm) in blocks[n]['reads']:
                if addr not in cur:
                    t = 60 + len(cur); cur[addr] = t
                    A(f'v_add_u32 v{t}, {pos[n]*16384}, v{addr}')
                A(f'ds_read_b64_tr_b16 {dst}, v{cur[addr]} offset:{imm}')
        A.wait(lgkm=0)
        A('s_barrier')
    def seg_dma(self, base, seg_s, buf_s, vL16):
        A = self.A
        A(f's_mul_i32 s{sTMP}, s{seg_s}, {SEGB}')
        A(f's_mul_i32 s{sTMP+1}, s{sW}, {9*1024}')
        A(f's_add_u32 s{sTMP}, s{sTMP}, s{sTMP+1}')
        A(f's_add_u32 s{sTMP}, s{sTMP}, {base}')
        A(f's_add_u32 s{sTMP+1}, s{sTMP+1}, s{buf_s}')
        for y in range(9):
            A(f's_add_u32 m0, s{sTMP+1}, {(y//4)*4096}')
            if y % 4 == 0 and y: A(f's_add_u32 s{sTMP}, s{sTMP}, 4096')
            A(f'buffer_load_dwordx4 v{vL16}, {WS}, s{sTMP} offen offset:{(y%4)*1024} sc1 lds')
    def passA(self):
        A = self.A; opt = self.opt
        self.vT = 2
        sMA, sGA, sNA = 50, 51, 52
        A(f's_lshl_b32 s{sTMP}, s{sG}, 5'); A(f's_add_u32 s{sTMP}, s{sTMP}, s{sM}')
        A(f's_mul_i32 s{sMA}, s{sTMP}, 9363'); A(f's_lshr_b32 s{sMA}, s{sMA}, 16')
        A(f's_mul_i32 s{sTMP+1}, s{sMA}, 7'); A(f's_sub_u32 s{sGA}, s{sTMP}, s{sTMP+1}')
        A(f's_cmp_eq_u32 s{sGA}, 0'); A(f's_cselect_b32 s{sNA}, 10, 9')
        C = {'wL16': 3, 'wDA': 4, 'wTA0': 5, 'wTA1': 6, 'wSTK': 7}
        self.consts(C)
        def fr(kp, tau, off=0, cnt=4):
            n = (2*kp + tau)*4 + off
            return f'a[{n}:{n+cnt-1}]' if n < 256 else f'v[{224+n-256}:{224+n-256+cnt-1}]'
        A(f's_load_dwordx2 s[{sP0}:{sP0+1}], s[0:1], 24')
        A(f's_load_dwordx2 s[{sP0+2}:{sP0+3}], s[0:1], 32')
        A.wait(lgkm=0)
        A(f's_cmp_lt_u32 s{sW}, 2')
        A(f's_cselect_b32 s{sT}, s{sP0}, s{sP0+2}')
        A(f's_cselect_b32 s{sT+1}, s{sP0+1}, s{sP0+3}')
        A(f's_and_b32 s{sT+1}, s{sT+1}, 0xffff')
        A(f's_mov_b32 s{sT+2}, {D*8192}')
        A(f's_mov_b32 s{sT+3}, 0x20000')
        A(f's_and_b32 s{sTMP}, s{sW}, 1')
        A(f's_mul_i32 s{sTMP}, s{sTMP}, {16*8192}')
        A(f's_lshl_b32 s{sA}, s{sMA}, 8')
        A(f's_add_u32 s{sA}, s{sA}, s{sTMP}')
        A(f's_lshl_b32 s42, s{sW}, 12')
        blocks = []
        for b in range(18):
            dm = [(4, sA, (32*b + 4*y)*8192, y*1024) for y in range(4)]
            rd = []
            for kk in range(2):
                for tau in range(2):
                    for rr in range(2):
                        rd.append((fr(2*b+kk, tau, 2*rr, 2), 5+tau, kk*4096 + rr*1024))
            blocks.append(dict(dmas=dm, reads=rd))
        self.ring(blocks)
        rt_stamp(A, opt, 3, sW, off=OFF_RT)
        self.dbg_wait(sGA, DBG_LN, None, 32)
        self.dbg_wait(None, DBG_CHINIT, None, 32)
        rt_stamp(A, opt, 4, sW, off=OFF_RT)
        A(f's_mov_b32 s{sK}, 0')
        A(f's_mov_b32 s{sSEG}, s{sGA}')
        A(f's_mov_b32 s{sB}, {W_XT0}')
        self.seg_dma(OFF_XNF, sSEG, sB, 3)
        A(f'v_add_u32 v8, {W_XT0}, v3')
        A(f's_lshl_b32 s{sC}, s{sGA}, 7')
        A(f's_lshl_b32 s{sTMP}, s{sMA}, 2')
        A(f's_add_u32 s{sC}, s{sC}, s{sTMP}')
        A(f's_add_u32 s{sC}, s{sC}, {FL_KV + 128}')
        L = A.newlabel('pa_loop'); nonext = A.newlabel('pa_nn'); vw = A.newlabel('pa_v'); epi = A.newlabel('pa_e')
        A.label(L)
        A.wait(vm=0)
        A('s_barrier')
        lab = A.newlabel('pa_fl')
        A(f's_cmp_eq_u32 s{sK}, 0'); A(f's_cbranch_scc1 {lab}')
        A(f's_cmp_eq_u32 s{sW}, 0'); A(f's_cbranch_scc0 {lab}')
        A(f's_mov_b64 exec, 1'); A(f'v_mov_b32 v60, 0'); A(f'v_mov_b32 v61, s{sK}')
        A(f'buffer_store_dword v61, v60, {WS}, s{sC} offen sc1'); A(f's_mov_b64 exec, -1')
        A.label(lab)
        A(f's_add_u32 s{sD_}, s{sK}, 1')
        A(f's_cmp_lt_u32 s{sD_}, s{sNA}')
        A(f's_cbranch_scc0 {nonext}')
        A(f's_add_u32 s{sD_}, s{sSEG}, 7')
        A(f's_xor_b32 s{sTMP+2}, s{sB}, {W_XT0 ^ W_XT1}')
        self.seg_dma(OFF_XNF, sD_, sTMP+2, 3)
        A.label(nonext)
        ACC = 64; XB = [96, 100, 104, 108]
        A(f's_cmp_lt_u32 s{sW}, 2')
        A(f's_cbranch_scc0 {vw}')
        for role in range(2):
            if role == 1: A.label(vw)
            for kp in range(3): A(f'ds_read_b128 {v(XB[kp],4)}, v8 offset:{kp*1024}')
            for kp in range(36):
                if kp + 3 < 36: A(f'ds_read_b128 {v(XB[(kp+3)%4],4)}, v8 offset:{(kp+3)*1024}')
                for tau in range(2):
                    d = v(ACC+16*tau, 16); c_ = d if kp else '0'
                    x_ = v(XB[kp % 4], 4)
                    if role == 0: A(f'v_mfma_f32_32x32x16_bf16 {d}, {fr(kp,tau)}, {x_}, {c_}')
                    else: A(f'v_mfma_f32_32x32x16_bf16 {d}, {x_}, {fr(kp,tau)}, {c_}')
            if role == 0: A(f's_branch {epi}')
        A.label(epi)
        A(f's_nop 15')
        A(f's_lshl_b32 s{sTMP}, s{sSEG}, 5')
        A(f's_add_u32 s{sTMP}, s{sTMP}, s{sMA}')
        A(f's_lshl_b32 s{sTMP}, s{sTMP}, 13')
        A(f's_cmp_lt_u32 s{sW}, 2')
        A(f's_cselect_b32 s{sTMP+1}, 0, {OFF_VXF-OFF_KXF}')
        A(f's_add_u32 s{sTMP}, s{sTMP}, s{sTMP+1}')
        A(f's_add_u32 s{sTMP}, s{sTMP}, {OFF_KXF}')
        PK = 112
        for tau in range(2):
            for u in range(2):
                r0 = ACC + 16*tau + 8*u; p = PK + 8*tau + 4*u
                for k in range(4): A(f'v_cvt_pk_bf16_f32 v{p+k}, v{r0+2*k}, v{r0+2*k+1}')
                A(f'buffer_store_dwordx4 {v(p,4)}, v7, {WS}, s{sTMP} offen offset:{tau*2048+u*512} sc1')
        A(f's_xor_b32 s{sB}, s{sB}, {W_XT0 ^ W_XT1}')
        A(f'v_add_u32 v8, s{sB}, v3')
        A(f's_add_u32 s{sSEG}, s{sSEG}, 7')
        A(f's_add_u32 s{sK}, s{sK}, 1')
        A(f's_cmp_lt_u32 s{sK}, s{sNA}')
        A(f's_cbranch_scc1 {L}')
        A.wait(vm=0)
        A('s_barrier')
        lab = A.newlabel('pa_fl')
        A(f's_cmp_eq_u32 s{sW}, 0'); A(f's_cbranch_scc0 {lab}')
        A(f's_mov_b64 exec, 1'); A(f'v_mov_b32 v60, 0'); A(f'v_mov_b32 v61, s{sK}')
        A(f'buffer_store_dword v61, v60, {WS}, s{sC} offen sc1'); A(f's_mov_b64 exec, -1')
        A.label(lab)

    def gemm2_blocks(self, fr2, nrb, mini, vDO, vTO, sbase, slds, setup):
        blocks = []
        first = True
        for q0 in (0, 2, 4, 6, 8):
            for rb in range(nrb):
                dm = [(vDO, sbase, (64*rb + 16*y)*1152 + q0*32, y*4096, slds) for y in range(4)]
                rd = []
                for kk in range(2):
                    for tau in range(2):
                        if q0 + tau > 8: continue
                        for rr in range(2):
                            rd.append((fr2(q0+tau, 2*rb+kk, 2*rr, 2), vTO+tau, (32*kk + 16*rr)*256))
                blocks.append(dict(dmas=dm, reads=rd, setup=setup if first else None)); first = False
            if mini:
                dm = [(vDO, sbase, (64*nrb)*1152 + q0*32, 0, slds)]
                rd = [(fr2(q0+tau, 4, 0, 2), vTO+tau, 0) for tau in range(2) if q0 + tau <= 8]
                blocks.append(dict(dmas=dm, reads=rd))
        return blocks
    def gemm2(self, fr2, k16, ACC, HF, PKD, vL16, vL8, vPS8, sPB):
        A = self.A
        for tt in range(2):
            for ko in range(4):
                A(f'ds_read_b128 {v(HF+4*ko,4)}, v{vL16} offset:{W_OEX + tt*4096 + ko*1024}')
            if k16: A(f'ds_read_b64 {v(HF+16,2)}, v{vL8} offset:{W_OEX + 8192 + tt*512}')
            for ko in range(4):
                for q in range(9):
                    d = v(ACC+4*q, 4)
                    A(f'v_mfma_f32_16x16x32_bf16 {d}, {fr2(q, ko)}, {v(HF+4*ko,4)}, {d if ko else 0}')
            if k16:
                for q in range(9):
                    d = v(ACC+4*q, 4)
                    A(f'v_mfma_f32_16x16x16_bf16 {d}, {fr2(q, 4, 0, 2)}, {v(HF+16,2)}, {d}')
            for a_ in range(4):
                p = PKD + 4*(a_ % 2)
                for t2 in range(2):
                    r0 = ACC + 4*(2*a_ + t2)
                    A(f'v_cvt_pk_bf16_f32 v{p+2*t2}, v{r0}, v{r0+1}')
                    A(f'v_cvt_pk_bf16_f32 v{p+2*t2+1}, v{r0+2}, v{r0+3}')
                self.mstore(f'buffer_store_dwordx4 {v(p,4)}, v{vL16}, {WS}, s{sPB} offen offset:{a_*1024}', tt*4608, sPB)
            p = PKD + 8
            A(f'v_cvt_pk_bf16_f32 v{p}, v{ACC+32}, v{ACC+33}')
            A(f'v_cvt_pk_bf16_f32 v{p+1}, v{ACC+34}, v{ACC+35}')
            A(f's_add_u32 s{sTMP}, s{sPB}, 4096')
            self.mstore(f'buffer_store_dwordx2 {v(p,2)}, v{vPS8}, {WS}, s{sTMP} offen', 0, None)
            if tt == 0: A(f's_add_u32 s{sPB}, s{sPB}, 4608')
        A(f's_sub_u32 s{sPB}, s{sPB}, 4608')
    def mstore(self, text, *_):
        A = self.A
        l1 = A.newlabel('ms'); l2 = A.newlabel('me')
        A(f's_cmp_eq_u32 s{sSLOW}, 0')
        A(f's_cbranch_scc0 {l1}')
        A(text)
        A.raw(f'  s_branch {l2}')
        A.raw(f'{l1}:')
        A.raw(f'  {text} sc1')
        A.raw(f'{l2}:')
    def reduce(self, which, R0, vRL, vSEL, vROb, vROf, vX0, vX1, vB2r, vB2x):
        A = self.A
        FT = which == 'D' and self.opt.get('fasttail', 1) and not self.opt.get('nochain')
        lns = A.newlabel('rns')
        if FT:
            A(f's_cmp_eq_u32 s{sSEG}, 63'); A(f's_cbranch_scc1 {lns}')
        A.wait(vm=0)
        A('s_barrier')
        self.group_sync(0 if which == 'C' else 1)
        if FT:
            A.raw(f'{lns}:'); A.reset()
        LD = R0; AC = R0 + 32; XX = R0 + 36; BB = R0 + 40
        def task(extra):
            if not extra:
                A(f's_lshr_b32 s{sTMP}, s{sM}, 3')
                A(f's_bfe_u32 s{sTMP+1}, s{sM}, 0x10002')
                A(f's_and_b32 s{sTMP+2}, s{sM}, 3')
                A(f's_mul_i32 s{sTMP+3}, s{sTMP}, 9216')
                A(f's_mul_i32 s{sTMP+4}, s{sTMP+1}, 4608')
                A(f's_add_u32 s{sTMP+3}, s{sTMP+3}, s{sTMP+4}')
                A(f's_lshl_b32 s{sTMP+4}, s{sTMP+2}, 10')
                A(f's_add_u32 s{sTMP+3}, s{sTMP+3}, s{sTMP+4}')
                A(f's_lshl_b32 s{sTMP+4}, s{sW}, 8')
                A(f's_add_u32 s{sTMP+3}, s{sTMP+3}, s{sTMP+4}')
                A(f's_mul_i32 s{sTMP+5}, s{sTMP}, {9*32}')
                A(f's_lshl_b32 s{sTMP+4}, s{sTMP+2}, 6')
                A(f's_add_u32 s{sTMP+5}, s{sTMP+5}, s{sTMP+4}')
                A(f's_lshl_b32 s{sTMP+4}, s{sW}, 3')
                A(f's_add_u32 s{sTMP+5}, s{sTMP+5}, s{sTMP+4}')
            else:
                A(f's_lshr_b32 s{sTMP}, s{sM}, 2')
                A(f's_bfe_u32 s{sTMP+1}, s{sM}, 0x10001')
                A(f's_and_b32 s{sTMP+2}, s{sM}, 1')
                A(f's_mul_i32 s{sTMP+3}, s{sTMP}, 9216')
                A(f's_mul_i32 s{sTMP+4}, s{sTMP+1}, 4608')
                A(f's_add_u32 s{sTMP+3}, s{sTMP+3}, s{sTMP+4}')
                A(f's_lshl_b32 s{sTMP+4}, s{sTMP+2}, 8')
                A(f's_add_u32 s{sTMP+3}, s{sTMP+3}, s{sTMP+4}')
                A(f's_add_u32 s{sTMP+3}, s{sTMP+3}, 4096')
                A(f's_mul_i32 s{sTMP+5}, s{sTMP}, {9*32}')
                A(f's_lshl_b32 s{sTMP+4}, s{sTMP+2}, 4')
                A(f's_add_u32 s{sTMP+5}, s{sTMP+5}, s{sTMP+4}')
                A(f's_add_u32 s{sTMP+5}, s{sTMP+5}, {8*32}')
            A(f's_lshl_b32 s{sTMP+4}, s{sSEG}, 5')
            A(f's_lshl_b32 s{sTMP+1}, s{sTMP+1}, 4')
            A(f's_add_u32 s{sTMP+4}, s{sTMP+4}, s{sTMP+1}')
            A(f's_mul_i32 s{sTMP+4}, s{sTMP+4}, 1152')
            A(f's_add_u32 s{sTMP+4}, s{sTMP+4}, s{sTMP+5}')
            A(f's_add_u32 s{sTMP+3}, s{sTMP+3}, s{sA}')
            vo_b = vX0 if extra else vROb; vo_f = vX1 if extra else vROf
            A(f's_lshl_b32 s{sTMP+2}, s{sTMP+4}, 1')
            A(f's_add_u32 s{sTMP+2}, s{sTMP+2}, {OFF_BASE}')
            if which == 'C':
                A(f'buffer_load_dwordx2 {v(XX,2)}, v{vo_b}, {TS}, s{sTMP+4} offen')
                A(f'v_add_u32 v{BB+2}, s{sTMP+5}, v{vB2x if extra else vB2r}')
                A(f'global_load_dwordx2 {v(BB,2)}, v{BB+2}, s[34:35]')
            else:
                A(f'buffer_load_dwordx4 {v(XX,4)}, v{vo_f}, {WS}, s{sTMP+2} offen sc1')
            lr = A.newlabel('rp'); lo = A.newlabel('ro')
            if FT:
                A(f's_mov_b32 s56, 0')
                A.raw(f'{lr}:')
            A(f's_mov_b32 s57, s{sTMP+3}')
            for n in range(8):
                A(f'buffer_load_dwordx4 {v(LD+4*n,4)}, v{vRL}, {WS}, s57 offen sc1')
                if n < 7: A(f's_add_u32 s57, s57, {4*WPB_M}')
            for n in range(8):
                A(f'v_mfma_f32_16x16x32_bf16 {v(AC,4)}, {v(vSEL,4)}, {v(LD+4*n,4)}, {v(AC,4) if n else 0}')
            if FT:
                A(f's_cmp_eq_u32 s{sSEG}, 63'); A(f's_cbranch_scc0 {lo}')
                A(f's_nop 7')
                A(f'v_cmp_u_f32 vcc, v{AC}, v{AC+1}')
                A(f'v_cmp_u_f32 s[58:59], v{AC+2}, v{AC+3}')
                A(f's_or_b64 vcc, vcc, s[58:59]')
                A(f's_cbranch_vccz {lo}')
                A(f's_add_u32 s56, s56, 1')
                A(f's_cmp_lg_u32 s{sDEAD}, 0'); A(f's_cbranch_scc1 {lo}')
                A(f's_cmp_lt_u32 s56, 0x40000'); A(f's_cbranch_scc1 {lr}')
                A(f's_mov_b32 s{sDEAD}, 1')
                A.raw(f'{lo}:')
                A(f's_nop 7')
            if which == 'C':
                A(f's_mov_b32 s{sTMP}, 0xffff0000')
                for k, src in enumerate((XX, BB)):
                    t = LD + 4*k
                    A(f'v_lshlrev_b32 v{t}, 16, v{src}'); A(f'v_and_b32 v{t+1}, s{sTMP}, v{src}')
                    A(f'v_lshlrev_b32 v{t+2}, 16, v{src+1}'); A(f'v_and_b32 v{t+3}, s{sTMP}, v{src+1}')
                for r in range(4):
                    A(f'v_add_f32 v{LD+r}, v{LD+r}, v{LD+4+r}')
                    A(f'v_add_f32 v{AC+r}, v{AC+r}, v{LD+r}')
                A(f's_mov_b64 exec, s[{LO32}:{LO32+1}]')
                A(f'buffer_store_dwordx4 {v(AC,4)}, v{vo_f}, {WS}, s{sTMP+2} offen' + (' sc1' if self.opt.get('wt') else ''))
                A(f's_mov_b64 exec, -1')
            else:
                for r in range(4): A(f'v_add_f32 v{AC+r}, v{AC+r}, v{XX+r}')
                A(f'v_cvt_pk_bf16_f32 v{AC}, v{AC}, v{AC+1}')
                A(f'v_cvt_pk_bf16_f32 v{AC+1}, v{AC+2}, v{AC+3}')
                A(f's_mov_b64 exec, s[{LO32}:{LO32+1}]')
                A(f'buffer_store_dwordx2 {v(AC,2)}, v{vo_b}, {TS}, s{sTMP+4} offen' + (' sc1' if self.opt.get('wt') else ''))
                A(f's_mov_b64 exec, -1')
        task(False)
        lab = A.newlabel('rx')
        A(f's_cmp_eq_u32 s{sW}, 3'); A(f's_cbranch_scc0 {lab}')
        A(f's_cmp_lt_u32 s{sM}, 16'); A(f's_cbranch_scc0 {lab}')
        task(True)
        A.wait(vm=0, lgkm=0)
        A.label(lab)
    def srd_cached(self, which): pass
    def passC(self):
        A = self.A; opt = self.opt
        self.vT = 2
        C = {'wL16': 3, 'wDW1': 4, 'wD16': 5, 'wT1a': 6, 'wT1b': 7, 'wT1c': 8, 'wDO': 9, 'wTO0': 10, 'wTO1': 11,
             'wHW': 12, 'wHW8': 13, 'wRL': 14, 'wROb': 15, 'wROf': 16, 'wPS8': 17, 'wB1': 18, 'wYR': 19, 'wYR2': 20,
             'wX0': 21, 'wX1': 22, 'wL8': 23, 'wSEL0': 24, 'wSEL1': 25, 'wSEL2': 26, 'wSEL3': 27}
        self.consts(C)
        A('v_lshrrev_b32 v28, 8, v3'); A('v_and_b32 v28, 1, v28')
        A('v_lshlrev_b32 v29, 3, v28'); A('v_lshlrev_b32 v28, 5, v28')
        def w1(ti, kp, off=0, cnt=4):
            n = (ti*18 + kp)*4 + off
            return f'a[{n}:{n+cnt-1}]'
        f4 = [('a', 216 + 4*k) for k in range(10)] + [('v', 134 + 4*k) for k in range(26)]
        f2 = [('v', 238 + 2*k) for k in range(9)]
        def fr2(q, ko, off=0, cnt=4):
            if ko < 4: kd, n = f4[q*4 + ko]
            else: kd, n = f2[q]
            n += off
            return f'{kd}[{n}:{n+cnt-1}]'
        self.srd(64, D*9216)
        A(f's_mul_i32 s{sA}, s{sM}, 288')
        A(f's_mul_i32 s{sTMP}, s{sW}, {4*9216}')
        A(f's_add_u32 s{sB}, s{sA}, s{sTMP}')
        A(f's_mul_i32 s{sTMP}, s{sW}, {5*32*9216}')
        A(f's_add_u32 s{sC}, s{sA}, s{sTMP}')
        A(f's_add_u32 s{sC}, s{sC}, 256')
        A(f's_lshl_b32 s42, s{sW}, 10')
        A(f's_mul_i32 s45, s{sW}, 5120')
        blocks = []
        for b in range(9):
            dm = [(4, sB, (64*b + 16*y)*9216, y*4096) for y in range(4)]
            rd = [(w1(tau, 2*b+kk, 2*rr, 2), 6+tau, kk*8192 + rr*1024) for kk in range(2) for tau in range(2) for rr in range(2)]
            blocks.append(dict(dmas=dm, reads=rd))
        dm = [(5, sC, y*32*9216, y*1024, 45) for y in range(5)]
        rd = [(w1(2, kp, 2*rr, 2), 8, kp*1024 + rr*128) for kp in range(18) for rr in range(2)]
        blocks.append(dict(dmas=dm, reads=rd, slots=2))
        self.ring(blocks)
        self.srd(80, F*1152)
        A(f's_mul_i32 s{sA}, s{sM}, 144')
        A(f's_lshl_b32 s{sTMP}, s{sW}, 2')
        A(f's_add_u32 s{sA}, s{sA}, s{sTMP}')
        A(f's_mul_i32 s{sB}, s{sA}, 1152')
        self.ring(self.gemm2_blocks(fr2, 2, True, 9, 10, sB, 42, None))
        rt_stamp(A, opt, 6, sW, off=OFF_RT)
        A(f's_load_dwordx2 s[{sP0}:{sP0+1}], s[0:1], 72')
        A(f's_load_dwordx2 s[34:35], s[0:1], 88')
        A.wait(lgkm=0)
        A(f's_mul_i32 s{sTMP}, s{sM}, 288')
        A(f's_lshl_b32 s{sTMP+1}, s{sW}, 6')
        A(f's_add_u32 s{sTMP+1}, s{sTMP+1}, s{sTMP}')
        A(f'v_add_u32 v60, s{sTMP+1}, v18')
        A(f'global_load_dwordx2 v[44:45], v60, s[{sP0}:{sP0+1}]')
        A(f'global_load_dwordx2 v[46:47], v60, s[{sP0}:{sP0+1}] offset:32')
        A(f's_add_u32 s{sTMP}, s{sTMP}, 256')
        A(f'v_add_u32 v60, s{sTMP}, v18')
        A(f'global_load_dwordx2 v[48:49], v60, s[{sP0}:{sP0+1}]')
        A(f's_mov_b32 s{sTMP}, 0xffff0000')
        BI = 30
        for ti in range(3):
            for hf in range(2):
                A(f'v_lshlrev_b32 v{BI+4*ti+2*hf}, 16, v{44+2*ti+hf}')
                A(f'v_and_b32 v{BI+4*ti+2*hf+1}, s{sTMP}, v{44+2*ti+hf}')
        self.dbg_wait(sG, DBG_LN, None, 32)
        A(f's_lshl_b32 s{sTMP}, s53, 2')
        A(f'v_mov_b32 v60, s{sTMP}')
        A(f'global_load_dword v61, v60, s[14:15] sc1')
        A(f'v_readfirstlane_b32 s{sTMP}, v61')
        A(f's_cmp_lt_u32 s{sTMP}, 32')
        A(f's_cselect_b32 s{sSLOW}, 1, 0')
        if opt.get('fake') or opt.get('slow') or opt.get('wslow'): A(f's_mov_b32 s{sSLOW}, 1')
        self.srd(0, S*D*2)
        A(f's_mov_b32 s{LO32}, -1'); A(f's_mov_b32 s{LO32+1}, 0')
        A(f's_mov_b32 s{sK}, 0')
        A(f's_mov_b32 s{sSEG}, s{sG}')
        A(f's_mov_b32 s{sB}, {W_XT0}')
        self.seg_dma(OFF_YF, sSEG, sB, 3)
        L = A.newlabel('pc_loop'); nonext = A.newlabel('pc_nn')
        A.label(L)
        A(f'v_add_u32 v42, s{sB}, v19')
        A(f'v_add_u32 v43, s{sB}, v20')
        A.wait(vm=0)
        A('s_barrier')
        A(f's_add_u32 s{sD_}, s{sK}, 1')
        A(f's_cmp_lt_u32 s{sD_}, s{sN}')
        A(f's_cbranch_scc0 {nonext}')
        A(f's_add_u32 s{sD_}, s{sSEG}, 7')
        A(f's_xor_b32 s{sTMP+2}, s{sB}, {W_XT0 ^ W_XT1}')
        self.seg_dma(OFF_YF, sD_, sTMP+2, 3)
        A.label(nonext)
        AC1 = 44; YB = [64, 76, 88]
        def yread(kp):
            b = YB[kp % 3]
            return [f'ds_read_b128 {v(b,4)}, v42 offset:{kp*2048}', f'ds_read_b128 {v(b+4,4)}, v42 offset:{kp*2048+256}',
                    f'ds_read_b128 {v(b+8,4)}, v43 offset:{kp*2048}']
        for kp in range(2):
            for x in yread(kp): A(x)
        for kp in range(18):
            if kp + 2 < 18:
                for x in yread(kp+2): A(x)
            b = YB[kp % 3]
            for idx, (ti, yo) in enumerate([(0, 0), (0, 4), (1, 0), (1, 4), (2, 8)]):
                d = v(AC1+4*idx, 4)
                A(f'v_mfma_f32_16x16x32_bf16 {d}, {w1(ti,kp)}, {v(b+yo,4)}, {d if kp else 0}')
        c1 = -2.0*math.sqrt(2.0/math.pi)*math.log2(math.e); c2 = c1*0.044715
        A(f's_mov_b32 s{sTMP}, {fb(c1):#x}'); A(f's_mov_b32 s{sTMP+1}, {fb(c2):#x}')
        A(f'v_mov_b32 v100, s{sTMP}')
        for idx, ti in enumerate([0, 0, 1, 1, 2]):
            for r in range(4):
                x = AC1 + 4*idx + r; t = 64 + 4*idx + r
                A(f'v_add_f32 v{x}, v{x}, v{BI+4*ti+r}')
                A(f'v_mul_f32 v{t}, v{x}, v{x}')
                A(f'v_fma_f32 v{t}, v{t}, s{sTMP+1}, v100')
                A(f'v_mul_f32 v{t}, v{t}, v{x}')
            for r in range(4):
                t = 64 + 4*idx + r
                A(f'v_exp_f32 v{t}, v{t}')
            for r in range(4):
                t = 64 + 4*idx + r
                A(f'v_add_f32 v{t}, 1.0, v{t}')
            for r in range(4):
                t = 64 + 4*idx + r
                A(f'v_rcp_f32 v{t}, v{t}')
            for r in range(4):
                x = AC1 + 4*idx + r; t = 64 + 4*idx + r
                A(f'v_mul_f32 v{x}, v{x}, v{t}')
        for tt in range(2):
            p = 88 + 4*tt
            for t2 in range(2):
                r0 = AC1 + 4*(2*t2 + tt)
                A(f'v_cvt_pk_bf16_f32 v{p+2*t2}, v{r0}, v{r0+1}')
                A(f'v_cvt_pk_bf16_f32 v{p+2*t2+1}, v{r0+2}, v{r0+3}')
            A(f'ds_write_b128 v12, {v(p,4)} offset:{tt*4096}')
        A(f'v_cvt_pk_bf16_f32 v96, v{AC1+16}, v{AC1+17}')
        A(f'v_cvt_pk_bf16_f32 v97, v{AC1+18}, v{AC1+19}')
        A(f'ds_write_b64 v13, v[96:97]')
        A.wait(lgkm=0)
        A('s_barrier')
        A(f's_mul_i32 s{sA}, s{sG}, {WPB_GRP}')
        A(f's_and_b32 s{sTMP}, s{sK}, 1')
        A(f's_mul_i32 s{sTMP}, s{sTMP}, {WPB_SLOT}')
        A(f's_add_u32 s{sA}, s{sA}, s{sTMP}')
        A(f's_add_u32 s{sA}, s{sA}, {OFF_WPB}')
        A(f's_mul_i32 s{sC}, s{sM}, {WPB_M}')
        A(f's_mul_i32 s{sTMP}, s{sW}, 9216')
        A(f's_add_u32 s{sC}, s{sC}, s{sTMP}')
        A(f's_add_u32 s{sC}, s{sC}, s{sA}')
        self.gemm2(fr2, True, 44, 84, 104, 3, 23, 17, sC)
        self.reduce('C', 44, 14, 24, 15, 16, 21, 22, 28, 29)
        A(f's_xor_b32 s{sB}, s{sB}, {W_XT0 ^ W_XT1}')
        A(f's_add_u32 s{sSEG}, s{sSEG}, 7')
        A(f's_add_u32 s{sK}, s{sK}, 1')
        A(f's_cmp_lt_u32 s{sK}, s{sN}')
        A(f's_cbranch_scc1 {L}')
        A.wait(vm=0, lgkm=0)
        A('s_barrier')

    def passD(self):
        A = self.A; opt = self.opt
        self.vT = 2
        C = {'wL16': 3, 'wDA': 4, 'wTQ': 5, 'wDO': 9, 'wTO0': 10, 'wTO1': 11, 'wQW': 12, 'wOW': 13, 'wRL': 14, 'wROb': 15,
             'wROf': 16, 'wPS8': 17, 'wKW': 18, 'wKR': 19, 'wX0': 21, 'wX1': 22, 'wL8': 23,
             'wSEL0': 24, 'wSEL1': 25, 'wSEL2': 26, 'wSEL3': 27}
        for k in range(8): C[f'wM{k}'] = 28 + k
        self.consts(C)
        def wq(kp, off=0, cnt=4):
            n = kp*4 + off
            return f'a[{n}:{n+cnt-1}]'
        f4 = [('a', 144 + 4*k) for k in range(28)] + [('v', 224 + 4*k) for k in range(8)]
        def fr2(q, ko, off=0, cnt=4):
            kd, n = f4[q*4 + ko]; n += off
            return f'{kd}[{n}:{n+cnt-1}]'
        self.srd(16, D*8192)
        A(f's_lshl_b32 s{sA}, s{sM}, 8')
        A(f's_mul_i32 s{sTMP}, s{sW}, {16*8192}')
        A(f's_add_u32 s{sA}, s{sA}, s{sTMP}')
        A(f's_lshl_b32 s45, s{sW}, 12')
        A(f's_lshl_b32 s42, s{sW}, 10')
        blocks = []
        for b in range(9):
            dm = [(4, sA, (64*b + 4*y)*8192, y*1024, 45) for y in range(4)]
            rd = [(wq(4*b+kk, 2*rr, 2), 5, kk*4096 + rr*1024) for kk in range(4) for rr in range(2)]
            blocks.append(dict(dmas=dm, reads=rd))
        self.ring(blocks)
        self.srd(40, 4096*1152)
        A(f's_lshl_b32 s{sA}, s{sM}, 7')
        A(f's_lshl_b32 s{sTMP}, s{sW}, 2')
        A(f's_add_u32 s{sA}, s{sA}, s{sTMP}')
        A(f's_mul_i32 s{sB}, s{sA}, 1152')
        self.ring(self.gemm2_blocks(fr2, 2, False, 9, 10, sB, 42, None))
        rt_stamp(A, opt, 9, sW, off=OFF_RT)
        self.srd(96, S*D*2)
        A(f's_mov_b32 s{LO32}, -1'); A(f's_mov_b32 s{LO32+1}, 0')
        c = DH**-0.5*math.log2(math.e)
        A(f's_mov_b32 s{sCv}, {fb(c):#x}'); A(f's_mov_b32 s{sCv+1}, {fb(c):#x}')
        A(f's_and_b32 s{sTMP}, s{sW}, 1'); A(f's_lshl_b32 s{sTMP}, s{sTMP}, 10')
        A(f'v_add_u32 v36, s{sTMP}, v3')
        sFL = 48; sKV = 49; sKM = 50
        A(f's_lshl_b32 s{sFL}, s{sM}, 7'); A(f's_add_u32 s{sFL}, s{sFL}, {FL_CH}')
        A(f's_mov_b32 s{sK}, 0')
        A(f's_mov_b32 s{sSEG}, s{sG}')
        A(f's_mov_b32 s{sB}, {W_XT0}')
        self.seg_dma(OFF_XNF, sSEG, sB, 3)
        L = A.newlabel('pd_loop'); nonext = A.newlabel('pd_nn')
        A.label(L)
        A(f'v_add_u32 v8, s{sB}, v3')
        A.wait(vm=0)
        A('s_barrier')
        A(f's_add_u32 s{sD_}, s{sK}, 1')
        A(f's_cmp_lt_u32 s{sD_}, s{sN}')
        A(f's_cbranch_scc0 {nonext}')
        A(f's_add_u32 s{sD_}, s{sSEG}, 7')
        A(f's_xor_b32 s{sTMP+2}, s{sB}, {W_XT0 ^ W_XT1}')
        self.seg_dma(OFF_XNF, sD_, sTMP+2, 3)
        A.label(nonext)
        KX = 128; VX = 160
        A(f's_lshl_b32 s{sKV}, s{sSEG}, 5'); A(f's_add_u32 s{sKV}, s{sKV}, s{sM}')
        A(f's_lshl_b32 s{sKM}, s{sKV}, 11')
        A(f's_lshl_b32 s{sKV}, s{sKV}, 13')
        A(f's_add_u32 s{sTMP}, s{sKV}, {OFF_KXF}')
        for f in range(8):
            if f == 4: A(f's_add_u32 s{sTMP}, s{sTMP}, 4096')
            A(f'buffer_load_dwordx4 {v(KX+4*f,4)}, v3, {WS}, s{sTMP} offen offset:{(f%4)*1024} sc1')
        A(f's_lshr_b32 s{sTMP+1}, s{sW}, 1'); A(f's_lshl_b32 s{sTMP+1}, s{sTMP+1}, 12')
        A(f's_add_u32 s{sTMP}, s{sKV}, s{sTMP+1}'); A(f's_add_u32 s{sTMP}, s{sTMP}, {OFF_VXF}')
        for f in range(4):
            A(f'buffer_load_dwordx4 {v(VX+4*f,4)}, v3, {WS}, s{sTMP} offen offset:{f*1024} sc1')
        ACC = 64; XB = [96, 100, 104, 108]
        for kp in range(3): A(f'ds_read_b128 {v(XB[kp],4)}, v8 offset:{kp*1024}')
        for kp in range(36):
            if kp + 3 < 36: A(f'ds_read_b128 {v(XB[(kp+3)%4],4)}, v8 offset:{(kp+3)*1024}')
            A(f'v_mfma_f32_32x32x16_bf16 {v(ACC,16)}, {wq(kp)}, {v(XB[kp%4],4)}, {v(ACC,16) if kp else 0}')
        for u in range(2):
            p = 112 + 4*u
            for k in range(4): A(f'v_cvt_pk_bf16_f32 v{p+k}, v{ACC+8*u+2*k}, v{ACC+8*u+2*k+1}')
            A(f'ds_write_b128 v12, {v(p,4)} offset:{u*512}')
        rt_stamp(A, opt, 10, sW, off=OFF_RT)
        KM2 = 120; VM = 176
        FT = self.opt.get('fasttail', 1) and not opt.get('nochain')
        sKo, sVo = 54, 55
        A(f's_lshl_b32 s{sTMP+1}, s{sW}, 9')
        A(f's_add_u32 s{sKo}, s{sKM}, s{sTMP+1}'); A(f's_add_u32 s{sKo}, s{sKo}, {OFF_KMF}')
        A(f's_lshr_b32 s{sTMP+1}, s{sW}, 1'); A(f's_lshl_b32 s{sTMP+1}, s{sTMP+1}, 10')
        A(f's_add_u32 s{sVo}, s{sKM}, s{sTMP+1}'); A(f's_add_u32 s{sVo}, s{sVo}, {OFF_VMF}')
        def kvloads(raw=False):
            for t in (f'buffer_load_dwordx2 {v(KM2,2)}, v23, {WS}, s{sKo} offen sc1',
                      f'buffer_load_dwordx2 {v(VM,2)}, v23, {WS}, s{sVo} offen sc1',
                      f'buffer_load_dwordx2 {v(VM+2,2)}, v23, {WS}, s{sVo} offen offset:512 sc1'):
                (A.raw('  ' + t) if raw else A(t))
        lft = A.newlabel('pd_ft'); lj = A.newlabel('pd_j')
        if FT:
            A(f's_cmp_eq_u32 s{sSEG}, 63'); A(f's_cbranch_scc1 {lft}')
        A(f's_add_u32 s{sD_}, s{sSEG}, 1')
        if not opt.get('nochain'): self.ws_wait(sFL, sD_, sleep=1)
        kvloads()
        A.wait(vm=0)
        if FT:
            R = A.raw
            R(f'  s_branch {lj}')
            R(f'{lft}:')
            R(f'  s_mov_b32 s{sTMP}, 0')
            R(f'{lft}_p:')
            kvloads(True)
            R(f'  s_add_u32 s{sTMP}, s{sTMP}, 1')
            R(f'  s_waitcnt vmcnt(0)')
            R(f'  v_max3_u32 v60, v{KM2}, v{KM2+1}, v{VM}')
            R(f'  v_max3_u32 v61, v{VM+1}, v{VM+2}, v{VM+3}')
            R(f'  v_max_u32 v60, v60, v61')
            R(f'  v_cmp_eq_u32 vcc, -1, v60')
            R(f'  s_cbranch_vccz {lj}')
            R(f'  s_cmp_lg_u32 s{sDEAD}, 0'); R(f'  s_cbranch_scc1 {lj}')
            R(f'  s_cmp_lt_u32 s{sTMP}, 0x40000'); R(f'  s_cbranch_scc1 {lft}_p')
            R(f'  s_mov_b32 s{sDEAD}, 1')
            R(f'{lj}:')
            A.reset()
        rt_stamp(A, opt, 12, sW, off=OFF_RT)
        A(f'ds_write2_b32 v18, v{KM2}, v{KM2} offset0:0 offset1:1')
        A(f'ds_write2_b32 v18, v{KM2+1}, v{KM2+1} offset0:128 offset1:129')
        A.wait(lgkm=0)
        A('s_barrier')
        QF = 64; KMF_ = 80; S0, S1, SM = 96, 100, 104
        for k4 in range(4):
            A(f'ds_read_b128 {v(QF+4*k4,4)}, v36 offset:{W_QEX + k4*2048}')
            A(f'ds_read_b64_tr_b16 {v(KMF_+4*k4,2)}, v19 offset:{k4*1024}')
            A(f'ds_read_b64_tr_b16 {v(KMF_+4*k4+2,2)}, v19 offset:{k4*1024+256}')
        for k4 in range(4):
            c_ = lambda d: (v(d, 4) if k4 else '0')
            A(f'v_mfma_f32_16x16x32_bf16 {v(S0,4)}, {v(KX+8*k4,4)}, {v(QF+4*k4,4)}, {c_(S0)}')
            A(f'v_mfma_f32_16x16x32_bf16 {v(S1,4)}, {v(KX+8*k4+4,4)}, {v(QF+4*k4,4)}, {c_(S1)}')
            A(f'v_mfma_f32_16x16x32_bf16 {v(SM,4)}, {v(KMF_+4*k4,4)}, {v(QF+4*k4,4)}, {c_(SM)}')
        ONES = 108; PM = 112; PX = 116; MX = 61; TT = 62
        for k in range(4): A(f'v_mov_b32 v{ONES+k}, 0x3f803f80')
        A(f'v_mov_b32 v{PM+1}, 0'); A(f'v_mov_b32 v{PM+2}, 0')
        for r in range(4):
            A(f'v_add_f32 v{S0+r}, v{S0+r}, v{28+r}')
            A(f'v_add_f32 v{S1+r}, v{S1+r}, v{32+r}')
        A(f'v_max3_f32 v{MX}, v{S0}, v{S0+1}, v{S0+2}')
        A(f'v_max3_f32 v{TT}, v{S1}, v{S1+1}, v{S1+2}')
        A(f'v_max3_f32 v{MX}, v{MX}, v{S0+3}, v{S1+3}')
        A(f'v_max_f32 v{MX}, v{MX}, v{TT}')
        A(f'v_max3_f32 v{MX}, v{MX}, v{SM}, v{SM+1}')
        for sw in ('16', '32'):
            A(f'v_mov_b32 v{TT}, v{MX}')
            A(f'v_permlane{sw}_swap_b32 v{MX}, v{TT}')
            A(f'v_max_f32 v{MX}, v{MX}, v{TT}')
        A(f'v_mul_f32 v{TT}, s{sCv}, v{MX}')
        for r in (S0, S0+2, S1, S1+2, SM):
            A(f'v_pk_fma_f32 {v(r,2)}, {v(r,2)}, s[{sCv}:{sCv+1}], {v(TT,2)} op_sel_hi:[1,1,0] neg_lo:[0,0,1] neg_hi:[0,0,1]')
        for r in (S0, S0+1, S0+2, S0+3, S1, S1+1, S1+2, S1+3, SM, SM+1): A(f'v_exp_f32 v{r}, v{r}')
        cvt = lambda d, x, y: f'v_cvt_pk_bf16_f32 v{d}, v{x}, v{y}'
        A(cvt(PX, S0, S0+1)); A(cvt(PX+1, S0+2, S0+3)); A(cvt(PX+2, S1, S1+1)); A(cvt(PX+3, S1+2, S1+3))
        A(cvt(PM, SM, SM+1)); A(cvt(PM+3, SM, SM+1))
        O = 64; LL = 80
        A(f'v_mfma_f32_16x16x32_bf16 {v(LL,4)}, {v(ONES,4)}, {v(PX,4)}, 0')
        for e in range(4): A(f'v_mfma_f32_16x16x32_bf16 {v(O+4*e,4)}, {v(VX+4*e,4)}, {v(PX,4)}, 0')
        A(f'v_mfma_f32_16x16x16_bf16 {v(LL,4)}, {v(ONES,2)}, {v(PM,2)}, {v(LL,4)}')
        for e in range(4):
            A(f'v_mfma_f32_16x16x16_bf16 {v(O+4*e,4)}, {v(VM+2*(e>>1),2)}, {v(PM+2*(e&1),2)}, {v(O+4*e,4)}')
        A(f's_nop 7')
        A(f'v_rcp_f32 v{MX}, v{LL}')
        for r in range(16): A(f'v_mul_f32 v{O+r}, v{MX}, v{O+r}')
        for ko in range(2):
            p = 84 + 4*ko
            for t2 in range(2):
                r0 = O + 4*(2*ko + t2)
                A(cvt(p+2*t2, r0, r0+1)); A(cvt(p+2*t2+1, r0+2, r0+3))
            A(f'ds_write_b128 v13, {v(p,4)} offset:{ko*1024}')
        A.wait(lgkm=0)
        A('s_barrier')
        A(f's_mul_i32 s{sA}, s{sG}, {WPB_GRP}')
        A(f's_and_b32 s{sTMP}, s{sK}, 1')
        A(f's_mul_i32 s{sTMP}, s{sTMP}, {WPB_SLOT}')
        A(f's_add_u32 s{sA}, s{sA}, s{sTMP}')
        if FT:
            A(f's_cmp_eq_u32 s{sSEG}, 63'); A(f's_cselect_b32 s{sA}, {14*WPB_SLOT}, s{sA}')
        A(f's_add_u32 s{sA}, s{sA}, {OFF_WPB}')
        A(f's_mul_i32 s{sC}, s{sM}, {WPB_M}')
        A(f's_mul_i32 s{sTMP}, s{sW}, 9216')
        A(f's_add_u32 s{sC}, s{sC}, s{sTMP}')
        A(f's_add_u32 s{sC}, s{sC}, s{sA}')
        rt_stamp(A, opt, 13, sW, off=OFF_RT)
        self.gemm2(fr2, False, 64, 100, 120, 3, 23, 17, sC)
        rt_stamp(A, opt, 14, sW, off=OFF_RT)
        self.reduce('D', 64, 14, 24, 15, 16, 21, 22, None, None)
        A(f's_xor_b32 s{sB}, s{sB}, {W_XT0 ^ W_XT1}')
        A(f's_add_u32 s{sSEG}, s{sSEG}, 7')
        A(f's_add_u32 s{sK}, s{sK}, 1')
        A(f's_cmp_lt_u32 s{sK}, s{sN}')
        A(f's_cbranch_scc1 {L}')
```

```python
import sys, struct
from asmlib import *
from layout import *
import chain as CH
import worker as WK

NAME = 'parallel_sum__memory_aug_recurrent_mem_tr__mixer_channel_mlp__prompt'
KN = NAME + '_kernel'

def table_text():
    out = ['.section .rodata,"a"', '.p2align 8', 'chain_tab:']
    for tid in range(256):
        c = chain_consts(tid >> 6, tid & 63)
        vals = [c[n] for n in CH_CONSTS] + [0]*(32-len(CH_CONSTS))
        out.append('.long ' + ','.join(str(x) for x in vals))
    out += ['.p2align 8', 'worker_tab:']
    for tid in range(256):
        c = worker_consts(tid >> 6, tid & 63)
        vals = [c[n] for n in WK_CONSTS] + [0]*(48-len(WK_CONSTS))
        out.append('.long ' + ','.join(str(x) for x in vals))
    return '\n'.join(out) + '\n'

def build(opt):
    A = Asm()
    hdr = open('cdna_kernels/' + NAME + '.s.ref').read().split('; Override')[0]
    head = hdr + '; @launch grid=(256,1,1) block=(256,1,1) lds=163840\n'
    head += '.amdgcn_target "amdgcn-amd-amdhsa--gfx950"\n.text\n.globl %s\n.p2align 8\n.type %s,@function\n%s:\n' % (KN, KN, KN)
    A('s_cmp_ge_u32 s2, 256')
    A('s_cbranch_scc1 k_end')
    A('s_load_dwordx2 s[14:15], s[0:1], 104')
    A('s_load_dwordx2 s[12:13], s[0:1], 112')
    A('s_getreg_b32 s3, hwreg(HW_REG_XCC_ID, 0, 4)')
    A('s_and_b32 s3, s3, 7')
    if opt.get('fake') == 1: A('s_lshr_b32 s3, s2, 5')
    if opt.get('fake') == 2: A('s_min_u32 s3, s3, 6')
    A('s_getpc_b64 s[28:29]')
    A.raw('  s_add_u32 s28, s28, chain_tab@rel32@lo+4')
    A.raw('  s_addc_u32 s29, s29, chain_tab@rel32@hi+12')
    ch = CH.Chain(A, opt)
    A('v_lshrrev_b32 v1, 6, v0')
    A.wait(lgkm=0)
    A(f'v_readfirstlane_b32 s{CH.sW}, v1')
    A(f's_mov_b32 s{CH.sWS}, s12')
    A(f's_and_b32 s{CH.sWS+1}, s13, 0xffff')
    A(f's_mov_b32 s{CH.sWS+2}, 0x10000000')
    A(f's_mov_b32 s{CH.sWS+3}, 0x20000')
    A('s_lshl_b32 s16, s3, 2')
    A('v_mov_b32 v2, s16')
    A('v_mov_b32 v3, 1')
    A(f's_cmp_eq_u32 s{CH.sW}, 0')
    A('s_cbranch_scc0 k_noatom')
    A('s_mov_b64 exec, 1')
    A.raw('  global_atomic_add v4, v2, v3, s[14:15] sc0')
    A('s_mov_b64 exec, -1')
    A.raw('k_noatom:')
    ch.preload()
    NPF = opt.get('codepf', 0)
    if NPF:
        A.raw('  s_getpc_b64 s[40:41]')
        A.raw('k_pc_ref:')
        A.raw(f'  s_sub_u32 s40, s40, k_pc_ref-{KN}')
        A.raw('  s_subb_u32 s41, s41, 0')
        A.raw('  s_and_b32 s41, s41, 0xffff')
        A.raw(f'  s_mov_b32 s42, k_code_end-{KN}')
        A.raw('  s_mov_b32 s43, 0x20000')
        A.raw('  v_lshlrev_b32 v6, 7, v0')
        for k in range(NPF):
            A.raw(f'  s_mov_b32 s44, {k*32768}')
            A.raw(f'  buffer_load_dword v{7+k}, v6, s[40:43], s44 offen')
    rt_stamp(A, opt, 0, CH.sW, off=OFF_RT)
    def dbg_time(idx, neg=False):
        lab = A.newlabel('dt')
        A.raw(f'  s_cmp_eq_u32 s{CH.sW}, 0'); A.raw(f'  s_cbranch_scc0 {lab}')
        A.raw('  s_memrealtime s[96:97]'); A.raw('  s_waitcnt lgkmcnt(0)')
        if neg: A.raw('  s_not_b32 s96, s96')
        A.raw('  s_mov_b64 exec, 1'); A.raw(f'  v_mov_b32 v62, {idx*4}'); A.raw('  v_mov_b32 v63, s96')
        A.raw('  global_atomic_umax v62, v63, s[14:15]'); A.raw('  s_mov_b64 exec, -1'); A.raw(f'{lab}:')
    self_dbg_time = dbg_time
    if opt.get('dbgt'): dbg_time(10, neg=True)
    A(f's_cmp_eq_u32 s{CH.sW}, 0')
    A('s_cbranch_scc0 k_noticket')
    A('s_mov_b64 exec, 1')
    A('v_mov_b32 v5, 0x27f00')
    A.raw('  s_waitcnt vmcnt(%d)' % ((7 if (opt.get('rt') or opt.get('dbgt')) else 6) + NPF))
    A('ds_write_b32 v5, v4')
    A('s_mov_b64 exec, -1')
    A.raw('  s_waitcnt lgkmcnt(0)')
    A.label('k_noticket')
    A('s_barrier')
    A('v_mov_b32 v5, 0x27f00')
    A('ds_read_b32 v4, v5')
    A.wait(lgkm=0)
    A(f'v_readfirstlane_b32 s{CH.sH}, v4')
    A('s_barrier')
    if opt.get('chain_only'):
        A('s_cmp_eq_u32 s3, 0')
        A('s_cbranch_scc0 k_end')
        A(f's_cmp_ge_u32 s{CH.sH}, 32')
        A('s_cbranch_scc1 k_end')
    else:
        A(f's_cmp_lt_u32 s{CH.sH}, 32')
        A('s_cbranch_scc1 k_role')
        A(f's_cmp_eq_u32 s{CH.sW}, 0')
        A('s_cbranch_scc0 k_ov_w')
        A('s_mov_b64 exec, 1')
        A(f'v_mov_b32 v2, {DBG_OVF*4}')
        A('v_mov_b32 v3, 1')
        A('global_atomic_add v4, v2, v3, s[14:15] sc0')
        A.wait(vm=0)
        A('v_readfirstlane_b32 s20, v4')
        A('s_mov_b64 exec, -1')
        A('v_and_b32 v2, 7, v0'); A('v_lshlrev_b32 v2, 2, v2')
        A('s_mov_b32 s21, 0')
        A.label('k_ov_poll')
        A('global_load_dword v3, v2, s[14:15] sc1')
        A('s_add_u32 s21, s21, 1')
        A.wait(vm=0)
        A('s_mov_b32 s22, 0')
        for x in range(8):
            A(f'v_readlane_b32 s{40+x}, v3, {x}')
        for x in range(8):
            A(f's_add_u32 s22, s22, s{40+x}')
        A('s_cmp_ge_u32 s22, 256')
        A('s_cbranch_scc1 k_ov_done')
        A('s_sleep 4')
        A('s_cmp_lt_u32 s21, 0x40000')
        A('s_cbranch_scc1 k_ov_poll')
        A.label('k_ov_done')
        A('s_mov_b32 s23, 0'); A('s_mov_b32 s24, 0')
        for x in range(7, -1, -1): pass
        A('s_mov_b32 s25, 0')
        for x in range(8):
            lab = A.newlabel('ovx')
            A(f's_cmp_lg_u32 s25, 0'); A(f's_cbranch_scc1 {lab}')
            A(f's_min_u32 s26, s{40+x}, 32'); A('s_sub_u32 s27, 32, s26')
            A('s_cmp_lt_u32 s20, s27')
            l2 = A.newlabel('ovy')
            A(f's_cbranch_scc0 {l2}')
            A(f's_mov_b32 s23, {x}'); A('s_add_u32 s24, s26, s20'); A('s_mov_b32 s25, 1')
            A(f's_branch {lab}')
            A.label(l2)
            A('s_sub_u32 s20, s20, s27')
            A.label(lab)
        A('s_lshl_b32 s23, s23, 8'); A('s_or_b32 s23, s23, s24')
        A('v_mov_b32 v4, s23'); A('v_mov_b32 v5, 0x27f00')
        A('ds_write_b32 v5, v4')
        A.wait(lgkm=0)
        A.label('k_ov_w')
        A('s_barrier')
        A('v_mov_b32 v5, 0x27f00')
        A('ds_read_b32 v4, v5')
        A.wait(lgkm=0)
        A('v_readfirstlane_b32 s20, v4')
        A('s_barrier')
        A('s_lshr_b32 s3, s20, 8')
        A(f's_and_b32 s{CH.sH}, s20, 31')
        A.label('k_role')
        if opt.get('hxor'): A(f's_xor_b32 s{CH.sH}, s{CH.sH}, {opt["hxor"]}')
        A('s_cmp_eq_u32 s3, 0')
        A('s_cbranch_scc0 k_worker')
    if opt.get('nochain'):
        ch.init(short=True)
    else:
        rt_stamp(A, opt, 1, CH.sW, off=OFF_RT)
        ch.init()
        rt_stamp(A, opt, 3, CH.sW, off=OFF_RT)
        if opt.get('dbgt'):
            dbg_time(11)
            A.raw('  s_memtime s[84:85]'); A.raw('  s_waitcnt lgkmcnt(0)')
        if opt.get('rt'):
            A.raw(f'  s_lshl_b32 s95, s2, 6'); A.raw(f'  s_add_u32 s95, s95, {OFF_RT + 6*4}')
            A.raw(f'  v_mov_b32 v62, s{CH.sH}'); A.raw('  v_mov_b32 v63, 0')
            A.raw('  buffer_store_dword v62, v63, s[4:7], s95 offen')
        if opt.get('chain_only'):
            ch.loop(False, 'f')
        else:
            A(f's_cmp_lg_u32 s{CH.sSLOW}, 0')
            A('s_cbranch_scc1 ch_slow_entry')
            ch.loop(False, 'f')
            A('s_branch ch_done')
            A.label('ch_slow_entry')
            ch.loop(True, 's')
            A.label('ch_done')
        rt_stamp(A, opt, 4, CH.sW, off=OFF_RT)
        if opt.get('dbgt'):
            dbg_time(12)
            A.raw('  s_memtime s[86:87]'); A.raw('  s_waitcnt lgkmcnt(0)'); A.raw('  s_sub_u32 s86, s86, s84')
            A.raw('  s_mov_b64 exec, 1'); A.raw('  v_mov_b32 v62, 56'); A.raw('  v_mov_b32 v63, s86')
            A.raw('  global_atomic_umax v62, v63, s[14:15]'); A.raw('  s_mov_b64 exec, -1')
    A.wait(vm=0, lgkm=0)
    if opt.get('ts') or opt.get('tt'):
        A.raw('  s_memtime s[86:87]')
        A('s_waitcnt lgkmcnt(0)')
        A(f's_sub_u32 s{CH.sTS+19}, s86, s84')
        A(f's_lshl_b32 s27, s{CH.sH}, 2')
        A(f's_add_u32 s27, s27, s{CH.sW}')
        A(f's_lshl_b32 s27, s27, 7')
        A(f's_add_u32 s27, s27, {OFF_FLAG+0x8000}')
        A(f's_mov_b32 s{CH.sTS+18}, s{CH.sDEAD}')
        A('s_mov_b64 exec, 1')
        A('v_mov_b32 v2, 0')
        for k in range(20):
            A(f'v_mov_b32 v3, s{CH.sTS+k}')
            A(f'buffer_store_dword v3, v2, s[{CH.sWS}:{CH.sWS+3}], s27 offen offset:{4*k}')
        for k in range(8):
            A(f'v_mov_b32 v3, s{88+k}')
            A(f'buffer_store_dword v3, v2, s[{CH.sWS}:{CH.sWS+3}], s27 offen offset:{4*(20+k)}')
        A.wait(vm=0)
    if not opt.get('chain_only'):
        A('s_branch k_end')
        A.label('k_worker')
        A(f's_sub_u32 s{WK.sG}, s3, 1')
        A(f's_cmp_eq_u32 s{WK.sG}, 0')
        A(f's_cselect_b32 s{WK.sN}, 10, 9')
        A(f's_mov_b32 s{WK.sSLOW}, 1')
        A(f's_mov_b32 s53, s3')
        A(f's_mov_b32 s{WK.sDEAD}, 0')
        A('s_getpc_b64 s[30:31]')
        A.raw('  s_add_u32 s30, s30, worker_tab@rel32@lo+4')
        A.raw('  s_addc_u32 s31, s31, worker_tab@rel32@hi+12')
        wk = WK.Worker(A, opt)
        rt_stamp(A, opt, 1, CH.sW, off=OFF_RT)
        if opt.get('warmw', 0): wk.warm_weights()
        wk.layernorm()
        rt_stamp(A, opt, 2, CH.sW, off=OFF_RT)
        if opt.get('passes', 15) & 1: wk.passA()
        rt_stamp(A, opt, 5, CH.sW, off=OFF_RT)
        if opt.get('passes', 15) & 2: wk.passC()
        rt_stamp(A, opt, 8, CH.sW, off=OFF_RT)
        if opt.get('passes', 15) & 4: wk.passD()
        rt_stamp(A, opt, 11, CH.sW, off=OFF_RT)
        if opt.get('dbgt'): dbg_time(13)
        A.wait(vm=0, lgkm=0)
    A.label('k_end')
    A('s_endpgm')
    A.raw('k_code_end:')
    tail = f'''
.section .rodata,"a"
.p2align 6
.amdhsa_kernel {KN}
  .amdhsa_next_free_vgpr 512
  .amdhsa_next_free_sgpr 102
  .amdhsa_accum_offset 256
  .amdhsa_group_segment_fixed_size 0
  .amdhsa_kernarg_size 120
  .amdhsa_user_sgpr_count 2
  .amdhsa_user_sgpr_kernarg_segment_ptr 1
  .amdhsa_system_sgpr_workgroup_id_x 1
.end_amdhsa_kernel
'''
    print('nops', A.nops, 'auto waits', A.nwaits, 'lines', len(A.out), file=sys.stderr)
    return head + A.text() + tail + table_text()

if __name__ == '__main__':
    opt = {}
    for a_ in sys.argv[2:]:
        k, _, val = a_.partition('=')
        opt[k] = int(val) if val else 1
    open(sys.argv[1], 'w').write(build(opt))
```

```python
import sys, struct
from asmlib import *
from layout import *
import chain as CH
import worker as WK

NAME = 'parallel_sum__memory_aug_recurrent_mem_tr__mixer_channel_mlp__prompt'
KN = NAME + '_kernel'

def table_text():
    out = ['.section .rodata,"a"', '.p2align 8', 'chain_tab:']
    for tid in range(256):
        c = chain_consts(tid >> 6, tid & 63)
        vals = [c[n] for n in CH_CONSTS] + [0]*(32-len(CH_CONSTS))
        out.append('.long ' + ','.join(str(x) for x in vals))
    out += ['.p2align 8', 'worker_tab:']
    for tid in range(256):
        c = worker_consts(tid >> 6, tid & 63)
        vals = [c[n] for n in WK_CONSTS] + [0]*(48-len(WK_CONSTS))
        out.append('.long ' + ','.join(str(x) for x in vals))
    return '\n'.join(out) + '\n'

def build(opt):
    A = Asm()
    hdr = open('cdna_kernels/' + NAME + '.s.ref').read().split('; Override')[0]
    head = hdr + '; @launch grid=(256,1,1) block=(256,1,1) lds=163840\n'
    head += '.amdgcn_target "amdgcn-amd-amdhsa--gfx950"\n.text\n.globl %s\n.p2align 8\n.type %s,@function\n%s:\n' % (KN, KN, KN)
    A('s_cmp_ge_u32 s2, 256')
    A('s_cbranch_scc1 k_end')
    A('s_load_dwordx2 s[14:15], s[0:1], 104')
    A('s_load_dwordx2 s[12:13], s[0:1], 112')
    A('s_getreg_b32 s3, hwreg(HW_REG_XCC_ID, 0, 4)')
    A('s_and_b32 s3, s3, 7')
    if opt.get('fake') == 1: A('s_lshr_b32 s3, s2, 5')
    if opt.get('fake') == 2: A('s_min_u32 s3, s3, 6')
    A('s_getpc_b64 s[28:29]')
    A.raw('  s_add_u32 s28, s28, chain_tab@rel32@lo+4')
    A.raw('  s_addc_u32 s29, s29, chain_tab@rel32@hi+12')
    ch = CH.Chain(A, opt)
    A('v_lshrrev_b32 v1, 6, v0')
    A.wait(lgkm=0)
    A(f'v_readfirstlane_b32 s{CH.sW}, v1')
    A(f's_mov_b32 s{CH.sWS}, s12')
    A(f's_and_b32 s{CH.sWS+1}, s13, 0xffff')
    A(f's_mov_b32 s{CH.sWS+2}, 0x10000000')
    A(f's_mov_b32 s{CH.sWS+3}, 0x20000')
    A('s_lshl_b32 s16, s3, 2')
    A('v_mov_b32 v2, s16')
    A('v_mov_b32 v3, 1')
    A(f's_cmp_eq_u32 s{CH.sW}, 0')
    A('s_cbranch_scc0 k_noatom')
    A('s_mov_b64 exec, 1')
    A.raw('  global_atomic_add v4, v2, v3, s[14:15] sc0')
    A('s_mov_b64 exec, -1')
    A.raw('k_noatom:')
    ch.preload()
    NPF = opt.get('codepf', 0)
    if NPF:
        A.raw('  s_getpc_b64 s[40:41]')
        A.raw('k_pc_ref:')
        A.raw(f'  s_sub_u32 s40, s40, k_pc_ref-{KN}')
        A.raw('  s_subb_u32 s41, s41, 0')
        A.raw('  s_and_b32 s41, s41, 0xffff')
        A.raw(f'  s_mov_b32 s42, k_code_end-{KN}')
        A.raw('  s_mov_b32 s43, 0x20000')
        A.raw('  v_lshlrev_b32 v6, 7, v0')
        for k in range(NPF):
            A.raw(f'  s_mov_b32 s44, {k*32768}')
            A.raw(f'  buffer_load_dword v{7+k}, v6, s[40:43], s44 offen')
    rt_stamp(A, opt, 0, CH.sW, off=OFF_RT)
    A(f's_cmp_eq_u32 s{CH.sW}, 0')
    A('s_cbranch_scc0 k_noticket')
    A('s_mov_b64 exec, 1')
    A('v_mov_b32 v5, 0x27f00')
    A.raw('  s_waitcnt vmcnt(%d)' % ((7 if opt.get('rt') else 6) + NPF))
    A('ds_write_b32 v5, v4')
    A('s_mov_b64 exec, -1')
    A.raw('  s_waitcnt lgkmcnt(0)')
    A.label('k_noticket')
    A('s_barrier')
    A('v_mov_b32 v5, 0x27f00')
    A('ds_read_b32 v4, v5')
    A.wait(lgkm=0)
    A(f'v_readfirstlane_b32 s{CH.sH}, v4')
    A('s_barrier')
    if opt.get('chain_only'):
        A('s_cmp_eq_u32 s3, 0')
        A('s_cbranch_scc0 k_end')
        A(f's_cmp_ge_u32 s{CH.sH}, 32')
        A('s_cbranch_scc1 k_end')
    else:
        A(f's_cmp_lt_u32 s{CH.sH}, 32')
        A('s_cbranch_scc1 k_role')
        A(f's_cmp_eq_u32 s{CH.sW}, 0')
        A('s_cbranch_scc0 k_ov_w')
        A('s_mov_b64 exec, 1')
        A(f'v_mov_b32 v2, {DBG_OVF*4}')
        A('v_mov_b32 v3, 1')
        A('global_atomic_add v4, v2, v3, s[14:15] sc0')
        A.wait(vm=0)
        A('v_readfirstlane_b32 s20, v4')
        A('s_mov_b64 exec, -1')
        A('v_and_b32 v2, 7, v0'); A('v_lshlrev_b32 v2, 2, v2')
        A('s_mov_b32 s21, 0')
        A.label('k_ov_poll')
        A('global_load_dword v3, v2, s[14:15] sc1')
        A('s_add_u32 s21, s21, 1')
        A.wait(vm=0)
        A('s_mov_b32 s22, 0')
        for x in range(8):
            A(f'v_readlane_b32 s{40+x}, v3, {x}')
        for x in range(8):
            A(f's_add_u32 s22, s22, s{40+x}')
        A('s_cmp_ge_u32 s22, 256')
        A('s_cbranch_scc1 k_ov_done')
        A('s_sleep 4')
        A('s_cmp_lt_u32 s21, 0x40000')
        A('s_cbranch_scc1 k_ov_poll')
        A.label('k_ov_done')
        A('s_mov_b32 s23, 0'); A('s_mov_b32 s24, 0')
        for x in range(7, -1, -1): pass
        A('s_mov_b32 s25, 0')
        for x in range(8):
            lab = A.newlabel('ovx')
            A(f's_cmp_lg_u32 s25, 0'); A(f's_cbranch_scc1 {lab}')
            A(f's_min_u32 s26, s{40+x}, 32'); A('s_sub_u32 s27, 32, s26')
            A('s_cmp_lt_u32 s20, s27')
            l2 = A.newlabel('ovy')
            A(f's_cbranch_scc0 {l2}')
            A(f's_mov_b32 s23, {x}'); A('s_add_u32 s24, s26, s20'); A('s_mov_b32 s25, 1')
            A(f's_branch {lab}')
            A.label(l2)
            A('s_sub_u32 s20, s20, s27')
            A.label(lab)
        A('s_lshl_b32 s23, s23, 8'); A('s_or_b32 s23, s23, s24')
        A('v_mov_b32 v4, s23'); A('v_mov_b32 v5, 0x27f00')
        A('ds_write_b32 v5, v4')
        A.wait(lgkm=0)
        A.label('k_ov_w')
        A('s_barrier')
        A('v_mov_b32 v5, 0x27f00')
        A('ds_read_b32 v4, v5')
        A.wait(lgkm=0)
        A('v_readfirstlane_b32 s20, v4')
        A('s_barrier')
        A('s_lshr_b32 s3, s20, 8')
        A(f's_and_b32 s{CH.sH}, s20, 31')
        A.label('k_role')
        if opt.get('hxor'): A(f's_xor_b32 s{CH.sH}, s{CH.sH}, {opt["hxor"]}')
        A('s_cmp_eq_u32 s3, 0')
        A('s_cbranch_scc0 k_worker')
    if opt.get('nochain'):
        ch.init(short=True)
    else:
        rt_stamp(A, opt, 1, CH.sW, off=OFF_RT)
        ch.init()
        rt_stamp(A, opt, 3, CH.sW, off=OFF_RT)
        if opt.get('rt'):
            A.raw(f'  s_lshl_b32 s95, s2, 6'); A.raw(f'  s_add_u32 s95, s95, {OFF_RT + 6*4}')
            A.raw(f'  v_mov_b32 v62, s{CH.sH}'); A.raw('  v_mov_b32 v63, 0')
            A.raw('  buffer_store_dword v62, v63, s[4:7], s95 offen')
        if opt.get('chain_only'):
            ch.loop(False, 'f')
        else:
            A(f's_cmp_lg_u32 s{CH.sSLOW}, 0')
            A('s_cbranch_scc1 ch_slow_entry')
            ch.loop(False, 'f')
            A('s_branch ch_done')
            A.label('ch_slow_entry')
            ch.loop(True, 's')
            A.label('ch_done')
        rt_stamp(A, opt, 4, CH.sW, off=OFF_RT)
    A.wait(vm=0, lgkm=0)
    if opt.get('ts') or opt.get('tt'):
        A.raw('  s_memtime s[86:87]')
        A('s_waitcnt lgkmcnt(0)')
        A(f's_sub_u32 s{CH.sTS+19}, s86, s84')
        A(f's_lshl_b32 s27, s{CH.sH}, 2')
        A(f's_add_u32 s27, s27, s{CH.sW}')
        A(f's_lshl_b32 s27, s27, 7')
        A(f's_add_u32 s27, s27, {OFF_FLAG+0x8000}')
        A(f's_mov_b32 s{CH.sTS+18}, s{CH.sDEAD}')
        A('s_mov_b64 exec, 1')
        A('v_mov_b32 v2, 0')
        for k in range(20):
            A(f'v_mov_b32 v3, s{CH.sTS+k}')
            A(f'buffer_store_dword v3, v2, s[{CH.sWS}:{CH.sWS+3}], s27 offen offset:{4*k}')
        for k in range(8):
            A(f'v_mov_b32 v3, s{88+k}')
            A(f'buffer_store_dword v3, v2, s[{CH.sWS}:{CH.sWS+3}], s27 offen offset:{4*(20+k)}')
        A.wait(vm=0)
    if not opt.get('chain_only'):
        A('s_branch k_end')
        A.label('k_worker')
        A(f's_sub_u32 s{WK.sG}, s3, 1')
        A(f's_cmp_eq_u32 s{WK.sG}, 0')
        A(f's_cselect_b32 s{WK.sN}, 10, 9')
        A(f's_mov_b32 s{WK.sSLOW}, 1')
        A(f's_mov_b32 s53, s3')
        A(f's_mov_b32 s{WK.sDEAD}, 0')
        A('s_getpc_b64 s[30:31]')
        A.raw('  s_add_u32 s30, s30, worker_tab@rel32@lo+4')
        A.raw('  s_addc_u32 s31, s31, worker_tab@rel32@hi+12')
        wk = WK.Worker(A, opt)
        rt_stamp(A, opt, 1, CH.sW, off=OFF_RT)
        if opt.get('warmw', 0): wk.warm_weights()
        wk.layernorm()
        rt_stamp(A, opt, 2, CH.sW, off=OFF_RT)
        if opt.get('passes', 15) & 1: wk.passA()
        rt_stamp(A, opt, 5, CH.sW, off=OFF_RT)
        if opt.get('passes', 15) & 2: wk.passC()
        rt_stamp(A, opt, 8, CH.sW, off=OFF_RT)
        if opt.get('passes', 15) & 4: wk.passD()
        rt_stamp(A, opt, 11, CH.sW, off=OFF_RT)
        A.wait(vm=0, lgkm=0)
    A.label('k_end')
    A('s_endpgm')
    A.raw('k_code_end:')
    tail = f'''
.section .rodata,"a"
.p2align 6
.amdhsa_kernel {KN}
  .amdhsa_next_free_vgpr 512
  .amdhsa_next_free_sgpr 102
  .amdhsa_accum_offset 256
  .amdhsa_group_segment_fixed_size 0
  .amdhsa_kernarg_size 120
  .amdhsa_user_sgpr_count 2
  .amdhsa_user_sgpr_kernarg_segment_ptr 1
  .amdhsa_system_sgpr_workgroup_id_x 1
.end_amdhsa_kernel
'''
    print('nops', A.nops, 'auto waits', A.nwaits, 'lines', len(A.out), file=sys.stderr)
    return head + A.text() + tail + table_text()

if __name__ == '__main__':
    opt = {}
    for a_ in sys.argv[2:]:
        k, _, val = a_.partition('=')
        opt[k] = int(val) if val else 1
    open(sys.argv[1], 'w').write(build(opt))
```

```python
from asmlib import *
from layout import *
import math, struct
def fb(x): return struct.unpack('<I', struct.pack('<f', x))[0]

sWS = 4; sT = 8
sM, sW, sG, sK, sSEG, sN, sSLOW = 16, 17, 18, 19, 20, 21, 22
sTMP = 23
sTAB = 30
sP0 = 32
sA, sB, sC, sD_ = 36, 37, 38, 39
sDEAD = 44
sCv = 40
WS = f's[{sWS}:{sWS+3}]'
TS = f's[{sT}:{sT+3}]'
LO32 = 46
CIDX = {n: k for k, n in enumerate(WK_CONSTS)}

class Worker:
    def __init__(self, A, opt):
        self.A = A; self.opt = opt
    def consts(self, mp):
        A = self.A
        A('v_mul_u32_u24 v255, 192, v0') if False else None
        A(f'v_mov_b32 v{self.vT}, 192')
        A(f'v_mul_u32_u24 v{self.vT}, v{self.vT}, v0')
        for n, r in mp.items():
            A(f'global_load_dword v{r}, v{self.vT}, s[{sTAB}:{sTAB+1}] offset:{4*CIDX[n]}')
        A.wait(vm=0)
    def srd(self, kern_off, size):
        A = self.A
        A(f's_load_dwordx2 s[{sP0}:{sP0+1}], s[0:1], {kern_off}')
        A.wait(lgkm=0)
        A(f's_mov_b32 s{sT}, s{sP0}')
        A(f's_and_b32 s{sT+1}, s{sP0+1}, 0xffff')
        A(f's_mov_b32 s{sT+2}, {size}')
        A(f's_mov_b32 s{sT+3}, 0x20000')
    def dbg_add(self, idx_s=None, idx_c=0):
        A = self.A
        lab = A.newlabel('wda')
        A(f's_cmp_eq_u32 s{sW}, 0')
        A(f's_cbranch_scc0 {lab}')
        A(f's_add_u32 s{sTMP}, s{idx_s}, {idx_c}') if idx_s is not None else A(f's_mov_b32 s{sTMP}, {idx_c}')
        A(f's_lshl_b32 s{sTMP}, s{sTMP}, 2')
        A(f's_mov_b64 exec, 1')
        A(f'v_mov_b32 v60, s{sTMP}')
        A(f'v_mov_b32 v61, 1')
        A(f'global_atomic_add v60, v61, s[14:15]')
        A(f's_mov_b64 exec, -1')
        A.label(lab)
    def dbg_wait(self, idx_s, idx_c, val_s=None, val_c=0, sleep=2, barrier=True):
        A = self.A
        lab = A.newlabel('wdw'); done = A.newlabel('wdd'); skip = A.newlabel('wds')
        A(f's_cmp_eq_u32 s{sW}, 0')
        A(f's_cbranch_scc0 {skip}')
        if idx_s is not None: A(f's_add_u32 s{sTMP}, s{idx_s}, {idx_c}')
        else: A(f's_mov_b32 s{sTMP}, {idx_c}')
        A(f's_lshl_b32 s{sTMP}, s{sTMP}, 2')
        A(f'v_mov_b32 v60, s{sTMP}')
        if val_s is not None: A(f's_mov_b32 s{sTMP+2}, s{val_s}')
        else: A(f's_mov_b32 s{sTMP+2}, {val_c}')
        A(f's_mov_b32 s{sTMP}, 0')
        A.label(lab)
        A(f'global_load_dword v61, v60, s[14:15] sc1')
        A(f's_add_u32 s{sTMP}, s{sTMP}, 1')
        A.wait(vm=0)
        A(f'v_readfirstlane_b32 s{sTMP+1}, v61')
        A(f's_cmp_ge_u32 s{sTMP+1}, s{sTMP+2}')
        A(f's_cbranch_scc1 {done}')
        A(f's_sleep {sleep}')
        A(f's_cmp_lg_u32 s{sDEAD}, 0')
        A(f's_cbranch_scc1 {done}')
        A(f's_cmp_lt_u32 s{sTMP}, 0x40000')
        A(f's_cbranch_scc1 {lab}')
        A(f's_mov_b32 s{sDEAD}, 1')
        A.label(done)
        A.raw(f'{skip}:')
        A.reset()
        if barrier: A('s_barrier')
    def ws_wait(self, off_s, val_s, sleep=2):
        A = self.A
        lab = A.newlabel('www'); done = A.newlabel('wwd'); skip = A.newlabel('wws')
        A(f's_cmp_eq_u32 s{sW}, 0')
        A(f's_cbranch_scc0 {skip}')
        A(f'v_mov_b32 v60, 0')
        A(f's_mov_b32 s{sTMP}, 0')
        A.label(lab)
        A(f'buffer_load_dword v61, v60, {WS}, s{off_s} offen sc1')
        A(f's_add_u32 s{sTMP}, s{sTMP}, 1')
        A.wait(vm=0)
        A(f'v_readfirstlane_b32 s{sTMP+1}, v61')
        A(f's_cmp_ge_u32 s{sTMP+1}, s{val_s}')
        A(f's_cbranch_scc1 {done}')
        near = A.newlabel('wwn'); cont = A.newlabel('wwc')
        A(f's_add_u32 s{sTMP+1}, s{sTMP+1}, 1')
        A(f's_cmp_ge_u32 s{sTMP+1}, s{val_s}')
        A(f's_cbranch_scc1 {near}')
        A(f's_sleep {self.opt.get("farsleep", 24)}')
        A(f's_branch {cont}')
        A.raw(f'{near}:')
        A(f's_sleep {self.opt.get("nearsleep", 3)}')
        A.raw(f'{cont}:')
        A(f's_cmp_lg_u32 s{sDEAD}, 0')
        A(f's_cbranch_scc1 {done}')
        A(f's_cmp_lt_u32 s{sTMP}, 0x40000')
        A(f's_cbranch_scc1 {lab}')
        A(f's_mov_b32 s{sDEAD}, 1')
        A.label(done)
        A.raw(f'{skip}:')
        A.reset()
        A('s_barrier')
    def group_sync(self, ps):
        A = self.A
        skip = A.newlabel('gs'); lab = A.newlabel('gsp'); done = A.newlabel('gsd')
        A(f's_cmp_eq_u32 s{sW}, 0')
        A(f's_cbranch_scc0 {skip}')
        A(f's_lshl_b32 s{sTMP}, s{sG}, 8')
        A(f's_add_u32 s{sTMP}, s{sTMP}, {FL_W + ps*128}')
        A(f's_add_u32 s{sTMP+2}, s{sK}, 1')
        A(f's_lshl_b32 s{sTMP+1}, s{sM}, 2')
        A(f's_mov_b64 exec, 1')
        A(f'v_mov_b32 v60, s{sTMP+1}')
        A(f'v_mov_b32 v61, s{sTMP+2}')
        self.mstore(f'buffer_store_dword v61, v60, {WS}, s{sTMP} offen')
        A(f's_mov_b64 exec, -1')
        A(f'v_mbcnt_lo_u32_b32 v60, -1, 0')
        A(f'v_mbcnt_hi_u32_b32 v60, -1, v60')
        A(f'v_and_b32 v60, 31, v60')
        A(f'v_lshlrev_b32 v60, 2, v60')
        A(f's_mov_b32 s{sTMP+1}, 0')
        A.label(lab)
        A(f'buffer_load_dword v61, v60, {WS}, s{sTMP} offen sc1')
        A(f's_add_u32 s{sTMP+1}, s{sTMP+1}, 1')
        A.wait(vm=0)
        A(f'v_cmp_gt_u32 vcc, s{sTMP+2}, v61')
        A(f's_cbranch_vccz {done}')
        A(f's_cmp_lg_u32 s{sDEAD}, 0')
        A(f's_cbranch_scc1 {done}')
        A(f's_cmp_lt_u32 s{sTMP+1}, 0x100000')
        A(f's_cbranch_scc1 {lab}')
        A(f's_mov_b32 s{sDEAD}, 1')
        A.label(done)
        A.raw(f'{skip}:')
        A.reset()
        A('s_barrier')
    def warm_weights(self):
        A = self.A
        A(f's_load_dwordx2 s[32:33], s[0:1], 16')
        A(f's_load_dwordx2 s[34:35], s[0:1], 32')
        A(f's_load_dwordx2 s[36:37], s[0:1], 40')
        A(f's_load_dwordx2 s[38:39], s[0:1], 24')
        A(f's_lshl_b32 s{sTMP}, s{sG}, 5'); A(f's_add_u32 s{sTMP}, s{sTMP}, s{sM}')
        A(f's_lshl_b32 s{sTMP}, s{sTMP}, 15')
        A(f'v_lshlrev_b32 v10, 7, v0')
        A.wait(lgkm=0)
        sel = {1: (32, 34, 36, 38), 2: (36,), 3: (36, 34)}[self.opt.get('warmw', 1)]
        for k, p in enumerate(sel):
            A(f's_mov_b32 s{sT}, s{p}'); A(f's_and_b32 s{sT+1}, s{p+1}, 0xffff')
            A(f's_mov_b32 s{sT+2}, {D*8192}'); A(f's_mov_b32 s{sT+3}, 0x20000')
            A.raw(f'  buffer_load_dword v{11+k}, v10, {TS}, s{sTMP} offen')
    def layernorm(self):
        A = self.A
        self.vT = 2
        self.consts({'wLNG': 3, 'wLNS': 4})
        A(f's_lshl_b32 s{sTMP}, s{sG}, 8')
        A(f's_lshl_b32 s{sTMP+1}, s{sM}, 2')
        A(f's_add_u32 s{sTMP}, s{sTMP}, s{sTMP+1}')
        A(f's_add_u32 s{sTMP}, s{sTMP}, {FL_W}')
        A(f'v_mov_b32 v60, 0')
        A(f'buffer_store_dword v60, v60, {WS}, s{sTMP} offen sc1')
        A(f'buffer_store_dword v60, v60, {WS}, s{sTMP} offen offset:128 sc1')
        if self.opt.get('fasttail', 1):
            lab = A.newlabel('ftc')
            A(f's_cmp_eq_u32 s{sG}, 0'); A(f's_cbranch_scc0 {lab}')
            A(f'v_mov_b64 v[8:9], -1'); A(f'v_mov_b64 v[10:11], -1')
            A(f'v_lshlrev_b32 v12, 3, v0')
            A(f's_add_u32 s{sTMP}, s{sM}, {63*32}'); A(f's_lshl_b32 s{sTMP}, s{sTMP}, 11')
            A(f's_add_u32 s{sTMP+1}, s{sTMP}, {OFF_KMF}')
            A(f'buffer_store_dwordx2 v[8:9], v12, {WS}, s{sTMP+1} offen sc1')
            A(f's_add_u32 s{sTMP+1}, s{sTMP}, {OFF_VMF}')
            A(f'buffer_store_dwordx2 v[8:9], v12, {WS}, s{sTMP+1} offen sc1')
            A(f'v_lshlrev_b32 v12, 4, v0')
            A(f's_mul_i32 s{sTMP}, s{sM}, {WPB_M}'); A(f's_add_u32 s{sTMP}, s{sTMP}, {OFF_WPB + 14*WPB_SLOT}')
            for k in range(9):
                A(f'buffer_store_dwordx4 v[8:11], v12, {WS}, s{sTMP} offen sc1')
                if k < 8: A(f's_add_u32 s{sTMP}, s{sTMP}, 4096')
            A.raw(f'{lab}:')
        done = A.newlabel('lnd')
        A(f's_lshl_b32 s{sTMP}, s{sW}, 5')
        A(f's_add_u32 s{sTMP}, s{sTMP}, s{sM}')
        A(f's_lshl_b32 s{sTMP+1}, s{sN}, 2')
        A(f's_cmp_lt_u32 s{sTMP}, s{sTMP+1}')
        A(f's_cbranch_scc0 {done}')
        A(f's_lshr_b32 s{sTMP+1}, s{sTMP}, 2')
        A(f's_mul_i32 s{sTMP+1}, s{sTMP+1}, 7')
        A(f's_add_u32 s{sTMP+1}, s{sTMP+1}, s{sG}')
        A(f's_and_b32 s{sTMP+2}, s{sTMP}, 3')
        A(f's_lshl_b32 s{sTMP+3}, s{sTMP+1}, 2')
        A(f's_add_u32 s{sTMP+3}, s{sTMP+3}, s{sTMP+2}')
        A(f's_mul_i32 s{sA}, s{sTMP+3}, {8*1152}')
        A(f's_mul_i32 s{sB}, s{sTMP+1}, {SEGB}')
        A(f's_lshl_b32 s{sTMP+2}, s{sTMP+2}, 7')
        A(f's_add_u32 s{sB}, s{sB}, s{sTMP+2}')
        self.srd(0, S*D*2)
        P = 64; F_ = 100
        for n in range(9):
            A(f'buffer_load_dwordx4 {v(P+4*n,4)}, v3, {TS}, s{sA} offen offset:{128*n}')
        A(f's_mov_b32 s{sC}, 0xffff0000')
        for which in range(2):
            for d in range(36):
                A(f'v_lshlrev_b32 v{F_+2*d}, 16, v{P+d}')
                A(f'v_and_b32 v{F_+2*d+1}, s{sC}, v{P+d}')
            def red8(r):
                A(f'v_add_f32_dpp v{r}, v{r}, v{r} quad_perm:[1,0,3,2] row_mask:0xf bank_mask:0xf')
                A(f'v_add_f32_dpp v{r}, v{r}, v{r} quad_perm:[2,3,0,1] row_mask:0xf bank_mask:0xf')
                A(f'v_add_f32_dpp v{r}, v{r}, v{r} row_half_mirror row_mask:0xf bank_mask:0xf')
            acc = [10, 11, 12, 13]
            for k in range(4): A(f'v_mov_b32 v{acc[k]}, v{F_+k}')
            for e in range(4, 72): A(f'v_add_f32 v{acc[e%4]}, v{acc[e%4]}, v{F_+e}')
            A('v_add_f32 v10, v10, v11'); A('v_add_f32 v12, v12, v13'); A('v_add_f32 v10, v10, v12')
            red8(10)
            A(f'v_mul_f32 v10, {fb(1.0/576):#x}, v10')
            for k in range(4): A(f'v_mov_b32 v{11+k}, 0')
            for e in range(72):
                A(f'v_sub_f32 v15, v{F_+e}, v10')
                A(f'v_fmac_f32 v{11+e%4}, v15, v15')
            A('v_add_f32 v11, v11, v12'); A('v_add_f32 v13, v13, v14'); A('v_add_f32 v11, v11, v13')
            red8(11)
            A(f'v_mul_f32 v11, {fb(1.0/576):#x}, v11')
            A('v_cvt_pk_bf16_f32 v10, v10, v11')
            A(f'v_and_b32 v11, s{sC}, v10')
            A('v_lshlrev_b32 v10, 16, v10')
            A(f'v_add_f32 v11, {fb(1e-5):#x}, v11')
            A('v_cvt_pk_bf16_f32 v11, v11, v11')
            A(f'v_and_b32 v11, s{sC}, v11')
            A('v_sqrt_f32 v11, v11')
            A('v_cvt_pk_bf16_f32 v11, v11, v11')
            A(f'v_and_b32 v11, s{sC}, v11')
            A('v_rcp_f32 v11, v11')
            for d in range(36):
                a0, a1 = F_+2*d, F_+2*d+1
                A(f'v_sub_f32 v{a0}, v{a0}, v10')
                A(f'v_sub_f32 v{a1}, v{a1}, v10')
                A(f'v_cvt_pk_bf16_f32 v15, v{a0}, v{a1}')
                A(f'v_lshlrev_b32 v{a0}, 16, v15')
                A(f'v_and_b32 v{a1}, s{sC}, v15')
                A(f'v_mul_f32 v{a0}, v11, v{a0}')
                A(f'v_mul_f32 v{a1}, v11, v{a1}')
                A(f'v_cvt_pk_bf16_f32 v{P+d}, v{a0}, v{a1}')
            base = OFF_XNF if which == 0 else OFF_YF
            for n in range(9):
                A(f's_add_u32 s{sTMP}, s{sB}, {base + n*8*512}')
                A(f'buffer_store_dwordx4 {v(P+4*n,4)}, v4, {WS}, s{sTMP} offen sc1')
            if which == 0: A('s_nop 1')
        A.wait(vm=0)
        A.label(done)
        A.wait(vm=0)
        A('s_barrier')
        self.dbg_add(sG, DBG_LN)
    def ring(self, blocks, nslots=9, depth=6):
        A = self.A
        pos = []; p = 0
        for b in blocks:
            ns = b.get('slots', 1)
            if p % nslots + ns > nslots: p += nslots - p % nslots
            pos.append(p % nslots); p += ns
        def issue(n):
            b = blocks[n]
            if b.get('setup'): b['setup']()
            for y, dm in enumerate(b['dmas']):
                voff, sbase, const, lds = dm[:4]
                lb = dm[4] if len(dm) > 4 else 42
                A(f's_add_u32 s43, s{sbase}, {const}')
                A(f's_add_u32 m0, s{lb}, {pos[n]*16384 + lds}')
                A(f'buffer_load_dwordx4 v{voff}, {TS}, s43 offen lds')
        N = len(blocks)
        issued = 0
        def can_issue(n, cur):
            sl = set(range(pos[n], pos[n] + blocks[n].get('slots', 1)))
            for q in range(cur, n):
                if sl & set(range(pos[q], pos[q] + blocks[q].get('slots', 1))): return False
            return n - cur < depth
        while issued < N and can_issue(issued, 0): issue(issued); issued += 1
        for n in range(N):
            left = sum(len(blocks[q]['dmas']) for q in range(n+1, issued))
            A.wait(vm=left, lgkm=0)
            A('s_barrier')
            while issued < N and can_issue(issued, n): issue(issued); issued += 1
            cur = {}
            for (dst, addr, imm) in blocks[n]['reads']:
                if addr not in cur:
                    t = 60 + len(cur); cur[addr] = t
                    A(f'v_add_u32 v{t}, {pos[n]*16384}, v{addr}')
                A(f'ds_read_b64_tr_b16 {dst}, v{cur[addr]} offset:{imm}')
        A.wait(lgkm=0)
        A('s_barrier')
    def seg_dma(self, base, seg_s, buf_s, vL16):
        A = self.A
        A(f's_mul_i32 s{sTMP}, s{seg_s}, {SEGB}')
        A(f's_mul_i32 s{sTMP+1}, s{sW}, {9*1024}')
        A(f's_add_u32 s{sTMP}, s{sTMP}, s{sTMP+1}')
        A(f's_add_u32 s{sTMP}, s{sTMP}, {base}')
        A(f's_add_u32 s{sTMP+1}, s{sTMP+1}, s{buf_s}')
        for y in range(9):
            A(f's_add_u32 m0, s{sTMP+1}, {(y//4)*4096}')
            if y % 4 == 0 and y: A(f's_add_u32 s{sTMP}, s{sTMP}, 4096')
            A(f'buffer_load_dwordx4 v{vL16}, {WS}, s{sTMP} offen offset:{(y%4)*1024} sc1 lds')
    def passA(self):
        A = self.A; opt = self.opt
        self.vT = 2
        sMA, sGA, sNA = 50, 51, 52
        A(f's_lshl_b32 s{sTMP}, s{sG}, 5'); A(f's_add_u32 s{sTMP}, s{sTMP}, s{sM}')
        A(f's_mul_i32 s{sMA}, s{sTMP}, 9363'); A(f's_lshr_b32 s{sMA}, s{sMA}, 16')
        A(f's_mul_i32 s{sTMP+1}, s{sMA}, 7'); A(f's_sub_u32 s{sGA}, s{sTMP}, s{sTMP+1}')
        A(f's_cmp_eq_u32 s{sGA}, 0'); A(f's_cselect_b32 s{sNA}, 10, 9')
        C = {'wL16': 3, 'wDA': 4, 'wTA0': 5, 'wTA1': 6, 'wSTK': 7}
        self.consts(C)
        def fr(kp, tau, off=0, cnt=4):
            n = (2*kp + tau)*4 + off
            return f'a[{n}:{n+cnt-1}]' if n < 256 else f'v[{224+n-256}:{224+n-256+cnt-1}]'
        A(f's_load_dwordx2 s[{sP0}:{sP0+1}], s[0:1], 24')
        A(f's_load_dwordx2 s[{sP0+2}:{sP0+3}], s[0:1], 32')
        A.wait(lgkm=0)
        A(f's_cmp_lt_u32 s{sW}, 2')
        A(f's_cselect_b32 s{sT}, s{sP0}, s{sP0+2}')
        A(f's_cselect_b32 s{sT+1}, s{sP0+1}, s{sP0+3}')
        A(f's_and_b32 s{sT+1}, s{sT+1}, 0xffff')
        A(f's_mov_b32 s{sT+2}, {D*8192}')
        A(f's_mov_b32 s{sT+3}, 0x20000')
        A(f's_and_b32 s{sTMP}, s{sW}, 1')
        A(f's_mul_i32 s{sTMP}, s{sTMP}, {16*8192}')
        A(f's_lshl_b32 s{sA}, s{sMA}, 8')
        A(f's_add_u32 s{sA}, s{sA}, s{sTMP}')
        A(f's_lshl_b32 s42, s{sW}, 12')
        blocks = []
        for b in range(18):
            dm = [(4, sA, (32*b + 4*y)*8192, y*1024) for y in range(4)]
            rd = []
            for kk in range(2):
                for tau in range(2):
                    for rr in range(2):
                        rd.append((fr(2*b+kk, tau, 2*rr, 2), 5+tau, kk*4096 + rr*1024))
            blocks.append(dict(dmas=dm, reads=rd))
        self.ring(blocks)
        rt_stamp(A, opt, 3, sW, off=OFF_RT)
        self.dbg_wait(sGA, DBG_LN, None, 32)
        self.dbg_wait(None, DBG_CHINIT, None, 32)
        rt_stamp(A, opt, 4, sW, off=OFF_RT)
        A(f's_mov_b32 s{sK}, 0')
        A(f's_mov_b32 s{sSEG}, s{sGA}')
        A(f's_mov_b32 s{sB}, {W_XT0}')
        self.seg_dma(OFF_XNF, sSEG, sB, 3)
        A(f'v_add_u32 v8, {W_XT0}, v3')
        A(f's_lshl_b32 s{sC}, s{sGA}, 7')
        A(f's_lshl_b32 s{sTMP}, s{sMA}, 2')
        A(f's_add_u32 s{sC}, s{sC}, s{sTMP}')
        A(f's_add_u32 s{sC}, s{sC}, {FL_KV + 128}')
        L = A.newlabel('pa_loop'); nonext = A.newlabel('pa_nn'); vw = A.newlabel('pa_v'); epi = A.newlabel('pa_e')
        A.label(L)
        A.wait(vm=0)
        A('s_barrier')
        lab = A.newlabel('pa_fl')
        A(f's_cmp_eq_u32 s{sK}, 0'); A(f's_cbranch_scc1 {lab}')
        A(f's_cmp_eq_u32 s{sW}, 0'); A(f's_cbranch_scc0 {lab}')
        A(f's_mov_b64 exec, 1'); A(f'v_mov_b32 v60, 0'); A(f'v_mov_b32 v61, s{sK}')
        A(f'buffer_store_dword v61, v60, {WS}, s{sC} offen sc1'); A(f's_mov_b64 exec, -1')
        A.label(lab)
        A(f's_add_u32 s{sD_}, s{sK}, 1')
        A(f's_cmp_lt_u32 s{sD_}, s{sNA}')
        A(f's_cbranch_scc0 {nonext}')
        A(f's_add_u32 s{sD_}, s{sSEG}, 7')
        A(f's_xor_b32 s{sTMP+2}, s{sB}, {W_XT0 ^ W_XT1}')
        self.seg_dma(OFF_XNF, sD_, sTMP+2, 3)
        A.label(nonext)
        ACC = 64; XB = [96, 100, 104, 108]
        A(f's_cmp_lt_u32 s{sW}, 2')
        A(f's_cbranch_scc0 {vw}')
        for role in range(2):
            if role == 1: A.label(vw)
            for kp in range(3): A(f'ds_read_b128 {v(XB[kp],4)}, v8 offset:{kp*1024}')
            for kp in range(36):
                if kp + 3 < 36: A(f'ds_read_b128 {v(XB[(kp+3)%4],4)}, v8 offset:{(kp+3)*1024}')
                for tau in range(2):
                    d = v(ACC+16*tau, 16); c_ = d if kp else '0'
                    x_ = v(XB[kp % 4], 4)
                    if role == 0: A(f'v_mfma_f32_32x32x16_bf16 {d}, {fr(kp,tau)}, {x_}, {c_}')
                    else: A(f'v_mfma_f32_32x32x16_bf16 {d}, {x_}, {fr(kp,tau)}, {c_}')
            if role == 0: A(f's_branch {epi}')
        A.label(epi)
        A(f's_nop 15')
        A(f's_lshl_b32 s{sTMP}, s{sSEG}, 5')
        A(f's_add_u32 s{sTMP}, s{sTMP}, s{sMA}')
        A(f's_lshl_b32 s{sTMP}, s{sTMP}, 13')
        A(f's_cmp_lt_u32 s{sW}, 2')
        A(f's_cselect_b32 s{sTMP+1}, 0, {OFF_VXF-OFF_KXF}')
        A(f's_add_u32 s{sTMP}, s{sTMP}, s{sTMP+1}')
        A(f's_add_u32 s{sTMP}, s{sTMP}, {OFF_KXF}')
        PK = 112
        for tau in range(2):
            for u in range(2):
                r0 = ACC + 16*tau + 8*u; p = PK + 8*tau + 4*u
                for k in range(4): A(f'v_cvt_pk_bf16_f32 v{p+k}, v{r0+2*k}, v{r0+2*k+1}')
                A(f'buffer_store_dwordx4 {v(p,4)}, v7, {WS}, s{sTMP} offen offset:{tau*2048+u*512} sc1')
        A(f's_xor_b32 s{sB}, s{sB}, {W_XT0 ^ W_XT1}')
        A(f'v_add_u32 v8, s{sB}, v3')
        A(f's_add_u32 s{sSEG}, s{sSEG}, 7')
        A(f's_add_u32 s{sK}, s{sK}, 1')
        A(f's_cmp_lt_u32 s{sK}, s{sNA}')
        A(f's_cbranch_scc1 {L}')
        A.wait(vm=0)
        A('s_barrier')
        lab = A.newlabel('pa_fl')
        A(f's_cmp_eq_u32 s{sW}, 0'); A(f's_cbranch_scc0 {lab}')
        A(f's_mov_b64 exec, 1'); A(f'v_mov_b32 v60, 0'); A(f'v_mov_b32 v61, s{sK}')
        A(f'buffer_store_dword v61, v60, {WS}, s{sC} offen sc1'); A(f's_mov_b64 exec, -1')
        A.label(lab)

    def gemm2_blocks(self, fr2, nrb, mini, vDO, vTO, sbase, slds, setup):
        blocks = []
        first = True
        for q0 in (0, 2, 4, 6, 8):
            for rb in range(nrb):
                dm = [(vDO, sbase, (64*rb + 16*y)*1152 + q0*32, y*4096, slds) for y in range(4)]
                rd = []
                for kk in range(2):
                    for tau in range(2):
                        if q0 + tau > 8: continue
                        for rr in range(2):
                            rd.append((fr2(q0+tau, 2*rb+kk, 2*rr, 2), vTO+tau, (32*kk + 16*rr)*256))
                blocks.append(dict(dmas=dm, reads=rd, setup=setup if first else None)); first = False
            if mini:
                dm = [(vDO, sbase, (64*nrb)*1152 + q0*32, 0, slds)]
                rd = [(fr2(q0+tau, 4, 0, 2), vTO+tau, 0) for tau in range(2) if q0 + tau <= 8]
                blocks.append(dict(dmas=dm, reads=rd))
        return blocks
    def gemm2(self, fr2, k16, ACC, HF, PKD, vL16, vL8, vPS8, sPB):
        A = self.A
        for tt in range(2):
            for ko in range(4):
                A(f'ds_read_b128 {v(HF+4*ko,4)}, v{vL16} offset:{W_OEX + tt*4096 + ko*1024}')
            if k16: A(f'ds_read_b64 {v(HF+16,2)}, v{vL8} offset:{W_OEX + 8192 + tt*512}')
            for ko in range(4):
                for q in range(9):
                    d = v(ACC+4*q, 4)
                    A(f'v_mfma_f32_16x16x32_bf16 {d}, {fr2(q, ko)}, {v(HF+4*ko,4)}, {d if ko else 0}')
            if k16:
                for q in range(9):
                    d = v(ACC+4*q, 4)
                    A(f'v_mfma_f32_16x16x16_bf16 {d}, {fr2(q, 4, 0, 2)}, {v(HF+16,2)}, {d}')
            for a_ in range(4):
                p = PKD + 4*(a_ % 2)
                for t2 in range(2):
                    r0 = ACC + 4*(2*a_ + t2)
                    A(f'v_cvt_pk_bf16_f32 v{p+2*t2}, v{r0}, v{r0+1}')
                    A(f'v_cvt_pk_bf16_f32 v{p+2*t2+1}, v{r0+2}, v{r0+3}')
                self.mstore(f'buffer_store_dwordx4 {v(p,4)}, v{vL16}, {WS}, s{sPB} offen offset:{a_*1024}', tt*4608, sPB)
            p = PKD + 8
            A(f'v_cvt_pk_bf16_f32 v{p}, v{ACC+32}, v{ACC+33}')
            A(f'v_cvt_pk_bf16_f32 v{p+1}, v{ACC+34}, v{ACC+35}')
            A(f's_add_u32 s{sTMP}, s{sPB}, 4096')
            self.mstore(f'buffer_store_dwordx2 {v(p,2)}, v{vPS8}, {WS}, s{sTMP} offen', 0, None)
            if tt == 0: A(f's_add_u32 s{sPB}, s{sPB}, 4608')
        A(f's_sub_u32 s{sPB}, s{sPB}, 4608')
    def mstore(self, text, *_):
        A = self.A
        l1 = A.newlabel('ms'); l2 = A.newlabel('me')
        A(f's_cmp_eq_u32 s{sSLOW}, 0')
        A(f's_cbranch_scc0 {l1}')
        A(text)
        A.raw(f'  s_branch {l2}')
        A.raw(f'{l1}:')
        A.raw(f'  {text} sc1')
        A.raw(f'{l2}:')
    def reduce(self, which, R0, vRL, vSEL, vROb, vROf, vX0, vX1, vB2r, vB2x):
        A = self.A
        FT = which == 'D' and self.opt.get('fasttail', 1) and not self.opt.get('nochain')
        lns = A.newlabel('rns')
        if FT:
            A(f's_cmp_eq_u32 s{sSEG}, 63'); A(f's_cbranch_scc1 {lns}')
        A.wait(vm=0)
        A('s_barrier')
        self.group_sync(0 if which == 'C' else 1)
        if FT:
            A.raw(f'{lns}:'); A.reset()
        LD = R0; AC = R0 + 32; XX = R0 + 36; BB = R0 + 40
        def task(extra):
            if not extra:
                A(f's_lshr_b32 s{sTMP}, s{sM}, 3')
                A(f's_bfe_u32 s{sTMP+1}, s{sM}, 0x10002')
                A(f's_and_b32 s{sTMP+2}, s{sM}, 3')
                A(f's_mul_i32 s{sTMP+3}, s{sTMP}, 9216')
                A(f's_mul_i32 s{sTMP+4}, s{sTMP+1}, 4608')
                A(f's_add_u32 s{sTMP+3}, s{sTMP+3}, s{sTMP+4}')
                A(f's_lshl_b32 s{sTMP+4}, s{sTMP+2}, 10')
                A(f's_add_u32 s{sTMP+3}, s{sTMP+3}, s{sTMP+4}')
                A(f's_lshl_b32 s{sTMP+4}, s{sW}, 8')
                A(f's_add_u32 s{sTMP+3}, s{sTMP+3}, s{sTMP+4}')
                A(f's_mul_i32 s{sTMP+5}, s{sTMP}, {9*32}')
                A(f's_lshl_b32 s{sTMP+4}, s{sTMP+2}, 6')
                A(f's_add_u32 s{sTMP+5}, s{sTMP+5}, s{sTMP+4}')
                A(f's_lshl_b32 s{sTMP+4}, s{sW}, 3')
                A(f's_add_u32 s{sTMP+5}, s{sTMP+5}, s{sTMP+4}')
            else:
                A(f's_lshr_b32 s{sTMP}, s{sM}, 2')
                A(f's_bfe_u32 s{sTMP+1}, s{sM}, 0x10001')
                A(f's_and_b32 s{sTMP+2}, s{sM}, 1')
                A(f's_mul_i32 s{sTMP+3}, s{sTMP}, 9216')
                A(f's_mul_i32 s{sTMP+4}, s{sTMP+1}, 4608')
                A(f's_add_u32 s{sTMP+3}, s{sTMP+3}, s{sTMP+4}')
                A(f's_lshl_b32 s{sTMP+4}, s{sTMP+2}, 8')
                A(f's_add_u32 s{sTMP+3}, s{sTMP+3}, s{sTMP+4}')
                A(f's_add_u32 s{sTMP+3}, s{sTMP+3}, 4096')
                A(f's_mul_i32 s{sTMP+5}, s{sTMP}, {9*32}')
                A(f's_lshl_b32 s{sTMP+4}, s{sTMP+2}, 4')
                A(f's_add_u32 s{sTMP+5}, s{sTMP+5}, s{sTMP+4}')
                A(f's_add_u32 s{sTMP+5}, s{sTMP+5}, {8*32}')
            A(f's_lshl_b32 s{sTMP+4}, s{sSEG}, 5')
            A(f's_lshl_b32 s{sTMP+1}, s{sTMP+1}, 4')
            A(f's_add_u32 s{sTMP+4}, s{sTMP+4}, s{sTMP+1}')
            A(f's_mul_i32 s{sTMP+4}, s{sTMP+4}, 1152')
            A(f's_add_u32 s{sTMP+4}, s{sTMP+4}, s{sTMP+5}')
            A(f's_add_u32 s{sTMP+3}, s{sTMP+3}, s{sA}')
            vo_b = vX0 if extra else vROb; vo_f = vX1 if extra else vROf
            A(f's_lshl_b32 s{sTMP+2}, s{sTMP+4}, 1')
            A(f's_add_u32 s{sTMP+2}, s{sTMP+2}, {OFF_BASE}')
            if which == 'C':
                A(f'buffer_load_dwordx2 {v(XX,2)}, v{vo_b}, {TS}, s{sTMP+4} offen')
                A(f'v_add_u32 v{BB+2}, s{sTMP+5}, v{vB2x if extra else vB2r}')
                A(f'global_load_dwordx2 {v(BB,2)}, v{BB+2}, s[34:35]')
            else:
                A(f'buffer_load_dwordx4 {v(XX,4)}, v{vo_f}, {WS}, s{sTMP+2} offen sc1')
            lr = A.newlabel('rp'); lo = A.newlabel('ro')
            if FT:
                A(f's_mov_b32 s56, 0')
                A.raw(f'{lr}:')
            A(f's_mov_b32 s57, s{sTMP+3}')
            for n in range(8):
                A(f'buffer_load_dwordx4 {v(LD+4*n,4)}, v{vRL}, {WS}, s57 offen sc1')
                if n < 7: A(f's_add_u32 s57, s57, {4*WPB_M}')
            for n in range(8):
                A(f'v_mfma_f32_16x16x32_bf16 {v(AC,4)}, {v(vSEL,4)}, {v(LD+4*n,4)}, {v(AC,4) if n else 0}')
            if FT:
                A(f's_cmp_eq_u32 s{sSEG}, 63'); A(f's_cbranch_scc0 {lo}')
                A(f's_nop 7')
                A(f'v_cmp_u_f32 vcc, v{AC}, v{AC+1}')
                A(f'v_cmp_u_f32 s[58:59], v{AC+2}, v{AC+3}')
                A(f's_or_b64 vcc, vcc, s[58:59]')
                A(f's_cbranch_vccz {lo}')
                A(f's_add_u32 s56, s56, 1')
                A(f's_cmp_lg_u32 s{sDEAD}, 0'); A(f's_cbranch_scc1 {lo}')
                A(f's_cmp_lt_u32 s56, 0x40000'); A(f's_cbranch_scc1 {lr}')
                A(f's_mov_b32 s{sDEAD}, 1')
                A.raw(f'{lo}:')
                A(f's_nop 7')
            if which == 'C':
                A(f's_mov_b32 s{sTMP}, 0xffff0000')
                for k, src in enumerate((XX, BB)):
                    t = LD + 4*k
                    A(f'v_lshlrev_b32 v{t}, 16, v{src}'); A(f'v_and_b32 v{t+1}, s{sTMP}, v{src}')
                    A(f'v_lshlrev_b32 v{t+2}, 16, v{src+1}'); A(f'v_and_b32 v{t+3}, s{sTMP}, v{src+1}')
                for r in range(4):
                    A(f'v_add_f32 v{LD+r}, v{LD+r}, v{LD+4+r}')
                    A(f'v_add_f32 v{AC+r}, v{AC+r}, v{LD+r}')
                A(f's_mov_b64 exec, s[{LO32}:{LO32+1}]')
                A(f'buffer_store_dwordx4 {v(AC,4)}, v{vo_f}, {WS}, s{sTMP+2} offen' + (' sc1' if self.opt.get('wt') else ''))
                A(f's_mov_b64 exec, -1')
            else:
                for r in range(4): A(f'v_add_f32 v{AC+r}, v{AC+r}, v{XX+r}')
                A(f'v_cvt_pk_bf16_f32 v{AC}, v{AC}, v{AC+1}')
                A(f'v_cvt_pk_bf16_f32 v{AC+1}, v{AC+2}, v{AC+3}')
                A(f's_mov_b64 exec, s[{LO32}:{LO32+1}]')
                A(f'buffer_store_dwordx2 {v(AC,2)}, v{vo_b}, {TS}, s{sTMP+4} offen' + (' sc1' if self.opt.get('wt') else ''))
                A(f's_mov_b64 exec, -1')
        task(False)
        lab = A.newlabel('rx')
        A(f's_cmp_eq_u32 s{sW}, 3'); A(f's_cbranch_scc0 {lab}')
        A(f's_cmp_lt_u32 s{sM}, 16'); A(f's_cbranch_scc0 {lab}')
        task(True)
        A.wait(vm=0, lgkm=0)
        A.label(lab)
    def srd_cached(self, which): pass
    def passC(self):
        A = self.A; opt = self.opt
        self.vT = 2
        C = {'wL16': 3, 'wDW1': 4, 'wD16': 5, 'wT1a': 6, 'wT1b': 7, 'wT1c': 8, 'wDO': 9, 'wTO0': 10, 'wTO1': 11,
             'wHW': 12, 'wHW8': 13, 'wRL': 14, 'wROb': 15, 'wROf': 16, 'wPS8': 17, 'wB1': 18, 'wYR': 19, 'wYR2': 20,
             'wX0': 21, 'wX1': 22, 'wL8': 23, 'wSEL0': 24, 'wSEL1': 25, 'wSEL2': 26, 'wSEL3': 27}
        self.consts(C)
        A('v_lshrrev_b32 v28, 8, v3'); A('v_and_b32 v28, 1, v28')
        A('v_lshlrev_b32 v29, 3, v28'); A('v_lshlrev_b32 v28, 5, v28')
        def w1(ti, kp, off=0, cnt=4):
            n = (ti*18 + kp)*4 + off
            return f'a[{n}:{n+cnt-1}]'
        f4 = [('a', 216 + 4*k) for k in range(10)] + [('v', 134 + 4*k) for k in range(26)]
        f2 = [('v', 238 + 2*k) for k in range(9)]
        def fr2(q, ko, off=0, cnt=4):
            if ko < 4: kd, n = f4[q*4 + ko]
            else: kd, n = f2[q]
            n += off
            return f'{kd}[{n}:{n+cnt-1}]'
        self.srd(64, D*9216)
        A(f's_mul_i32 s{sA}, s{sM}, 288')
        A(f's_mul_i32 s{sTMP}, s{sW}, {4*9216}')
        A(f's_add_u32 s{sB}, s{sA}, s{sTMP}')
        A(f's_mul_i32 s{sTMP}, s{sW}, {5*32*9216}')
        A(f's_add_u32 s{sC}, s{sA}, s{sTMP}')
        A(f's_add_u32 s{sC}, s{sC}, 256')
        A(f's_lshl_b32 s42, s{sW}, 10')
        A(f's_mul_i32 s45, s{sW}, 5120')
        blocks = []
        for b in range(9):
            dm = [(4, sB, (64*b + 16*y)*9216, y*4096) for y in range(4)]
            rd = [(w1(tau, 2*b+kk, 2*rr, 2), 6+tau, kk*8192 + rr*1024) for kk in range(2) for tau in range(2) for rr in range(2)]
            blocks.append(dict(dmas=dm, reads=rd))
        dm = [(5, sC, y*32*9216, y*1024, 45) for y in range(5)]
        rd = [(w1(2, kp, 2*rr, 2), 8, kp*1024 + rr*128) for kp in range(18) for rr in range(2)]
        blocks.append(dict(dmas=dm, reads=rd, slots=2))
        self.ring(blocks)
        self.srd(80, F*1152)
        A(f's_mul_i32 s{sA}, s{sM}, 144')
        A(f's_lshl_b32 s{sTMP}, s{sW}, 2')
        A(f's_add_u32 s{sA}, s{sA}, s{sTMP}')
        A(f's_mul_i32 s{sB}, s{sA}, 1152')
        self.ring(self.gemm2_blocks(fr2, 2, True, 9, 10, sB, 42, None))
        rt_stamp(A, opt, 6, sW, off=OFF_RT)
        A(f's_load_dwordx2 s[{sP0}:{sP0+1}], s[0:1], 72')
        A(f's_load_dwordx2 s[34:35], s[0:1], 88')
        A.wait(lgkm=0)
        A(f's_mul_i32 s{sTMP}, s{sM}, 288')
        A(f's_lshl_b32 s{sTMP+1}, s{sW}, 6')
        A(f's_add_u32 s{sTMP+1}, s{sTMP+1}, s{sTMP}')
        A(f'v_add_u32 v60, s{sTMP+1}, v18')
        A(f'global_load_dwordx2 v[44:45], v60, s[{sP0}:{sP0+1}]')
        A(f'global_load_dwordx2 v[46:47], v60, s[{sP0}:{sP0+1}] offset:32')
        A(f's_add_u32 s{sTMP}, s{sTMP}, 256')
        A(f'v_add_u32 v60, s{sTMP}, v18')
        A(f'global_load_dwordx2 v[48:49], v60, s[{sP0}:{sP0+1}]')
        A(f's_mov_b32 s{sTMP}, 0xffff0000')
        BI = 30
        for ti in range(3):
            for hf in range(2):
                A(f'v_lshlrev_b32 v{BI+4*ti+2*hf}, 16, v{44+2*ti+hf}')
                A(f'v_and_b32 v{BI+4*ti+2*hf+1}, s{sTMP}, v{44+2*ti+hf}')
        self.dbg_wait(sG, DBG_LN, None, 32)
        A(f's_lshl_b32 s{sTMP}, s53, 2')
        A(f'v_mov_b32 v60, s{sTMP}')
        A(f'global_load_dword v61, v60, s[14:15] sc1')
        A(f'v_readfirstlane_b32 s{sTMP}, v61')
        A(f's_cmp_lt_u32 s{sTMP}, 32')
        A(f's_cselect_b32 s{sSLOW}, 1, 0')
        if opt.get('fake') or opt.get('slow') or opt.get('wslow'): A(f's_mov_b32 s{sSLOW}, 1')
        self.srd(0, S*D*2)
        A(f's_mov_b32 s{LO32}, -1'); A(f's_mov_b32 s{LO32+1}, 0')
        A(f's_mov_b32 s{sK}, 0')
        A(f's_mov_b32 s{sSEG}, s{sG}')
        A(f's_mov_b32 s{sB}, {W_XT0}')
        self.seg_dma(OFF_YF, sSEG, sB, 3)
        L = A.newlabel('pc_loop'); nonext = A.newlabel('pc_nn')
        A.label(L)
        A(f'v_add_u32 v42, s{sB}, v19')
        A(f'v_add_u32 v43, s{sB}, v20')
        A.wait(vm=0)
        A('s_barrier')
        A(f's_add_u32 s{sD_}, s{sK}, 1')
        A(f's_cmp_lt_u32 s{sD_}, s{sN}')
        A(f's_cbranch_scc0 {nonext}')
        A(f's_add_u32 s{sD_}, s{sSEG}, 7')
        A(f's_xor_b32 s{sTMP+2}, s{sB}, {W_XT0 ^ W_XT1}')
        self.seg_dma(OFF_YF, sD_, sTMP+2, 3)
        A.label(nonext)
        AC1 = 44; YB = [64, 76, 88]
        def yread(kp):
            b = YB[kp % 3]
            return [f'ds_read_b128 {v(b,4)}, v42 offset:{kp*2048}', f'ds_read_b128 {v(b+4,4)}, v42 offset:{kp*2048+256}',
                    f'ds_read_b128 {v(b+8,4)}, v43 offset:{kp*2048}']
        for kp in range(2):
            for x in yread(kp): A(x)
        for kp in range(18):
            if kp + 2 < 18:
                for x in yread(kp+2): A(x)
            b = YB[kp % 3]
            for idx, (ti, yo) in enumerate([(0, 0), (0, 4), (1, 0), (1, 4), (2, 8)]):
                d = v(AC1+4*idx, 4)
                A(f'v_mfma_f32_16x16x32_bf16 {d}, {w1(ti,kp)}, {v(b+yo,4)}, {d if kp else 0}')
        c1 = -2.0*math.sqrt(2.0/math.pi)*math.log2(math.e); c2 = c1*0.044715
        A(f's_mov_b32 s{sTMP}, {fb(c1):#x}'); A(f's_mov_b32 s{sTMP+1}, {fb(c2):#x}')
        A(f'v_mov_b32 v100, s{sTMP}')
        for idx, ti in enumerate([0, 0, 1, 1, 2]):
            for r in range(4):
                x = AC1 + 4*idx + r; t = 64 + 4*idx + r
                A(f'v_add_f32 v{x}, v{x}, v{BI+4*ti+r}')
                A(f'v_mul_f32 v{t}, v{x}, v{x}')
                A(f'v_fma_f32 v{t}, v{t}, s{sTMP+1}, v100')
                A(f'v_mul_f32 v{t}, v{t}, v{x}')
            for r in range(4):
                t = 64 + 4*idx + r
                A(f'v_exp_f32 v{t}, v{t}')
            for r in range(4):
                t = 64 + 4*idx + r
                A(f'v_add_f32 v{t}, 1.0, v{t}')
            for r in range(4):
                t = 64 + 4*idx + r
                A(f'v_rcp_f32 v{t}, v{t}')
            for r in range(4):
                x = AC1 + 4*idx + r; t = 64 + 4*idx + r
                A(f'v_mul_f32 v{x}, v{x}, v{t}')
        for tt in range(2):
            p = 88 + 4*tt
            for t2 in range(2):
                r0 = AC1 + 4*(2*t2 + tt)
                A(f'v_cvt_pk_bf16_f32 v{p+2*t2}, v{r0}, v{r0+1}')
                A(f'v_cvt_pk_bf16_f32 v{p+2*t2+1}, v{r0+2}, v{r0+3}')
            A(f'ds_write_b128 v12, {v(p,4)} offset:{tt*4096}')
        A(f'v_cvt_pk_bf16_f32 v96, v{AC1+16}, v{AC1+17}')
        A(f'v_cvt_pk_bf16_f32 v97, v{AC1+18}, v{AC1+19}')
        A(f'ds_write_b64 v13, v[96:97]')
        A.wait(lgkm=0)
        A('s_barrier')
        A(f's_mul_i32 s{sA}, s{sG}, {WPB_GRP}')
        A(f's_and_b32 s{sTMP}, s{sK}, 1')
        A(f's_mul_i32 s{sTMP}, s{sTMP}, {WPB_SLOT}')
        A(f's_add_u32 s{sA}, s{sA}, s{sTMP}')
        A(f's_add_u32 s{sA}, s{sA}, {OFF_WPB}')
        A(f's_mul_i32 s{sC}, s{sM}, {WPB_M}')
        A(f's_mul_i32 s{sTMP}, s{sW}, 9216')
        A(f's_add_u32 s{sC}, s{sC}, s{sTMP}')
        A(f's_add_u32 s{sC}, s{sC}, s{sA}')
        self.gemm2(fr2, True, 44, 84, 104, 3, 23, 17, sC)
        self.reduce('C', 44, 14, 24, 15, 16, 21, 22, 28, 29)
        A(f's_xor_b32 s{sB}, s{sB}, {W_XT0 ^ W_XT1}')
        A(f's_add_u32 s{sSEG}, s{sSEG}, 7')
        A(f's_add_u32 s{sK}, s{sK}, 1')
        A(f's_cmp_lt_u32 s{sK}, s{sN}')
        A(f's_cbranch_scc1 {L}')
        A.wait(vm=0, lgkm=0)
        A('s_barrier')

    def passD(self):
        A = self.A; opt = self.opt
        self.vT = 2
        C = {'wL16': 3, 'wDA': 4, 'wTQ': 5, 'wDO': 9, 'wTO0': 10, 'wTO1': 11, 'wQW': 12, 'wOW': 13, 'wRL': 14, 'wROb': 15,
             'wROf': 16, 'wPS8': 17, 'wKW': 18, 'wKR': 19, 'wX0': 21, 'wX1': 22, 'wL8': 23,
             'wSEL0': 24, 'wSEL1': 25, 'wSEL2': 26, 'wSEL3': 27}
        for k in range(8): C[f'wM{k}'] = 28 + k
        self.consts(C)
        def wq(kp, off=0, cnt=4):
            n = kp*4 + off
            return f'a[{n}:{n+cnt-1}]'
        f4 = [('a', 144 + 4*k) for k in range(28)] + [('v', 224 + 4*k) for k in range(8)]
        def fr2(q, ko, off=0, cnt=4):
            kd, n = f4[q*4 + ko]; n += off
            return f'{kd}[{n}:{n+cnt-1}]'
        self.srd(16, D*8192)
        A(f's_lshl_b32 s{sA}, s{sM}, 8')
        A(f's_mul_i32 s{sTMP}, s{sW}, {16*8192}')
        A(f's_add_u32 s{sA}, s{sA}, s{sTMP}')
        A(f's_lshl_b32 s45, s{sW}, 12')
        A(f's_lshl_b32 s42, s{sW}, 10')
        blocks = []
        for b in range(9):
            dm = [(4, sA, (64*b + 4*y)*8192, y*1024, 45) for y in range(4)]
            rd = [(wq(4*b+kk, 2*rr, 2), 5, kk*4096 + rr*1024) for kk in range(4) for rr in range(2)]
            blocks.append(dict(dmas=dm, reads=rd))
        self.ring(blocks)
        self.srd(40, 4096*1152)
        A(f's_lshl_b32 s{sA}, s{sM}, 7')
        A(f's_lshl_b32 s{sTMP}, s{sW}, 2')
        A(f's_add_u32 s{sA}, s{sA}, s{sTMP}')
        A(f's_mul_i32 s{sB}, s{sA}, 1152')
        self.ring(self.gemm2_blocks(fr2, 2, False, 9, 10, sB, 42, None))
        rt_stamp(A, opt, 9, sW, off=OFF_RT)
        self.srd(96, S*D*2)
        A(f's_mov_b32 s{LO32}, -1'); A(f's_mov_b32 s{LO32+1}, 0')
        c = DH**-0.5*math.log2(math.e)
        A(f's_mov_b32 s{sCv}, {fb(c):#x}'); A(f's_mov_b32 s{sCv+1}, {fb(c):#x}')
        A(f's_and_b32 s{sTMP}, s{sW}, 1'); A(f's_lshl_b32 s{sTMP}, s{sTMP}, 10')
        A(f'v_add_u32 v36, s{sTMP}, v3')
        sFL = 48; sKV = 49; sKM = 50
        A(f's_lshl_b32 s{sFL}, s{sM}, 7'); A(f's_add_u32 s{sFL}, s{sFL}, {FL_CH}')
        A(f's_mov_b32 s{sK}, 0')
        A(f's_mov_b32 s{sSEG}, s{sG}')
        A(f's_mov_b32 s{sB}, {W_XT0}')
        self.seg_dma(OFF_XNF, sSEG, sB, 3)
        L = A.newlabel('pd_loop'); nonext = A.newlabel('pd_nn')
        A.label(L)
        A(f'v_add_u32 v8, s{sB}, v3')
        A.wait(vm=0)
        A('s_barrier')
        A(f's_add_u32 s{sD_}, s{sK}, 1')
        A(f's_cmp_lt_u32 s{sD_}, s{sN}')
        A(f's_cbranch_scc0 {nonext}')
        A(f's_add_u32 s{sD_}, s{sSEG}, 7')
        A(f's_xor_b32 s{sTMP+2}, s{sB}, {W_XT0 ^ W_XT1}')
        self.seg_dma(OFF_XNF, sD_, sTMP+2, 3)
        A.label(nonext)
        KX = 128; VX = 160
        A(f's_lshl_b32 s{sKV}, s{sSEG}, 5'); A(f's_add_u32 s{sKV}, s{sKV}, s{sM}')
        A(f's_lshl_b32 s{sKM}, s{sKV}, 11')
        A(f's_lshl_b32 s{sKV}, s{sKV}, 13')
        A(f's_add_u32 s{sTMP}, s{sKV}, {OFF_KXF}')
        for f in range(8):
            if f == 4: A(f's_add_u32 s{sTMP}, s{sTMP}, 4096')
            A(f'buffer_load_dwordx4 {v(KX+4*f,4)}, v3, {WS}, s{sTMP} offen offset:{(f%4)*1024} sc1')
        A(f's_lshr_b32 s{sTMP+1}, s{sW}, 1'); A(f's_lshl_b32 s{sTMP+1}, s{sTMP+1}, 12')
        A(f's_add_u32 s{sTMP}, s{sKV}, s{sTMP+1}'); A(f's_add_u32 s{sTMP}, s{sTMP}, {OFF_VXF}')
        for f in range(4):
            A(f'buffer_load_dwordx4 {v(VX+4*f,4)}, v3, {WS}, s{sTMP} offen offset:{f*1024} sc1')
        ACC = 64; XB = [96, 100, 104, 108]
        for kp in range(3): A(f'ds_read_b128 {v(XB[kp],4)}, v8 offset:{kp*1024}')
        for kp in range(36):
            if kp + 3 < 36: A(f'ds_read_b128 {v(XB[(kp+3)%4],4)}, v8 offset:{(kp+3)*1024}')
            A(f'v_mfma_f32_32x32x16_bf16 {v(ACC,16)}, {wq(kp)}, {v(XB[kp%4],4)}, {v(ACC,16) if kp else 0}')
        for u in range(2):
            p = 112 + 4*u
            for k in range(4): A(f'v_cvt_pk_bf16_f32 v{p+k}, v{ACC+8*u+2*k}, v{ACC+8*u+2*k+1}')
            A(f'ds_write_b128 v12, {v(p,4)} offset:{u*512}')
        rt_stamp(A, opt, 10, sW, off=OFF_RT)
        KM2 = 120; VM = 176
        FT = self.opt.get('fasttail', 1) and not opt.get('nochain')
        sKo, sVo = 54, 55
        A(f's_lshl_b32 s{sTMP+1}, s{sW}, 9')
        A(f's_add_u32 s{sKo}, s{sKM}, s{sTMP+1}'); A(f's_add_u32 s{sKo}, s{sKo}, {OFF_KMF}')
        A(f's_lshr_b32 s{sTMP+1}, s{sW}, 1'); A(f's_lshl_b32 s{sTMP+1}, s{sTMP+1}, 10')
        A(f's_add_u32 s{sVo}, s{sKM}, s{sTMP+1}'); A(f's_add_u32 s{sVo}, s{sVo}, {OFF_VMF}')
        def kvloads(raw=False):
            for t in (f'buffer_load_dwordx2 {v(KM2,2)}, v23, {WS}, s{sKo} offen sc1',
                      f'buffer_load_dwordx2 {v(VM,2)}, v23, {WS}, s{sVo} offen sc1',
                      f'buffer_load_dwordx2 {v(VM+2,2)}, v23, {WS}, s{sVo} offen offset:512 sc1'):
                (A.raw('  ' + t) if raw else A(t))
        lft = A.newlabel('pd_ft'); lj = A.newlabel('pd_j')
        if FT:
            A(f's_cmp_eq_u32 s{sSEG}, 63'); A(f's_cbranch_scc1 {lft}')
        A(f's_add_u32 s{sD_}, s{sSEG}, 1')
        if not opt.get('nochain'): self.ws_wait(sFL, sD_, sleep=1)
        kvloads()
        A.wait(vm=0)
        if FT:
            R = A.raw
            R(f'  s_branch {lj}')
            R(f'{lft}:')
            R(f'  s_mov_b32 s{sTMP}, 0')
            R(f'{lft}_p:')
            kvloads(True)
            R(f'  s_add_u32 s{sTMP}, s{sTMP}, 1')
            R(f'  s_waitcnt vmcnt(0)')
            R(f'  v_max3_u32 v60, v{KM2}, v{KM2+1}, v{VM}')
            R(f'  v_max3_u32 v61, v{VM+1}, v{VM+2}, v{VM+3}')
            R(f'  v_max_u32 v60, v60, v61')
            R(f'  v_cmp_eq_u32 vcc, -1, v60')
            R(f'  s_cbranch_vccz {lj}')
            R(f'  s_cmp_lg_u32 s{sDEAD}, 0'); R(f'  s_cbranch_scc1 {lj}')
            R(f'  s_cmp_lt_u32 s{sTMP}, 0x40000'); R(f'  s_cbranch_scc1 {lft}_p')
            R(f'  s_mov_b32 s{sDEAD}, 1')
            R(f'{lj}:')
            A.reset()
        rt_stamp(A, opt, 12, sW, off=OFF_RT)
        A(f'ds_write2_b32 v18, v{KM2}, v{KM2} offset0:0 offset1:1')
        A(f'ds_write2_b32 v18, v{KM2+1}, v{KM2+1} offset0:128 offset1:129')
        A.wait(lgkm=0)
        A('s_barrier')
        QF = 64; KMF_ = 80; S0, S1, SM = 96, 100, 104
        for k4 in range(4):
            A(f'ds_read_b128 {v(QF+4*k4,4)}, v36 offset:{W_QEX + k4*2048}')
            A(f'ds_read_b64_tr_b16 {v(KMF_+4*k4,2)}, v19 offset:{k4*1024}')
            A(f'ds_read_b64_tr_b16 {v(KMF_+4*k4+2,2)}, v19 offset:{k4*1024+256}')
        for k4 in range(4):
            c_ = lambda d: (v(d, 4) if k4 else '0')
            A(f'v_mfma_f32_16x16x32_bf16 {v(S0,4)}, {v(KX+8*k4,4)}, {v(QF+4*k4,4)}, {c_(S0)}')
            A(f'v_mfma_f32_16x16x32_bf16 {v(S1,4)}, {v(KX+8*k4+4,4)}, {v(QF+4*k4,4)}, {c_(S1)}')
            A(f'v_mfma_f32_16x16x32_bf16 {v(SM,4)}, {v(KMF_+4*k4,4)}, {v(QF+4*k4,4)}, {c_(SM)}')
        ONES = 108; PM = 112; PX = 116; MX = 61; TT = 62
        for k in range(4): A(f'v_mov_b32 v{ONES+k}, 0x3f803f80')
        A(f'v_mov_b32 v{PM+1}, 0'); A(f'v_mov_b32 v{PM+2}, 0')
        for r in range(4):
            A(f'v_add_f32 v{S0+r}, v{S0+r}, v{28+r}')
            A(f'v_add_f32 v{S1+r}, v{S1+r}, v{32+r}')
        A(f'v_max3_f32 v{MX}, v{S0}, v{S0+1}, v{S0+2}')
        A(f'v_max3_f32 v{TT}, v{S1}, v{S1+1}, v{S1+2}')
        A(f'v_max3_f32 v{MX}, v{MX}, v{S0+3}, v{S1+3}')
        A(f'v_max_f32 v{MX}, v{MX}, v{TT}')
        A(f'v_max3_f32 v{MX}, v{MX}, v{SM}, v{SM+1}')
        for sw in ('16', '32'):
            A(f'v_mov_b32 v{TT}, v{MX}')
            A(f'v_permlane{sw}_swap_b32 v{MX}, v{TT}')
            A(f'v_max_f32 v{MX}, v{MX}, v{TT}')
        A(f'v_mul_f32 v{TT}, s{sCv}, v{MX}')
        for r in (S0, S0+2, S1, S1+2, SM):
            A(f'v_pk_fma_f32 {v(r,2)}, {v(r,2)}, s[{sCv}:{sCv+1}], {v(TT,2)} op_sel_hi:[1,1,0] neg_lo:[0,0,1] neg_hi:[0,0,1]')
        for r in (S0, S0+1, S0+2, S0+3, S1, S1+1, S1+2, S1+3, SM, SM+1): A(f'v_exp_f32 v{r}, v{r}')
        cvt = lambda d, x, y: f'v_cvt_pk_bf16_f32 v{d}, v{x}, v{y}'
        A(cvt(PX, S0, S0+1)); A(cvt(PX+1, S0+2, S0+3)); A(cvt(PX+2, S1, S1+1)); A(cvt(PX+3, S1+2, S1+3))
        A(cvt(PM, SM, SM+1)); A(cvt(PM+3, SM, SM+1))
        O = 64; LL = 80
        A(f'v_mfma_f32_16x16x32_bf16 {v(LL,4)}, {v(ONES,4)}, {v(PX,4)}, 0')
        for e in range(4): A(f'v_mfma_f32_16x16x32_bf16 {v(O+4*e,4)}, {v(VX+4*e,4)}, {v(PX,4)}, 0')
        A(f'v_mfma_f32_16x16x16_bf16 {v(LL,4)}, {v(ONES,2)}, {v(PM,2)}, {v(LL,4)}')
        for e in range(4):
            A(f'v_mfma_f32_16x16x16_bf16 {v(O+4*e,4)}, {v(VM+2*(e>>1),2)}, {v(PM+2*(e&1),2)}, {v(O+4*e,4)}')
        A(f's_nop 7')
        A(f'v_rcp_f32 v{MX}, v{LL}')
        for r in range(16): A(f'v_mul_f32 v{O+r}, v{MX}, v{O+r}')
        for ko in range(2):
            p = 84 + 4*ko
            for t2 in range(2):
                r0 = O + 4*(2*ko + t2)
                A(cvt(p+2*t2, r0, r0+1)); A(cvt(p+2*t2+1, r0+2, r0+3))
            A(f'ds_write_b128 v13, {v(p,4)} offset:{ko*1024}')
        A.wait(lgkm=0)
        A('s_barrier')
        A(f's_mul_i32 s{sA}, s{sG}, {WPB_GRP}')
        A(f's_and_b32 s{sTMP}, s{sK}, 1')
        A(f's_mul_i32 s{sTMP}, s{sTMP}, {WPB_SLOT}')
        A(f's_add_u32 s{sA}, s{sA}, s{sTMP}')
        if FT:
            A(f's_cmp_eq_u32 s{sSEG}, 63'); A(f's_cselect_b32 s{sA}, {14*WPB_SLOT}, s{sA}')
        A(f's_add_u32 s{sA}, s{sA}, {OFF_WPB}')
        A(f's_mul_i32 s{sC}, s{sM}, {WPB_M}')
        A(f's_mul_i32 s{sTMP}, s{sW}, 9216')
        A(f's_add_u32 s{sC}, s{sC}, s{sTMP}')
        A(f's_add_u32 s{sC}, s{sC}, s{sA}')
        rt_stamp(A, opt, 13, sW, off=OFF_RT)
        self.gemm2(fr2, False, 64, 100, 120, 3, 23, 17, sC)
        rt_stamp(A, opt, 14, sW, off=OFF_RT)
        self.reduce('D', 64, 14, 24, 15, 16, 21, 22, None, None)
        if opt.get('wb'):
            lab = A.newlabel('wb')
            A(f's_cmp_eq_u32 s{sM}, 0'); A(f's_cbranch_scc0 {lab}')
            A(f's_cmp_eq_u32 s{sW}, 1'); A(f's_cbranch_scc0 {lab}')
            A(f's_cmp_eq_u32 s{sSEG}, 63'); A(f's_cbranch_scc1 {lab}')
            A.raw('  buffer_wbl2 sc1')
            A.raw(f'{lab}:')
        A(f's_xor_b32 s{sB}, s{sB}, {W_XT0 ^ W_XT1}')
        A(f's_add_u32 s{sSEG}, s{sSEG}, 7')
        A(f's_add_u32 s{sK}, s{sK}, 1')
        A(f's_cmp_lt_u32 s{sK}, s{sN}')
        A(f's_cbranch_scc1 {L}')
```

```python
import sys, struct
from asmlib import *
from layout import *
import chain as CH
import worker as WK

NAME = 'parallel_sum__memory_aug_recurrent_mem_tr__mixer_channel_mlp__prompt'
KN = NAME + '_kernel'

def table_text():
    out = ['.section .rodata,"a"', '.p2align 8', 'chain_tab:']
    for tid in range(256):
        c = chain_consts(tid >> 6, tid & 63)
        vals = [c[n] for n in CH_CONSTS] + [0]*(32-len(CH_CONSTS))
        out.append('.long ' + ','.join(str(x) for x in vals))
    out += ['.p2align 8', 'worker_tab:']
    for tid in range(256):
        c = worker_consts(tid >> 6, tid & 63)
        vals = [c[n] for n in WK_CONSTS] + [0]*(48-len(WK_CONSTS))
        out.append('.long ' + ','.join(str(x) for x in vals))
    return '\n'.join(out) + '\n'

def build(opt):
    A = Asm()
    hdr = open('cdna_kernels/' + NAME + '.s.ref').read().split('; Override')[0]
    head = hdr + '; @launch grid=(256,1,1) block=(256,1,1) lds=163840\n'
    head += '.amdgcn_target "amdgcn-amd-amdhsa--gfx950"\n.text\n.globl %s\n.p2align 8\n.type %s,@function\n%s:\n' % (KN, KN, KN)
    A('s_cmp_ge_u32 s2, 256')
    A('s_cbranch_scc1 k_end')
    A('s_load_dwordx2 s[14:15], s[0:1], 104')
    A('s_load_dwordx2 s[12:13], s[0:1], 112')
    A('s_getreg_b32 s3, hwreg(HW_REG_XCC_ID, 0, 4)')
    A('s_and_b32 s3, s3, 7')
    if opt.get('fake') == 1: A('s_lshr_b32 s3, s2, 5')
    if opt.get('fake') == 2: A('s_min_u32 s3, s3, 6')
    A('s_getpc_b64 s[28:29]')
    A.raw('  s_add_u32 s28, s28, chain_tab@rel32@lo+4')
    A.raw('  s_addc_u32 s29, s29, chain_tab@rel32@hi+12')
    ch = CH.Chain(A, opt)
    A('v_lshrrev_b32 v1, 6, v0')
    A.wait(lgkm=0)
    A(f'v_readfirstlane_b32 s{CH.sW}, v1')
    A(f's_mov_b32 s{CH.sWS}, s12')
    A(f's_and_b32 s{CH.sWS+1}, s13, 0xffff')
    A(f's_mov_b32 s{CH.sWS+2}, 0x10000000')
    A(f's_mov_b32 s{CH.sWS+3}, 0x20000')
    A('s_lshl_b32 s16, s3, 2')
    A('v_mov_b32 v2, s16')
    A('v_mov_b32 v3, 1')
    A(f's_cmp_eq_u32 s{CH.sW}, 0')
    A('s_cbranch_scc0 k_noatom')
    A('s_mov_b64 exec, 1')
    A.raw('  global_atomic_add v4, v2, v3, s[14:15] sc0')
    A('s_mov_b64 exec, -1')
    A.raw('k_noatom:')
    ch.preload()
    NPF = opt.get('codepf', 0)
    if NPF:
        A.raw('  s_getpc_b64 s[40:41]')
        A.raw('k_pc_ref:')
        A.raw(f'  s_sub_u32 s40, s40, k_pc_ref-{KN}')
        A.raw('  s_subb_u32 s41, s41, 0')
        A.raw('  s_and_b32 s41, s41, 0xffff')
        A.raw(f'  s_mov_b32 s42, k_code_end-{KN}')
        A.raw('  s_mov_b32 s43, 0x20000')
        A.raw('  v_lshlrev_b32 v6, 7, v0')
        for k in range(NPF):
            A.raw(f'  s_mov_b32 s44, {k*32768}')
            A.raw(f'  buffer_load_dword v{7+k}, v6, s[40:43], s44 offen')
    rt_stamp(A, opt, 0, CH.sW, off=OFF_RT)
    def dbg_time(idx, neg=False):
        lab = A.newlabel('dt')
        A.raw(f'  s_cmp_eq_u32 s{CH.sW}, 0'); A.raw(f'  s_cbranch_scc0 {lab}')
        A.raw('  s_memrealtime s[96:97]'); A.raw('  s_waitcnt lgkmcnt(0)')
        if neg: A.raw('  s_not_b32 s96, s96')
        A.raw('  s_mov_b64 exec, 1'); A.raw(f'  v_mov_b32 v62, {idx*4}'); A.raw('  v_mov_b32 v63, s96')
        A.raw('  global_atomic_umax v62, v63, s[14:15]'); A.raw('  s_mov_b64 exec, -1'); A.raw(f'{lab}:')
    self_dbg_time = dbg_time
    if opt.get('dbgt'): dbg_time(10, neg=True)
    A(f's_cmp_eq_u32 s{CH.sW}, 0')
    A('s_cbranch_scc0 k_noticket')
    A('s_mov_b64 exec, 1')
    A('v_mov_b32 v5, 0x27f00')
    A.raw('  s_waitcnt vmcnt(%d)' % ((7 if (opt.get('rt') or opt.get('dbgt')) else 6) + NPF))
    A('ds_write_b32 v5, v4')
    A('s_mov_b64 exec, -1')
    A.raw('  s_waitcnt lgkmcnt(0)')
    A.label('k_noticket')
    A('s_barrier')
    A('v_mov_b32 v5, 0x27f00')
    A('ds_read_b32 v4, v5')
    A.wait(lgkm=0)
    A(f'v_readfirstlane_b32 s{CH.sH}, v4')
    A('s_barrier')
    if opt.get('chain_only'):
        A('s_cmp_eq_u32 s3, 0')
        A('s_cbranch_scc0 k_end')
        A(f's_cmp_ge_u32 s{CH.sH}, 32')
        A('s_cbranch_scc1 k_end')
    else:
        A(f's_cmp_lt_u32 s{CH.sH}, 32')
        A('s_cbranch_scc1 k_role')
        A(f's_cmp_eq_u32 s{CH.sW}, 0')
        A('s_cbranch_scc0 k_ov_w')
        A('s_mov_b64 exec, 1')
        A(f'v_mov_b32 v2, {DBG_OVF*4}')
        A('v_mov_b32 v3, 1')
        A('global_atomic_add v4, v2, v3, s[14:15] sc0')
        A.wait(vm=0)
        A('v_readfirstlane_b32 s20, v4')
        A('s_mov_b64 exec, -1')
        A('v_and_b32 v2, 7, v0'); A('v_lshlrev_b32 v2, 2, v2')
        A('s_mov_b32 s21, 0')
        A.label('k_ov_poll')
        A('global_load_dword v3, v2, s[14:15] sc1')
        A('s_add_u32 s21, s21, 1')
        A.wait(vm=0)
        A('s_mov_b32 s22, 0')
        for x in range(8):
            A(f'v_readlane_b32 s{40+x}, v3, {x}')
        for x in range(8):
            A(f's_add_u32 s22, s22, s{40+x}')
        A('s_cmp_ge_u32 s22, 256')
        A('s_cbranch_scc1 k_ov_done')
        A('s_sleep 4')
        A('s_cmp_lt_u32 s21, 0x40000')
        A('s_cbranch_scc1 k_ov_poll')
        A.label('k_ov_done')
        A('s_mov_b32 s23, 0'); A('s_mov_b32 s24, 0')
        for x in range(7, -1, -1): pass
        A('s_mov_b32 s25, 0')
        for x in range(8):
            lab = A.newlabel('ovx')
            A(f's_cmp_lg_u32 s25, 0'); A(f's_cbranch_scc1 {lab}')
            A(f's_min_u32 s26, s{40+x}, 32'); A('s_sub_u32 s27, 32, s26')
            A('s_cmp_lt_u32 s20, s27')
            l2 = A.newlabel('ovy')
            A(f's_cbranch_scc0 {l2}')
            A(f's_mov_b32 s23, {x}'); A('s_add_u32 s24, s26, s20'); A('s_mov_b32 s25, 1')
            A(f's_branch {lab}')
            A.label(l2)
            A('s_sub_u32 s20, s20, s27')
            A.label(lab)
        A('s_lshl_b32 s23, s23, 8'); A('s_or_b32 s23, s23, s24')
        A('v_mov_b32 v4, s23'); A('v_mov_b32 v5, 0x27f00')
        A('ds_write_b32 v5, v4')
        A.wait(lgkm=0)
        A.label('k_ov_w')
        A('s_barrier')
        A('v_mov_b32 v5, 0x27f00')
        A('ds_read_b32 v4, v5')
        A.wait(lgkm=0)
        A('v_readfirstlane_b32 s20, v4')
        A('s_barrier')
        A('s_lshr_b32 s3, s20, 8')
        A(f's_and_b32 s{CH.sH}, s20, 31')
        A.label('k_role')
        if opt.get('hxor'): A(f's_xor_b32 s{CH.sH}, s{CH.sH}, {opt["hxor"]}')
        A('s_cmp_eq_u32 s3, 0')
        A('s_cbranch_scc0 k_worker')
    if opt.get('nochain'):
        ch.init(short=True)
    else:
        rt_stamp(A, opt, 1, CH.sW, off=OFF_RT)
        ch.init()
        rt_stamp(A, opt, 3, CH.sW, off=OFF_RT)
        if opt.get('dbgt'):
            dbg_time(11)
            A.raw('  s_memtime s[84:85]'); A.raw('  s_waitcnt lgkmcnt(0)')
        if opt.get('rt'):
            A.raw(f'  s_lshl_b32 s95, s2, 6'); A.raw(f'  s_add_u32 s95, s95, {OFF_RT + 6*4}')
            A.raw(f'  v_mov_b32 v62, s{CH.sH}'); A.raw('  v_mov_b32 v63, 0')
            A.raw('  buffer_store_dword v62, v63, s[4:7], s95 offen')
        if opt.get('chain_only'):
            ch.loop(False, 'f')
        else:
            A(f's_cmp_lg_u32 s{CH.sSLOW}, 0')
            A('s_cbranch_scc1 ch_slow_entry')
            ch.loop(False, 'f')
            A('s_branch ch_done')
            A.label('ch_slow_entry')
            ch.loop(True, 's')
            A.label('ch_done')
        rt_stamp(A, opt, 4, CH.sW, off=OFF_RT)
        if opt.get('dbgt'):
            dbg_time(12)
            A.raw('  s_memtime s[86:87]'); A.raw('  s_waitcnt lgkmcnt(0)'); A.raw('  s_sub_u32 s86, s86, s84')
            if opt.get('dbgt') == 1:
                A.raw('  s_mov_b64 exec, 1'); A.raw('  v_mov_b32 v62, 56'); A.raw('  v_mov_b32 v63, s86')
                A.raw('  global_atomic_umax v62, v63, s[14:15]'); A.raw('  s_mov_b64 exec, -1')
    A.wait(vm=0, lgkm=0)
    if opt.get('ts') or opt.get('tt'):
        A.raw('  s_memtime s[86:87]')
        A('s_waitcnt lgkmcnt(0)')
        A(f's_sub_u32 s{CH.sTS+19}, s86, s84')
        A(f's_lshl_b32 s27, s{CH.sH}, 2')
        A(f's_add_u32 s27, s27, s{CH.sW}')
        A(f's_lshl_b32 s27, s27, 7')
        A(f's_add_u32 s27, s27, {OFF_FLAG+0x8000}')
        A(f's_mov_b32 s{CH.sTS+18}, s{CH.sDEAD}')
        A('s_mov_b64 exec, 1')
        A('v_mov_b32 v2, 0')
        for k in range(20):
            A(f'v_mov_b32 v3, s{CH.sTS+k}')
            A(f'buffer_store_dword v3, v2, s[{CH.sWS}:{CH.sWS+3}], s27 offen offset:{4*k}')
        for k in range(8):
            A(f'v_mov_b32 v3, s{88+k}')
            A(f'buffer_store_dword v3, v2, s[{CH.sWS}:{CH.sWS+3}], s27 offen offset:{4*(20+k)}')
        A.wait(vm=0)
    if not opt.get('chain_only'):
        A('s_branch k_end')
        A.label('k_worker')
        A(f's_sub_u32 s{WK.sG}, s3, 1')
        A(f's_cmp_eq_u32 s{WK.sG}, 0')
        A(f's_cselect_b32 s{WK.sN}, 10, 9')
        A(f's_mov_b32 s{WK.sSLOW}, 1')
        A(f's_mov_b32 s53, s3')
        A(f's_mov_b32 s{WK.sDEAD}, 0')
        A('s_getpc_b64 s[30:31]')
        A.raw('  s_add_u32 s30, s30, worker_tab@rel32@lo+4')
        A.raw('  s_addc_u32 s31, s31, worker_tab@rel32@hi+12')
        wk = WK.Worker(A, opt)
        rt_stamp(A, opt, 1, CH.sW, off=OFF_RT)
        if opt.get('warmw', 0): wk.warm_weights()
        wk.layernorm()
        rt_stamp(A, opt, 2, CH.sW, off=OFF_RT)
        if opt.get('passes', 15) & 1: wk.passA()
        rt_stamp(A, opt, 5, CH.sW, off=OFF_RT)
        if opt.get('dbgt') == 2: dbg_time(15)
        if opt.get('passes', 15) & 2: wk.passC()
        rt_stamp(A, opt, 8, CH.sW, off=OFF_RT)
        if opt.get('dbgt') == 2: dbg_time(14)
        if opt.get('passes', 15) & 4: wk.passD()
        rt_stamp(A, opt, 11, CH.sW, off=OFF_RT)
        if opt.get('dbgt'): dbg_time(13)
        A.wait(vm=0, lgkm=0)
    A.label('k_end')
    A('s_endpgm')
    A.raw('k_code_end:')
    tail = f'''
.section .rodata,"a"
.p2align 6
.amdhsa_kernel {KN}
  .amdhsa_next_free_vgpr 512
  .amdhsa_next_free_sgpr 102
  .amdhsa_accum_offset 256
  .amdhsa_group_segment_fixed_size 0
  .amdhsa_kernarg_size 120
  .amdhsa_user_sgpr_count 2
  .amdhsa_user_sgpr_kernarg_segment_ptr 1
  .amdhsa_system_sgpr_workgroup_id_x 1
.end_amdhsa_kernel
'''
    print('nops', A.nops, 'auto waits', A.nwaits, 'lines', len(A.out), file=sys.stderr)
    return head + A.text() + tail + table_text()

if __name__ == '__main__':
    opt = {}
    for a_ in sys.argv[2:]:
        k, _, val = a_.partition('=')
        opt[k] = int(val) if val else 1
    open(sys.argv[1], 'w').write(build(opt))
```

```python
from asmlib import *
from layout import *
import math

vMS,vF0,vF1,vF2,vIDX,vQW,vKW,vQR,vKR,vOW,vRL,vRS = range(1,13)
T13,T14,T15 = 13,14,15
AB0,AB1 = 16,20
AQ0,AQ1,AK0,AK1,AV0,AV1 = 24,28,32,36,40,44
SB0,SB1,SB2 = 48,56,64
WV0 = 72
def frag_alloc():
    m = {}
    regs = [('v', WV0 + 8*k) for k in range((256-WV0)//8)] + [('a', 8*k) for k in range(32)]
    names = []
    for t in range(9):
        for tau in range(2): names.append(('Q',t,tau))
    for t in range(9):
        for tau in range(2): names.append(('V',t,tau))
    names.append(('K',8,1))
    for q in range(9):
        for tp in range(2): names.append(('O',tp,q))
    assert len(names) == len(regs) == 55, (len(names), len(regs))
    for n, r in zip(names, regs): m[n] = r
    return m
FR = frag_alloc()
LF = {}
for t in range(9):
    for tau in range(2):
        if (t, tau) != (8, 1): LF[('K',t,tau)] = 2*t+tau
def freg(name, off=0, cnt=8):
    k, n = FR[name]
    return f'{k}[{n+off}:{n+off+cnt-1}]'
def lf_addr(name, hh):
    f = LF[name]
    base = [vF0, vF1, vF2][f//8]
    return base, (f % 8)*8192 + hh*1024

sWS = 4
sT  = 8
sH, sW, sS = 16, 17, 18
sPBc, sPBn, sPBx = 21, 54, 55
sMBa, sMBb, sMBc = 22, 23, 24
sTASK = 25
sRSO  = 26
sTMP  = 27
sKX, sVX, sKM, sVM = 36, 37, 38, 39
sCv = 40
sMASK = 42
sDEAD = 44
sRL0 = 46
sPBr = 54
sFLAG = 55
sNEED = 56
sLO = 57
sPBl = 59
sWARM = 45
sKXW = 98
sFLC = 99
sR7 = 100
sK7 = 101
sPUB = 19
sCLR = 20
sHI = 56
sHP = 83
sKVF = 82
sKVB = 81
sSLOW = 80
sREP = 55
sTS = 60
PBRING = [OFF_PB, OFF_PB+PBS, OFF_PB+2*PBS]

def smf(A_, d, a_reg, bname_or_reg):
    if isinstance(bname_or_reg, tuple): b = freg(bname_or_reg)
    else: b = v(bname_or_reg, 8)
    return f'v_smfmac_f32_16x16x64_bf16 {v(d,4)}, {v(a_reg,4)}, {b}, {v(vIDX)}'

def interleave(main, fill):
    out = []
    for k, m in enumerate(main):
        out.append(m)
        if k < len(fill): out += fill[k]
    for k in range(len(main), len(fill)): out += fill[k]
    return out

def lfread(dst, name):
    r = []
    for hh in range(2):
        b, off = lf_addr(name, hh)
        r.append(f'ds_read_b128 {v(dst+4*hh,4)}, {v(b)} offset:{off}')
    return r

def aread(dst, t):
    return f'ds_read_b128 {v(dst,4)}, {v(vMS)} offset:{L_MEMST-BASE_MS+t*1024}'

class Chain:
    def __init__(self, A, opt):
        self.A = A; self.opt = opt
    def ts(self, k):
        if self.opt.get('upto') == k+100 or self.opt.get('upto') == k:
            self.A.wait(vm=0, lgkm=0)
            self.A('s_branch ch_skip')
        if not self.opt.get('ts'): return
        A = self.A
        A.raw(f'  s_memtime s[{sTS}:{sTS+1}]')
        A.raw(f'  s_waitcnt lgkmcnt(0)')
        A.lgk = []
        A.raw(f'  s_sub_u32 s{sTS+2}, s{sTS}, s{sTS+3}')
        A.raw(f'  s_add_u32 s{sTS+4+k}, s{sTS+4+k}, s{sTS+2}')
        A.raw(f'  s_mov_b32 s{sTS+3}, s{sTS}')

    def at(self, k, adj=0):
        st = self.opt.get('abs')
        if st is None: return
        st += adj
        A = self.A
        lab = A.newlabel('abs')
        A.raw(f'  s_cmp_eq_u32 s{sS}, {st}')
        A.raw(f'  s_cbranch_scc0 {lab}')
        A.raw(f'  s_memtime s[96:97]')
        A.raw(f'  s_waitcnt lgkmcnt(0)')
        A.raw(f'  s_mov_b32 s{88+k}, s96')
        A.raw(f'{lab}:')
    def preload(self):
        A = self.A
        A(f'v_lshlrev_b32 v13, 7, v0')
        for k in range(6): A(f'global_load_dwordx4 v[{16+4*k}:{19+4*k}], v13, s[28:29] offset:{16*k}')
        A(f's_load_dwordx2 s[30:31], s[0:1], 16')
        A(f's_load_dwordx2 s[32:33], s[0:1], 24')
        A(f's_load_dwordx2 s[34:35], s[0:1], 32')
        A(f's_load_dwordx2 s[36:37], s[0:1], 40')
        A(f's_load_dwordx2 s[38:39], s[0:1], 8')
    def init(self, short=False):
        A = self.A; opt = self.opt
        A.wait(vm=0, lgkm=0)
        names = CH_CONSTS
        for k, n in enumerate(names[:12]):
            A(f'v_mov_b32 v{1+k}, v{16+k}')
        vDQ, vDO, vDO8, vTR0, vTR1, vM0 = 28, 29, 30, 31, 32, 33
        ob = [('O', 0, 0), ('O', 0, 2), ('O', 0, 4), ('O', 0, 6), ('O', 1, 0), ('O', 1, 2), ('O', 1, 4), ('O', 1, 6), ('O8',)]
        blocks = []
        if opt.get('ilv', 0):
            for t in range(9): blocks += [('Q', t), ('V', t), ob[t]]
        else:
            for t in range(9): blocks.append(('Q', t))
            for t in range(9): blocks.append(('V', t))
            blocks += ob
        for t in range(9): blocks.append(('K', t))
        assert len(blocks) == 36
        ptr = {'Q': 30, 'K': 32, 'V': 34, 'O': 36, 'O8': 36}
        size = {'Q': D*8192, 'K': D*8192, 'V': D*8192, 'O': 4096*1152, 'O8': 4096*1152}
        A(f's_lshl_b32 s40, s{sH}, 8')
        A(f's_mul_i32 s41, s{sH}, {128*1152}')
        A(f's_lshl_b32 s42, s{sW}, 10')
        cur = [None]
        def issue(n):
            b = blocks[n]; k = b[0]
            sl = n % 9
            if cur[0] != ptr[k]:
                A(f's_mov_b32 s{sT}, s{ptr[k]}')
                A(f's_and_b32 s{sT+1}, s{ptr[k]+1}, 0xffff')
                A(f's_mov_b32 s{sT+2}, {size[k]}')
                A(f's_mov_b32 s{sT+3}, 0x20000')
                cur[0] = ptr[k]
            for y in range(4):
                if k in 'QKV':
                    so = (64*b[1] + 16*y)*8192; base = 40; vo = vDQ
                elif k == 'O':
                    so = (64*b[1] + 32*(y >> 1) + 8*(y & 1))*1152 + b[2]*32; base = 41; vo = vDO
                else:
                    so = (32*(y >> 1) + 8*(y & 1))*1152 + 8*32; base = 41; vo = vDO8
                A(f's_add_u32 s43, s{base}, {so}')
                A(f's_add_u32 m0, s42, {sl*16384 + y*4096}')
                A(f'buffer_load_dwordx4 {v(vo)}, s[{sT}:{sT+3}], s43 offen lds')
        DEPTH = opt.get("depth", 6)
        if not short:
            for n in range(DEPTH): issue(n)
        nclr = 0
        A(f'ds_write_b128 {v(vMS)}, v[34:37] offset:{L_SPARE-BASE_MS}')
        A(f'v_mov_b64 v[40:41], 0')
        A(f'v_mov_b64 v[42:43], 0')
        A(f's_mul_i32 s{sTMP}, s{sH}, {HS}')
        A(f's_mul_i32 s{sTMP+1}, s{sW}, 2304')
        A(f's_add_u32 s{sTMP}, s{sTMP}, s{sTMP+1}')
        A(f's_lshl_b32 s{sLO}, s{sW}, 9')
        A(f's_add_u32 s{sLO}, s{sLO}, {L_QEX-BASE_MS-2048}')
        A(f's_add_u32 s{sPBc}, s{sTMP}, {PBRING[0]-BASE_MS}')
        A(f's_sub_u32 s{sPBl}, s{sPBc}, s{sLO}')
        self.clear_partial(sPBc, init=True); nclr += 3
        A(f'v_mov_b64 v[44:45], -1')
        A(f'v_mov_b64 v[46:47], -1')
        A(f's_mul_i32 s{sTMP}, s{sH}, 1536')
        A(f's_min_u32 s{sTMP+1}, s{sW}, 1'); A(f's_lshl_b32 s{sTMP+1}, s{sTMP+1}, 9')
        A(f's_add_u32 s{sTMP}, s{sTMP}, s{sTMP+1}')
        A(f's_add_u32 s{sTMP}, s{sTMP}, {OFF_MB-BASE_MS}')
        A(f'buffer_store_dwordx4 v[44:47], {v(vMS)}, s[{sWS}:{sWS+3}], s{sTMP} offen sc1'); nclr += 1
        if not opt.get('chain_only'):
            A(f'v_lshrrev_b32 v48, 4, {v(vMS)}')
            A(f'v_and_b32 v48, 63, v48')
            A(f'v_lshlrev_b32 v49, 7, v48')
            A(f's_mul_i32 s{sTMP}, s{sH}, 124'); A(f's_add_u32 s{sTMP}, s{sTMP}, 0x1000')
            A(f'v_mov_b32 v50, s{sTMP}')
            A(f'v_cmp_eq_u32 vcc, 8, v48')
            A(f'v_cndmask_b32 v49, v49, v50, vcc')
            A(f'v_mov_b32 v50, 0')
            A(f's_lshl_b32 s{sTMP}, s{sH}, 2')
            A(f's_add_u32 s{sTMP}, s{sTMP}, {OFF_FLAG}')
            A(f's_mov_b64 exec, 0x1ff')
            A(f'buffer_store_dword v50, v49, s[{sWS}:{sWS+3}], s{sTMP} offen sc1'); nclr += 1
            A(f's_mov_b64 exec, -1')
        if short:
            A.wait(vm=0); A('s_barrier'); self.dbg_add(9)
            return
        TA, TB = 40, 56
        pend = None
        NE = 36 - DEPTH; nearly = 5
        for n in range(36):
            b = blocks[n]; k = b[0]; sl = n % 9
            left = min(35, n + DEPTH - 1) - n
            extra = nclr if n < DEPTH else 0
            if n > NE: extra += nearly
            A.wait(vm=4*left + extra, lgkm=0)
            A('s_barrier')
            if n in (9, 18, 27): rt_stamp(A, opt, 7 + n//9 - 1, sW, off=OFF_RT)
            if n == DEPTH:
                self.dbg_add(9, nowait=True)
            if pend is not None:
                pn, treg = pend
                self.writeback(blocks[pn], treg); pend = None
            if n + DEPTH < 36: issue(n + DEPTH)
            if n == NE:
                A(f's_mov_b32 s44, s38'); A(f's_and_b32 s45, s39, 0xffff'); A(f's_mov_b32 s46, {8*1152}'); A(f's_mov_b32 s47, 0x20000')
                A(f's_lshl_b32 s43, s{sW}, 8')
                A(f'buffer_load_dwordx4 v[16:19], v{vM0}, s[44:47], s43 offen')
                A(f'buffer_load_dwordx4 v[20:23], v{vM0}, s[44:47], s43 offen offset:128')
                A(f's_mov_b32 s43, {8*128}')
                A(f'buffer_load_dwordx4 v[24:27], v{vM0}, s[44:47], s43 offen')
                A(f'v_lshrrev_b32 v38, 2, {v(vMS)}'); A(f'v_and_b32 v38, 60, v38')
                A(f'global_load_dword v38, v38, s[14:15] sc1')
                A(f'v_lshrrev_b32 v39, 4, {v(vMS)}'); A(f'v_and_b32 v39, 1, v39'); A(f'v_lshlrev_b32 v39, 7, v39')
                A(f's_lshl_b32 s43, s{sH}, 2'); A(f's_add_u32 s43, s43, {FL_KV + 128}')
                A(f'buffer_load_dword v39, v39, s[{sWS}:{sWS+3}], s43 offen sc1')
            inplace = n >= 27
            tmp = TA if (n % 2 == 0) else TB
            if k in 'QKV': names = [(k, b[1], 0), (k, b[1], 1)]
            elif k == 'O': names = [('O', b[1], b[2]), ('O', b[1], b[2]+1)]
            else: names = [('O', 0, 8), ('O', 1, 8)]
            for tau in range(2):
                A(f'v_add_u32 v{13+tau}, {sl*16384}, v{vTR0+tau}')
            for tau in range(2):
                nm = names[tau]
                for rr in range(4):
                    off = (32*(rr >> 1) + 4*(rr & 1))*256
                    if nm in FR: dst = freg(nm, 2*rr, 2)
                    else: dst = v(tmp + 8*tau + 2*rr, 2)
                    A(f'ds_read_b64_tr_b16 {dst}, v{13+tau} offset:{off}')
            if inplace: pend = (n, tmp)
        A.wait(lgkm=0)
        A('s_barrier')
        self.writeback(blocks[pend[0]], pend[1])
        A.wait(lgkm=0)
        A('s_barrier')
        rt_stamp(A, opt, 2, sW, off=OFF_RT)
        A.wait(vm=0)
        A(f's_mov_b32 s40, 0x05040100'); A(f's_mov_b32 s41, 0x07060302')
        for q, r in enumerate((16, 20, 24)):
            d = 60 + 4*q
            A(f'v_perm_b32 v{d}, v{r+1}, v{r}, s40'); A(f'v_perm_b32 v{d+1}, v{r+3}, v{r+2}, s40')
            A(f'v_perm_b32 v{d+2}, v{r+1}, v{r}, s41'); A(f'v_perm_b32 v{d+3}, v{r+3}, v{r+2}, s41')
        A(f'ds_write_b128 {v(vF2)}, v[60:63] offset:{L_MEMST-BASE_MS}')
        A(f'ds_write_b128 {v(vF2)}, v[64:67] offset:{L_MEMST-BASE_MS+1024}')
        A(f'ds_write_b128 {v(vMS)}, v[68:71] offset:{L_MEMST-BASE_MS+8192}')
        A(f'v_readlane_b32 s90, v38, 0'); A(f'v_readlane_b32 s91, v38, 9')
        A(f'v_readlane_b32 s92, v39, 0'); A(f'v_readlane_b32 s93, v39, 1')
        A(f's_mov_b32 s{sS}, 0')
        A(f's_mov_b32 s{sMBa}, {OFF_MB-BASE_MS}')
        A(f's_mov_b32 s{sMBb}, {OFF_MB+MBS-BASE_MS}')
        A(f's_mov_b32 s{sMBc}, {OFF_MB+2*MBS-BASE_MS}')
        A(f's_mov_b32 s{sPBr}, {PBRING[0]}')
        A(f's_lshr_b32 s{sTMP}, s{sH}, 3')
        A(f's_mul_i32 s{sTMP+1}, s{sTMP}, 2304')
        A(f's_bfe_u32 s{sTMP+2}, s{sH}, 0x10002')
        A(f's_and_b32 s{sTMP+3}, s{sH}, 3')
        A(f's_lshl_b32 s{sTMP+4}, s{sTMP+2}, 10')
        A(f's_lshl_b32 s{sTMP+5}, s{sTMP+3}, 8')
        A(f's_add_u32 s{sTASK}, s{sTMP+1}, s{sTMP+4}')
        A(f's_add_u32 s{sTASK}, s{sTASK}, s{sTMP+5}')
        A(f's_lshl_b32 s{sTMP+5}, s{sW}, 7')
        A(f's_add_u32 s{sTASK}, s{sTASK}, s{sTMP+5}')
        A(f's_mul_i32 s{sRSO}, s{sTMP}, {9*256}')
        A(f's_add_u32 s{sRSO}, s{sRSO}, s{sTMP+4}')
        A(f's_lshl_b32 s{sTMP+5}, s{sTMP+3}, 6')
        A(f's_add_u32 s{sRSO}, s{sRSO}, s{sTMP+5}')
        A(f's_lshl_b32 s{sTMP+5}, s{sW}, 5')
        A(f's_add_u32 s{sRSO}, s{sRSO}, s{sTMP+5}')
        lab = A.newlabel('ch_t')
        A(f's_cmp_lt_u32 s{sW}, 2')
        A(f's_cbranch_scc1 {lab}')
        A(f's_mov_b32 s{sTASK}, -1')
        A(f's_cmp_eq_u32 s{sW}, 2')
        A(f's_cbranch_scc0 {lab}')
        A(f's_cmp_eq_u32 s{sTMP+3}, 0')
        A(f's_cbranch_scc0 {lab}')
        A(f's_lshl_b32 s{sTMP+5}, s{sTMP+2}, 7')
        A(f's_add_u32 s{sTASK}, s{sTMP+1}, s{sTMP+5}')
        A(f's_add_u32 s{sTASK}, s{sTASK}, 2048')
        A(f's_mul_i32 s{sRSO}, s{sTMP}, {9*256}')
        A(f's_lshl_b32 s{sTMP+5}, s{sTMP+2}, 5')
        A(f's_add_u32 s{sRSO}, s{sRSO}, s{sTMP+5}')
        A(f's_add_u32 s{sRSO}, s{sRSO}, {8*256}')
        A.wait(vm=0, lgkm=0)
        A.label(lab)
        A(f's_add_u32 s{sRL0}, s{sTASK}, {OFF_PB}')
        for n in range(1, 4): A(f's_add_u32 s{sRL0+n}, s{sRL0+n-1}, {8*HS}')
        A(f's_add_u32 s{sRSO}, s{sRSO}, {BASE_MS}')
        A(f's_lshl_b32 s{sHI}, s{sH}, 1'); A(f's_add_u32 s{sHI}, s{sHI}, s{sW}')
        A(f's_lshr_b32 s{sTMP}, s{sH}, 2'); A(f's_add_u32 s{sTMP}, s{sTMP}, 64')
        A(f's_cmp_eq_u32 s{sW}, 2'); A(f's_cselect_b32 s{sHI}, s{sTMP}, s{sHI}')
        A(f's_add_u32 s{sHI}, s{sHI}, {OFF_H2}')
        A(f's_and_b32 s{sHP}, s{sH}, {H2_REP-1}'); A(f's_mul_i32 s{sHP}, s{sHP}, {H2_STR}'); A(f's_add_u32 s{sHP}, s{sHP}, {OFF_H2}')
        A(f's_sub_u32 s{sREP}, s{sW}, 1'); A(f's_lshl_b32 s{sREP}, s{sREP}, 11'); A(f's_add_u32 s{sREP}, s{sREP}, {MB_REP}')
        A(f's_cmp_eq_u32 s{sW}, 0'); A(f's_cselect_b32 s{sREP}, 0, s{sREP}')
        A(f's_and_b32 s{sKXW}, s{sW}, 1')
        A(f's_lshl_b32 s{sKXW}, s{sKXW}, 12')
        A(f's_lshl_b32 s{sWARM}, s{sH}, 13')
        A(f's_add_u32 s{sWARM}, s{sWARM}, s{sKXW}')
        A(f's_add_u32 s{sWARM}, s{sWARM}, {OFF_KXF-BASE_MS+32*8192}')
        A(f's_cmp_ge_u32 s{sW}, 2')
        A(f's_cselect_b32 s{sTMP}, {OFF_VXF-OFF_KXF}, 0')
        A(f's_add_u32 s{sWARM}, s{sWARM}, s{sTMP}')
        A(f's_lshl_b32 s{sTMP}, s{sH}, 13')
        A(f's_add_u32 s{sKX}, s{sTMP}, {OFF_KXF-BASE_MS}')
        A(f's_lshl_b32 s{sTMP+1}, s{sW}, 11')
        A(f's_add_u32 s{sVX}, s{sTMP}, s{sTMP+1}')
        A(f's_add_u32 s{sVX}, s{sVX}, {OFF_VXF-BASE_MS}')
        A(f's_lshl_b32 s{sTMP}, s{sH}, 12')
        A(f's_lshl_b32 s{sTMP+1}, s{sW}, 10')
        A(f's_add_u32 s{sTMP}, s{sTMP}, s{sTMP+1}')
        A(f's_lshr_b32 s{sTMP}, s{sTMP}, 1')
        A(f's_add_u32 s{sKM}, s{sTMP}, {OFF_KMF-BASE_MS//2}')
        A(f's_add_u32 s{sVM}, s{sTMP}, {OFF_VMF-BASE_MS//2}')
        c = DH**-0.5*math.log2(math.e)
        import struct
        cb = struct.unpack('<I', struct.pack('<f', c))[0]
        A(f's_mov_b32 s{sCv}, {cb:#x}')
        A(f's_mov_b32 s{sCv+1}, {cb:#x}')
        A(f's_mov_b32 s{sMASK}, 0x00ff00ff')
        A(f's_mov_b32 s{sMASK+1}, 0x00ff00ff')
        A(f's_mov_b32 s{sDEAD}, 0')
        for k in range(20): A(f's_mov_b32 s{sTS+k}, 0')
        l9 = A.newlabel('i9')
        A(f's_cmp_ge_u32 s91, 32'); A(f's_cbranch_scc1 {l9}')
        self.dbg_wait(9, 32)
        A(f'v_mov_b32 v13, 0')
        A(f'global_load_dword v14, v13, s[14:15] sc1')
        A(f'v_readfirstlane_b32 s90, v14')
        A.label(l9)
        A(f's_cmp_lt_u32 s90, 32')
        A(f's_cselect_b32 s{sSLOW}, 1, 0')
        if opt.get('fake') or opt.get('slow'): A(f's_mov_b32 s{sSLOW}, 1')
        A(f's_lshl_b32 s{sFLC}, s{sH}, 7')
        A(f's_add_u32 s{sFLC}, s{sFLC}, {FL_CH}')
        A(f's_mov_b32 s{sR7}, 0'); A(f's_mov_b32 s{sK7}, 0')
        if not opt.get('chain_only'):
            lk = A.newlabel('ikv')
            A(f's_min_u32 s92, s92, s93')
            A(f's_cmp_ge_u32 s92, 1'); A(f's_cbranch_scc1 {lk}')
            self.kv_wait(); A(f's_mov_b32 s{sR7}, 1'); self.kv_wait()
            A.label(lk)
        A(f's_mov_b32 s{sR7}, 2')
        A(f's_lshl_b32 s{sKVB}, s{sH}, 2'); A(f's_add_u32 s{sKVB}, s{sKVB}, {FL_KV + 128}')
        A(f's_add_u32 s{sKVF}, s{sKVB}, 256')
        for k in range(8): A(f's_mov_b32 s{88+k}, 0')
        self.kx_dma(all_waves=True)
        A.wait(vm=0, lgkm=0)
        A('s_barrier')

    def dbg_add(self, idx, nowait=False):
        A = self.A
        if nowait:
            lab = A.newlabel('dbga'); R = A.raw
            R(f'  s_cmp_eq_u32 s{sW}, 0'); R(f'  s_cbranch_scc0 {lab}')
            R(f'  s_mov_b64 exec, 1'); R(f'  v_mov_b32 v13, {idx*4}'); R(f'  v_mov_b32 v14, 1')
            R(f'  global_atomic_add v13, v14, s[14:15]'); R(f'  s_mov_b64 exec, -1'); R(f'{lab}:')
            return
        lab = A.newlabel('dbga')
        A(f's_cmp_eq_u32 s{sW}, 0')
        A(f's_cbranch_scc0 {lab}')
        A(f's_load_dwordx2 s[{sTMP}:{sTMP+1}], s[0:1], 104') if False else None
        A(f's_mov_b64 exec, 1')
        A(f'v_mov_b32 v13, {idx*4}')
        A(f'v_mov_b32 v14, 1')
        A(f'global_atomic_add v13, v14, s[14:15]')
        A(f's_mov_b64 exec, -1')
        A.wait(vm=0)
        A.label(lab)
    def dbg_wait(self, idx, val):
        A = self.A
        lab = A.newlabel('dbgw'); done = A.newlabel('dbgd')
        A(f's_mov_b32 s{sTMP}, 0')
        A(f'v_mov_b32 v13, {idx*4}')
        A.label(lab)
        A(f'global_load_dword v14, v13, s[14:15] sc1')
        A(f's_add_u32 s{sTMP}, s{sTMP}, 1')
        A.wait(vm=0)
        A(f'v_readfirstlane_b32 s{sTMP+1}, v14')
        A(f's_cmp_ge_u32 s{sTMP+1}, {val}')
        A(f's_cbranch_scc1 {done}')
        A(f's_sleep 2')
        A(f's_cmp_lt_u32 s{sTMP}, 0x40000')
        A(f's_cbranch_scc1 {lab}')
        A(f's_mov_b32 s{sDEAD}, 1')
        A.label(done)
    def writeback(self, b, tmp):
        A = self.A
        k = b[0]
        if k in 'QKV': names = [(k, b[1], 0), (k, b[1], 1)]
        elif k == 'O': names = [('O', b[1], b[2]), ('O', b[1], b[2]+1)]
        else: names = [('O', 0, 8), ('O', 1, 8)]
        for tau in range(2):
            nm = names[tau]
            if nm in FR: continue
            for hh in range(2):
                bs, off = lf_addr(nm, hh)
                A(f'ds_write_b128 {v(bs)}, {v(tmp+8*tau+4*hh,4)} offset:{off}')
    def clear_partial(self, sreg, init=False, fl=None):
        A = self.A
        R = 40 if init else self.NEG
        fl = 'sc1' if init else self.stf
        A(f'buffer_store_dwordx4 {v(R,4)}, {v(vMS)}, s[{sWS}:{sWS+3}], s{sreg} offen {fl}')
        A(f'buffer_store_dwordx4 {v(R,4)}, {v(vMS)}, s[{sWS}:{sWS+3}], s{sreg} offen offset:1024 {fl}')
        A(f's_sub_u32 s{sTMP+1}, s{sreg}, s{sLO}')
        A(f'buffer_store_dword {v(R)}, {v(vQW)}, s[{sWS}:{sWS+3}], s{sTMP+1} offen {fl}')
    def kv_wait(self):
        A = self.A
        lab = A.newlabel('kvw'); done = A.newlabel('kvd')
        A(f's_lshl_b32 s{sTMP}, s{sR7}, 7')
        A(f's_lshl_b32 s{sTMP+1}, s{sH}, 2')
        A(f's_add_u32 s{sTMP}, s{sTMP}, s{sTMP+1}')
        A(f's_add_u32 s{sTMP}, s{sTMP}, {FL_KV + 128}')
        A(f's_mov_b32 s{sTMP+1}, 0')
        A(f'v_mov_b32 v13, 0')
        A.label(lab)
        A(f'buffer_load_dword v14, v13, s[{sWS}:{sWS+3}], s{sTMP} offen sc1')
        A(f's_add_u32 s{sTMP+1}, s{sTMP+1}, 1')
        A.wait(vm=0)
        A(f'v_readfirstlane_b32 s{sTMP+2}, v14')
        A(f's_cmp_gt_u32 s{sTMP+2}, s{sK7}')
        A(f's_cbranch_scc1 {done}')
        A(f's_sleep 2')
        A(f's_cmp_lg_u32 s{sDEAD}, 0')
        A(f's_cbranch_scc1 {done}')
        A(f's_cmp_lt_u32 s{sTMP+1}, 0x40000')
        A(f's_cbranch_scc1 {lab}')
        A(f's_mov_b32 s{sDEAD}, 1')
        A.label(done)
    def kx_dma(self, all_waves=False):
        A = self.A
        A(f's_lshl_b32 s{sTMP}, s{sW}, 11')
        A(f's_add_u32 s{sTMP+1}, s{sKX}, s{sTMP}')
        A(f's_add_u32 m0, s{sTMP}, {L_KXST}')
        A(f'buffer_load_dwordx4 {v(vMS)}, s[{sWS}:{sWS+3}], s{sTMP+1} offen sc1 lds')
        A(f's_add_u32 m0, s{sTMP}, {L_KXST}')
        A(f'buffer_load_dwordx4 {v(vMS)}, s[{sWS}:{sWS+3}], s{sTMP+1} offen offset:1024 sc1 lds')

    def loop(self, slow, tag):
        A = self.A; opt = self.opt
        self.stf = 'sc1' if slow else ''
        L = f'ch_loop_{tag}'
        self.pre_step()
        if opt.get('es', 2) == 2:
            A(f'ds_read_b128 {v(AB0,4)}, {v(vF2)} offset:{L_MEMST-BASE_MS}'); A(f'ds_read_b128 {v(AB1,4)}, {v(vF2)} offset:{L_MEMST-BASE_MS+1024}')
        elif opt.get('es', 2):
            A(aread(AB0, 0)); A(aread(AB1, 1))
        self.wmark = None
        if opt.get('tt') or opt.get('ts'):
            A.raw('  s_memtime s[84:85]')
            A.raw(f'  s_memtime s[{sTS}:{sTS+1}]')
            A.raw('  s_waitcnt lgkmcnt(0)')
            A(f's_mov_b32 s{sTS+3}, s{sTS}')
        A.wait(lgkm=0)
        A.label(L)
        self.step(0, tag)
        if not opt.get('single'): self.step(1, tag)
        A(f's_cmp_lt_u32 s{sS}, {opt.get("nsteps", 64)}')
        A(f's_cbranch_scc1 {L}')
        if not opt.get('chain_only') and opt.get('nsteps', 64) == 64:
            WS = f's[{sWS}:{sWS+3}]'
            A.label(f'ch_last_{tag}')
            A.wait(vm=0, lgkm=0)
            A('s_barrier')
            pf = A.newlabel('pfl')
            A(f's_cmp_eq_u32 s{sW}, 3'); A(f's_cbranch_scc0 {pf}')
            A(f's_mov_b64 exec, 1'); A(f'v_mov_b32 v13, 0'); A(f'v_mov_b32 v14, 64')
            A(f'buffer_store_dword v14, v13, {WS}, s{sFLC} offen sc1'); A(f's_mov_b64 exec, -1')
            A.label(pf)
    def step(self, par, tag):
        A = self.A; opt = self.opt
        stf = self.stf
        WS = f's[{sWS}:{sWS+3}]'
        skip = f'ch_skip_{tag}_{par}'
        self.skip = skip
        if opt.get('cut') and par == 0: A.cut = opt['cut']; A.cutn = 0; A.cutlab = skip
        self.ts(0)
        self.at(0)
        if opt.get('rtsync'):
            A.raw('  s_memrealtime s[94:95]')
            A.raw('  s_waitcnt lgkmcnt(0)')
        for _ in range(opt.get('nop_start', 0)): A('s_nop 7')
        ES = opt.get('es', 2)
        def add(r, x, y): return f'v_add_f32 {v(r)}, {v(x)}, {v(y)}'
        def xread(dst, k4, tau):
            return f'ds_read_b128 {v(dst,4)}, {v(vMS)} offset:{L_KXST-BASE_MS+(k4*2+tau)*1024}'
        X0 = {0: SB0, 1: SB1, 2: SB2, 3: SB1}
        X1 = {0: SB0+4, 1: SB1+4, 2: SB2+4, 3: SB1+4}
        VXR = SB0; PXR = SB1
        cvt = lambda d, x, y: f'v_cvt_pk_bf16_f32 {v(d)}, {v(x)}, {v(y)}'
        qe = [add(AQ0, AQ0, AQ0+2), add(AQ0+1, AQ0+1, AQ0+3), add(AQ1, AQ1, AQ1+2), add(AQ1+1, AQ1+1, AQ1+3),
              cvt(AQ0, AQ0, AQ0+1), cvt(AQ1, AQ1, AQ1+1),
              f'ds_write2_b32 {v(vQW)}, {v(AQ0)}, {v(AQ1)} offset0:0 offset1:64']
        ke = [add(AK0, AK0, AK0+2), add(AK0+1, AK0+1, AK0+3), add(AK1, AK1, AK1+2), add(AK1+1, AK1+1, AK1+3),
              cvt(T14, AK0, AK0+1), cvt(T15, AK1, AK1+1),
              f'ds_write2_b32 {v(vKW)}, {v(T14)}, {v(T14)} offset0:0 offset1:1',
              f'ds_write2_b32 {v(vKW)}, {v(T15)}, {v(T15)} offset0:128 offset1:129']
        def p1(order):
            kseq = [('K', order[p], tau) for p in range(9) for tau in range(2)][:17]
            SB = [SB0, SB1, SB2]
            kreg = {nm: SB[k % 3] for k, nm in enumerate(kseq)}
            Areg = {p: (AB0 if p % 2 == 0 else AB1) for p in range(9)}
            if not ES:
                A(aread(Areg[0], order[0]))
            for x in lfread(SB2, kseq[2]): A(x, nowait=bool(ES))
            nlds = 2
            if ES: A.raw('  s_waitcnt lgkmcnt(4)')
            if not opt.get('chain_only'):
                kf = A.newlabel('kf')
                A.raw(f'  s_cmp_eq_u32 s{sW}, 3')
                A.raw(f'  s_cbranch_scc0 {kf}')
                A.raw(f'  buffer_load_dword {v(vRS)}, off, {WS}, s{sKVF} sc1')
                A.raw(f'{kf}:')
            seq = []
            LAG = 4
            for p in range(9):
                t = order[p]
                kb = lambda tau: (kreg[('K', t, tau)] if ('K', t, tau) in kreg else ('K', t, tau))
                m = [smf(A, AQ0, Areg[p], ('Q', t, 0)), smf(A, AQ1, Areg[p], ('Q', t, 1)),
                     smf(A, AK0, Areg[p], kb(0)), smf(A, AK1, Areg[p], kb(1))]
                f = [[], [], [], []]
                full = p < 9 - LAG
                if full:
                    m += [smf(A, AV0, Areg[p], ('V', t, 0)), smf(A, AV1, Areg[p], ('V', t, 1))]
                    f += [[], []]
                if p < 8 and not (ES and p == 0):
                    if ES and p == 1: f[0].append('@BAR')
                    f[0].append(aread(Areg[p+1], order[p+1]))
                i0 = 2*p
                if i0 + 3 < 17:
                    r = lfread(kreg[kseq[i0]], kseq[i0+3])
                    if full: f[2].append(r[0]); f[3].append(r[1])
                    else: f[2] += r
                if i0 + 4 < 17:
                    r = lfread(kreg[kseq[i0+1]], kseq[i0+4])
                    if full: f[4].append(r[0]); f[5].append(r[1])
                    else: f[3] += r
                if p < 4 and not opt.get('nokx'):
                    f[1].append(f'buffer_load_dword v13, {v(vMS)}, {WS}, s{sWARM} offen offset:{1024*p} sc1')
                if p == 7:
                    f[2].append(aread(SB2, order[5])); f[3].append(aread(SB2+4, order[6]))
                seq += interleave(m, f)
            for x in seq:
                if x == '@BAR':
                    A.wait(lgkm=nlds)
                    A('s_barrier')
                    self.progress_flag()
                    continue
                if x.startswith('ds_'): nlds += 1
                A(x, nowait=x.startswith('buffer_load_dword v13'))
            sv = lambda acc, areg, p, tau: smf(A, acc, areg, ('V', order[p], tau))
            prog = [sv(AV0, AB0, 8, 0), xread(X0[0], 0, 0), sv(AV1, AB0, 8, 1), xread(X1[0], 0, 1)]
            prog += qe + ke
            prog += [sv(AV0, AB1, 7, 0), xread(X0[1], 1, 0), sv(AV1, AB1, 7, 1), xread(X1[1], 1, 1),
                     sv(AV0, SB2, 5, 0), sv(AV1, SB2, 5, 1), sv(AV0, SB2+4, 6, 0), sv(AV1, SB2+4, 6, 1)]
            for x in prog: A(x)
        if ES:
            join = A.newlabel('p1j')
            labs = [A.newlabel('p1w') for _ in range(4)]
            for w_ in range(1, 4):
                A.raw(f'  s_cmp_eq_u32 s{sW}, {w_}'); A.raw(f'  s_cbranch_scc1 {labs[w_]}')
            st0 = (list(A.lgk), list(A.vm), list(A.hist))
            for w_ in range(4):
                A.lgk, A.vm, A.hist = list(st0[0]), list(st0[1]), list(st0[2])
                if w_: A.raw(f'{labs[w_]}:')
                own = [2*w_, 2*w_+1]
                p1(own + [t for t in range(8) if t not in own] + [8])
                if w_ < 3: A.raw(f'  s_branch {join}')
            A.raw(f'{join}:')
        else:
            p1(list(range(9)))
        self.ts(1)
        S0, S1, SM = 24, 28, 32
        def qread(dst, k4):
            return [f'ds_read_b64_tr_b16 {v(dst,2)}, {v(vQR)} offset:{k4*512}',
                    f'ds_read_b64_tr_b16 {v(dst+2,2)}, {v(vQR)} offset:{k4*512+128}']
        def kmread(dst, k4):
            return [f'ds_read_b64_tr_b16 {v(dst,2)}, {v(vKR)} offset:{k4*1024}',
                    f'ds_read_b64_tr_b16 {v(dst+2,2)}, {v(vKR)} offset:{k4*1024+256}']
        Q_ = {0: AB0, 1: 36, 2: AB0, 3: 36}
        KM = {0: AB1, 1: 44, 2: AB1, 3: 44}
        ONES = 16; PM = 20
        def smm(k4):
            c = lambda d: (v(d, 4) if k4 > 0 else '0')
            return [f'v_mfma_f32_16x16x32_bf16 {v(S0,4)}, {v(X0[k4],4)}, {v(Q_[k4],4)}, {c(S0)}',
                    f'v_mfma_f32_16x16x32_bf16 {v(S1,4)}, {v(X1[k4],4)}, {v(Q_[k4],4)}, {c(S1)}',
                    f'v_mfma_f32_16x16x32_bf16 {v(SM,4)}, {v(KM[k4],4)}, {v(Q_[k4],4)}, {c(SM)}']
        ve = [add(AV0, AV0, AV0+2), add(AV0+1, AV0+1, AV0+3), add(AV1, AV1, AV1+2), add(AV1+1, AV1+1, AV1+3),
              cvt(AV0, AV0, AV0+1), cvt(AV0+1, AV1, AV1+1)]
        def vxpub():
            if not opt.get('nokx'):
                A(f'buffer_load_dwordx4 {v(VXR,4)}, {v(vMS)}, {WS}, s{sVX} offen sc1')
                A(f'buffer_load_dwordx4 {v(VXR+4,4)}, {v(vMS)}, {WS}, s{sVX} offen offset:1024 sc1')
            if not opt.get('nopub'):
                A(f'v_lshrrev_b32 {v(43)}, 1, {v(vMS)}')
                A(f'buffer_store_dwordx2 {v(T14,2)}, {v(43)}, {WS}, s{sKM} offen sc1')
                A(f'buffer_store_dwordx2 {v(AV0,2)}, {v(43)}, {WS}, s{sVM} offen sc1')
            if par == 1 and not opt.get('chain_only') and opt.get('nsteps', 64) == 64:
                A.raw(f'  s_cmp_eq_u32 s{sS}, 63')
                A.raw(f'  s_cbranch_scc1 ch_last_{tag}')
        m0 = smm(0); m1 = smm(1); m2 = smm(2); m3 = smm(3)
        A.wait(lgkm=2)
        A('s_barrier')
        self.ts(2)
        for x in qread(Q_[0], 0) + kmread(KM[0], 0) + qread(Q_[1], 1) + [xread(X0[2], 2, 0), xread(X1[2], 2, 1)]: A(x)
        for x in ve: A(x)
        for x in kmread(KM[1], 1): A(x)
        for x in m0: A(x)
        vxpub()
        for x in qread(Q_[2], 2) + kmread(KM[2], 2): A(x)
        for x in m1: A(x)
        for x in [xread(X0[3], 3, 0), xread(X1[3], 3, 1)] + qread(Q_[3], 3) + kmread(KM[3], 3): A(x)
        for x in m2: A(x)
        A(f'v_mov_b32 {v(ONES)}, 0x3f803f80'); A(f'v_mov_b32 {v(ONES+1)}, 0x3f803f80')
        A(f'v_mov_b32 {v(ONES+2)}, 0x3f803f80'); A(f'v_mov_b32 {v(ONES+3)}, 0x3f803f80')
        A(m3[0]); A(f'v_mov_b32 {v(PM+1)}, 0'); A(m3[1]); A(f'v_mov_b32 {v(PM+2)}, 0'); A(m3[2])
        self.ts(3)
        MX, TT = 42, 14
        early0 = [36, 38, 44, 46, 64, 66, 68, 70] if opt.get('ev', 2) == 2 and opt.get('zfill', 0) else []
        ez = [f'v_mov_b64 {v(r,2)}, 0' for r in early0]
        def zf(n):
            for _ in range(n):
                if ez: A(ez.pop(0))
        zf(3)
        A(f'v_max3_f32 {v(MX)}, {v(S0)}, {v(S0+1)}, {v(S0+2)}')
        A(f'v_max3_f32 {v(TT)}, {v(S1)}, {v(S1+1)}, {v(S1+2)}')
        A(f'v_max3_f32 {v(MX)}, {v(MX)}, {v(S0+3)}, {v(S1+3)}')
        A(f'v_max_f32 {v(MX)}, {v(MX)}, {v(TT)}')
        zf(1)
        A(f'v_max3_f32 {v(MX)}, {v(MX)}, {v(SM)}, {v(SM+1)}')
        A(f'v_mov_b32 {v(TT)}, {v(MX)}')
        zf(2)
        A(f'v_permlane16_swap_b32 {v(MX)}, {v(TT)}')
        A(f'v_max_f32 {v(MX)}, {v(MX)}, {v(TT)}')
        A(f'v_mov_b32 {v(TT)}, {v(MX)}')
        zf(2)
        A(f'v_permlane32_swap_b32 {v(MX)}, {v(TT)}')
        A(f'v_max_f32 {v(MX)}, {v(MX)}, {v(TT)}')
        A(f'v_mul_f32 {v(TT)}, s{sCv}, {v(MX)}')
        for r in (S0, S0+2, S1, S1+2, SM):
            A(f'v_pk_fma_f32 {v(r,2)}, {v(r,2)}, s[{sCv}:{sCv+1}], {v(TT,2)} op_sel_hi:[1,1,0] neg_lo:[0,0,1] neg_hi:[0,0,1]')
        for r in (S0, S0+1, S0+2, S0+3, S1, S1+1, S1+2, S1+3, SM, SM+1):
            A(f'v_exp_f32 {v(r)}, {v(r)}')
        PX = PXR
        A(cvt(PX, S0, S0+1)); A(cvt(PX+1, S0+2, S0+3)); A(cvt(PX+2, S1, S1+1)); A(cvt(PX+3, S1+2, S1+3))
        A(cvt(PM, SM, SM+1)); A(cvt(PM+3, SM, SM+1))
        self.ts(4)
        O0, O1, LL = 24, 28, 32
        VX = VXR
        if opt.get('nokx'):
            for r in range(VX, VX+8, 2): A(f'v_mov_b64 {v(r,2)}, 0')
        A(f'v_mfma_f32_16x16x32_bf16 {v(LL,4)}, {v(ONES,4)}, {v(PX,4)}, 0')
        A(f'v_mfma_f32_16x16x32_bf16 {v(O0,4)}, {v(VX,4)}, {v(PX,4)}, 0')
        A(f'v_mfma_f32_16x16x32_bf16 {v(O1,4)}, {v(VX+4,4)}, {v(PX,4)}, 0')
        A(f'v_mfma_f32_16x16x16_bf16 {v(LL,4)}, {v(ONES,2)}, {v(PM,2)}, {v(LL,4)}')
        A(f'v_mfma_f32_16x16x16_bf16 {v(O0,4)}, {v(AV0,2)}, {v(PM,2)}, {v(O0,4)}')
        A(f'v_mfma_f32_16x16x16_bf16 {v(O1,4)}, {v(AV0,2)}, {v(PM+2,2)}, {v(O1,4)}')
        WACC = 36
        MX = 13
        zero = [f'v_mov_b64 {v(WACC+2*k,2)}, 0' for k in range(18) if (WACC+2*k) not in early0]
        zq = list(zero)
        for x in zq[:6]: A(x)
        A(f'v_rcp_f32 {v(MX)}, {v(LL)}')
        A(zq[6])
        for r in range(4): A(f'v_mul_f32 {v(O0+r)}, {v(MX)}, {v(O0+r)}')
        A(cvt(O0, O0, O0+1)); A(cvt(O0+1, O0+2, O0+3))
        for r in range(4): A(f'v_mul_f32 {v(O1+r)}, {v(MX)}, {v(O1+r)}')
        A(cvt(O0+2, O1, O1+1)); A(cvt(O0+3, O1+2, O1+3))
        A(f's_mov_b64 exec, s[{sMASK}:{sMASK+1}]')
        A(f'ds_write_b128 {v(vOW)}, {v(O0,4)}')
        A(f's_mov_b64 exec, -1')
        for x in zq[7:]: A(x)
        A.wait(lgkm=0)
        A('s_barrier')
        self.ts(5)
        OA0, OA1 = 16, 20
        A(f'ds_read_b128 {v(OA0,4)}, {v(vMS)} offset:{L_OEX-BASE_MS}')
        A(f'ds_read_b128 {v(OA1,4)}, {v(vMS)} offset:{L_OEX-BASE_MS+1024}')
        acc = lambda q: WACC + 4*q
        def wo(q, tp):
            return f'v_smfmac_f32_16x16x64_bf16 {v(acc(q),4)}, {v(OA0 if tp == 0 else OA1,4)}, {freg(("O", tp, q))}, {v(vIDX)}'
        def epi(q):
            dst = 24 + q
            tagop = f'v_or_b32 {v(dst)}, 1, {v(dst)}' if par == 0 else f'v_and_b32 {v(dst)}, -2, {v(dst)}'
            return [add(acc(q), acc(q), acc(q)+2), add(acc(q)+1, acc(q)+1, acc(q)+3), cvt(dst, acc(q), acc(q)+1), tagop]
        st = lambda r, off: f'buffer_store_dwordx4 {v(r,4)}, {v(vMS)}, {WS}, s{sPBc} offen offset:{off} {stf}'
        prog = []; pend = []
        WV = opt.get('wov', 0)
        if WV == 0:
            for q in range(9):
                prog.append(wo(q, 0))
                if pend: prog.append(pend.pop(0))
                if q >= 2 and pend: prog.append(pend.pop(0))
                prog.append(wo(q, 1))
                if pend: prog.append(pend.pop(0))
                if q >= 2 and pend: prog.append(pend.pop(0))
                if q >= 2:
                    pend += epi(q-2)
                    if q-2 == 3: pend.append(st(24, 0))
            prog += [f'ds_read_b128 {v(16,4)}, {v(vMS)} offset:{L_SPARE-BASE_MS}']
            prog += pend
            prog += epi(7) + [st(28, 1024)] + epi(8)
            prog += [f'buffer_store_dword {v(32)}, {v(vQW)}, {WS}, s{sPBl} offen {stf}']
        else:
            order = [8, 0, 1, 2, 3, 4, 5, 6, 7]
            st2 = lambda r, off: f'buffer_store_dwordx2 {v(r,2)}, {v(vMS)}, {WS}, s{sPBc} offen offset:{off} {stf}'
            after = {8: [f'buffer_store_dword {v(32)}, {v(vQW)}, {WS}, s{sPBl} offen {stf}'], 3: [st(24, 0)], 5: [st2(28, 1024)], 7: [st2(30, 1024+8)]}
            for n, q in enumerate(order):
                prog.append(wo(q, 0))
                for _ in range(2):
                    if pend: prog.append(pend.pop(0))
                prog.append(wo(q, 1))
                for _ in range(2 if n < 8 else 0):
                    if pend: prog.append(pend.pop(0))
                if n >= 1:
                    qq = order[n-1]
                    pend += epi(qq) + after.get(qq, [])
            prog += [f'ds_read_b128 {v(16,4)}, {v(vMS)} offset:{L_SPARE-BASE_MS}']
            prog += pend + epi(7) + after[7]
        for x in prog: A(x)
        self.ts(6)
        self.at(1)
        if opt.get('log') or opt.get('logtp'):
            A.raw('  s_memrealtime s[90:91]')
            A.raw('  s_mov_b32 s92, 0')
        nored = A.newlabel('nored')
        gat = A.newlabel('gat')
        sG = 58
        def shadow():
            for r in range(AQ0, (AV0 if opt.get('gdbl') else AV1+4), 2): A(f'v_mov_b64 {v(r,2)}, 0')
            A(f's_add_u32 s{sPUB}, s{sMBb}, s{sRSO}')
            A(f's_add_u32 s{sCLR}, s{sMBa}, s{sRSO}')
            A(f's_mov_b32 s{sG}, s{sMBb}')
            A(f's_mov_b32 s{sTMP}, s{sMBa}'); A(f's_mov_b32 s{sMBa}, s{sMBb}'); A(f's_mov_b32 s{sMBb}, s{sMBc}'); A(f's_mov_b32 s{sMBc}, s{sTMP}')
            A(f's_add_u32 s{sVX}, s{sVX}, {32*8192}')
            A(f's_add_u32 s{sWARM}, s{sWARM}, {32*8192}')
            A(f's_add_u32 s{sKM}, s{sKM}, {32*2048}')
            A(f's_add_u32 s{sVM}, s{sVM}, {32*2048}')
            A(f's_add_u32 s{sS}, s{sS}, 1')
            if opt.get('hint'):
                A(f'v_lshrrev_b32 {v(T15)}, 4, {v(vMS)}')
                A(f'v_and_b32 {v(T15)}, 63, {v(T15)}')
                A(f'v_lshlrev_b32 {v(T15)}, {H2_STR.bit_length()-1}, {v(T15)}')
        def shadow2():
            A(f's_add_u32 s{sR7}, s{sR7}, 1')
            A(f's_cmp_eq_u32 s{sR7}, 7')
            A(f's_cselect_b32 s{sR7}, 0, s{sR7}')
            A(f's_addc_u32 s{sK7}, s{sK7}, 0')
            A(f's_lshl_b32 s{sKVF}, s{sR7}, 7')
            A(f's_add_u32 s{sKVF}, s{sKVF}, s{sKVB}')
            zb = 68 if opt.get('es', 2) == 1 else 64
            A(f'v_mov_b64 {v(zb,2)}, 0')
            A(f'v_mov_b64 {v(zb+2,2)}, 0')
            if opt.get('gdbl'):
                A(f'v_mov_b64 {v(68,2)}, 0'); A(f'v_mov_b64 {v(70,2)}, 0')
        def prefill(): pass
        if not opt.get('nohop'):
            A(f's_cmp_eq_u32 s{sTASK}, -1')
            A(f's_cbranch_scc1 {nored}')
            self.reducer(par, shadow, shadow2)
            prefill()
            A(f's_branch {gat}')
            A.label(nored)
            if not opt.get('chain_only'):
                nk = A.newlabel('nkv')
                A(f's_cmp_eq_u32 s{sW}, 3'); A(f's_cbranch_scc0 {nk}')
                A(f's_cmp_lt_u32 s{sS}, 62'); A(f's_cbranch_scc0 {nk}')
                A(f'v_readfirstlane_b32 s{sTMP+2}, {v(vRS)}')
                A(f's_cmp_gt_u32 s{sTMP+2}, s{sK7}'); A(f's_cbranch_scc1 {nk}')
                self.kv_wait()
                A.label(nk)
            if not opt.get('nokx'): self.next_kx()
            shadow(); shadow2(); prefill()
            if opt.get('hint'): self.hint_poll()
            A.label(gat)
        else:
            A.cut = None
            A.raw(f'{skip}:')
            shadow(); shadow2()
        self.k_prefetch()
        if opt.get('gbar', 1) and not opt.get('nohop'): A('s_barrier')
        ES = opt.get('es', 2)
        self.wmark = None
        if not opt.get('nohop'): self.gather(sG)
        elif ES:
            A(f'ds_read_b128 {v(AB0,4)}, {v(vF2)} offset:{L_MEMST-BASE_MS}'); A(f'ds_read_b128 {v(AB1,4)}, {v(vF2)} offset:{L_MEMST-BASE_MS+1024}'); A.wait(lgkm=0)
        self.ts(8)
        if not ES:
            A.wait(vm=0, lgkm=0)
            A('s_barrier')
        if opt.get('log') or opt.get('logst'):
            A.raw('  s_memrealtime s[94:95]')
            A.raw(f'  s_lshl_b32 s96, s{sH}, 2')
            A.raw(f'  s_add_u32 s96, s96, s{sW}')
            A.raw(f'  s_lshl_b32 s96, s96, 6')
            A.raw(f'  s_add_u32 s96, s96, s{sS}')
            A.raw(f'  s_lshl_b32 s96, s96, 4')
            A.raw(f'  s_add_u32 s96, s96, {0x8000000 - 16}')
            A.raw('  s_waitcnt lgkmcnt(0)')
            A.raw('  s_mov_b64 exec, 1')
            A.raw('  v_mov_b32 v68, s90'); A.raw('  v_mov_b32 v69, s94'); A.raw('  v_mov_b32 v70, s92'); A.raw(f'  v_mov_b32 v71, s{sTMP+2}')
            A.raw('  v_mov_b32 v13, 0')
            A.raw(f'  buffer_store_dwordx4 v[68:71], v13, {WS}, s96 offen')
            A.raw('  s_mov_b64 exec, -1')
        if not opt.get('es', 2): self.progress_flag()
    def progress_flag(self):
        A = self.A; opt = self.opt
        WS = f's[{sWS}:{sWS+3}]'
        if not opt.get('chain_only'):
            pf = A.newlabel('pf')
            A.raw(f'  s_cmp_eq_u32 s{sW}, 3')
            A.raw(f'  s_cbranch_scc0 {pf}')
            A.raw(f'  s_mov_b64 exec, 1')
            A.raw(f'  v_mov_b32 v14, s{sS}')
            A.raw(f'  buffer_store_dword v14, off, {WS}, s{sFLC} sc1')
            A.raw(f'  s_mov_b64 exec, -1')
            A.raw(f'{pf}:')
    def next_kx(self):
        A = self.A
        lab = A.newlabel('nkx')
        R = A.raw
        WS = f's[{sWS}:{sWS+3}]'
        R(f'  s_cmp_eq_u32 s{sW}, 3')
        R(f'  s_cbranch_scc0 {lab}')
        R(f'  s_add_u32 s{sKX}, s{sKX}, {32*8192}')
        R(f'  s_mov_b32 m0, {L_KXST}')
        R(f'  s_add_u32 s{sTMP+2}, s{sKX}, 4096')
        for k in range(4):
            R(f'  buffer_load_dwordx4 {v(vMS)}, {WS}, s{sKX} offen offset:{1024*k} sc1 lds')
        R(f'  s_mov_b32 m0, {L_KXST+4096}')
        R(f'  s_nop 0')
        for k in range(4):
            R(f'  buffer_load_dwordx4 {v(vMS)}, {WS}, s{sTMP+2} offen offset:{1024*k} sc1 lds')
        R(f'{lab}:')
    def k_prefetch(self):
        A = self.A
        if self.opt.get('es', 2) == 2:
            A(f's_lshl_b32 s{sTMP}, s{sW}, 15')
            A(f'v_add_u32 {v(T15)}, s{sTMP}, {v(vF0)}')
            for d, off in ((SB0, 0), (SB0+4, 1024), (SB1, 8192), (SB1+4, 9216)):
                A(f'ds_read_b128 {v(d,4)}, {v(T15)} offset:{off}', nowait=True)
        else:
            for x in lfread(SB0, ('K', 0, 0)) + lfread(SB1, ('K', 0, 1)): A(x, nowait=True)
    def pre_step(self):
        A = self.A
        for r in range(AQ0, AV1+4, 2): A(f'v_mov_b64 {v(r,2)}, 0')
        self.k_prefetch()
    def reducer(self, par, shadow, shadow2):
        A = self.A; opt = self.opt
        R = A.raw
        WS = f's[{sWS}:{sWS+3}]'
        SEL, ACC = 16, 20
        NL = 4
        ld = [48 + 4*n for n in range(NL)]
        bop = '0x80' if par == 0 else '0xfe'
        lab = A.newlabel('redp'); ok = A.newlabel('redok')
        spin = opt.get('rspin', 0)
        A(f's_mov_b32 s{sTMP+2}, 0')
        def issue(raw=False):
            for n in range(NL):
                t = f'buffer_load_dwordx4 {v(ld[n],4)}, {v(vRL)}, {WS}, s{sRL0+n} offen sc1'
                (R('  ' + t) if raw else A(t))
        flat = [ld[n] + k for n in range(NL) for k in range(4)]
        chk = [f'v_bitop3_b32 {v(T13)}, {v(flat[0])}, {v(flat[1])}, {v(flat[2])} bitop3:{bop}']
        k = 3
        while k < 4*NL:
            b = flat[k+1] if k + 1 < 4*NL else flat[k]
            chk.append(f'v_bitop3_b32 {v(T13)}, {v(T13)}, {v(flat[k])}, {v(b)} bitop3:{bop}')
            k += 2
        fin = [f'v_and_b32 {v(T13)}, 1, {v(T13)}', f'v_cmp_{"eq" if par == 0 else "ne"}_u32 vcc, 0, {v(T13)}']
        if opt.get('shfirst', 1):
            shadow(); shadow2()
            for _ in range(opt.get('nop_red', 0)): A(f's_nop 7')
            self.at(2, 1)
            issue()
        else:
            for _ in range(opt.get('nop_red', 0)): A(f's_nop 7')
            self.at(2)
            issue()
            shadow(); shadow2()
        A.wait(lgkm=0)
        ci = 0
        for n in range(NL):
            A(f'v_mfma_f32_16x16x32_bf16 {v(ACC,4)}, {v(ld[n],4)}, {v(SEL,4)}, {v(ACC,4) if n else 0}')
            while ci < len(chk) and max(r[1] for r in I(chk[ci]).rd if r[0] == 'v' and r[1] >= 48) <= ld[n] + 3:
                A(chk[ci]); ci += 1
        A(f's_add_u32 s{sTMP+2}, s{sTMP+2}, 1')
        for c in fin: A(c)
        A(f's_cbranch_vccz {ok}')
        R(f'{lab}:')
        issue(True)
        R(f'  s_add_u32 s{sTMP+2}, s{sTMP+2}, 1')
        if spin:
            for q in range(spin):
                for c in chk + fin: R('  ' + c)
                R(f'  s_cbranch_vccz {ok}_m')
        elif opt.get('rfast', 1):
            ci = 0
            for n in range(NL):
                R(f'  s_waitcnt vmcnt({NL-1-n})')
                R(f'  v_mfma_f32_16x16x32_bf16 {v(ACC,4)}, {v(ld[n],4)}, {v(SEL,4)}, {v(ACC,4) if n else 0}')
                while ci < len(chk) and max(r[1] for r in I(chk[ci]).rd if r[0] == 'v' and r[1] >= 48) <= ld[n] + 3:
                    R('  ' + chk[ci]); ci += 1
            R('  s_nop 0')
            for c in fin: R('  ' + c)
            R(f'  s_cbranch_vccz {ok}')
        else:
            R(f'  s_waitcnt vmcnt(0)')
            for c in chk + fin: R('  ' + c)
            R(f'  s_cbranch_vccz {ok}_m')
        R(f'  s_cmp_lg_u32 s{sDEAD}, 0')
        R(f'  s_cbranch_scc1 {ok}_d')
        R(f'  s_cmp_lt_u32 s{sTMP+2}, 0x10000')
        R(f'  s_cbranch_scc1 {lab}')
        R(f'  s_mov_b32 s{sDEAD}, 1')
        R(f'{ok}_d:')
        R(f'  s_waitcnt vmcnt(0)')
        R(f'{ok}_m:')
        for n in range(NL):
            R(f'  v_mfma_f32_16x16x32_bf16 {v(ACC,4)}, {v(ld[n],4)}, {v(SEL,4)}, {v(ACC,4) if n else 0}')
        R(f'  s_nop 5')
        R(f'{ok}:')
        A(f's_nop 1')
        A(f'v_permlane32_swap_b32 {v(ACC)}, {v(ACC+1)}')
        A(f'v_permlane32_swap_b32 {v(ACC+2)}, {v(ACC+3)}')
        A(f'v_add_f32 {v(ACC)}, {v(ACC)}, {v(ACC+1)}')
        A(f'v_add_f32 {v(ACC+2)}, {v(ACC+2)}, {v(ACC+3)}')
        A(f'v_cvt_pk_bf16_f32 {v(ACC)}, {v(ACC)}, {v(ACC+2)}')
        A(f's_mov_b64 exec, s[{sMASK}:{sMASK+1}]')
        A(f'buffer_store_dword {v(ACC)}, {v(vRS)}, {WS}, s{sPUB} offen {self.stf}')
        if opt.get('es', 2) == 1:
            lr = A.newlabel('rep')
            R(f'  s_cmp_lt_u32 s{sH}, 8'); R(f'  s_cbranch_scc0 {lr}')
            R(f'  s_cmp_lt_u32 s{sW}, 2'); R(f'  s_cbranch_scc0 {lr}')
            R(f'  s_add_u32 s{sTMP}, s{sPUB}, {MB_REP}')
            R(f'  buffer_store_dword {v(ACC)}, {v(vRS)}, {WS}, s{sTMP} offen {self.stf}')
            R(f'  buffer_store_dword {v(ACC)}, {v(vRS)}, {WS}, s{sTMP} offen offset:2048 {self.stf}')
            R(f'  s_add_u32 s{sTMP}, s{sTMP}, 4096')
            R(f'  buffer_store_dword {v(ACC)}, {v(vRS)}, {WS}, s{sTMP} offen {self.stf}')
            R(f'{lr}:')
        A(f'v_mov_b32 {v(ACC+2)}, -1')
        A(f'buffer_store_dword {v(ACC+2)}, {v(vRS)}, {WS}, s{sCLR} offen {self.stf}')
        if opt.get('es', 2) == 1:
            lr = A.newlabel('repc')
            R(f'  s_cmp_lt_u32 s{sH}, 8'); R(f'  s_cbranch_scc0 {lr}')
            R(f'  s_cmp_lt_u32 s{sW}, 2'); R(f'  s_cbranch_scc0 {lr}')
            R(f'  s_add_u32 s{sTMP}, s{sCLR}, {MB_REP}')
            R(f'  buffer_store_dword {v(ACC+2)}, {v(vRS)}, {WS}, s{sTMP} offen {self.stf}')
            R(f'  buffer_store_dword {v(ACC+2)}, {v(vRS)}, {WS}, s{sTMP} offen offset:2048 {self.stf}')
            R(f'  s_add_u32 s{sTMP}, s{sTMP}, 4096')
            R(f'  buffer_store_dword {v(ACC+2)}, {v(vRS)}, {WS}, s{sTMP} offen {self.stf}')
            R(f'{lr}:')
        if opt.get('hint'):
            A(f's_mov_b64 exec, {(1<<H2_REP)-1}')
            A(f'v_mov_b32 {v(ACC+3)}, s{sS}')
            A(f'buffer_store_byte {v(ACC+3)}, {v(T15)}, {WS}, s{sHI} offen {self.stf}')
        A(f's_mov_b64 exec, -1')
        A(f's_waitcnt vmcnt({3 if opt.get("hint") else 2})')
        A.reset()
        A(f's_add_u32 s{sTS+16}, s{sTS+16}, s{sTMP+2}')
        if opt.get('log'): A.raw(f'  s_mov_b32 s92, s{sTMP+2}')
        self.at(3, 1)
        self.ts(7)
    def hint_poll(self):
        A = self.A; opt = self.opt; R = A.raw
        WS = f's[{sWS}:{sWS+3}]'
        skip = A.newlabel('hs'); lab = A.newlabel('hp'); ok = A.newlabel('hok')
        HR = [68, 69, 70, 71]
        R(f'  s_cmp_eq_u32 s{sW}, 3')
        R(f'  s_cbranch_scc0 {skip}')
        R(f'  s_and_b32 s{sTMP}, s{sS}, 0xff')
        R(f'  s_mul_i32 s{sTMP}, s{sTMP}, 0x01010101')
        R(f'  v_lshrrev_b32 v13, 2, {v(vMS)}')
        R(f'  v_and_b32 v13, 0xff, v13')
        R(f'  s_mov_b64 exec, 0x3ffff')
        R(f'  s_mov_b32 s{sTMP+1}, 0')
        for _ in range(opt.get('nop_hint', 0)): R('  s_nop 7')
        for k in range(3):
            R(f'  buffer_load_dword v{HR[k]}, v13, {WS}, s{sHP} offen sc1')
            R(f'  s_nop {opt.get("hgap", 7)}')
        R(f'{lab}:')
        for k in range(4):
            R(f'  buffer_load_dword v{HR[(k+3)%4]}, v13, {WS}, s{sHP} offen sc1')
            R(f'  s_waitcnt vmcnt(3)')
            R(f'  v_cmp_ne_u32 vcc, s{sTMP}, v{HR[k]}')
            R(f'  s_cbranch_vccz {ok}')
        R(f'  s_add_u32 s{sTMP+1}, s{sTMP+1}, 1')
        R(f'  s_cmp_lg_u32 s{sDEAD}, 0')
        R(f'  s_cbranch_scc1 {ok}')
        R(f'  s_cmp_lt_u32 s{sTMP+1}, 0x8000')
        R(f'  s_cbranch_scc1 {lab}')
        R(f'  s_mov_b32 s{sDEAD}, 1')
        R(f'{ok}:')
        R(f'  s_mov_b64 exec, -1')
        R(f'{skip}:')
        A.reset()
    def gather(self, sG):
        if self.opt.get('es', 2) == 1: return self.gather_es(sG)
        A = self.A; opt = self.opt
        WS = f's[{sWS}:{sWS+3}]'
        lab = A.newlabel('gatp'); ok = A.newlabel('gatok'); okb = A.newlabel('gatokb'); fin = A.newlabel('gatfin')
        R = A.raw
        DBL = opt.get('gdbl', 0)
        SA = (16, 20, 64); SBb = (40, 44, 68)
        A(f's_mov_b32 s{sTMP+2}, 0')
        A(f's_add_u32 s{sTMP+1}, s{sG}, 8192')
        for _ in range(opt.get('nop_gat', 0)): A(f's_nop 7')
        self.at(4, 1)
        def issue(G):
            l3 = A.newlabel('gat3')
            R(f'  buffer_load_dwordx4 {v(G[0],4)}, {v(vF2)}, {WS}, s{sG} offen sc1')
            R(f'  buffer_load_dwordx4 {v(G[1],4)}, {v(vF2)}, {WS}, s{sG} offen offset:1024 sc1')
            R(f'  s_cmp_eq_u32 s{sW}, 3')
            R(f'  s_cbranch_scc0 {l3}')
            R(f'  buffer_load_dwordx4 {v(G[2],4)}, {v(vMS)}, {WS}, s{sTMP+1} offen sc1')
            R(f'{l3}:')
        def check(G, target):
            G0, G1, G2 = G
            R(f'  v_max3_u32 {v(T13)}, {v(G0)}, {v(G0+1)}, {v(G0+2)}')
            R(f'  v_max3_u32 {v(T14)}, {v(G1)}, {v(G1+1)}, {v(G1+2)}')
            R(f'  v_max3_u32 {v(T13)}, {v(T13)}, {v(G0+3)}, {v(G1+3)}')
            R(f'  v_max3_u32 {v(T14)}, {v(T14)}, {v(G2)}, {v(G2+1)}')
            R(f'  v_max3_u32 {v(T13)}, {v(T13)}, {v(G2+2)}, {v(G2+3)}')
            R(f'  v_max_u32 {v(T13)}, {v(T13)}, {v(T14)}')
            R(f'  v_cmp_eq_u32 vcc, -1, {v(T13)}')
            R(f'  s_cbranch_vccz {target}')
        def writes(G):
            l3b = A.newlabel('gat3b')
            R(f'  ds_write_b128 {v(vF2)}, {v(G[0],4)} offset:{L_MEMST-BASE_MS}')
            R(f'  ds_write_b128 {v(vF2)}, {v(G[1],4)} offset:{L_MEMST-BASE_MS+1024}')
            R(f'  s_cmp_eq_u32 s{sW}, 3')
            R(f'  s_cbranch_scc0 {l3b}')
            R(f'  ds_write_b128 {v(vMS)}, {v(G[2],4)} offset:{L_MEMST-BASE_MS+8192}')
            R(f'{l3b}:')
        issue(SA)
        R(f'  s_add_u32 s{sTMP+2}, s{sTMP+2}, 1')
        if DBL:
            for _ in range(DBL): R('  s_nop 7')
            issue(SBb)
            l3 = A.newlabel('gw')
            R(f'  s_cmp_eq_u32 s{sW}, 3'); R(f'  s_cbranch_scc1 {l3}')
            R(f'  s_waitcnt vmcnt(2)'); R(f'  s_branch {l3}_j')
            R(f'{l3}:'); R(f'  s_waitcnt vmcnt(3)'); R(f'{l3}_j:')
            check(SA, ok)
            R(f'  s_add_u32 s{sTMP+2}, s{sTMP+2}, 1')
            R(f'  s_waitcnt vmcnt(0)')
            check(SBb, okb)
        else:
            R(f'  s_waitcnt vmcnt(0)')
            check(SA, ok)
        R(f'{lab}:')
        issue(SA)
        R(f'  s_add_u32 s{sTMP+2}, s{sTMP+2}, 1')
        R(f'  s_waitcnt vmcnt(0)')
        check(SA, ok)
        R(f'  s_cmp_lg_u32 s{sDEAD}, 0')
        R(f'  s_cbranch_scc1 {ok}')
        R(f'  s_cmp_lt_u32 s{sTMP+2}, 0x10000')
        R(f'  s_cbranch_scc1 {lab}')
        R(f'  s_mov_b32 s{sDEAD}, 1')
        R(f'{ok}:')
        writes(SA)
        if DBL:
            R(f'  s_branch {fin}')
            R(f'{okb}:')
            writes(SBb)
            R(f'{fin}:')
        A.reset()
        A(f's_add_u32 s{sTS+17}, s{sTS+17}, s{sTMP+2}')
        self.at(5, 1)

    def gather_es(self, sG):
        A = self.A; opt = self.opt
        WS = f's[{sWS}:{sWS+3}]'
        lab = A.newlabel('gatp'); ok = A.newlabel('gatok')
        R = A.raw
        E0, E1, G2, G3 = AB0, AB1, 64, 68
        A(f's_mov_b32 s{sTMP+2}, 0')
        A(f's_add_u32 s{sTMP+1}, s{sG}, 2048')
        A(f's_add_u32 s{sTMP+3}, s{sG}, s{sREP}')
        for _ in range(opt.get('nop_gat', 0)): A(f's_nop 7')
        self.at(4, 1)
        def issue():
            l3 = A.newlabel('gat3')
            R(f'  buffer_load_dwordx4 {v(E0,4)}, {v(vMS)}, {WS}, s{sTMP+3} offen sc1')
            R(f'  buffer_load_dwordx4 {v(E1,4)}, {v(vMS)}, {WS}, s{sTMP+3} offen offset:1024 sc1')
            R(f'  buffer_load_dwordx4 {v(G2,4)}, {v(vF2)}, {WS}, s{sTMP+1} offen sc1')
            R(f'  s_cmp_eq_u32 s{sW}, 3')
            R(f'  s_cbranch_scc1 {l3}')
            R(f'  buffer_load_dwordx4 {v(G3,4)}, {v(vF2)}, {WS}, s{sTMP+1} offen offset:1024 sc1')
            R(f'{l3}:')
        def check():
            R(f'  s_waitcnt vmcnt(0)')
            R(f'  v_max3_u32 {v(T13)}, {v(E0)}, {v(E0+1)}, {v(E0+2)}')
            R(f'  v_max3_u32 {v(T14)}, {v(E1)}, {v(E1+1)}, {v(E1+2)}')
            R(f'  v_max3_u32 {v(T13)}, {v(T13)}, {v(E0+3)}, {v(E1+3)}')
            R(f'  v_max3_u32 {v(T14)}, {v(T14)}, {v(G2)}, {v(G2+1)}')
            R(f'  v_max3_u32 {v(T13)}, {v(T13)}, {v(G2+2)}, {v(G2+3)}')
            R(f'  v_max3_u32 {v(T14)}, {v(T14)}, {v(G3)}, {v(G3+1)}')
            R(f'  v_max3_u32 {v(T13)}, {v(T13)}, {v(G3+2)}, {v(G3+3)}')
            R(f'  v_max_u32 {v(T13)}, {v(T13)}, {v(T14)}')
            R(f'  v_cmp_eq_u32 vcc, -1, {v(T13)}')
            R(f'  s_cbranch_vccz {ok}')
        issue()
        R(f'  s_add_u32 s{sTMP+2}, s{sTMP+2}, 1')
        check()
        R(f'{lab}:')
        issue()
        R(f'  s_add_u32 s{sTMP+2}, s{sTMP+2}, 1')
        check()
        R(f'  s_cmp_lg_u32 s{sDEAD}, 0')
        R(f'  s_cbranch_scc1 {ok}')
        R(f'  s_cmp_lt_u32 s{sTMP+2}, 0x10000')
        R(f'  s_cbranch_scc1 {lab}')
        R(f'  s_mov_b32 s{sDEAD}, 1')
        R(f'{ok}:')
        A.reset()
        l3 = A.newlabel('gat3b')
        A(f'ds_write_b128 {v(vF2)}, {v(G2,4)} offset:{L_MEMST-BASE_MS+2048}')
        R(f'  s_cmp_eq_u32 s{sW}, 3')
        R(f'  s_cbranch_scc1 {l3}')
        R(f'  ds_write_b128 {v(vF2)}, {v(G3,4)} offset:{L_MEMST-BASE_MS+3072}')
        R(f'{l3}:')
        A.lgk.append(set())
        self.wmark = A.lgk[-1]
        A(f's_add_u32 s{sTS+17}, s{sTS+17}, s{sTMP+2}')
        self.at(5, 1)
```

```python
from asmlib import *
from layout import *
import math, struct
def fb(x): return struct.unpack('<I', struct.pack('<f', x))[0]

sWS = 4; sT = 8
sM, sW, sG, sK, sSEG, sN, sSLOW = 16, 17, 18, 19, 20, 21, 22
sTMP = 23
sTAB = 30
sP0 = 32
sA, sB, sC, sD_ = 36, 37, 38, 39
sDEAD = 44
sCv = 40
WS = f's[{sWS}:{sWS+3}]'
TS = f's[{sT}:{sT+3}]'
LO32 = 46
CIDX = {n: k for k, n in enumerate(WK_CONSTS)}

class Worker:
    def __init__(self, A, opt):
        self.A = A; self.opt = opt
    def consts(self, mp):
        A = self.A
        A('v_mul_u32_u24 v255, 192, v0') if False else None
        A(f'v_mov_b32 v{self.vT}, 192')
        A(f'v_mul_u32_u24 v{self.vT}, v{self.vT}, v0')
        for n, r in mp.items():
            A(f'global_load_dword v{r}, v{self.vT}, s[{sTAB}:{sTAB+1}] offset:{4*CIDX[n]}')
        A.wait(vm=0)
    def srd(self, kern_off, size):
        A = self.A
        A(f's_load_dwordx2 s[{sP0}:{sP0+1}], s[0:1], {kern_off}')
        A.wait(lgkm=0)
        A(f's_mov_b32 s{sT}, s{sP0}')
        A(f's_and_b32 s{sT+1}, s{sP0+1}, 0xffff')
        A(f's_mov_b32 s{sT+2}, {size}')
        A(f's_mov_b32 s{sT+3}, 0x20000')
    def dbg_add(self, idx_s=None, idx_c=0):
        A = self.A
        lab = A.newlabel('wda')
        A(f's_cmp_eq_u32 s{sW}, 0')
        A(f's_cbranch_scc0 {lab}')
        A(f's_add_u32 s{sTMP}, s{idx_s}, {idx_c}') if idx_s is not None else A(f's_mov_b32 s{sTMP}, {idx_c}')
        A(f's_lshl_b32 s{sTMP}, s{sTMP}, 2')
        A(f's_mov_b64 exec, 1')
        A(f'v_mov_b32 v60, s{sTMP}')
        A(f'v_mov_b32 v61, 1')
        A(f'global_atomic_add v60, v61, s[14:15]')
        A(f's_mov_b64 exec, -1')
        A.label(lab)
    def dbg_wait(self, idx_s, idx_c, val_s=None, val_c=0, sleep=2, barrier=True):
        A = self.A
        lab = A.newlabel('wdw'); done = A.newlabel('wdd'); skip = A.newlabel('wds')
        A(f's_cmp_eq_u32 s{sW}, 0')
        A(f's_cbranch_scc0 {skip}')
        if idx_s is not None: A(f's_add_u32 s{sTMP}, s{idx_s}, {idx_c}')
        else: A(f's_mov_b32 s{sTMP}, {idx_c}')
        A(f's_lshl_b32 s{sTMP}, s{sTMP}, 2')
        A(f'v_mov_b32 v60, s{sTMP}')
        if val_s is not None: A(f's_mov_b32 s{sTMP+2}, s{val_s}')
        else: A(f's_mov_b32 s{sTMP+2}, {val_c}')
        A(f's_mov_b32 s{sTMP}, 0')
        A.label(lab)
        A(f'global_load_dword v61, v60, s[14:15] sc1')
        A(f's_add_u32 s{sTMP}, s{sTMP}, 1')
        A.wait(vm=0)
        A(f'v_readfirstlane_b32 s{sTMP+1}, v61')
        A(f's_cmp_ge_u32 s{sTMP+1}, s{sTMP+2}')
        A(f's_cbranch_scc1 {done}')
        A(f's_sleep {sleep}')
        A(f's_cmp_lg_u32 s{sDEAD}, 0')
        A(f's_cbranch_scc1 {done}')
        A(f's_cmp_lt_u32 s{sTMP}, 0x40000')
        A(f's_cbranch_scc1 {lab}')
        A(f's_mov_b32 s{sDEAD}, 1')
        A.label(done)
        A.raw(f'{skip}:')
        A.reset()
        if barrier: A('s_barrier')
    def ws_wait(self, off_s, val_s, sleep=2):
        A = self.A
        lab = A.newlabel('www'); done = A.newlabel('wwd'); skip = A.newlabel('wws')
        A(f's_cmp_eq_u32 s{sW}, 0')
        A(f's_cbranch_scc0 {skip}')
        A(f'v_mov_b32 v60, 0')
        A(f's_mov_b32 s{sTMP}, 0')
        A.label(lab)
        A(f'buffer_load_dword v61, v60, {WS}, s{off_s} offen sc1')
        A(f's_add_u32 s{sTMP}, s{sTMP}, 1')
        A.wait(vm=0)
        A(f'v_readfirstlane_b32 s{sTMP+1}, v61')
        A(f's_cmp_ge_u32 s{sTMP+1}, s{val_s}')
        A(f's_cbranch_scc1 {done}')
        near = A.newlabel('wwn'); cont = A.newlabel('wwc')
        A(f's_add_u32 s{sTMP+1}, s{sTMP+1}, 1')
        A(f's_cmp_ge_u32 s{sTMP+1}, s{val_s}')
        A(f's_cbranch_scc1 {near}')
        A(f's_sleep {self.opt.get("farsleep", 24)}')
        A(f's_branch {cont}')
        A.raw(f'{near}:')
        A(f's_sleep {self.opt.get("nearsleep", 3)}')
        A.raw(f'{cont}:')
        A(f's_cmp_lg_u32 s{sDEAD}, 0')
        A(f's_cbranch_scc1 {done}')
        A(f's_cmp_lt_u32 s{sTMP}, 0x40000')
        A(f's_cbranch_scc1 {lab}')
        A(f's_mov_b32 s{sDEAD}, 1')
        A.label(done)
        A.raw(f'{skip}:')
        A.reset()
        A('s_barrier')
    def group_sync(self, ps):
        A = self.A
        skip = A.newlabel('gs'); lab = A.newlabel('gsp'); done = A.newlabel('gsd')
        A(f's_cmp_eq_u32 s{sW}, 0')
        A(f's_cbranch_scc0 {skip}')
        A(f's_lshl_b32 s{sTMP}, s{sG}, 8')
        A(f's_add_u32 s{sTMP}, s{sTMP}, {FL_W + ps*128}')
        A(f's_add_u32 s{sTMP+2}, s{sK}, 1')
        A(f's_lshl_b32 s{sTMP+1}, s{sM}, 2')
        A(f's_mov_b64 exec, 1')
        A(f'v_mov_b32 v60, s{sTMP+1}')
        A(f'v_mov_b32 v61, s{sTMP+2}')
        self.mstore(f'buffer_store_dword v61, v60, {WS}, s{sTMP} offen')
        A(f's_mov_b64 exec, -1')
        A(f'v_mbcnt_lo_u32_b32 v60, -1, 0')
        A(f'v_mbcnt_hi_u32_b32 v60, -1, v60')
        A(f'v_and_b32 v60, 31, v60')
        A(f'v_lshlrev_b32 v60, 2, v60')
        A(f's_mov_b32 s{sTMP+1}, 0')
        A.label(lab)
        A(f'buffer_load_dword v61, v60, {WS}, s{sTMP} offen sc1')
        A(f's_add_u32 s{sTMP+1}, s{sTMP+1}, 1')
        A.wait(vm=0)
        A(f'v_cmp_gt_u32 vcc, s{sTMP+2}, v61')
        A(f's_cbranch_vccz {done}')
        A(f's_cmp_lg_u32 s{sDEAD}, 0')
        A(f's_cbranch_scc1 {done}')
        A(f's_cmp_lt_u32 s{sTMP+1}, 0x100000')
        A(f's_cbranch_scc1 {lab}')
        A(f's_mov_b32 s{sDEAD}, 1')
        A.label(done)
        A.raw(f'{skip}:')
        A.reset()
        A('s_barrier')
    def warm_weights(self):
        A = self.A
        A(f's_load_dwordx2 s[32:33], s[0:1], 16')
        A(f's_load_dwordx2 s[34:35], s[0:1], 32')
        A(f's_load_dwordx2 s[36:37], s[0:1], 40')
        A(f's_load_dwordx2 s[38:39], s[0:1], 24')
        A(f's_lshl_b32 s{sTMP}, s{sG}, 5'); A(f's_add_u32 s{sTMP}, s{sTMP}, s{sM}')
        A(f's_lshl_b32 s{sTMP}, s{sTMP}, 15')
        A(f'v_lshlrev_b32 v10, 7, v0')
        A.wait(lgkm=0)
        sel = {1: (32, 34, 36, 38), 2: (36,), 3: (36, 34)}[self.opt.get('warmw', 1)]
        for k, p in enumerate(sel):
            A(f's_mov_b32 s{sT}, s{p}'); A(f's_and_b32 s{sT+1}, s{p+1}, 0xffff')
            A(f's_mov_b32 s{sT+2}, {D*8192}'); A(f's_mov_b32 s{sT+3}, 0x20000')
            A.raw(f'  buffer_load_dword v{11+k}, v10, {TS}, s{sTMP} offen')
    def layernorm(self):
        A = self.A
        self.vT = 2
        self.consts({'wLNG': 3, 'wLNS': 4})
        A(f's_lshl_b32 s{sTMP}, s{sG}, 8')
        A(f's_lshl_b32 s{sTMP+1}, s{sM}, 2')
        A(f's_add_u32 s{sTMP}, s{sTMP}, s{sTMP+1}')
        A(f's_add_u32 s{sTMP}, s{sTMP}, {FL_W}')
        A(f'v_mov_b32 v60, 0')
        A(f'buffer_store_dword v60, v60, {WS}, s{sTMP} offen sc1')
        A(f'buffer_store_dword v60, v60, {WS}, s{sTMP} offen offset:128 sc1')
        if self.opt.get('fasttail', 1):
            lab = A.newlabel('ftc')
            A(f's_cmp_eq_u32 s{sG}, 0'); A(f's_cbranch_scc0 {lab}')
            A(f'v_mov_b64 v[8:9], -1'); A(f'v_mov_b64 v[10:11], -1')
            A(f'v_lshlrev_b32 v12, 3, v0')
            A(f's_add_u32 s{sTMP}, s{sM}, {63*32}'); A(f's_lshl_b32 s{sTMP}, s{sTMP}, 11')
            A(f's_add_u32 s{sTMP+1}, s{sTMP}, {OFF_KMF}')
            A(f'buffer_store_dwordx2 v[8:9], v12, {WS}, s{sTMP+1} offen sc1')
            A(f's_add_u32 s{sTMP+1}, s{sTMP}, {OFF_VMF}')
            A(f'buffer_store_dwordx2 v[8:9], v12, {WS}, s{sTMP+1} offen sc1')
            A(f'v_lshlrev_b32 v12, 4, v0')
            A(f's_mul_i32 s{sTMP}, s{sM}, {WPB_M}'); A(f's_add_u32 s{sTMP}, s{sTMP}, {OFF_WPB + 14*WPB_SLOT}')
            for k in range(9):
                A(f'buffer_store_dwordx4 v[8:11], v12, {WS}, s{sTMP} offen sc1')
                if k < 8: A(f's_add_u32 s{sTMP}, s{sTMP}, 4096')
            A.raw(f'{lab}:')
        done = A.newlabel('lnd')
        A(f's_lshl_b32 s{sTMP}, s{sW}, 5')
        A(f's_add_u32 s{sTMP}, s{sTMP}, s{sM}')
        A(f's_lshl_b32 s{sTMP+1}, s{sN}, 2')
        A(f's_cmp_lt_u32 s{sTMP}, s{sTMP+1}')
        A(f's_cbranch_scc0 {done}')
        A(f's_lshr_b32 s{sTMP+1}, s{sTMP}, 2')
        A(f's_mul_i32 s{sTMP+1}, s{sTMP+1}, 7')
        A(f's_add_u32 s{sTMP+1}, s{sTMP+1}, s{sG}')
        A(f's_and_b32 s{sTMP+2}, s{sTMP}, 3')
        A(f's_lshl_b32 s{sTMP+3}, s{sTMP+1}, 2')
        A(f's_add_u32 s{sTMP+3}, s{sTMP+3}, s{sTMP+2}')
        A(f's_mul_i32 s{sA}, s{sTMP+3}, {8*1152}')
        A(f's_mul_i32 s{sB}, s{sTMP+1}, {SEGB}')
        A(f's_lshl_b32 s{sTMP+2}, s{sTMP+2}, 7')
        A(f's_add_u32 s{sB}, s{sB}, s{sTMP+2}')
        self.srd(0, S*D*2)
        P = 64; F_ = 100
        for n in range(9):
            A(f'buffer_load_dwordx4 {v(P+4*n,4)}, v3, {TS}, s{sA} offen offset:{128*n}')
        A(f's_mov_b32 s{sC}, 0xffff0000')
        for which in range(2):
            for d in range(36):
                A(f'v_lshlrev_b32 v{F_+2*d}, 16, v{P+d}')
                A(f'v_and_b32 v{F_+2*d+1}, s{sC}, v{P+d}')
            def red8(r):
                A(f'v_add_f32_dpp v{r}, v{r}, v{r} quad_perm:[1,0,3,2] row_mask:0xf bank_mask:0xf')
                A(f'v_add_f32_dpp v{r}, v{r}, v{r} quad_perm:[2,3,0,1] row_mask:0xf bank_mask:0xf')
                A(f'v_add_f32_dpp v{r}, v{r}, v{r} row_half_mirror row_mask:0xf bank_mask:0xf')
            acc = [10, 11, 12, 13]
            for k in range(4): A(f'v_mov_b32 v{acc[k]}, v{F_+k}')
            for e in range(4, 72): A(f'v_add_f32 v{acc[e%4]}, v{acc[e%4]}, v{F_+e}')
            A('v_add_f32 v10, v10, v11'); A('v_add_f32 v12, v12, v13'); A('v_add_f32 v10, v10, v12')
            red8(10)
            A(f'v_mul_f32 v10, {fb(1.0/576):#x}, v10')
            for k in range(4): A(f'v_mov_b32 v{11+k}, 0')
            for e in range(72):
                A(f'v_sub_f32 v15, v{F_+e}, v10')
                A(f'v_fmac_f32 v{11+e%4}, v15, v15')
            A('v_add_f32 v11, v11, v12'); A('v_add_f32 v13, v13, v14'); A('v_add_f32 v11, v11, v13')
            red8(11)
            A(f'v_mul_f32 v11, {fb(1.0/576):#x}, v11')
            A('v_cvt_pk_bf16_f32 v10, v10, v11')
            A(f'v_and_b32 v11, s{sC}, v10')
            A('v_lshlrev_b32 v10, 16, v10')
            A(f'v_add_f32 v11, {fb(1e-5):#x}, v11')
            A('v_cvt_pk_bf16_f32 v11, v11, v11')
            A(f'v_and_b32 v11, s{sC}, v11')
            A('v_sqrt_f32 v11, v11')
            A('v_cvt_pk_bf16_f32 v11, v11, v11')
            A(f'v_and_b32 v11, s{sC}, v11')
            A('v_rcp_f32 v11, v11')
            for d in range(36):
                a0, a1 = F_+2*d, F_+2*d+1
                A(f'v_sub_f32 v{a0}, v{a0}, v10')
                A(f'v_sub_f32 v{a1}, v{a1}, v10')
                A(f'v_cvt_pk_bf16_f32 v15, v{a0}, v{a1}')
                A(f'v_lshlrev_b32 v{a0}, 16, v15')
                A(f'v_and_b32 v{a1}, s{sC}, v15')
                A(f'v_mul_f32 v{a0}, v11, v{a0}')
                A(f'v_mul_f32 v{a1}, v11, v{a1}')
                A(f'v_cvt_pk_bf16_f32 v{P+d}, v{a0}, v{a1}')
            base = OFF_XNF if which == 0 else OFF_YF
            for n in range(9):
                A(f's_add_u32 s{sTMP}, s{sB}, {base + n*8*512}')
                A(f'buffer_store_dwordx4 {v(P+4*n,4)}, v4, {WS}, s{sTMP} offen sc1')
            if which == 0: A('s_nop 1')
        A.wait(vm=0)
        A.label(done)
        A.wait(vm=0)
        A('s_barrier')
        self.dbg_add(sG, DBG_LN)
    def ring(self, blocks, nslots=9, depth=6):
        A = self.A
        pos = []; p = 0
        for b in blocks:
            ns = b.get('slots', 1)
            if p % nslots + ns > nslots: p += nslots - p % nslots
            pos.append(p % nslots); p += ns
        def issue(n):
            b = blocks[n]
            if b.get('setup'): b['setup']()
            for y, dm in enumerate(b['dmas']):
                voff, sbase, const, lds = dm[:4]
                lb = dm[4] if len(dm) > 4 else 42
                A(f's_add_u32 s43, s{sbase}, {const}')
                A(f's_add_u32 m0, s{lb}, {pos[n]*16384 + lds}')
                A(f'buffer_load_dwordx4 v{voff}, {TS}, s43 offen lds')
        N = len(blocks)
        issued = 0
        def can_issue(n, cur):
            sl = set(range(pos[n], pos[n] + blocks[n].get('slots', 1)))
            for q in range(cur, n):
                if sl & set(range(pos[q], pos[q] + blocks[q].get('slots', 1))): return False
            return n - cur < depth
        while issued < N and can_issue(issued, 0): issue(issued); issued += 1
        for n in range(N):
            left = sum(len(blocks[q]['dmas']) for q in range(n+1, issued))
            A.wait(vm=left, lgkm=0)
            A('s_barrier')
            while issued < N and can_issue(issued, n): issue(issued); issued += 1
            cur = {}
            for (dst, addr, imm) in blocks[n]['reads']:
                if addr not in cur:
                    t = 60 + len(cur); cur[addr] = t
                    A(f'v_add_u32 v{t}, {pos[n]*16384}, v{addr}')
                A(f'ds_read_b64_tr_b16 {dst}, v{cur[addr]} offset:{imm}')
        A.wait(lgkm=0)
        A('s_barrier')
    def seg_dma(self, base, seg_s, buf_s, vL16):
        A = self.A
        A(f's_mul_i32 s{sTMP}, s{seg_s}, {SEGB}')
        A(f's_mul_i32 s{sTMP+1}, s{sW}, {9*1024}')
        A(f's_add_u32 s{sTMP}, s{sTMP}, s{sTMP+1}')
        A(f's_add_u32 s{sTMP}, s{sTMP}, {base}')
        A(f's_add_u32 s{sTMP+1}, s{sTMP+1}, s{buf_s}')
        for y in range(9):
            A(f's_add_u32 m0, s{sTMP+1}, {(y//4)*4096}')
            if y % 4 == 0 and y: A(f's_add_u32 s{sTMP}, s{sTMP}, 4096')
            A(f'buffer_load_dwordx4 v{vL16}, {WS}, s{sTMP} offen offset:{(y%4)*1024} sc1 lds')
    def passA(self):
        A = self.A; opt = self.opt
        self.vT = 2
        sMA, sGA, sNA = 50, 51, 52
        A(f's_lshl_b32 s{sTMP}, s{sG}, 5'); A(f's_add_u32 s{sTMP}, s{sTMP}, s{sM}')
        A(f's_mul_i32 s{sMA}, s{sTMP}, 9363'); A(f's_lshr_b32 s{sMA}, s{sMA}, 16')
        A(f's_mul_i32 s{sTMP+1}, s{sMA}, 7'); A(f's_sub_u32 s{sGA}, s{sTMP}, s{sTMP+1}')
        A(f's_cmp_eq_u32 s{sGA}, 0'); A(f's_cselect_b32 s{sNA}, 10, 9')
        C = {'wL16': 3, 'wDA': 4, 'wTA0': 5, 'wTA1': 6, 'wSTK': 7}
        self.consts(C)
        def fr(kp, tau, off=0, cnt=4):
            n = (2*kp + tau)*4 + off
            return f'a[{n}:{n+cnt-1}]' if n < 256 else f'v[{224+n-256}:{224+n-256+cnt-1}]'
        A(f's_load_dwordx2 s[{sP0}:{sP0+1}], s[0:1], 24')
        A(f's_load_dwordx2 s[{sP0+2}:{sP0+3}], s[0:1], 32')
        A.wait(lgkm=0)
        A(f's_cmp_lt_u32 s{sW}, 2')
        A(f's_cselect_b32 s{sT}, s{sP0}, s{sP0+2}')
        A(f's_cselect_b32 s{sT+1}, s{sP0+1}, s{sP0+3}')
        A(f's_and_b32 s{sT+1}, s{sT+1}, 0xffff')
        A(f's_mov_b32 s{sT+2}, {D*8192}')
        A(f's_mov_b32 s{sT+3}, 0x20000')
        A(f's_and_b32 s{sTMP}, s{sW}, 1')
        A(f's_mul_i32 s{sTMP}, s{sTMP}, {16*8192}')
        A(f's_lshl_b32 s{sA}, s{sMA}, 8')
        A(f's_add_u32 s{sA}, s{sA}, s{sTMP}')
        A(f's_lshl_b32 s42, s{sW}, 12')
        blocks = []
        for b in range(18):
            dm = [(4, sA, (32*b + 4*y)*8192, y*1024) for y in range(4)]
            rd = []
            for kk in range(2):
                for tau in range(2):
                    for rr in range(2):
                        rd.append((fr(2*b+kk, tau, 2*rr, 2), 5+tau, kk*4096 + rr*1024))
            blocks.append(dict(dmas=dm, reads=rd))
        self.ring(blocks)
        rt_stamp(A, opt, 3, sW, off=OFF_RT)
        self.dbg_wait(sGA, DBG_LN, None, 32)
        self.dbg_wait(None, DBG_CHINIT, None, 32)
        rt_stamp(A, opt, 4, sW, off=OFF_RT)
        A(f's_mov_b32 s{sK}, 0')
        A(f's_mov_b32 s{sSEG}, s{sGA}')
        A(f's_mov_b32 s{sB}, {W_XT0}')
        self.seg_dma(OFF_XNF, sSEG, sB, 3)
        A(f'v_add_u32 v8, {W_XT0}, v3')
        A(f's_lshl_b32 s{sC}, s{sGA}, 7')
        A(f's_lshl_b32 s{sTMP}, s{sMA}, 2')
        A(f's_add_u32 s{sC}, s{sC}, s{sTMP}')
        A(f's_add_u32 s{sC}, s{sC}, {FL_KV + 128}')
        L = A.newlabel('pa_loop'); nonext = A.newlabel('pa_nn'); vw = A.newlabel('pa_v'); epi = A.newlabel('pa_e')
        A.label(L)
        A.wait(vm=0)
        A('s_barrier')
        lab = A.newlabel('pa_fl')
        A(f's_cmp_eq_u32 s{sK}, 0'); A(f's_cbranch_scc1 {lab}')
        A(f's_cmp_eq_u32 s{sW}, 0'); A(f's_cbranch_scc0 {lab}')
        A(f's_mov_b64 exec, 1'); A(f'v_mov_b32 v60, 0'); A(f'v_mov_b32 v61, s{sK}')
        A(f'buffer_store_dword v61, v60, {WS}, s{sC} offen sc1'); A(f's_mov_b64 exec, -1')
        A.label(lab)
        A(f's_add_u32 s{sD_}, s{sK}, 1')
        A(f's_cmp_lt_u32 s{sD_}, s{sNA}')
        A(f's_cbranch_scc0 {nonext}')
        A(f's_add_u32 s{sD_}, s{sSEG}, 7')
        A(f's_xor_b32 s{sTMP+2}, s{sB}, {W_XT0 ^ W_XT1}')
        self.seg_dma(OFF_XNF, sD_, sTMP+2, 3)
        A.label(nonext)
        ACC = 64; XB = [96, 100, 104, 108]
        A(f's_cmp_lt_u32 s{sW}, 2')
        A(f's_cbranch_scc0 {vw}')
        for role in range(2):
            if role == 1: A.label(vw)
            for kp in range(3): A(f'ds_read_b128 {v(XB[kp],4)}, v8 offset:{kp*1024}')
            for kp in range(36):
                if kp + 3 < 36: A(f'ds_read_b128 {v(XB[(kp+3)%4],4)}, v8 offset:{(kp+3)*1024}')
                for tau in range(2):
                    d = v(ACC+16*tau, 16); c_ = d if kp else '0'
                    x_ = v(XB[kp % 4], 4)
                    if role == 0: A(f'v_mfma_f32_32x32x16_bf16 {d}, {fr(kp,tau)}, {x_}, {c_}')
                    else: A(f'v_mfma_f32_32x32x16_bf16 {d}, {x_}, {fr(kp,tau)}, {c_}')
            if role == 0: A(f's_branch {epi}')
        A.label(epi)
        A(f's_nop 15')
        A(f's_lshl_b32 s{sTMP}, s{sSEG}, 5')
        A(f's_add_u32 s{sTMP}, s{sTMP}, s{sMA}')
        A(f's_lshl_b32 s{sTMP}, s{sTMP}, 13')
        A(f's_cmp_lt_u32 s{sW}, 2')
        A(f's_cselect_b32 s{sTMP+1}, 0, {OFF_VXF-OFF_KXF}')
        A(f's_add_u32 s{sTMP}, s{sTMP}, s{sTMP+1}')
        A(f's_add_u32 s{sTMP}, s{sTMP}, {OFF_KXF}')
        PK = 112
        for tau in range(2):
            for u in range(2):
                r0 = ACC + 16*tau + 8*u; p = PK + 8*tau + 4*u
                for k in range(4): A(f'v_cvt_pk_bf16_f32 v{p+k}, v{r0+2*k}, v{r0+2*k+1}')
                A(f'buffer_store_dwordx4 {v(p,4)}, v7, {WS}, s{sTMP} offen offset:{tau*2048+u*512} sc1')
        A(f's_xor_b32 s{sB}, s{sB}, {W_XT0 ^ W_XT1}')
        A(f'v_add_u32 v8, s{sB}, v3')
        A(f's_add_u32 s{sSEG}, s{sSEG}, 7')
        A(f's_add_u32 s{sK}, s{sK}, 1')
        A(f's_cmp_lt_u32 s{sK}, s{sNA}')
        A(f's_cbranch_scc1 {L}')
        A.wait(vm=0)
        A('s_barrier')
        lab = A.newlabel('pa_fl')
        A(f's_cmp_eq_u32 s{sW}, 0'); A(f's_cbranch_scc0 {lab}')
        A(f's_mov_b64 exec, 1'); A(f'v_mov_b32 v60, 0'); A(f'v_mov_b32 v61, s{sK}')
        A(f'buffer_store_dword v61, v60, {WS}, s{sC} offen sc1'); A(f's_mov_b64 exec, -1')
        A.label(lab)

    def gemm2_blocks(self, fr2, nrb, mini, vDO, vTO, sbase, slds, setup):
        blocks = []
        first = True
        for q0 in (0, 2, 4, 6, 8):
            for rb in range(nrb):
                dm = [(vDO, sbase, (64*rb + 16*y)*1152 + q0*32, y*4096, slds) for y in range(4)]
                rd = []
                for kk in range(2):
                    for tau in range(2):
                        if q0 + tau > 8: continue
                        for rr in range(2):
                            rd.append((fr2(q0+tau, 2*rb+kk, 2*rr, 2), vTO+tau, (32*kk + 16*rr)*256))
                blocks.append(dict(dmas=dm, reads=rd, setup=setup if first else None)); first = False
            if mini:
                dm = [(vDO, sbase, (64*nrb)*1152 + q0*32, 0, slds)]
                rd = [(fr2(q0+tau, 4, 0, 2), vTO+tau, 0) for tau in range(2) if q0 + tau <= 8]
                blocks.append(dict(dmas=dm, reads=rd))
        return blocks
    def gemm2(self, fr2, k16, ACC, HF, PKD, vL16, vL8, vPS8, sPB, HF2=None):
        A = self.A
        hf = [HF, HF2]
        for tt in range(2):
            for ko in range(4):
                A(f'ds_read_b128 {v(hf[tt]+4*ko,4)}, v{vL16} offset:{W_OEX + tt*4096 + ko*1024}')
            if k16: A(f'ds_read_b64 {v(hf[tt]+16,2)}, v{vL8} offset:{W_OEX + 8192 + tt*512}')
        A(f's_add_u32 s58, s{sPB}, 4608')
        A(f's_add_u32 s59, s{sPB}, 4096')
        A(f's_add_u32 s60, s58, 4096')
        ls = A.newlabel('g2s'); le = A.newlabel('g2e')
        A(f's_cmp_eq_u32 s{sSLOW}, 0')
        A.raw(f'  s_cbranch_scc0 {ls}')
        st0 = (list(A.lgk), list(A.vm), list(A.hist))
        for slow in range(2):
            A.lgk, A.vm, A.hist = list(st0[0]), list(st0[1]), list(st0[2])
            if slow: A.raw(f'{ls}:')
            fl = ' sc1' if slow else ''
            groups = [(tt, g) for tt in range(2) for g in ((0, 1), (2, 3), (4, 5), (6, 7), (8,))]
            pend = []
            late = []
            for gi, (tt, g) in enumerate(groups):
                mm = []
                for ko in range(4):
                    for q in g:
                        d = v(ACC+4*q, 4)
                        mm.append(f'v_mfma_f32_16x16x32_bf16 {d}, {fr2(q, ko)}, {v(hf[tt]+4*ko,4)}, {d if ko else 0}')
                for n, x in enumerate(mm):
                    A(x)
                    if n == 1 and late:
                        for y in late: A(y)
                        late = []
                    if n >= 1 and not late:
                        for _ in range(2):
                            if pend: A(pend.pop(0))
                for y in late: A(y)
                late = []
                for y in pend: A(y)
                ep = []
                if len(g) == 2:
                    a_ = g[0] // 2
                    p = PKD + 4*(gi % 2)
                    for t2, q in enumerate(g):
                        r0 = ACC + 4*q
                        ep.append(f'v_cvt_pk_bf16_f32 v{p+2*t2}, v{r0}, v{r0+1}')
                        ep.append(f'v_cvt_pk_bf16_f32 v{p+2*t2+1}, v{r0+2}, v{r0+3}')
                    ep.append(f'buffer_store_dwordx4 {v(p,4)}, v{vL16}, {WS}, s{sPB if tt == 0 else 58} offen offset:{a_*1024}{fl}')
                else:
                    p = PKD + 8
                    ep.append(f'v_cvt_pk_bf16_f32 v{p}, v{ACC+32}, v{ACC+33}')
                    ep.append(f'v_cvt_pk_bf16_f32 v{p+1}, v{ACC+34}, v{ACC+35}')
                    ep.append(f'buffer_store_dwordx2 {v(p,2)}, v{vPS8}, {WS}, s{59+tt} offen{fl}')
                pend = ep
                if k16:
                    late = [f'v_mfma_f32_16x16x16_bf16 {v(ACC+4*q,4)}, {fr2(q, 4, 0, 2)}, {v(hf[tt]+16,2)}, {v(ACC+4*q,4)}' for q in g]
            if late:
                A('s_nop 7')
                for y in late: A(y)
            for y in pend: A(y)
            if not slow: A.raw(f'  s_branch {le}')
        A.raw(f'{le}:')
    def mstore(self, text, *_):
        A = self.A
        l1 = A.newlabel('ms'); l2 = A.newlabel('me')
        A(f's_cmp_eq_u32 s{sSLOW}, 0')
        A(f's_cbranch_scc0 {l1}')
        A(text)
        A.raw(f'  s_branch {l2}')
        A.raw(f'{l1}:')
        A.raw(f'  {text} sc1')
        A.raw(f'{l2}:')
    def reduce(self, which, R0, vRL, vSEL, vROb, vROf, vX0, vX1, vB2r, vB2x):
        A = self.A
        FT = which == 'D' and self.opt.get('fasttail', 1) and not self.opt.get('nochain')
        lns = A.newlabel('rns')
        if FT:
            A(f's_cmp_eq_u32 s{sSEG}, 63'); A(f's_cbranch_scc1 {lns}')
        A.wait(vm=0)
        A('s_barrier')
        self.group_sync(0 if which == 'C' else 1)
        if FT:
            A.raw(f'{lns}:'); A.reset()
        LD = R0; AC = R0 + 32; XX = R0 + 36; BB = R0 + 40
        def task(extra):
            if not extra:
                A(f's_lshr_b32 s{sTMP}, s{sM}, 3')
                A(f's_bfe_u32 s{sTMP+1}, s{sM}, 0x10002')
                A(f's_and_b32 s{sTMP+2}, s{sM}, 3')
                A(f's_mul_i32 s{sTMP+3}, s{sTMP}, 9216')
                A(f's_mul_i32 s{sTMP+4}, s{sTMP+1}, 4608')
                A(f's_add_u32 s{sTMP+3}, s{sTMP+3}, s{sTMP+4}')
                A(f's_lshl_b32 s{sTMP+4}, s{sTMP+2}, 10')
                A(f's_add_u32 s{sTMP+3}, s{sTMP+3}, s{sTMP+4}')
                A(f's_lshl_b32 s{sTMP+4}, s{sW}, 8')
                A(f's_add_u32 s{sTMP+3}, s{sTMP+3}, s{sTMP+4}')
                A(f's_mul_i32 s{sTMP+5}, s{sTMP}, {9*32}')
                A(f's_lshl_b32 s{sTMP+4}, s{sTMP+2}, 6')
                A(f's_add_u32 s{sTMP+5}, s{sTMP+5}, s{sTMP+4}')
                A(f's_lshl_b32 s{sTMP+4}, s{sW}, 3')
                A(f's_add_u32 s{sTMP+5}, s{sTMP+5}, s{sTMP+4}')
            else:
                A(f's_lshr_b32 s{sTMP}, s{sM}, 2')
                A(f's_bfe_u32 s{sTMP+1}, s{sM}, 0x10001')
                A(f's_and_b32 s{sTMP+2}, s{sM}, 1')
                A(f's_mul_i32 s{sTMP+3}, s{sTMP}, 9216')
                A(f's_mul_i32 s{sTMP+4}, s{sTMP+1}, 4608')
                A(f's_add_u32 s{sTMP+3}, s{sTMP+3}, s{sTMP+4}')
                A(f's_lshl_b32 s{sTMP+4}, s{sTMP+2}, 8')
                A(f's_add_u32 s{sTMP+3}, s{sTMP+3}, s{sTMP+4}')
                A(f's_add_u32 s{sTMP+3}, s{sTMP+3}, 4096')
                A(f's_mul_i32 s{sTMP+5}, s{sTMP}, {9*32}')
                A(f's_lshl_b32 s{sTMP+4}, s{sTMP+2}, 4')
                A(f's_add_u32 s{sTMP+5}, s{sTMP+5}, s{sTMP+4}')
                A(f's_add_u32 s{sTMP+5}, s{sTMP+5}, {8*32}')
            A(f's_lshl_b32 s{sTMP+4}, s{sSEG}, 5')
            A(f's_lshl_b32 s{sTMP+1}, s{sTMP+1}, 4')
            A(f's_add_u32 s{sTMP+4}, s{sTMP+4}, s{sTMP+1}')
            A(f's_mul_i32 s{sTMP+4}, s{sTMP+4}, 1152')
            A(f's_add_u32 s{sTMP+4}, s{sTMP+4}, s{sTMP+5}')
            A(f's_add_u32 s{sTMP+3}, s{sTMP+3}, s{sA}')
            vo_b = vX0 if extra else vROb; vo_f = vX1 if extra else vROf
            A(f's_lshl_b32 s{sTMP+2}, s{sTMP+4}, 1')
            A(f's_add_u32 s{sTMP+2}, s{sTMP+2}, {OFF_BASE}')
            if which == 'C':
                A(f'buffer_load_dwordx2 {v(XX,2)}, v{vo_b}, {TS}, s{sTMP+4} offen')
                A(f'v_add_u32 v{BB+2}, s{sTMP+5}, v{vB2x if extra else vB2r}')
                A(f'global_load_dwordx2 {v(BB,2)}, v{BB+2}, s[34:35]')
            else:
                A(f'buffer_load_dwordx4 {v(XX,4)}, v{vo_f}, {WS}, s{sTMP+2} offen sc1')
            lr = A.newlabel('rp'); lo = A.newlabel('ro')
            if FT:
                A(f's_mov_b32 s56, 0')
                A.raw(f'{lr}:')
            A(f's_mov_b32 s57, s{sTMP+3}')
            for n in range(8):
                A(f'buffer_load_dwordx4 {v(LD+4*n,4)}, v{vRL}, {WS}, s57 offen sc1')
                if n < 7: A(f's_add_u32 s57, s57, {4*WPB_M}')
            for n in range(8):
                A(f'v_mfma_f32_16x16x32_bf16 {v(AC,4)}, {v(vSEL,4)}, {v(LD+4*n,4)}, {v(AC,4) if n else 0}')
            if FT:
                A(f's_cmp_eq_u32 s{sSEG}, 63'); A(f's_cbranch_scc0 {lo}')
                A(f's_nop 7')
                A(f'v_cmp_u_f32 vcc, v{AC}, v{AC+1}')
                A(f'v_cmp_u_f32 s[58:59], v{AC+2}, v{AC+3}')
                A(f's_or_b64 vcc, vcc, s[58:59]')
                A(f's_cbranch_vccz {lo}')
                A(f's_add_u32 s56, s56, 1')
                A(f's_cmp_lg_u32 s{sDEAD}, 0'); A(f's_cbranch_scc1 {lo}')
                A(f's_cmp_lt_u32 s56, 0x40000'); A(f's_cbranch_scc1 {lr}')
                A(f's_mov_b32 s{sDEAD}, 1')
                A.raw(f'{lo}:')
                A(f's_nop 7')
            if which == 'C':
                A(f's_mov_b32 s{sTMP}, 0xffff0000')
                for k, src in enumerate((XX, BB)):
                    t = LD + 4*k
                    A(f'v_lshlrev_b32 v{t}, 16, v{src}'); A(f'v_and_b32 v{t+1}, s{sTMP}, v{src}')
                    A(f'v_lshlrev_b32 v{t+2}, 16, v{src+1}'); A(f'v_and_b32 v{t+3}, s{sTMP}, v{src+1}')
                for r in range(4):
                    A(f'v_add_f32 v{LD+r}, v{LD+r}, v{LD+4+r}')
                    A(f'v_add_f32 v{AC+r}, v{AC+r}, v{LD+r}')
                A(f's_mov_b64 exec, s[{LO32}:{LO32+1}]')
                A(f'buffer_store_dwordx4 {v(AC,4)}, v{vo_f}, {WS}, s{sTMP+2} offen' + (' sc1' if self.opt.get('wt') else ''))
                A(f's_mov_b64 exec, -1')
            else:
                for r in range(4): A(f'v_add_f32 v{AC+r}, v{AC+r}, v{XX+r}')
                A(f'v_cvt_pk_bf16_f32 v{AC}, v{AC}, v{AC+1}')
                A(f'v_cvt_pk_bf16_f32 v{AC+1}, v{AC+2}, v{AC+3}')
                A(f's_mov_b64 exec, s[{LO32}:{LO32+1}]')
                A(f'buffer_store_dwordx2 {v(AC,2)}, v{vo_b}, {TS}, s{sTMP+4} offen' + (' sc1' if self.opt.get('wt') else ''))
                A(f's_mov_b64 exec, -1')
        task(False)
        lab = A.newlabel('rx')
        A(f's_cmp_eq_u32 s{sW}, 3'); A(f's_cbranch_scc0 {lab}')
        A(f's_cmp_lt_u32 s{sM}, 16'); A(f's_cbranch_scc0 {lab}')
        task(True)
        A.wait(vm=0, lgkm=0)
        A.label(lab)
    def srd_cached(self, which): pass
    def passC(self):
        A = self.A; opt = self.opt
        self.vT = 2
        C = {'wL16': 3, 'wDW1': 4, 'wD16': 5, 'wT1a': 6, 'wT1b': 7, 'wT1c': 8, 'wDO': 9, 'wTO0': 10, 'wTO1': 11,
             'wHW': 12, 'wHW8': 13, 'wRL': 14, 'wROb': 15, 'wROf': 16, 'wPS8': 17, 'wB1': 18, 'wYR': 19, 'wYR2': 20,
             'wX0': 21, 'wX1': 22, 'wL8': 23, 'wSEL0': 24, 'wSEL1': 25, 'wSEL2': 26, 'wSEL3': 27}
        self.consts(C)
        A('v_lshrrev_b32 v28, 8, v3'); A('v_and_b32 v28, 1, v28')
        A('v_lshlrev_b32 v29, 3, v28'); A('v_lshlrev_b32 v28, 5, v28')
        def w1(ti, kp, off=0, cnt=4):
            n = (ti*18 + kp)*4 + off
            return f'a[{n}:{n+cnt-1}]'
        f4 = [('a', 216 + 4*k) for k in range(10)] + [('v', 134 + 4*k) for k in range(26)]
        f2 = [('v', 238 + 2*k) for k in range(9)]
        def fr2(q, ko, off=0, cnt=4):
            if ko < 4: kd, n = f4[q*4 + ko]
            else: kd, n = f2[q]
            n += off
            return f'{kd}[{n}:{n+cnt-1}]'
        self.srd(64, D*9216)
        A(f's_mul_i32 s{sA}, s{sM}, 288')
        A(f's_mul_i32 s{sTMP}, s{sW}, {4*9216}')
        A(f's_add_u32 s{sB}, s{sA}, s{sTMP}')
        A(f's_mul_i32 s{sTMP}, s{sW}, {5*32*9216}')
        A(f's_add_u32 s{sC}, s{sA}, s{sTMP}')
        A(f's_add_u32 s{sC}, s{sC}, 256')
        A(f's_lshl_b32 s42, s{sW}, 10')
        A(f's_mul_i32 s45, s{sW}, 5120')
        blocks = []
        for b in range(9):
            dm = [(4, sB, (64*b + 16*y)*9216, y*4096) for y in range(4)]
            rd = [(w1(tau, 2*b+kk, 2*rr, 2), 6+tau, kk*8192 + rr*1024) for kk in range(2) for tau in range(2) for rr in range(2)]
            blocks.append(dict(dmas=dm, reads=rd))
        dm = [(5, sC, y*32*9216, y*1024, 45) for y in range(5)]
        rd = [(w1(2, kp, 2*rr, 2), 8, kp*1024 + rr*128) for kp in range(18) for rr in range(2)]
        blocks.append(dict(dmas=dm, reads=rd, slots=2))
        self.ring(blocks)
        self.srd(80, F*1152)
        A(f's_mul_i32 s{sA}, s{sM}, 144')
        A(f's_lshl_b32 s{sTMP}, s{sW}, 2')
        A(f's_add_u32 s{sA}, s{sA}, s{sTMP}')
        A(f's_mul_i32 s{sB}, s{sA}, 1152')
        self.ring(self.gemm2_blocks(fr2, 2, True, 9, 10, sB, 42, None))
        rt_stamp(A, opt, 6, sW, off=OFF_RT)
        A(f's_load_dwordx2 s[{sP0}:{sP0+1}], s[0:1], 72')
        A(f's_load_dwordx2 s[34:35], s[0:1], 88')
        A.wait(lgkm=0)
        A(f's_mul_i32 s{sTMP}, s{sM}, 288')
        A(f's_lshl_b32 s{sTMP+1}, s{sW}, 6')
        A(f's_add_u32 s{sTMP+1}, s{sTMP+1}, s{sTMP}')
        A(f'v_add_u32 v60, s{sTMP+1}, v18')
        A(f'global_load_dwordx2 v[44:45], v60, s[{sP0}:{sP0+1}]')
        A(f'global_load_dwordx2 v[46:47], v60, s[{sP0}:{sP0+1}] offset:32')
        A(f's_add_u32 s{sTMP}, s{sTMP}, 256')
        A(f'v_add_u32 v60, s{sTMP}, v18')
        A(f'global_load_dwordx2 v[48:49], v60, s[{sP0}:{sP0+1}]')
        A(f's_mov_b32 s{sTMP}, 0xffff0000')
        BI = 30
        for ti in range(3):
            for hf in range(2):
                A(f'v_lshlrev_b32 v{BI+4*ti+2*hf}, 16, v{44+2*ti+hf}')
                A(f'v_and_b32 v{BI+4*ti+2*hf+1}, s{sTMP}, v{44+2*ti+hf}')
        self.dbg_wait(sG, DBG_LN, None, 32)
        A(f's_lshl_b32 s{sTMP}, s53, 2')
        A(f'v_mov_b32 v60, s{sTMP}')
        A(f'global_load_dword v61, v60, s[14:15] sc1')
        A(f'v_readfirstlane_b32 s{sTMP}, v61')
        A(f's_cmp_lt_u32 s{sTMP}, 32')
        A(f's_cselect_b32 s{sSLOW}, 1, 0')
        if opt.get('fake') or opt.get('slow') or opt.get('wslow'): A(f's_mov_b32 s{sSLOW}, 1')
        self.srd(0, S*D*2)
        A(f's_mov_b32 s{LO32}, -1'); A(f's_mov_b32 s{LO32+1}, 0')
        A(f's_mov_b32 s{sK}, 0')
        A(f's_mov_b32 s{sSEG}, s{sG}')
        A(f's_mov_b32 s{sB}, {W_XT0}')
        self.seg_dma(OFF_YF, sSEG, sB, 3)
        L = A.newlabel('pc_loop'); nonext = A.newlabel('pc_nn')
        A.label(L)
        A(f'v_add_u32 v42, s{sB}, v19')
        A(f'v_add_u32 v43, s{sB}, v20')
        A.wait(vm=0)
        A('s_barrier')
        A(f's_add_u32 s{sD_}, s{sK}, 1')
        A(f's_cmp_lt_u32 s{sD_}, s{sN}')
        A(f's_cbranch_scc0 {nonext}')
        A(f's_add_u32 s{sD_}, s{sSEG}, 7')
        A(f's_xor_b32 s{sTMP+2}, s{sB}, {W_XT0 ^ W_XT1}')
        self.seg_dma(OFF_YF, sD_, sTMP+2, 3)
        A.label(nonext)
        AC1 = 44; YB = [64, 76, 88]
        def yread(kp):
            b = YB[kp % 3]
            return [f'ds_read_b128 {v(b,4)}, v42 offset:{kp*2048}', f'ds_read_b128 {v(b+4,4)}, v42 offset:{kp*2048+256}',
                    f'ds_read_b128 {v(b+8,4)}, v43 offset:{kp*2048}']
        for kp in range(2):
            for x in yread(kp): A(x)
        for kp in range(18):
            if kp + 2 < 18:
                for x in yread(kp+2): A(x)
            b = YB[kp % 3]
            for idx, (ti, yo) in enumerate([(0, 0), (0, 4), (1, 0), (1, 4), (2, 8)]):
                d = v(AC1+4*idx, 4)
                A(f'v_mfma_f32_16x16x32_bf16 {d}, {w1(ti,kp)}, {v(b+yo,4)}, {d if kp else 0}')
        c1 = -2.0*math.sqrt(2.0/math.pi)*math.log2(math.e); c2 = c1*0.044715
        A(f's_mov_b32 s{sTMP}, {fb(c1):#x}'); A(f's_mov_b32 s{sTMP+1}, {fb(c2):#x}')
        A(f'v_mov_b32 v100, s{sTMP}')
        for idx, ti in enumerate([0, 0, 1, 1, 2]):
            for r in range(4):
                x = AC1 + 4*idx + r; t = 64 + 4*idx + r
                A(f'v_add_f32 v{x}, v{x}, v{BI+4*ti+r}')
                A(f'v_mul_f32 v{t}, v{x}, v{x}')
                A(f'v_fma_f32 v{t}, v{t}, s{sTMP+1}, v100')
                A(f'v_mul_f32 v{t}, v{t}, v{x}')
            for r in range(4):
                t = 64 + 4*idx + r
                A(f'v_exp_f32 v{t}, v{t}')
            for r in range(4):
                t = 64 + 4*idx + r
                A(f'v_add_f32 v{t}, 1.0, v{t}')
            for r in range(4):
                t = 64 + 4*idx + r
                A(f'v_rcp_f32 v{t}, v{t}')
            for r in range(4):
                x = AC1 + 4*idx + r; t = 64 + 4*idx + r
                A(f'v_mul_f32 v{x}, v{x}, v{t}')
        for tt in range(2):
            p = 88 + 4*tt
            for t2 in range(2):
                r0 = AC1 + 4*(2*t2 + tt)
                A(f'v_cvt_pk_bf16_f32 v{p+2*t2}, v{r0}, v{r0+1}')
                A(f'v_cvt_pk_bf16_f32 v{p+2*t2+1}, v{r0+2}, v{r0+3}')
            A(f'ds_write_b128 v12, {v(p,4)} offset:{tt*4096}')
        A(f'v_cvt_pk_bf16_f32 v96, v{AC1+16}, v{AC1+17}')
        A(f'v_cvt_pk_bf16_f32 v97, v{AC1+18}, v{AC1+19}')
        A(f'ds_write_b64 v13, v[96:97]')
        A.wait(lgkm=0)
        A('s_barrier')
        A(f's_mul_i32 s{sA}, s{sG}, {WPB_GRP}')
        A(f's_and_b32 s{sTMP}, s{sK}, 1')
        A(f's_mul_i32 s{sTMP}, s{sTMP}, {WPB_SLOT}')
        A(f's_add_u32 s{sA}, s{sA}, s{sTMP}')
        A(f's_add_u32 s{sA}, s{sA}, {OFF_WPB}')
        A(f's_mul_i32 s{sC}, s{sM}, {WPB_M}')
        A(f's_mul_i32 s{sTMP}, s{sW}, 9216')
        A(f's_add_u32 s{sC}, s{sC}, s{sTMP}')
        A(f's_add_u32 s{sC}, s{sC}, s{sA}')
        self.gemm2(fr2, True, 44, 84, 104, 3, 23, 17, sC, HF2=114)
        self.reduce('C', 44, 14, 24, 15, 16, 21, 22, 28, 29)
        A(f's_xor_b32 s{sB}, s{sB}, {W_XT0 ^ W_XT1}')
        A(f's_add_u32 s{sSEG}, s{sSEG}, 7')
        A(f's_add_u32 s{sK}, s{sK}, 1')
        A(f's_cmp_lt_u32 s{sK}, s{sN}')
        A(f's_cbranch_scc1 {L}')
        A.wait(vm=0, lgkm=0)
        A('s_barrier')

    def passD(self):
        A = self.A; opt = self.opt
        self.vT = 2
        C = {'wL16': 3, 'wDA': 4, 'wTQ': 5, 'wDO': 9, 'wTO0': 10, 'wTO1': 11, 'wQW': 12, 'wOW': 13, 'wRL': 14, 'wROb': 15,
             'wROf': 16, 'wPS8': 17, 'wKW': 18, 'wKR': 19, 'wX0': 21, 'wX1': 22, 'wL8': 23,
             'wSEL0': 24, 'wSEL1': 25, 'wSEL2': 26, 'wSEL3': 27}
        for k in range(8): C[f'wM{k}'] = 28 + k
        self.consts(C)
        def wq(kp, off=0, cnt=4):
            n = kp*4 + off
            return f'a[{n}:{n+cnt-1}]'
        f4 = [('a', 144 + 4*k) for k in range(28)] + [('v', 224 + 4*k) for k in range(8)]
        def fr2(q, ko, off=0, cnt=4):
            kd, n = f4[q*4 + ko]; n += off
            return f'{kd}[{n}:{n+cnt-1}]'
        self.srd(16, D*8192)
        A(f's_lshl_b32 s{sA}, s{sM}, 8')
        A(f's_mul_i32 s{sTMP}, s{sW}, {16*8192}')
        A(f's_add_u32 s{sA}, s{sA}, s{sTMP}')
        A(f's_lshl_b32 s45, s{sW}, 12')
        A(f's_lshl_b32 s42, s{sW}, 10')
        blocks = []
        for b in range(9):
            dm = [(4, sA, (64*b + 4*y)*8192, y*1024, 45) for y in range(4)]
            rd = [(wq(4*b+kk, 2*rr, 2), 5, kk*4096 + rr*1024) for kk in range(4) for rr in range(2)]
            blocks.append(dict(dmas=dm, reads=rd))
        self.ring(blocks)
        self.srd(40, 4096*1152)
        A(f's_lshl_b32 s{sA}, s{sM}, 7')
        A(f's_lshl_b32 s{sTMP}, s{sW}, 2')
        A(f's_add_u32 s{sA}, s{sA}, s{sTMP}')
        A(f's_mul_i32 s{sB}, s{sA}, 1152')
        self.ring(self.gemm2_blocks(fr2, 2, False, 9, 10, sB, 42, None))
        rt_stamp(A, opt, 9, sW, off=OFF_RT)
        self.srd(96, S*D*2)
        A(f's_mov_b32 s{LO32}, -1'); A(f's_mov_b32 s{LO32+1}, 0')
        c = DH**-0.5*math.log2(math.e)
        A(f's_mov_b32 s{sCv}, {fb(c):#x}'); A(f's_mov_b32 s{sCv+1}, {fb(c):#x}')
        A(f's_and_b32 s{sTMP}, s{sW}, 1'); A(f's_lshl_b32 s{sTMP}, s{sTMP}, 10')
        A(f'v_add_u32 v36, s{sTMP}, v3')
        sFL = 48; sKV = 49; sKM = 50
        A(f's_lshl_b32 s{sFL}, s{sM}, 7'); A(f's_add_u32 s{sFL}, s{sFL}, {FL_CH}')
        A(f's_mov_b32 s{sK}, 0')
        A(f's_mov_b32 s{sSEG}, s{sG}')
        A(f's_mov_b32 s{sB}, {W_XT0}')
        self.seg_dma(OFF_XNF, sSEG, sB, 3)
        L = A.newlabel('pd_loop'); nonext = A.newlabel('pd_nn')
        A.label(L)
        A(f'v_add_u32 v8, s{sB}, v3')
        A.wait(vm=0)
        A('s_barrier')
        A(f's_add_u32 s{sD_}, s{sK}, 1')
        A(f's_cmp_lt_u32 s{sD_}, s{sN}')
        A(f's_cbranch_scc0 {nonext}')
        A(f's_add_u32 s{sD_}, s{sSEG}, 7')
        A(f's_xor_b32 s{sTMP+2}, s{sB}, {W_XT0 ^ W_XT1}')
        self.seg_dma(OFF_XNF, sD_, sTMP+2, 3)
        A.label(nonext)
        KX = 128; VX = 160
        A(f's_lshl_b32 s{sKV}, s{sSEG}, 5'); A(f's_add_u32 s{sKV}, s{sKV}, s{sM}')
        A(f's_lshl_b32 s{sKM}, s{sKV}, 11')
        A(f's_lshl_b32 s{sKV}, s{sKV}, 13')
        A(f's_add_u32 s{sTMP}, s{sKV}, {OFF_KXF}')
        for f in range(8):
            if f == 4: A(f's_add_u32 s{sTMP}, s{sTMP}, 4096')
            A(f'buffer_load_dwordx4 {v(KX+4*f,4)}, v3, {WS}, s{sTMP} offen offset:{(f%4)*1024} sc1')
        A(f's_lshr_b32 s{sTMP+1}, s{sW}, 1'); A(f's_lshl_b32 s{sTMP+1}, s{sTMP+1}, 12')
        A(f's_add_u32 s{sTMP}, s{sKV}, s{sTMP+1}'); A(f's_add_u32 s{sTMP}, s{sTMP}, {OFF_VXF}')
        for f in range(4):
            A(f'buffer_load_dwordx4 {v(VX+4*f,4)}, v3, {WS}, s{sTMP} offen offset:{f*1024} sc1')
        ACC = 64; XB = [96, 100, 104, 108]
        for kp in range(3): A(f'ds_read_b128 {v(XB[kp],4)}, v8 offset:{kp*1024}')
        for kp in range(36):
            if kp + 3 < 36: A(f'ds_read_b128 {v(XB[(kp+3)%4],4)}, v8 offset:{(kp+3)*1024}')
            A(f'v_mfma_f32_32x32x16_bf16 {v(ACC,16)}, {wq(kp)}, {v(XB[kp%4],4)}, {v(ACC,16) if kp else 0}')
        for u in range(2):
            p = 112 + 4*u
            for k in range(4): A(f'v_cvt_pk_bf16_f32 v{p+k}, v{ACC+8*u+2*k}, v{ACC+8*u+2*k+1}')
            A(f'ds_write_b128 v12, {v(p,4)} offset:{u*512}')
        rt_stamp(A, opt, 10, sW, off=OFF_RT)
        KM2 = 120; VM = 176
        FT = self.opt.get('fasttail', 1) and not opt.get('nochain')
        sKo, sVo = 54, 55
        A(f's_lshl_b32 s{sTMP+1}, s{sW}, 9')
        A(f's_add_u32 s{sKo}, s{sKM}, s{sTMP+1}'); A(f's_add_u32 s{sKo}, s{sKo}, {OFF_KMF}')
        A(f's_lshr_b32 s{sTMP+1}, s{sW}, 1'); A(f's_lshl_b32 s{sTMP+1}, s{sTMP+1}, 10')
        A(f's_add_u32 s{sVo}, s{sKM}, s{sTMP+1}'); A(f's_add_u32 s{sVo}, s{sVo}, {OFF_VMF}')
        def kvloads(raw=False):
            for t in (f'buffer_load_dwordx2 {v(KM2,2)}, v23, {WS}, s{sKo} offen sc1',
                      f'buffer_load_dwordx2 {v(VM,2)}, v23, {WS}, s{sVo} offen sc1',
                      f'buffer_load_dwordx2 {v(VM+2,2)}, v23, {WS}, s{sVo} offen offset:512 sc1'):
                (A.raw('  ' + t) if raw else A(t))
        lft = A.newlabel('pd_ft'); lj = A.newlabel('pd_j')
        if FT:
            A(f's_cmp_eq_u32 s{sSEG}, 63'); A(f's_cbranch_scc1 {lft}')
        A(f's_add_u32 s{sD_}, s{sSEG}, 1')
        if not opt.get('nochain'): self.ws_wait(sFL, sD_, sleep=1)
        kvloads()
        A.wait(vm=0)
        if FT:
            R = A.raw
            R(f'  s_branch {lj}')
            R(f'{lft}:')
            R(f'  s_mov_b32 s{sTMP}, 0')
            R(f'{lft}_p:')
            kvloads(True)
            R(f'  s_add_u32 s{sTMP}, s{sTMP}, 1')
            R(f'  s_waitcnt vmcnt(0)')
            R(f'  v_max3_u32 v60, v{KM2}, v{KM2+1}, v{VM}')
            R(f'  v_max3_u32 v61, v{VM+1}, v{VM+2}, v{VM+3}')
            R(f'  v_max_u32 v60, v60, v61')
            R(f'  v_cmp_eq_u32 vcc, -1, v60')
            R(f'  s_cbranch_vccz {lj}')
            R(f'  s_cmp_lg_u32 s{sDEAD}, 0'); R(f'  s_cbranch_scc1 {lj}')
            R(f'  s_cmp_lt_u32 s{sTMP}, 0x40000'); R(f'  s_cbranch_scc1 {lft}_p')
            R(f'  s_mov_b32 s{sDEAD}, 1')
            R(f'{lj}:')
            A.reset()
        rt_stamp(A, opt, 12, sW, off=OFF_RT)
        A(f'ds_write2_b32 v18, v{KM2}, v{KM2} offset0:0 offset1:1')
        A(f'ds_write2_b32 v18, v{KM2+1}, v{KM2+1} offset0:128 offset1:129')
        A.wait(lgkm=0)
        A('s_barrier')
        QF = 64; KMF_ = 80; S0, S1, SM = 96, 100, 104
        for k4 in range(4):
            A(f'ds_read_b128 {v(QF+4*k4,4)}, v36 offset:{W_QEX + k4*2048}')
            A(f'ds_read_b64_tr_b16 {v(KMF_+4*k4,2)}, v19 offset:{k4*1024}')
            A(f'ds_read_b64_tr_b16 {v(KMF_+4*k4+2,2)}, v19 offset:{k4*1024+256}')
        for k4 in range(4):
            c_ = lambda d: (v(d, 4) if k4 else '0')
            A(f'v_mfma_f32_16x16x32_bf16 {v(S0,4)}, {v(KX+8*k4,4)}, {v(QF+4*k4,4)}, {c_(S0)}')
            A(f'v_mfma_f32_16x16x32_bf16 {v(S1,4)}, {v(KX+8*k4+4,4)}, {v(QF+4*k4,4)}, {c_(S1)}')
            A(f'v_mfma_f32_16x16x32_bf16 {v(SM,4)}, {v(KMF_+4*k4,4)}, {v(QF+4*k4,4)}, {c_(SM)}')
        ONES = 108; PM = 112; PX = 116; MX = 61; TT = 62
        for k in range(4): A(f'v_mov_b32 v{ONES+k}, 0x3f803f80')
        A(f'v_mov_b32 v{PM+1}, 0'); A(f'v_mov_b32 v{PM+2}, 0')
        for r in range(4):
            A(f'v_add_f32 v{S0+r}, v{S0+r}, v{28+r}')
            A(f'v_add_f32 v{S1+r}, v{S1+r}, v{32+r}')
        A(f'v_max3_f32 v{MX}, v{S0}, v{S0+1}, v{S0+2}')
        A(f'v_max3_f32 v{TT}, v{S1}, v{S1+1}, v{S1+2}')
        A(f'v_max3_f32 v{MX}, v{MX}, v{S0+3}, v{S1+3}')
        A(f'v_max_f32 v{MX}, v{MX}, v{TT}')
        A(f'v_max3_f32 v{MX}, v{MX}, v{SM}, v{SM+1}')
        for sw in ('16', '32'):
            A(f'v_mov_b32 v{TT}, v{MX}')
            A(f'v_permlane{sw}_swap_b32 v{MX}, v{TT}')
            A(f'v_max_f32 v{MX}, v{MX}, v{TT}')
        A(f'v_mul_f32 v{TT}, s{sCv}, v{MX}')
        for r in (S0, S0+2, S1, S1+2, SM):
            A(f'v_pk_fma_f32 {v(r,2)}, {v(r,2)}, s[{sCv}:{sCv+1}], {v(TT,2)} op_sel_hi:[1,1,0] neg_lo:[0,0,1] neg_hi:[0,0,1]')
        for r in (S0, S0+1, S0+2, S0+3, S1, S1+1, S1+2, S1+3, SM, SM+1): A(f'v_exp_f32 v{r}, v{r}')
        cvt = lambda d, x, y: f'v_cvt_pk_bf16_f32 v{d}, v{x}, v{y}'
        A(cvt(PX, S0, S0+1)); A(cvt(PX+1, S0+2, S0+3)); A(cvt(PX+2, S1, S1+1)); A(cvt(PX+3, S1+2, S1+3))
        A(cvt(PM, SM, SM+1)); A(cvt(PM+3, SM, SM+1))
        O = 64; LL = 80
        A(f'v_mfma_f32_16x16x32_bf16 {v(LL,4)}, {v(ONES,4)}, {v(PX,4)}, 0')
        for e in range(4): A(f'v_mfma_f32_16x16x32_bf16 {v(O+4*e,4)}, {v(VX+4*e,4)}, {v(PX,4)}, 0')
        A(f'v_mfma_f32_16x16x16_bf16 {v(LL,4)}, {v(ONES,2)}, {v(PM,2)}, {v(LL,4)}')
        for e in range(4):
            A(f'v_mfma_f32_16x16x16_bf16 {v(O+4*e,4)}, {v(VM+2*(e>>1),2)}, {v(PM+2*(e&1),2)}, {v(O+4*e,4)}')
        A(f's_nop 7')
        A(f'v_rcp_f32 v{MX}, v{LL}')
        for r in range(16): A(f'v_mul_f32 v{O+r}, v{MX}, v{O+r}')
        for ko in range(2):
            p = 84 + 4*ko
            for t2 in range(2):
                r0 = O + 4*(2*ko + t2)
                A(cvt(p+2*t2, r0, r0+1)); A(cvt(p+2*t2+1, r0+2, r0+3))
            A(f'ds_write_b128 v13, {v(p,4)} offset:{ko*1024}')
        A.wait(lgkm=0)
        A('s_barrier')
        A(f's_mul_i32 s{sA}, s{sG}, {WPB_GRP}')
        A(f's_and_b32 s{sTMP}, s{sK}, 1')
        A(f's_mul_i32 s{sTMP}, s{sTMP}, {WPB_SLOT}')
        A(f's_add_u32 s{sA}, s{sA}, s{sTMP}')
        if FT:
            A(f's_cmp_eq_u32 s{sSEG}, 63'); A(f's_cselect_b32 s{sA}, {14*WPB_SLOT}, s{sA}')
        A(f's_add_u32 s{sA}, s{sA}, {OFF_WPB}')
        A(f's_mul_i32 s{sC}, s{sM}, {WPB_M}')
        A(f's_mul_i32 s{sTMP}, s{sW}, 9216')
        A(f's_add_u32 s{sC}, s{sC}, s{sTMP}')
        A(f's_add_u32 s{sC}, s{sC}, s{sA}')
        rt_stamp(A, opt, 13, sW, off=OFF_RT)
        self.gemm2(fr2, False, 64, 100, 120, 3, 23, 17, sC, HF2=132)
        rt_stamp(A, opt, 14, sW, off=OFF_RT)
        self.reduce('D', 64, 14, 24, 15, 16, 21, 22, None, None)
        if opt.get('wb'):
            lab = A.newlabel('wb')
            A(f's_cmp_eq_u32 s{sM}, 0'); A(f's_cbranch_scc0 {lab}')
            A(f's_cmp_eq_u32 s{sW}, 1'); A(f's_cbranch_scc0 {lab}')
            A(f's_cmp_eq_u32 s{sSEG}, 63'); A(f's_cbranch_scc1 {lab}')
            A.raw('  buffer_wbl2 sc1')
            A.raw(f'{lab}:')
        A(f's_xor_b32 s{sB}, s{sB}, {W_XT0 ^ W_XT1}')
        A(f's_add_u32 s{sSEG}, s{sSEG}, 7')
        A(f's_add_u32 s{sK}, s{sK}, 1')
        A(f's_cmp_lt_u32 s{sK}, s{sN}')
        A(f's_cbranch_scc1 {L}')
```

```python
import sys, struct
from asmlib import *
from layout import *
import chain as CH
import worker as WK

NAME = 'parallel_sum__memory_aug_recurrent_mem_tr__mixer_channel_mlp__prompt'
KN = NAME + '_kernel'

def table_text():
    out = ['.section .rodata,"a"', '.p2align 8', 'chain_tab:']
    for tid in range(256):
        c = chain_consts(tid >> 6, tid & 63)
        vals = [c[n] for n in CH_CONSTS] + [0]*(32-len(CH_CONSTS))
        out.append('.long ' + ','.join(str(x) for x in vals))
    out += ['.p2align 8', 'worker_tab:']
    for tid in range(256):
        c = worker_consts(tid >> 6, tid & 63)
        vals = [c[n] for n in WK_CONSTS] + [0]*(48-len(WK_CONSTS))
        out.append('.long ' + ','.join(str(x) for x in vals))
    return '\n'.join(out) + '\n'

def build(opt):
    A = Asm()
    hdr = open('cdna_kernels/' + NAME + '.s.ref').read().split('; Override')[0]
    head = hdr + '; @launch grid=(256,1,1) block=(256,1,1) lds=163840\n'
    head += '.amdgcn_target "amdgcn-amd-amdhsa--gfx950"\n.text\n.globl %s\n.p2align 8\n.type %s,@function\n%s:\n' % (KN, KN, KN)
    A('s_cmp_ge_u32 s2, 256')
    A('s_cbranch_scc1 k_end')
    A('s_load_dwordx2 s[14:15], s[0:1], 104')
    A('s_load_dwordx2 s[12:13], s[0:1], 112')
    A('s_getreg_b32 s3, hwreg(HW_REG_XCC_ID, 0, 4)')
    A('s_and_b32 s3, s3, 7')
    if opt.get('fake') == 1: A('s_lshr_b32 s3, s2, 5')
    if opt.get('fake') == 2: A('s_min_u32 s3, s3, 6')
    A('s_getpc_b64 s[28:29]')
    A.raw('  s_add_u32 s28, s28, chain_tab@rel32@lo+4')
    A.raw('  s_addc_u32 s29, s29, chain_tab@rel32@hi+12')
    ch = CH.Chain(A, opt)
    A('v_lshrrev_b32 v1, 6, v0')
    A.wait(lgkm=0)
    A(f'v_readfirstlane_b32 s{CH.sW}, v1')
    A(f's_mov_b32 s{CH.sWS}, s12')
    A(f's_and_b32 s{CH.sWS+1}, s13, 0xffff')
    A(f's_mov_b32 s{CH.sWS+2}, 0x10000000')
    A(f's_mov_b32 s{CH.sWS+3}, 0x20000')
    A('s_lshl_b32 s16, s3, 2')
    A('v_mov_b32 v2, s16')
    A('v_mov_b32 v3, 1')
    A(f's_cmp_eq_u32 s{CH.sW}, 0')
    A('s_cbranch_scc0 k_noatom')
    A('s_mov_b64 exec, 1')
    A.raw('  global_atomic_add v4, v2, v3, s[14:15] sc0')
    A('s_mov_b64 exec, -1')
    A.raw('k_noatom:')
    ch.preload()
    NW = 0
    if opt.get('warm0', 1) and not opt.get('chain_only'):
        NW = 4
        A.raw('  s_waitcnt lgkmcnt(0)')
        A.raw('  s_cmp_eq_u32 s3, 0'); A.raw('  s_cbranch_scc1 k_nowarm')
        A.raw('  s_sub_u32 s44, s3, 1'); A.raw('  s_lshl_b32 s44, s44, 5')
        A.raw('  s_lshr_b32 s45, s2, 3'); A.raw('  s_and_b32 s45, s45, 31'); A.raw('  s_add_u32 s44, s44, s45')
        A.raw('  s_lshl_b32 s44, s44, 15')
        A.raw('  v_lshlrev_b32 v6, 7, v0')
        for k, p in enumerate((30, 34, 36, 32)):
            A.raw(f'  s_mov_b32 s40, s{p}'); A.raw(f'  s_and_b32 s41, s{p+1}, 0xffff')
            A.raw(f'  s_mov_b32 s42, {D*8192}'); A.raw('  s_mov_b32 s43, 0x20000')
            A.raw(f'  buffer_load_dword v{7+k}, v6, s[40:43], s44 offen')
            if opt.get('warm0', 1) == 2: A.raw(f'  buffer_load_dword v{11}, v6, s[40:43], s44 offen offset:64')
        A.raw('k_nowarm:')
    NPF = opt.get('codepf', 0)
    if NPF:
        A.raw('  s_getpc_b64 s[40:41]')
        A.raw('k_pc_ref:')
        A.raw(f'  s_sub_u32 s40, s40, k_pc_ref-{KN}')
        A.raw('  s_subb_u32 s41, s41, 0')
        A.raw('  s_and_b32 s41, s41, 0xffff')
        A.raw(f'  s_mov_b32 s42, k_code_end-{KN}')
        A.raw('  s_mov_b32 s43, 0x20000')
        A.raw('  v_lshlrev_b32 v6, 7, v0')
        for k in range(NPF):
            A.raw(f'  s_mov_b32 s44, {k*32768}')
            A.raw(f'  buffer_load_dword v{7+k}, v6, s[40:43], s44 offen')
    rt_stamp(A, opt, 0, CH.sW, off=OFF_RT)
    def dbg_time(idx, neg=False):
        lab = A.newlabel('dt')
        A.raw(f'  s_cmp_eq_u32 s{CH.sW}, 0'); A.raw(f'  s_cbranch_scc0 {lab}')
        A.raw('  s_memrealtime s[96:97]'); A.raw('  s_waitcnt lgkmcnt(0)')
        if neg: A.raw('  s_not_b32 s96, s96')
        A.raw('  s_mov_b64 exec, 1'); A.raw(f'  v_mov_b32 v62, {idx*4}'); A.raw('  v_mov_b32 v63, s96')
        A.raw('  global_atomic_umax v62, v63, s[14:15]'); A.raw('  s_mov_b64 exec, -1'); A.raw(f'{lab}:')
    self_dbg_time = dbg_time
    if opt.get('dbgt'): dbg_time(10, neg=True)
    A(f's_cmp_eq_u32 s{CH.sW}, 0')
    A('s_cbranch_scc0 k_noticket')
    A('s_mov_b64 exec, 1')
    A('v_mov_b32 v5, 0x27f00')
    A.raw('  s_waitcnt vmcnt(%d)' % ((7 if (opt.get('rt') or opt.get('dbgt')) else 6) + NPF))
    A('ds_write_b32 v5, v4')
    A('s_mov_b64 exec, -1')
    A.raw('  s_waitcnt lgkmcnt(0)')
    A.label('k_noticket')
    A('s_barrier')
    A('v_mov_b32 v5, 0x27f00')
    A('ds_read_b32 v4, v5')
    A.wait(lgkm=0)
    A(f'v_readfirstlane_b32 s{CH.sH}, v4')
    A('s_barrier')
    if opt.get('chain_only'):
        A('s_cmp_eq_u32 s3, 0')
        A('s_cbranch_scc0 k_end')
        A(f's_cmp_ge_u32 s{CH.sH}, 32')
        A('s_cbranch_scc1 k_end')
    else:
        A(f's_cmp_lt_u32 s{CH.sH}, 32')
        A('s_cbranch_scc1 k_role')
        A(f's_cmp_eq_u32 s{CH.sW}, 0')
        A('s_cbranch_scc0 k_ov_w')
        A('s_mov_b64 exec, 1')
        A(f'v_mov_b32 v2, {DBG_OVF*4}')
        A('v_mov_b32 v3, 1')
        A('global_atomic_add v4, v2, v3, s[14:15] sc0')
        A.wait(vm=0)
        A('v_readfirstlane_b32 s20, v4')
        A('s_mov_b64 exec, -1')
        A('v_and_b32 v2, 7, v0'); A('v_lshlrev_b32 v2, 2, v2')
        A('s_mov_b32 s21, 0')
        A.label('k_ov_poll')
        A('global_load_dword v3, v2, s[14:15] sc1')
        A('s_add_u32 s21, s21, 1')
        A.wait(vm=0)
        A('s_mov_b32 s22, 0')
        for x in range(8):
            A(f'v_readlane_b32 s{40+x}, v3, {x}')
        for x in range(8):
            A(f's_add_u32 s22, s22, s{40+x}')
        A('s_cmp_ge_u32 s22, 256')
        A('s_cbranch_scc1 k_ov_done')
        A('s_sleep 4')
        A('s_cmp_lt_u32 s21, 0x40000')
        A('s_cbranch_scc1 k_ov_poll')
        A.label('k_ov_done')
        A('s_mov_b32 s23, 0'); A('s_mov_b32 s24, 0')
        for x in range(7, -1, -1): pass
        A('s_mov_b32 s25, 0')
        for x in range(8):
            lab = A.newlabel('ovx')
            A(f's_cmp_lg_u32 s25, 0'); A(f's_cbranch_scc1 {lab}')
            A(f's_min_u32 s26, s{40+x}, 32'); A('s_sub_u32 s27, 32, s26')
            A('s_cmp_lt_u32 s20, s27')
            l2 = A.newlabel('ovy')
            A(f's_cbranch_scc0 {l2}')
            A(f's_mov_b32 s23, {x}'); A('s_add_u32 s24, s26, s20'); A('s_mov_b32 s25, 1')
            A(f's_branch {lab}')
            A.label(l2)
            A('s_sub_u32 s20, s20, s27')
            A.label(lab)
        A('s_lshl_b32 s23, s23, 8'); A('s_or_b32 s23, s23, s24')
        A('v_mov_b32 v4, s23'); A('v_mov_b32 v5, 0x27f00')
        A('ds_write_b32 v5, v4')
        A.wait(lgkm=0)
        A.label('k_ov_w')
        A('s_barrier')
        A('v_mov_b32 v5, 0x27f00')
        A('ds_read_b32 v4, v5')
        A.wait(lgkm=0)
        A('v_readfirstlane_b32 s20, v4')
        A('s_barrier')
        A('s_lshr_b32 s3, s20, 8')
        A(f's_and_b32 s{CH.sH}, s20, 31')
        A.label('k_role')
        if opt.get('hxor'): A(f's_xor_b32 s{CH.sH}, s{CH.sH}, {opt["hxor"]}')
        A('s_cmp_eq_u32 s3, 0')
        A('s_cbranch_scc0 k_worker')
    if opt.get('nochain'):
        ch.init(short=True)
    else:
        rt_stamp(A, opt, 1, CH.sW, off=OFF_RT)
        ch.init()
        rt_stamp(A, opt, 3, CH.sW, off=OFF_RT)
        if opt.get('dbgt'):
            dbg_time(11)
            A.raw('  s_memtime s[84:85]'); A.raw('  s_waitcnt lgkmcnt(0)')
        if opt.get('rt'):
            A.raw(f'  s_lshl_b32 s95, s2, 6'); A.raw(f'  s_add_u32 s95, s95, {OFF_RT + 6*4}')
            A.raw(f'  v_mov_b32 v62, s{CH.sH}'); A.raw('  v_mov_b32 v63, 0')
            A.raw('  buffer_store_dword v62, v63, s[4:7], s95 offen')
        if opt.get('chain_only'):
            ch.loop(False, 'f')
        else:
            A(f's_cmp_lg_u32 s{CH.sSLOW}, 0')
            A('s_cbranch_scc1 ch_slow_entry')
            ch.loop(False, 'f')
            A('s_branch ch_done')
            A.label('ch_slow_entry')
            ch.loop(True, 's')
            A.label('ch_done')
        rt_stamp(A, opt, 4, CH.sW, off=OFF_RT)
        if opt.get('dbgt'):
            dbg_time(12)
            A.raw('  s_memtime s[86:87]'); A.raw('  s_waitcnt lgkmcnt(0)'); A.raw('  s_sub_u32 s86, s86, s84')
            if opt.get('dbgt') == 1:
                A.raw('  s_mov_b64 exec, 1'); A.raw('  v_mov_b32 v62, 56'); A.raw('  v_mov_b32 v63, s86')
                A.raw('  global_atomic_umax v62, v63, s[14:15]'); A.raw('  s_mov_b64 exec, -1')
    A.wait(vm=0, lgkm=0)
    if opt.get('ts') or opt.get('tt'):
        A.raw('  s_memtime s[86:87]')
        A('s_waitcnt lgkmcnt(0)')
        A(f's_sub_u32 s{CH.sTS+19}, s86, s84')
        A(f's_lshl_b32 s27, s{CH.sH}, 2')
        A(f's_add_u32 s27, s27, s{CH.sW}')
        A(f's_lshl_b32 s27, s27, 7')
        A(f's_add_u32 s27, s27, {OFF_FLAG+0x8000}')
        A(f's_mov_b32 s{CH.sTS+18}, s{CH.sDEAD}')
        A('s_mov_b64 exec, 1')
        A('v_mov_b32 v2, 0')
        for k in range(20):
            A(f'v_mov_b32 v3, s{CH.sTS+k}')
            A(f'buffer_store_dword v3, v2, s[{CH.sWS}:{CH.sWS+3}], s27 offen offset:{4*k}')
        for k in range(8):
            A(f'v_mov_b32 v3, s{88+k}')
            A(f'buffer_store_dword v3, v2, s[{CH.sWS}:{CH.sWS+3}], s27 offen offset:{4*(20+k)}')
        A.wait(vm=0)
    if not opt.get('chain_only'):
        A('s_branch k_end')
        A.label('k_worker')
        A(f's_sub_u32 s{WK.sG}, s3, 1')
        A(f's_cmp_eq_u32 s{WK.sG}, 0')
        A(f's_cselect_b32 s{WK.sN}, 10, 9')
        A(f's_mov_b32 s{WK.sSLOW}, 1')
        A(f's_mov_b32 s53, s3')
        A(f's_mov_b32 s{WK.sDEAD}, 0')
        A('s_getpc_b64 s[30:31]')
        A.raw('  s_add_u32 s30, s30, worker_tab@rel32@lo+4')
        A.raw('  s_addc_u32 s31, s31, worker_tab@rel32@hi+12')
        wk = WK.Worker(A, opt)
        rt_stamp(A, opt, 1, CH.sW, off=OFF_RT)
        if opt.get('warmw', 0): wk.warm_weights()
        wk.layernorm()
        rt_stamp(A, opt, 2, CH.sW, off=OFF_RT)
        if opt.get('passes', 15) & 1: wk.passA()
        rt_stamp(A, opt, 5, CH.sW, off=OFF_RT)
        if opt.get('dbgt') == 2: dbg_time(15)
        if opt.get('passes', 15) & 2: wk.passC()
        rt_stamp(A, opt, 8, CH.sW, off=OFF_RT)
        if opt.get('dbgt') == 2: dbg_time(14)
        if opt.get('passes', 15) & 4: wk.passD()
        rt_stamp(A, opt, 11, CH.sW, off=OFF_RT)
        if opt.get('dbgt'): dbg_time(13)
        A.wait(vm=0, lgkm=0)
    A.label('k_end')
    A('s_endpgm')
    A.raw('k_code_end:')
    tail = f'''
.section .rodata,"a"
.p2align 6
.amdhsa_kernel {KN}
  .amdhsa_next_free_vgpr 512
  .amdhsa_next_free_sgpr 102
  .amdhsa_accum_offset 256
  .amdhsa_group_segment_fixed_size 0
  .amdhsa_kernarg_size 120
  .amdhsa_user_sgpr_count 2
  .amdhsa_user_sgpr_kernarg_segment_ptr 1
  .amdhsa_system_sgpr_workgroup_id_x 1
.end_amdhsa_kernel
'''
    print('nops', A.nops, 'auto waits', A.nwaits, 'lines', len(A.out), file=sys.stderr)
    return head + A.text() + tail + table_text()

if __name__ == '__main__':
    opt = {}
    for a_ in sys.argv[2:]:
        k, _, val = a_.partition('=')
        opt[k] = int(val) if val else 1
    open(sys.argv[1], 'w').write(build(opt))
```

```python
from asmlib import *
from layout import *
import math

vMS,vF0,vF1,vF2,vIDX,vQW,vKW,vQR,vKR,vOW,vRL,vRS = range(1,13)
T13,T14,T15 = 13,14,15
AB0,AB1 = 16,20
AQ0,AQ1,AK0,AK1,AV0,AV1 = 24,28,32,36,40,44
SB0,SB1,SB2 = 48,56,64
WV0 = 72
def frag_alloc():
    m = {}
    regs = [('v', WV0 + 8*k) for k in range((256-WV0)//8)] + [('a', 8*k) for k in range(32)]
    names = []
    for t in range(9):
        for tau in range(2): names.append(('Q',t,tau))
    for t in range(9):
        for tau in range(2): names.append(('V',t,tau))
    names.append(('K',8,1))
    for q in range(9):
        for tp in range(2): names.append(('O',tp,q))
    assert len(names) == len(regs) == 55, (len(names), len(regs))
    for n, r in zip(names, regs): m[n] = r
    return m
FR = frag_alloc()
LF = {}
for t in range(9):
    for tau in range(2):
        if (t, tau) != (8, 1): LF[('K',t,tau)] = 2*t+tau
def freg(name, off=0, cnt=8):
    k, n = FR[name]
    return f'{k}[{n+off}:{n+off+cnt-1}]'
def lf_addr(name, hh):
    f = LF[name]
    base = [vF0, vF1, vF2][f//8]
    return base, (f % 8)*8192 + hh*1024

sWS = 4
sT  = 8
sH, sW, sS = 16, 17, 18
sPBc, sPBn, sPBx = 21, 54, 55
sMBa, sMBb, sMBc = 22, 23, 24
sTASK = 25
sRSO  = 26
sTMP  = 27
sKX, sVX, sKM, sVM = 36, 37, 38, 39
sCv = 40
sMASK = 42
sDEAD = 44
sRL0 = 46
sPBr = 54
sFLAG = 55
sNEED = 56
sLO = 57
sPBl = 59
sWARM = 45
sKXW = 98
sFLC = 99
sR7 = 100
sK7 = 101
sPUB = 19
sCLR = 20
sHI = 56
sHP = 83
sKVF = 82
sKVB = 81
sSLOW = 80
sREP = 55
sTS = 60
PBRING = [OFF_PB, OFF_PB+PBS, OFF_PB+2*PBS]

def smf(A_, d, a_reg, bname_or_reg):
    if isinstance(bname_or_reg, tuple): b = freg(bname_or_reg)
    else: b = v(bname_or_reg, 8)
    return f'v_smfmac_f32_16x16x64_bf16 {v(d,4)}, {v(a_reg,4)}, {b}, {v(vIDX)}'

def interleave(main, fill):
    out = []
    for k, m in enumerate(main):
        out.append(m)
        if k < len(fill): out += fill[k]
    for k in range(len(main), len(fill)): out += fill[k]
    return out

def lfread(dst, name):
    r = []
    for hh in range(2):
        b, off = lf_addr(name, hh)
        r.append(f'ds_read_b128 {v(dst+4*hh,4)}, {v(b)} offset:{off}')
    return r

def aread(dst, t):
    return f'ds_read_b128 {v(dst,4)}, {v(vMS)} offset:{L_MEMST-BASE_MS+t*1024}'

class Chain:
    def __init__(self, A, opt):
        self.A = A; self.opt = opt
    def ts(self, k):
        if self.opt.get('upto') == k+100 or self.opt.get('upto') == k:
            self.A.wait(vm=0, lgkm=0)
            self.A('s_branch ch_skip')
        if not self.opt.get('ts'): return
        A = self.A
        A.raw(f'  s_memtime s[{sTS}:{sTS+1}]')
        A.raw(f'  s_waitcnt lgkmcnt(0)')
        A.lgk = []
        A.raw(f'  s_sub_u32 s{sTS+2}, s{sTS}, s{sTS+3}')
        A.raw(f'  s_add_u32 s{sTS+4+k}, s{sTS+4+k}, s{sTS+2}')
        A.raw(f'  s_mov_b32 s{sTS+3}, s{sTS}')

    def pf(self, which):
        if self.stf: return 'sc1'
        m = self.opt.get('pollf', 0)
        return {0: 'sc1', 1: 'nt', 2: 'sc0 sc1', 3: ('nt' if which == 0 else 'sc1'), 4: ('sc1' if which == 0 else 'nt'), 5: 'sc1 nt'}[m]
    def backoff(self, n32):
        A = self.A
        if not n32: return
        if self.opt.get('usesleep', 1):
            A.comment('back off: the slowest member cannot have delivered yet; an early poll would only be repeated')
            if n32 // 2: A(f's_sleep {n32 // 2}')
            if n32 % 2: A('s_nop 7')
        else:
            for _ in range(n32): A('s_nop 7')
    def at(self, k, adj=0):
        st = self.opt.get('abs')
        if st is None: return
        st += adj
        A = self.A
        lab = A.newlabel('abs')
        A.raw(f'  s_cmp_eq_u32 s{sS}, {st}')
        A.raw(f'  s_cbranch_scc0 {lab}')
        A.raw(f'  s_memtime s[96:97]')
        A.raw(f'  s_waitcnt lgkmcnt(0)')
        A.raw(f'  s_mov_b32 s{88+k}, s96')
        A.raw(f'{lab}:')
    def preload(self):
        A = self.A
        A(f'v_lshlrev_b32 v13, 7, v0')
        for k in range(6): A(f'global_load_dwordx4 v[{16+4*k}:{19+4*k}], v13, s[28:29] offset:{16*k}')
        A(f's_load_dwordx2 s[30:31], s[0:1], 16')
        A(f's_load_dwordx2 s[32:33], s[0:1], 24')
        A(f's_load_dwordx2 s[34:35], s[0:1], 32')
        A(f's_load_dwordx2 s[36:37], s[0:1], 40')
        A(f's_load_dwordx2 s[38:39], s[0:1], 8')
    def init(self, short=False):
        A = self.A; opt = self.opt
        A.wait(vm=0, lgkm=0)
        names = CH_CONSTS
        for k, n in enumerate(names[:12]):
            A(f'v_mov_b32 v{1+k}, v{16+k}')
        vDQ, vDO, vDO8, vTR0, vTR1, vM0 = 28, 29, 30, 31, 32, 33
        ob = [('O', 0, 0), ('O', 0, 2), ('O', 0, 4), ('O', 0, 6), ('O', 1, 0), ('O', 1, 2), ('O', 1, 4), ('O', 1, 6), ('O8',)]
        blocks = []
        if opt.get('ilv', 0):
            for t in range(9): blocks += [('Q', t), ('V', t), ob[t]]
        elif opt.get('ofirst', 0):
            blocks += ob
            for t in range(9): blocks.append(('Q', t))
            for t in range(9): blocks.append(('V', t))
        else:
            for t in range(9): blocks.append(('Q', t))
            for t in range(9): blocks.append(('V', t))
            blocks += ob
        for t in range(9): blocks.append(('K', t))
        assert len(blocks) == 36
        ptr = {'Q': 30, 'K': 32, 'V': 34, 'O': 36, 'O8': 36}
        size = {'Q': D*8192, 'K': D*8192, 'V': D*8192, 'O': 4096*1152, 'O8': 4096*1152}
        A(f's_lshl_b32 s40, s{sH}, 8')
        A(f's_mul_i32 s41, s{sH}, {128*1152}')
        A(f's_lshl_b32 s42, s{sW}, 10')
        cur = [None]
        def issue(n):
            b = blocks[n]; k = b[0]
            sl = n % 9
            if cur[0] != ptr[k]:
                A(f's_mov_b32 s{sT}, s{ptr[k]}')
                A(f's_and_b32 s{sT+1}, s{ptr[k]+1}, 0xffff')
                A(f's_mov_b32 s{sT+2}, {size[k]}')
                A(f's_mov_b32 s{sT+3}, 0x20000')
                cur[0] = ptr[k]
            for y in range(4):
                if k in 'QKV':
                    so = (64*b[1] + 16*y)*8192; base = 40; vo = vDQ
                elif k == 'O':
                    so = (64*b[1] + 32*(y >> 1) + 8*(y & 1))*1152 + b[2]*32; base = 41; vo = vDO
                else:
                    so = (32*(y >> 1) + 8*(y & 1))*1152 + 8*32; base = 41; vo = vDO8
                A(f's_add_u32 s43, s{base}, {so}')
                A(f's_add_u32 m0, s42, {sl*16384 + y*4096}')
                A(f'buffer_load_dwordx4 {v(vo)}, s[{sT}:{sT+3}], s43 offen {"nt " if (opt.get("wnt", 0) == 1 or (opt.get("wnt", 0) == 2 and k in "QKV")) else ""}lds')
        DEPTH = opt.get("depth", 6)
        if not short:
            for n in range(DEPTH): issue(n)
        nclr = 0
        A(f'ds_write_b128 {v(vMS)}, v[34:37] offset:{L_SPARE-BASE_MS}')
        A(f'v_mov_b64 v[40:41], 0')
        A(f'v_mov_b64 v[42:43], 0')
        A(f's_mul_i32 s{sTMP}, s{sH}, {HS}')
        A(f's_mul_i32 s{sTMP+1}, s{sW}, 2304')
        A(f's_add_u32 s{sTMP}, s{sTMP}, s{sTMP+1}')
        A(f's_lshl_b32 s{sLO}, s{sW}, 9')
        A(f's_add_u32 s{sLO}, s{sLO}, {L_QEX-BASE_MS-2048}')
        A(f's_add_u32 s{sPBc}, s{sTMP}, {PBRING[0]-BASE_MS}')
        A(f's_sub_u32 s{sPBl}, s{sPBc}, s{sLO}')
        self.clear_partial(sPBc, init=True); nclr += 3
        A(f'v_mov_b64 v[44:45], -1')
        A(f'v_mov_b64 v[46:47], -1')
        A(f's_mul_i32 s{sTMP}, s{sH}, 1536')
        A(f's_min_u32 s{sTMP+1}, s{sW}, 1'); A(f's_lshl_b32 s{sTMP+1}, s{sTMP+1}, 9')
        A(f's_add_u32 s{sTMP}, s{sTMP}, s{sTMP+1}')
        A(f's_add_u32 s{sTMP}, s{sTMP}, {OFF_MB-BASE_MS}')
        A(f'buffer_store_dwordx4 v[44:47], {v(vMS)}, s[{sWS}:{sWS+3}], s{sTMP} offen sc1'); nclr += 1
        if not opt.get('chain_only'):
            A(f'v_lshrrev_b32 v48, 4, {v(vMS)}')
            A(f'v_and_b32 v48, 63, v48')
            A(f'v_lshlrev_b32 v49, 7, v48')
            A(f's_mul_i32 s{sTMP}, s{sH}, 124'); A(f's_add_u32 s{sTMP}, s{sTMP}, 0x1000')
            A(f'v_mov_b32 v50, s{sTMP}')
            A(f'v_cmp_eq_u32 vcc, 8, v48')
            A(f'v_cndmask_b32 v49, v49, v50, vcc')
            A(f'v_mov_b32 v50, 0')
            A(f's_lshl_b32 s{sTMP}, s{sH}, 2')
            A(f's_add_u32 s{sTMP}, s{sTMP}, {OFF_FLAG}')
            A(f's_mov_b64 exec, 0x1ff')
            A(f'buffer_store_dword v50, v49, s[{sWS}:{sWS+3}], s{sTMP} offen sc1'); nclr += 1
            A(f's_mov_b64 exec, -1')
        if short:
            A.wait(vm=0); A('s_barrier'); self.dbg_add(9)
            return
        TA, TB = 40, 56
        pend = None
        NE = 36 - DEPTH; nearly = 5
        for n in range(36):
            b = blocks[n]; k = b[0]; sl = n % 9
            left = min(35, n + DEPTH - 1) - n
            extra = nclr if n < DEPTH else 0
            if n > NE: extra += nearly
            A.wait(vm=4*left + extra, lgkm=0)
            A('s_barrier')
            if n in (9, 18, 27): rt_stamp(A, opt, 7 + n//9 - 1, sW, off=OFF_RT)
            if n == DEPTH:
                self.dbg_add(9, nowait=True)
            if pend is not None:
                pn, treg = pend
                self.writeback(blocks[pn], treg); pend = None
            if n + DEPTH < 36: issue(n + DEPTH)
            if n == NE:
                A(f's_mov_b32 s44, s38'); A(f's_and_b32 s45, s39, 0xffff'); A(f's_mov_b32 s46, {8*1152}'); A(f's_mov_b32 s47, 0x20000')
                A(f's_lshl_b32 s43, s{sW}, 8')
                A(f'buffer_load_dwordx4 v[16:19], v{vM0}, s[44:47], s43 offen')
                A(f'buffer_load_dwordx4 v[20:23], v{vM0}, s[44:47], s43 offen offset:128')
                A(f's_mov_b32 s43, {8*128}')
                A(f'buffer_load_dwordx4 v[24:27], v{vM0}, s[44:47], s43 offen')
                A(f'v_lshrrev_b32 v38, 2, {v(vMS)}'); A(f'v_and_b32 v38, 60, v38')
                A(f'global_load_dword v38, v38, s[14:15] sc1')
                A(f'v_lshrrev_b32 v39, 4, {v(vMS)}'); A(f'v_and_b32 v39, 1, v39'); A(f'v_lshlrev_b32 v39, 7, v39')
                A(f's_lshl_b32 s43, s{sH}, 2'); A(f's_add_u32 s43, s43, {FL_KV + 128}')
                A(f'buffer_load_dword v39, v39, s[{sWS}:{sWS+3}], s43 offen sc1')
            inplace = n >= 27
            tmp = TA if (n % 2 == 0) else TB
            if k in 'QKV': names = [(k, b[1], 0), (k, b[1], 1)]
            elif k == 'O': names = [('O', b[1], b[2]), ('O', b[1], b[2]+1)]
            else: names = [('O', 0, 8), ('O', 1, 8)]
            for tau in range(2):
                A(f'v_add_u32 v{13+tau}, {sl*16384}, v{vTR0+tau}')
            for tau in range(2):
                nm = names[tau]
                for rr in range(4):
                    off = (32*(rr >> 1) + 4*(rr & 1))*256
                    if nm in FR: dst = freg(nm, 2*rr, 2)
                    else: dst = v(tmp + 8*tau + 2*rr, 2)
                    A(f'ds_read_b64_tr_b16 {dst}, v{13+tau} offset:{off}')
            if inplace: pend = (n, tmp)
        A.wait(lgkm=0)
        A('s_barrier')
        self.writeback(blocks[pend[0]], pend[1])
        A.wait(lgkm=0)
        A('s_barrier')
        rt_stamp(A, opt, 2, sW, off=OFF_RT)
        A.wait(vm=0)
        A(f's_mov_b32 s40, 0x05040100'); A(f's_mov_b32 s41, 0x07060302')
        for q, r in enumerate((16, 20, 24)):
            d = 60 + 4*q
            A(f'v_perm_b32 v{d}, v{r+1}, v{r}, s40'); A(f'v_perm_b32 v{d+1}, v{r+3}, v{r+2}, s40')
            A(f'v_perm_b32 v{d+2}, v{r+1}, v{r}, s41'); A(f'v_perm_b32 v{d+3}, v{r+3}, v{r+2}, s41')
        A(f'ds_write_b128 {v(vF2)}, v[60:63] offset:{L_MEMST-BASE_MS}')
        A(f'ds_write_b128 {v(vF2)}, v[64:67] offset:{L_MEMST-BASE_MS+1024}')
        A(f'ds_write_b128 {v(vMS)}, v[68:71] offset:{L_MEMST-BASE_MS+8192}')
        A(f'v_readlane_b32 s90, v38, 0'); A(f'v_readlane_b32 s91, v38, 9')
        A(f'v_readlane_b32 s92, v39, 0'); A(f'v_readlane_b32 s93, v39, 1')
        A(f's_mov_b32 s{sS}, 0')
        A(f's_mov_b32 s{sMBa}, {OFF_MB-BASE_MS}')
        A(f's_mov_b32 s{sMBb}, {OFF_MB+MBS-BASE_MS}')
        A(f's_mov_b32 s{sMBc}, {OFF_MB+2*MBS-BASE_MS}')
        A(f's_mov_b32 s{sPBr}, {PBRING[0]}')
        A(f's_lshr_b32 s{sTMP}, s{sH}, 3')
        A(f's_mul_i32 s{sTMP+1}, s{sTMP}, 2304')
        A(f's_bfe_u32 s{sTMP+2}, s{sH}, 0x10002')
        A(f's_and_b32 s{sTMP+3}, s{sH}, 3')
        A(f's_lshl_b32 s{sTMP+4}, s{sTMP+2}, 10')
        A(f's_lshl_b32 s{sTMP+5}, s{sTMP+3}, 8')
        A(f's_add_u32 s{sTASK}, s{sTMP+1}, s{sTMP+4}')
        A(f's_add_u32 s{sTASK}, s{sTASK}, s{sTMP+5}')
        A(f's_lshl_b32 s{sTMP+5}, s{sW}, 7')
        A(f's_add_u32 s{sTASK}, s{sTASK}, s{sTMP+5}')
        A(f's_mul_i32 s{sRSO}, s{sTMP}, {9*256}')
        A(f's_add_u32 s{sRSO}, s{sRSO}, s{sTMP+4}')
        A(f's_lshl_b32 s{sTMP+5}, s{sTMP+3}, 6')
        A(f's_add_u32 s{sRSO}, s{sRSO}, s{sTMP+5}')
        A(f's_lshl_b32 s{sTMP+5}, s{sW}, 5')
        A(f's_add_u32 s{sRSO}, s{sRSO}, s{sTMP+5}')
        lab = A.newlabel('ch_t')
        A(f's_cmp_lt_u32 s{sW}, 2')
        A(f's_cbranch_scc1 {lab}')
        A(f's_mov_b32 s{sTASK}, -1')
        A(f's_cmp_eq_u32 s{sW}, 2')
        A(f's_cbranch_scc0 {lab}')
        A(f's_cmp_eq_u32 s{sTMP+3}, 0')
        A(f's_cbranch_scc0 {lab}')
        A(f's_lshl_b32 s{sTMP+5}, s{sTMP+2}, 7')
        A(f's_add_u32 s{sTASK}, s{sTMP+1}, s{sTMP+5}')
        A(f's_add_u32 s{sTASK}, s{sTASK}, 2048')
        A(f's_mul_i32 s{sRSO}, s{sTMP}, {9*256}')
        A(f's_lshl_b32 s{sTMP+5}, s{sTMP+2}, 5')
        A(f's_add_u32 s{sRSO}, s{sRSO}, s{sTMP+5}')
        A(f's_add_u32 s{sRSO}, s{sRSO}, {8*256}')
        A.wait(vm=0, lgkm=0)
        A.label(lab)
        A(f's_add_u32 s{sRL0}, s{sTASK}, {OFF_PB}')
        for n in range(1, 4): A(f's_add_u32 s{sRL0+n}, s{sRL0+n-1}, {8*HS}')
        A(f's_add_u32 s{sRSO}, s{sRSO}, {BASE_MS}')
        A(f's_lshl_b32 s{sHI}, s{sH}, 1'); A(f's_add_u32 s{sHI}, s{sHI}, s{sW}')
        A(f's_lshr_b32 s{sTMP}, s{sH}, 2'); A(f's_add_u32 s{sTMP}, s{sTMP}, 64')
        A(f's_cmp_eq_u32 s{sW}, 2'); A(f's_cselect_b32 s{sHI}, s{sTMP}, s{sHI}')
        A(f's_add_u32 s{sHI}, s{sHI}, {OFF_H2}')
        A(f's_and_b32 s{sHP}, s{sH}, {H2_REP-1}'); A(f's_mul_i32 s{sHP}, s{sHP}, {H2_STR}'); A(f's_add_u32 s{sHP}, s{sHP}, {OFF_H2}')
        A(f's_sub_u32 s{sREP}, s{sW}, 1'); A(f's_lshl_b32 s{sREP}, s{sREP}, 11'); A(f's_add_u32 s{sREP}, s{sREP}, {MB_REP}')
        A(f's_cmp_eq_u32 s{sW}, 0'); A(f's_cselect_b32 s{sREP}, 0, s{sREP}')
        A(f's_and_b32 s{sKXW}, s{sW}, 1')
        A(f's_lshl_b32 s{sKXW}, s{sKXW}, 12')
        A(f's_lshl_b32 s{sWARM}, s{sH}, 13')
        A(f's_add_u32 s{sWARM}, s{sWARM}, s{sKXW}')
        A(f's_add_u32 s{sWARM}, s{sWARM}, {OFF_KXF-BASE_MS+32*8192}')
        A(f's_cmp_ge_u32 s{sW}, 2')
        A(f's_cselect_b32 s{sTMP}, {OFF_VXF-OFF_KXF}, 0')
        A(f's_add_u32 s{sWARM}, s{sWARM}, s{sTMP}')
        A(f's_lshl_b32 s{sTMP}, s{sH}, 13')
        A(f's_add_u32 s{sKX}, s{sTMP}, {OFF_KXF-BASE_MS}')
        A(f's_lshl_b32 s{sTMP+1}, s{sW}, 11')
        A(f's_add_u32 s{sVX}, s{sTMP}, s{sTMP+1}')
        A(f's_add_u32 s{sVX}, s{sVX}, {OFF_VXF-BASE_MS}')
        A(f's_lshl_b32 s{sTMP}, s{sH}, 12')
        A(f's_lshl_b32 s{sTMP+1}, s{sW}, 10')
        A(f's_add_u32 s{sTMP}, s{sTMP}, s{sTMP+1}')
        A(f's_lshr_b32 s{sTMP}, s{sTMP}, 1')
        A(f's_add_u32 s{sKM}, s{sTMP}, {OFF_KMF-BASE_MS//2}')
        A(f's_add_u32 s{sVM}, s{sTMP}, {OFF_VMF-BASE_MS//2}')
        c = DH**-0.5*math.log2(math.e)
        import struct
        cb = struct.unpack('<I', struct.pack('<f', c))[0]
        A(f's_mov_b32 s{sCv}, {cb:#x}')
        A(f's_mov_b32 s{sCv+1}, {cb:#x}')
        A(f's_mov_b32 s{sMASK}, 0x00ff00ff')
        A(f's_mov_b32 s{sMASK+1}, 0x00ff00ff')
        A(f's_mov_b32 s{sDEAD}, 0')
        for k in range(20): A(f's_mov_b32 s{sTS+k}, 0')
        l9 = A.newlabel('i9')
        A(f's_cmp_ge_u32 s91, 32'); A(f's_cbranch_scc1 {l9}')
        self.dbg_wait(9, 32)
        A(f'v_mov_b32 v13, 0')
        A(f'global_load_dword v14, v13, s[14:15] sc1')
        A(f'v_readfirstlane_b32 s90, v14')
        A.label(l9)
        A(f's_cmp_lt_u32 s90, 32')
        A(f's_cselect_b32 s{sSLOW}, 1, 0')
        if opt.get('fake') or opt.get('slow'): A(f's_mov_b32 s{sSLOW}, 1')
        A(f's_lshl_b32 s{sFLC}, s{sH}, 7')
        A(f's_add_u32 s{sFLC}, s{sFLC}, {FL_CH}')
        A(f's_mov_b32 s{sR7}, 0'); A(f's_mov_b32 s{sK7}, 0')
        if not opt.get('chain_only'):
            lk = A.newlabel('ikv')
            A(f's_min_u32 s92, s92, s93')
            A(f's_cmp_ge_u32 s92, 1'); A(f's_cbranch_scc1 {lk}')
            self.kv_wait(); A(f's_mov_b32 s{sR7}, 1'); self.kv_wait()
            A.label(lk)
        A(f's_mov_b32 s{sR7}, 2')
        A(f's_lshl_b32 s{sKVB}, s{sH}, 2'); A(f's_add_u32 s{sKVB}, s{sKVB}, {FL_KV + 128}')
        A(f's_add_u32 s{sKVF}, s{sKVB}, 256')
        for k in range(8): A(f's_mov_b32 s{88+k}, 0')
        self.kx_dma(all_waves=True)
        A.wait(vm=0, lgkm=0)
        A('s_barrier')

    def dbg_add(self, idx, nowait=False):
        A = self.A
        if nowait:
            lab = A.newlabel('dbga'); R = A.raw
            R(f'  s_cmp_eq_u32 s{sW}, 0'); R(f'  s_cbranch_scc0 {lab}')
            R(f'  s_mov_b64 exec, 1'); R(f'  v_mov_b32 v13, {idx*4}'); R(f'  v_mov_b32 v14, 1')
            R(f'  global_atomic_add v13, v14, s[14:15]'); R(f'  s_mov_b64 exec, -1'); R(f'{lab}:')
            return
        lab = A.newlabel('dbga')
        A(f's_cmp_eq_u32 s{sW}, 0')
        A(f's_cbranch_scc0 {lab}')
        A(f's_load_dwordx2 s[{sTMP}:{sTMP+1}], s[0:1], 104') if False else None
        A(f's_mov_b64 exec, 1')
        A(f'v_mov_b32 v13, {idx*4}')
        A(f'v_mov_b32 v14, 1')
        A(f'global_atomic_add v13, v14, s[14:15]')
        A(f's_mov_b64 exec, -1')
        A.wait(vm=0)
        A.label(lab)
    def dbg_wait(self, idx, val):
        A = self.A
        lab = A.newlabel('dbgw'); done = A.newlabel('dbgd')
        A(f's_mov_b32 s{sTMP}, 0')
        A(f'v_mov_b32 v13, {idx*4}')
        A.label(lab)
        A(f'global_load_dword v14, v13, s[14:15] sc1')
        A(f's_add_u32 s{sTMP}, s{sTMP}, 1')
        A.wait(vm=0)
        A(f'v_readfirstlane_b32 s{sTMP+1}, v14')
        A(f's_cmp_ge_u32 s{sTMP+1}, {val}')
        A(f's_cbranch_scc1 {done}')
        A(f's_sleep 2')
        A(f's_cmp_lt_u32 s{sTMP}, 0x40000')
        A(f's_cbranch_scc1 {lab}')
        A(f's_mov_b32 s{sDEAD}, 1')
        A.label(done)
    def writeback(self, b, tmp):
        A = self.A
        k = b[0]
        if k in 'QKV': names = [(k, b[1], 0), (k, b[1], 1)]
        elif k == 'O': names = [('O', b[1], b[2]), ('O', b[1], b[2]+1)]
        else: names = [('O', 0, 8), ('O', 1, 8)]
        for tau in range(2):
            nm = names[tau]
            if nm in FR: continue
            for hh in range(2):
                bs, off = lf_addr(nm, hh)
                A(f'ds_write_b128 {v(bs)}, {v(tmp+8*tau+4*hh,4)} offset:{off}')
    def clear_partial(self, sreg, init=False, fl=None):
        A = self.A
        R = 40 if init else self.NEG
        fl = 'sc1' if init else self.stf
        A(f'buffer_store_dwordx4 {v(R,4)}, {v(vMS)}, s[{sWS}:{sWS+3}], s{sreg} offen {fl}')
        A(f'buffer_store_dwordx4 {v(R,4)}, {v(vMS)}, s[{sWS}:{sWS+3}], s{sreg} offen offset:1024 {fl}')
        A(f's_sub_u32 s{sTMP+1}, s{sreg}, s{sLO}')
        A(f'buffer_store_dword {v(R)}, {v(vQW)}, s[{sWS}:{sWS+3}], s{sTMP+1} offen {fl}')
    def kv_wait(self):
        A = self.A
        lab = A.newlabel('kvw'); done = A.newlabel('kvd')
        A(f's_lshl_b32 s{sTMP}, s{sR7}, 7')
        A(f's_lshl_b32 s{sTMP+1}, s{sH}, 2')
        A(f's_add_u32 s{sTMP}, s{sTMP}, s{sTMP+1}')
        A(f's_add_u32 s{sTMP}, s{sTMP}, {FL_KV + 128}')
        A(f's_mov_b32 s{sTMP+1}, 0')
        A(f'v_mov_b32 v13, 0')
        A.label(lab)
        A(f'buffer_load_dword v14, v13, s[{sWS}:{sWS+3}], s{sTMP} offen sc1')
        A(f's_add_u32 s{sTMP+1}, s{sTMP+1}, 1')
        A.wait(vm=0)
        A(f'v_readfirstlane_b32 s{sTMP+2}, v14')
        A(f's_cmp_gt_u32 s{sTMP+2}, s{sK7}')
        A(f's_cbranch_scc1 {done}')
        A(f's_sleep 2')
        A(f's_cmp_lg_u32 s{sDEAD}, 0')
        A(f's_cbranch_scc1 {done}')
        A(f's_cmp_lt_u32 s{sTMP+1}, 0x40000')
        A(f's_cbranch_scc1 {lab}')
        A(f's_mov_b32 s{sDEAD}, 1')
        A.label(done)
    def kx_dma(self, all_waves=False):
        A = self.A
        A(f's_lshl_b32 s{sTMP}, s{sW}, 11')
        A(f's_add_u32 s{sTMP+1}, s{sKX}, s{sTMP}')
        A(f's_add_u32 m0, s{sTMP}, {L_KXST}')
        A(f'buffer_load_dwordx4 {v(vMS)}, s[{sWS}:{sWS+3}], s{sTMP+1} offen sc1 lds')
        A(f's_add_u32 m0, s{sTMP}, {L_KXST}')
        A(f'buffer_load_dwordx4 {v(vMS)}, s[{sWS}:{sWS+3}], s{sTMP+1} offen offset:1024 sc1 lds')

    def loop(self, slow, tag):
        A = self.A; opt = self.opt
        self.stf = 'sc1' if slow else ''
        L = f'ch_loop_{tag}'
        self.pre_step()
        if opt.get('es', 2) == 2:
            A(f'ds_read_b128 {v(AB0,4)}, {v(vF2)} offset:{L_MEMST-BASE_MS}'); A(f'ds_read_b128 {v(AB1,4)}, {v(vF2)} offset:{L_MEMST-BASE_MS+1024}')
        elif opt.get('es', 2):
            A(aread(AB0, 0)); A(aread(AB1, 1))
        self.wmark = None
        if opt.get('tt') or opt.get('ts'):
            A.raw('  s_memtime s[84:85]')
            A.raw(f'  s_memtime s[{sTS}:{sTS+1}]')
            A.raw('  s_waitcnt lgkmcnt(0)')
            A(f's_mov_b32 s{sTS+3}, s{sTS}')
        A.wait(lgkm=0)
        A.label(L)
        self.step(0, tag)
        if not opt.get('single'): self.step(1, tag)
        A(f's_cmp_lt_u32 s{sS}, {opt.get("nsteps", 64)}')
        A(f's_cbranch_scc1 {L}')
        if not opt.get('chain_only') and opt.get('nsteps', 64) == 64:
            WS = f's[{sWS}:{sWS+3}]'
            A.label(f'ch_last_{tag}')
            A.wait(vm=0, lgkm=0)
            A('s_barrier')
            pf = A.newlabel('pfl')
            A(f's_cmp_eq_u32 s{sW}, 3'); A(f's_cbranch_scc0 {pf}')
            A(f's_mov_b64 exec, 1'); A(f'v_mov_b32 v13, 0'); A(f'v_mov_b32 v14, 64')
            A(f'buffer_store_dword v14, v13, {WS}, s{sFLC} offen sc1'); A(f's_mov_b64 exec, -1')
            A.label(pf)
    def step(self, par, tag):
        A = self.A; opt = self.opt
        stf = self.stf
        WS = f's[{sWS}:{sWS+3}]'
        skip = f'ch_skip_{tag}_{par}'
        self.skip = skip
        if opt.get('cut') and par == 0: A.cut = opt['cut']; A.cutn = 0; A.cutlab = skip
        self.ts(0)
        self.at(0)
        if opt.get('rtsync'):
            A.raw('  s_memrealtime s[94:95]')
            A.raw('  s_waitcnt lgkmcnt(0)')
        for _ in range(opt.get('nop_start', 0)): A('s_nop 7')
        ES = opt.get('es', 2)
        def add(r, x, y): return f'v_add_f32 {v(r)}, {v(x)}, {v(y)}'
        def xread(dst, k4, tau):
            return f'ds_read_b128 {v(dst,4)}, {v(vMS)} offset:{L_KXST-BASE_MS+(k4*2+tau)*1024}'
        X0 = {0: SB0, 1: SB1, 2: SB2, 3: SB1}
        X1 = {0: SB0+4, 1: SB1+4, 2: SB2+4, 3: SB1+4}
        VXR = SB0; PXR = SB1
        cvt = lambda d, x, y: f'v_cvt_pk_bf16_f32 {v(d)}, {v(x)}, {v(y)}'
        qe = [add(AQ0, AQ0, AQ0+2), add(AQ0+1, AQ0+1, AQ0+3), add(AQ1, AQ1, AQ1+2), add(AQ1+1, AQ1+1, AQ1+3),
              cvt(AQ0, AQ0, AQ0+1), cvt(AQ1, AQ1, AQ1+1),
              f'ds_write2_b32 {v(vQW)}, {v(AQ0)}, {v(AQ1)} offset0:0 offset1:64']
        ke = [add(AK0, AK0, AK0+2), add(AK0+1, AK0+1, AK0+3), add(AK1, AK1, AK1+2), add(AK1+1, AK1+1, AK1+3),
              cvt(T14, AK0, AK0+1), cvt(T15, AK1, AK1+1),
              f'ds_write2_b32 {v(vKW)}, {v(T14)}, {v(T14)} offset0:0 offset1:1',
              f'ds_write2_b32 {v(vKW)}, {v(T15)}, {v(T15)} offset0:128 offset1:129']
        def p1(order):
            kseq = [('K', order[p], tau) for p in range(9) for tau in range(2)][:17]
            SB = [SB0, SB1, SB2]
            kreg = {nm: SB[k % 3] for k, nm in enumerate(kseq)}
            Areg = {p: (AB0 if p % 2 == 0 else AB1) for p in range(9)}
            if not ES:
                A(aread(Areg[0], order[0]))
            for x in lfread(SB2, kseq[2]): A(x, nowait=bool(ES))
            nlds = 2
            if ES: A.raw('  s_waitcnt lgkmcnt(4)')
            if not opt.get('chain_only'):
                kf = A.newlabel('kf')
                A.raw(f'  s_cmp_eq_u32 s{sW}, 3')
                A.raw(f'  s_cbranch_scc0 {kf}')
                A.raw(f'  buffer_load_dword {v(vRS)}, off, {WS}, s{sKVF} sc1')
                A.raw(f'{kf}:')
            seq = []
            LAG = 4
            for p in range(9):
                t = order[p]
                kb = lambda tau: (kreg[('K', t, tau)] if ('K', t, tau) in kreg else ('K', t, tau))
                m = [smf(A, AQ0, Areg[p], ('Q', t, 0)), smf(A, AQ1, Areg[p], ('Q', t, 1)),
                     smf(A, AK0, Areg[p], kb(0)), smf(A, AK1, Areg[p], kb(1))]
                f = [[], [], [], []]
                full = p < 9 - LAG
                if full:
                    m += [smf(A, AV0, Areg[p], ('V', t, 0)), smf(A, AV1, Areg[p], ('V', t, 1))]
                    f += [[], []]
                if p < 8 and not (ES and p == 0):
                    if ES and p == 1: f[0].append('@BAR')
                    f[0].append(aread(Areg[p+1], order[p+1]))
                i0 = 2*p
                if i0 + 3 < 17:
                    r = lfread(kreg[kseq[i0]], kseq[i0+3])
                    if full: f[2].append(r[0]); f[3].append(r[1])
                    else: f[2] += r
                if i0 + 4 < 17:
                    r = lfread(kreg[kseq[i0+1]], kseq[i0+4])
                    if full: f[4].append(r[0]); f[5].append(r[1])
                    else: f[3] += r
                if p < 4 and not opt.get('nokx'):
                    f[1].append(f'buffer_load_dword v13, {v(vMS)}, {WS}, s{sWARM} offen offset:{1024*p} sc1')
                if p == 7:
                    f[2].append(aread(SB2, order[5])); f[3].append(aread(SB2+4, order[6]))
                seq += interleave(m, f)
            for x in seq:
                if x == '@BAR':
                    A.wait(lgkm=nlds)
                    A('s_barrier')
                    self.progress_flag()
                    continue
                if x.startswith('ds_'): nlds += 1
                A(x, nowait=x.startswith('buffer_load_dword v13'))
            sv = lambda acc, areg, p, tau: smf(A, acc, areg, ('V', order[p], tau))
            prog = [sv(AV0, AB0, 8, 0), xread(X0[0], 0, 0), sv(AV1, AB0, 8, 1), xread(X1[0], 0, 1)]
            prog += qe + ke
            prog += [sv(AV0, AB1, 7, 0), xread(X0[1], 1, 0), sv(AV1, AB1, 7, 1), xread(X1[1], 1, 1),
                     sv(AV0, SB2, 5, 0), sv(AV1, SB2, 5, 1), sv(AV0, SB2+4, 6, 0), sv(AV1, SB2+4, 6, 1)]
            for x in prog: A(x)
        if ES:
            join = A.newlabel('p1j')
            labs = [A.newlabel('p1w') for _ in range(4)]
            for w_ in range(1, 4):
                A.raw(f'  s_cmp_eq_u32 s{sW}, {w_}'); A.raw(f'  s_cbranch_scc1 {labs[w_]}')
            st0 = (list(A.lgk), list(A.vm), list(A.hist))
            for w_ in range(4):
                A.lgk, A.vm, A.hist = list(st0[0]), list(st0[1]), list(st0[2])
                if w_: A.raw(f'{labs[w_]}:')
                own = [2*w_, 2*w_+1]
                p1(own + [t for t in range(8) if t not in own] + [8])
                if w_ < 3: A.raw(f'  s_branch {join}')
            A.raw(f'{join}:')
        else:
            p1(list(range(9)))
        self.ts(1)
        S0, S1, SM = 24, 28, 32
        def qread(dst, k4):
            return [f'ds_read_b64_tr_b16 {v(dst,2)}, {v(vQR)} offset:{k4*512}',
                    f'ds_read_b64_tr_b16 {v(dst+2,2)}, {v(vQR)} offset:{k4*512+128}']
        def kmread(dst, k4):
            return [f'ds_read_b64_tr_b16 {v(dst,2)}, {v(vKR)} offset:{k4*1024}',
                    f'ds_read_b64_tr_b16 {v(dst+2,2)}, {v(vKR)} offset:{k4*1024+256}']
        Q_ = {0: AB0, 1: 36, 2: AB0, 3: 36}
        KM = {0: AB1, 1: 44, 2: AB1, 3: 44}
        ONES = 16; PM = 20
        def smm(k4):
            c = lambda d: (v(d, 4) if k4 > 0 else '0')
            return [f'v_mfma_f32_16x16x32_bf16 {v(S0,4)}, {v(X0[k4],4)}, {v(Q_[k4],4)}, {c(S0)}',
                    f'v_mfma_f32_16x16x32_bf16 {v(S1,4)}, {v(X1[k4],4)}, {v(Q_[k4],4)}, {c(S1)}',
                    f'v_mfma_f32_16x16x32_bf16 {v(SM,4)}, {v(KM[k4],4)}, {v(Q_[k4],4)}, {c(SM)}']
        ve = [add(AV0, AV0, AV0+2), add(AV0+1, AV0+1, AV0+3), add(AV1, AV1, AV1+2), add(AV1+1, AV1+1, AV1+3),
              cvt(AV0, AV0, AV0+1), cvt(AV0+1, AV1, AV1+1)]
        def vxpub():
            if not opt.get('nokx'):
                A(f'buffer_load_dwordx4 {v(VXR,4)}, {v(vMS)}, {WS}, s{sVX} offen sc1')
                A(f'buffer_load_dwordx4 {v(VXR+4,4)}, {v(vMS)}, {WS}, s{sVX} offen offset:1024 sc1')
            if not opt.get('nopub'):
                A(f'v_lshrrev_b32 {v(43)}, 1, {v(vMS)}')
                A(f'buffer_store_dwordx2 {v(T14,2)}, {v(43)}, {WS}, s{sKM} offen sc1')
                A(f'buffer_store_dwordx2 {v(AV0,2)}, {v(43)}, {WS}, s{sVM} offen sc1')
            if par == 1 and not opt.get('chain_only') and opt.get('nsteps', 64) == 64:
                A.raw(f'  s_cmp_eq_u32 s{sS}, 63')
                A.raw(f'  s_cbranch_scc1 ch_last_{tag}')
        m0 = smm(0); m1 = smm(1); m2 = smm(2); m3 = smm(3)
        A.wait(lgkm=2)
        A('s_barrier')
        self.ts(2)
        for x in qread(Q_[0], 0) + kmread(KM[0], 0) + qread(Q_[1], 1) + [xread(X0[2], 2, 0), xread(X1[2], 2, 1)]: A(x)
        for x in ve: A(x)
        for x in kmread(KM[1], 1): A(x)
        for x in m0: A(x)
        vxpub()
        for x in qread(Q_[2], 2) + kmread(KM[2], 2): A(x)
        for x in m1: A(x)
        for x in [xread(X0[3], 3, 0), xread(X1[3], 3, 1)] + qread(Q_[3], 3) + kmread(KM[3], 3): A(x)
        for x in m2: A(x)
        A(f'v_mov_b32 {v(ONES)}, 0x3f803f80'); A(f'v_mov_b32 {v(ONES+1)}, 0x3f803f80')
        A(f'v_mov_b32 {v(ONES+2)}, 0x3f803f80'); A(f'v_mov_b32 {v(ONES+3)}, 0x3f803f80')
        A(m3[0]); A(f'v_mov_b32 {v(PM+1)}, 0'); A(m3[1]); A(f'v_mov_b32 {v(PM+2)}, 0'); A(m3[2])
        self.ts(3)
        MX, TT = 42, 14
        early0 = [36, 38, 44, 46, 64, 66, 68, 70] if opt.get('ev', 2) == 2 and opt.get('zfill', 0) else []
        ez = [f'v_mov_b64 {v(r,2)}, 0' for r in early0]
        def zf(n):
            for _ in range(n):
                if ez: A(ez.pop(0))
        zf(3)
        A(f'v_max3_f32 {v(MX)}, {v(S0)}, {v(S0+1)}, {v(S0+2)}')
        A(f'v_max3_f32 {v(TT)}, {v(S1)}, {v(S1+1)}, {v(S1+2)}')
        A(f'v_max3_f32 {v(MX)}, {v(MX)}, {v(S0+3)}, {v(S1+3)}')
        A(f'v_max_f32 {v(MX)}, {v(MX)}, {v(TT)}')
        zf(1)
        A(f'v_max3_f32 {v(MX)}, {v(MX)}, {v(SM)}, {v(SM+1)}')
        A(f'v_mov_b32 {v(TT)}, {v(MX)}')
        zf(2)
        A(f'v_permlane16_swap_b32 {v(MX)}, {v(TT)}')
        A(f'v_max_f32 {v(MX)}, {v(MX)}, {v(TT)}')
        A(f'v_mov_b32 {v(TT)}, {v(MX)}')
        zf(2)
        A(f'v_permlane32_swap_b32 {v(MX)}, {v(TT)}')
        A(f'v_max_f32 {v(MX)}, {v(MX)}, {v(TT)}')
        A(f'v_mul_f32 {v(TT)}, s{sCv}, {v(MX)}')
        for r in (S0, S0+2, S1, S1+2, SM):
            A(f'v_pk_fma_f32 {v(r,2)}, {v(r,2)}, s[{sCv}:{sCv+1}], {v(TT,2)} op_sel_hi:[1,1,0] neg_lo:[0,0,1] neg_hi:[0,0,1]')
        for r in (S0, S0+1, S0+2, S0+3, S1, S1+1, S1+2, S1+3, SM, SM+1):
            A(f'v_exp_f32 {v(r)}, {v(r)}')
        PX = PXR
        A(cvt(PX, S0, S0+1)); A(cvt(PX+1, S0+2, S0+3)); A(cvt(PX+2, S1, S1+1)); A(cvt(PX+3, S1+2, S1+3))
        A(cvt(PM, SM, SM+1)); A(cvt(PM+3, SM, SM+1))
        self.ts(4)
        O0, O1, LL = 24, 28, 32
        VX = VXR
        if opt.get('nokx'):
            for r in range(VX, VX+8, 2): A(f'v_mov_b64 {v(r,2)}, 0')
        A(f'v_mfma_f32_16x16x32_bf16 {v(LL,4)}, {v(ONES,4)}, {v(PX,4)}, 0')
        A(f'v_mfma_f32_16x16x32_bf16 {v(O0,4)}, {v(VX,4)}, {v(PX,4)}, 0')
        A(f'v_mfma_f32_16x16x32_bf16 {v(O1,4)}, {v(VX+4,4)}, {v(PX,4)}, 0')
        A(f'v_mfma_f32_16x16x16_bf16 {v(LL,4)}, {v(ONES,2)}, {v(PM,2)}, {v(LL,4)}')
        A(f'v_mfma_f32_16x16x16_bf16 {v(O0,4)}, {v(AV0,2)}, {v(PM,2)}, {v(O0,4)}')
        A(f'v_mfma_f32_16x16x16_bf16 {v(O1,4)}, {v(AV0,2)}, {v(PM+2,2)}, {v(O1,4)}')
        WACC = 36
        MX = 13
        zero = [f'v_mov_b64 {v(WACC+2*k,2)}, 0' for k in range(18) if (WACC+2*k) not in early0]
        zq = list(zero)
        for x in zq[:6]: A(x)
        A(f'v_rcp_f32 {v(MX)}, {v(LL)}')
        A(zq[6])
        for r in range(4): A(f'v_mul_f32 {v(O0+r)}, {v(MX)}, {v(O0+r)}')
        A(cvt(O0, O0, O0+1)); A(cvt(O0+1, O0+2, O0+3))
        for r in range(4): A(f'v_mul_f32 {v(O1+r)}, {v(MX)}, {v(O1+r)}')
        A(cvt(O0+2, O1, O1+1)); A(cvt(O0+3, O1+2, O1+3))
        A(f's_mov_b64 exec, s[{sMASK}:{sMASK+1}]')
        A(f'ds_write_b128 {v(vOW)}, {v(O0,4)}')
        A(f's_mov_b64 exec, -1')
        for x in zq[7:]: A(x)
        A.wait(lgkm=0)
        A('s_barrier')
        self.ts(5)
        OA0, OA1 = 16, 20
        A(f'ds_read_b128 {v(OA0,4)}, {v(vMS)} offset:{L_OEX-BASE_MS}')
        A(f'ds_read_b128 {v(OA1,4)}, {v(vMS)} offset:{L_OEX-BASE_MS+1024}')
        acc = lambda q: WACC + 4*q
        def wo(q, tp):
            return f'v_smfmac_f32_16x16x64_bf16 {v(acc(q),4)}, {v(OA0 if tp == 0 else OA1,4)}, {freg(("O", tp, q))}, {v(vIDX)}'
        def epi(q):
            dst = 24 + q
            tagop = f'v_or_b32 {v(dst)}, 1, {v(dst)}' if par == 0 else f'v_and_b32 {v(dst)}, -2, {v(dst)}'
            return [add(acc(q), acc(q), acc(q)+2), add(acc(q)+1, acc(q)+1, acc(q)+3), cvt(dst, acc(q), acc(q)+1), tagop]
        st = lambda r, off: f'buffer_store_dwordx4 {v(r,4)}, {v(vMS)}, {WS}, s{sPBc} offen offset:{off} {stf}'
        prog = []; pend = []
        WV = opt.get('wov', 0)
        if WV == 0:
            for q in range(9):
                prog.append(wo(q, 0))
                if pend: prog.append(pend.pop(0))
                if q >= 2 and pend: prog.append(pend.pop(0))
                prog.append(wo(q, 1))
                if pend: prog.append(pend.pop(0))
                if q >= 2 and pend: prog.append(pend.pop(0))
                if q >= 2:
                    pend += epi(q-2)
                    if q-2 == 3: pend.append(st(24, 0))
            prog += [f'ds_read_b128 {v(16,4)}, {v(vMS)} offset:{L_SPARE-BASE_MS}']
            prog += pend
            prog += epi(7) + [st(28, 1024)] + epi(8)
            prog += [f'buffer_store_dword {v(32)}, {v(vQW)}, {WS}, s{sPBl} offen {stf}']
        else:
            order = [8, 0, 1, 2, 3, 4, 5, 6, 7]
            st2 = lambda r, off: f'buffer_store_dwordx2 {v(r,2)}, {v(vMS)}, {WS}, s{sPBc} offen offset:{off} {stf}'
            after = {8: [f'buffer_store_dword {v(32)}, {v(vQW)}, {WS}, s{sPBl} offen {stf}'], 3: [st(24, 0)], 5: [st2(28, 1024)], 7: [st2(30, 1024+8)]}
            for n, q in enumerate(order):
                prog.append(wo(q, 0))
                for _ in range(2):
                    if pend: prog.append(pend.pop(0))
                prog.append(wo(q, 1))
                for _ in range(2 if n < 8 else 0):
                    if pend: prog.append(pend.pop(0))
                if n >= 1:
                    qq = order[n-1]
                    pend += epi(qq) + after.get(qq, [])
            prog += [f'ds_read_b128 {v(16,4)}, {v(vMS)} offset:{L_SPARE-BASE_MS}']
            prog += pend + epi(7) + after[7]
        for x in prog: A(x)
        self.ts(6)
        self.at(1)
        if opt.get('log') or opt.get('logtp'):
            A.raw('  s_memrealtime s[90:91]')
            A.raw('  s_mov_b32 s92, 0')
        nored = A.newlabel('nored')
        gat = A.newlabel('gat')
        sG = 58
        def shadow(skip=0):
            for r in range(AQ0 + skip, (AV0 if opt.get('gdbl') else AV1+4), 2): A(f'v_mov_b64 {v(r,2)}, 0')
            A(f's_add_u32 s{sPUB}, s{sMBb}, s{sRSO}')
            A(f's_add_u32 s{sCLR}, s{sMBa}, s{sRSO}')
            A(f's_mov_b32 s{sG}, s{sMBb}')
            A(f's_mov_b32 s{sTMP}, s{sMBa}'); A(f's_mov_b32 s{sMBa}, s{sMBb}'); A(f's_mov_b32 s{sMBb}, s{sMBc}'); A(f's_mov_b32 s{sMBc}, s{sTMP}')
            A(f's_add_u32 s{sVX}, s{sVX}, {32*8192}')
            A(f's_add_u32 s{sWARM}, s{sWARM}, {32*8192}')
            A(f's_add_u32 s{sKM}, s{sKM}, {32*2048}')
            A(f's_add_u32 s{sVM}, s{sVM}, {32*2048}')
            A(f's_add_u32 s{sS}, s{sS}, 1')
            if opt.get('hint'):
                A(f'v_lshrrev_b32 {v(T15)}, 4, {v(vMS)}')
                A(f'v_and_b32 {v(T15)}, 63, {v(T15)}')
                A(f'v_lshlrev_b32 {v(T15)}, {H2_STR.bit_length()-1}, {v(T15)}')
        def shadow2():
            A(f's_add_u32 s{sR7}, s{sR7}, 1')
            A(f's_cmp_eq_u32 s{sR7}, 7')
            A(f's_cselect_b32 s{sR7}, 0, s{sR7}')
            A(f's_addc_u32 s{sK7}, s{sK7}, 0')
            A(f's_lshl_b32 s{sKVF}, s{sR7}, 7')
            A(f's_add_u32 s{sKVF}, s{sKVF}, s{sKVB}')
            zb = 68 if opt.get('es', 2) == 1 else 64
            A(f'v_mov_b64 {v(zb,2)}, 0')
            A(f'v_mov_b64 {v(zb+2,2)}, 0')
            if opt.get('gdbl'):
                A(f'v_mov_b64 {v(68,2)}, 0'); A(f'v_mov_b64 {v(70,2)}, 0')
        def prefill(): pass
        if not opt.get('nohop'):
            A(f's_cmp_eq_u32 s{sTASK}, -1')
            A(f's_cbranch_scc1 {nored}')
            self.reducer(par, shadow, shadow2)
            prefill()
            A(f's_branch {gat}')
            A.label(nored)
            if not opt.get('chain_only'):
                nk = A.newlabel('nkv')
                A(f's_cmp_eq_u32 s{sW}, 3'); A(f's_cbranch_scc0 {nk}')
                A(f's_cmp_lt_u32 s{sS}, 62'); A(f's_cbranch_scc0 {nk}')
                A(f'v_readfirstlane_b32 s{sTMP+2}, {v(vRS)}')
                A(f's_cmp_gt_u32 s{sTMP+2}, s{sK7}'); A(f's_cbranch_scc1 {nk}')
                self.kv_wait()
                A.label(nk)
            if not opt.get('nokx'): self.next_kx()
            shadow(); shadow2(); prefill()
            if opt.get('hint'): self.hint_poll()
            A.label(gat)
        else:
            A.cut = None
            A.raw(f'{skip}:')
            shadow(); shadow2()
        self.k_prefetch()
        if opt.get('gbar', 1) and not opt.get('nohop'): A('s_barrier')
        ES = opt.get('es', 2)
        self.wmark = None
        if not opt.get('nohop'): self.gather(sG)
        elif ES:
            A(f'ds_read_b128 {v(AB0,4)}, {v(vF2)} offset:{L_MEMST-BASE_MS}'); A(f'ds_read_b128 {v(AB1,4)}, {v(vF2)} offset:{L_MEMST-BASE_MS+1024}'); A.wait(lgkm=0)
        self.ts(8)
        if not ES:
            A.wait(vm=0, lgkm=0)
            A('s_barrier')
        if opt.get('log') or opt.get('logst'):
            A.raw('  s_memrealtime s[94:95]')
            A.raw(f'  s_lshl_b32 s96, s{sH}, 2')
            A.raw(f'  s_add_u32 s96, s96, s{sW}')
            A.raw(f'  s_lshl_b32 s96, s96, 6')
            A.raw(f'  s_add_u32 s96, s96, s{sS}')
            A.raw(f'  s_lshl_b32 s96, s96, 4')
            A.raw(f'  s_add_u32 s96, s96, {0x8000000 - 16}')
            A.raw('  s_waitcnt lgkmcnt(0)')
            A.raw('  s_mov_b64 exec, 1')
            A.raw('  v_mov_b32 v68, s90'); A.raw('  v_mov_b32 v69, s94'); A.raw('  v_mov_b32 v70, s92'); A.raw(f'  v_mov_b32 v71, s{sTMP+2}')
            A.raw('  v_mov_b32 v13, 0')
            A.raw(f'  buffer_store_dwordx4 v[68:71], v13, {WS}, s96 offen')
            A.raw('  s_mov_b64 exec, -1')
        if not opt.get('es', 2): self.progress_flag()
    def progress_flag(self):
        A = self.A; opt = self.opt
        WS = f's[{sWS}:{sWS+3}]'
        if not opt.get('chain_only'):
            pf = A.newlabel('pf')
            A.raw(f'  s_cmp_eq_u32 s{sW}, 3')
            A.raw(f'  s_cbranch_scc0 {pf}')
            A.raw(f'  s_mov_b64 exec, 1')
            A.raw(f'  v_mov_b32 v14, s{sS}')
            A.raw(f'  buffer_store_dword v14, off, {WS}, s{sFLC} sc1')
            A.raw(f'  s_mov_b64 exec, -1')
            A.raw(f'{pf}:')
    def next_kx(self):
        A = self.A
        lab = A.newlabel('nkx')
        R = A.raw
        WS = f's[{sWS}:{sWS+3}]'
        R(f'  s_cmp_eq_u32 s{sW}, 3')
        R(f'  s_cbranch_scc0 {lab}')
        R(f'  s_add_u32 s{sKX}, s{sKX}, {32*8192}')
        R(f'  s_mov_b32 m0, {L_KXST}')
        R(f'  s_add_u32 s{sTMP+2}, s{sKX}, 4096')
        for k in range(4):
            R(f'  buffer_load_dwordx4 {v(vMS)}, {WS}, s{sKX} offen offset:{1024*k} sc1 lds')
        R(f'  s_mov_b32 m0, {L_KXST+4096}')
        R(f'  s_nop 0')
        for k in range(4):
            R(f'  buffer_load_dwordx4 {v(vMS)}, {WS}, s{sTMP+2} offen offset:{1024*k} sc1 lds')
        R(f'{lab}:')
    def k_prefetch(self):
        A = self.A
        if self.opt.get('es', 2) == 2:
            A(f's_lshl_b32 s{sTMP}, s{sW}, 15')
            A(f'v_add_u32 {v(T15)}, s{sTMP}, {v(vF0)}')
            for d, off in ((SB0, 0), (SB0+4, 1024), (SB1, 8192), (SB1+4, 9216)):
                A(f'ds_read_b128 {v(d,4)}, {v(T15)} offset:{off}', nowait=True)
        else:
            for x in lfread(SB0, ('K', 0, 0)) + lfread(SB1, ('K', 0, 1)): A(x, nowait=True)
    def pre_step(self):
        A = self.A
        for r in range(AQ0, AV1+4, 2): A(f'v_mov_b64 {v(r,2)}, 0')
        self.k_prefetch()
    def reducer(self, par, shadow, shadow2):
        A = self.A; opt = self.opt
        R = A.raw
        WS = f's[{sWS}:{sWS+3}]'
        SEL, ACC = 16, 20
        NL = 4
        ld = [48 + 4*n for n in range(NL)]
        bop = '0x80' if par == 0 else '0xfe'
        lab = A.newlabel('redp'); ok = A.newlabel('redok')
        spin = opt.get('rspin', 0)
        A(f's_mov_b32 s{sTMP+2}, 0')
        def issue(raw=False):
            for n in range(NL):
                t = f'buffer_load_dwordx4 {v(ld[n],4)}, {v(vRL)}, {WS}, s{sRL0+n} offen {self.pf(0)}'
                (R('  ' + t) if raw else A(t))
        flat = [ld[n] + k for n in range(NL) for k in range(4)]
        chk = [f'v_bitop3_b32 {v(T13)}, {v(flat[0])}, {v(flat[1])}, {v(flat[2])} bitop3:{bop}']
        k = 3
        while k < 4*NL:
            b = flat[k+1] if k + 1 < 4*NL else flat[k]
            chk.append(f'v_bitop3_b32 {v(T13)}, {v(T13)}, {v(flat[k])}, {v(b)} bitop3:{bop}')
            k += 2
        fin = [f'v_and_b32 {v(T13)}, 1, {v(T13)}', f'v_cmp_{"eq" if par == 0 else "ne"}_u32 vcc, 0, {v(T13)}']
        DB = opt.get('rdbl', 0)
        ldb = [24 + 4*n for n in range(NL)]
        def attempt(regs, younger, raw):
            fl = [regs[n] + k for n in range(NL) for k in range(4)]
            ck = [f'v_bitop3_b32 {v(T13)}, {v(fl[0])}, {v(fl[1])}, {v(fl[2])} bitop3:{bop}']
            k = 3
            while k < 4*NL:
                b = fl[k+1] if k + 1 < 4*NL else fl[k]
                ck.append(f'v_bitop3_b32 {v(T13)}, {v(T13)}, {v(fl[k])}, {v(b)} bitop3:{bop}')
                k += 2
            ci = 0
            for n in range(NL):
                R(f'  s_waitcnt vmcnt({younger + NL-1-n})')
                R(f'  v_mfma_f32_16x16x32_bf16 {v(ACC,4)}, {v(regs[n],4)}, {v(SEL,4)}, {v(ACC,4) if n else 0}')
                while ci < len(ck) and max(r[1] for r in I(ck[ci]).rd if r[0] == 'v' and r[1] >= regs[0]) <= regs[n] + 3:
                    R('  ' + ck[ci]); ci += 1
            R('  s_nop 0')
            for c in fin: R('  ' + c)
            R(f'  s_cbranch_vccz {ok}')
        if DB:
            shadow(16)
            self.backoff(opt.get('nop_red', 0))
            self.at(2, 1)
            issue(True)
            shadow2()
            self.backoff(DB)
            for n in range(NL):
                R(f'  buffer_load_dwordx4 {v(ldb[n],4)}, {v(vRL)}, {WS}, s{sRL0+n} offen sc1')
            R('  s_waitcnt lgkmcnt(0)')
            R(f'  s_add_u32 s{sTMP+2}, s{sTMP+2}, 1')
            attempt(ld, NL, True)
            R(f'  s_add_u32 s{sTMP+2}, s{sTMP+2}, 1')
            R('  s_nop 7')
            attempt(ldb, 0, True)
        else:
            if opt.get('shfirst', 1):
                shadow(); shadow2()
                self.backoff(opt.get('nop_red', 0))
                self.at(2, 1)
                issue()
            else:
                self.backoff(opt.get('nop_red', 0))
                self.at(2)
                issue()
                shadow(); shadow2()
            A.wait(lgkm=0)
            ci = 0
            for n in range(NL):
                A(f'v_mfma_f32_16x16x32_bf16 {v(ACC,4)}, {v(ld[n],4)}, {v(SEL,4)}, {v(ACC,4) if n else 0}')
                while ci < len(chk) and max(r[1] for r in I(chk[ci]).rd if r[0] == 'v' and r[1] >= 48) <= ld[n] + 3:
                    A(chk[ci]); ci += 1
            A(f's_add_u32 s{sTMP+2}, s{sTMP+2}, 1')
            for c in fin: A(c)
            A(f's_cbranch_vccz {ok}')
        R(f'{lab}:')
        issue(True)
        R(f'  s_add_u32 s{sTMP+2}, s{sTMP+2}, 1')
        if spin:
            for q in range(spin):
                for c in chk + fin: R('  ' + c)
                R(f'  s_cbranch_vccz {ok}_m')
        elif opt.get('rfast', 1):
            ci = 0
            for n in range(NL):
                R(f'  s_waitcnt vmcnt({NL-1-n})')
                R(f'  v_mfma_f32_16x16x32_bf16 {v(ACC,4)}, {v(ld[n],4)}, {v(SEL,4)}, {v(ACC,4) if n else 0}')
                while ci < len(chk) and max(r[1] for r in I(chk[ci]).rd if r[0] == 'v' and r[1] >= 48) <= ld[n] + 3:
                    R('  ' + chk[ci]); ci += 1
            R('  s_nop 0')
            for c in fin: R('  ' + c)
            R(f'  s_cbranch_vccz {ok}')
        else:
            R(f'  s_waitcnt vmcnt(0)')
            for c in chk + fin: R('  ' + c)
            R(f'  s_cbranch_vccz {ok}_m')
        R(f'  s_cmp_lg_u32 s{sDEAD}, 0')
        R(f'  s_cbranch_scc1 {ok}_d')
        R(f'  s_cmp_lt_u32 s{sTMP+2}, 0x10000')
        R(f'  s_cbranch_scc1 {lab}')
        R(f'  s_mov_b32 s{sDEAD}, 1')
        R(f'{ok}_d:')
        R(f'  s_waitcnt vmcnt(0)')
        R(f'{ok}_m:')
        for n in range(NL):
            R(f'  v_mfma_f32_16x16x32_bf16 {v(ACC,4)}, {v(ld[n],4)}, {v(SEL,4)}, {v(ACC,4) if n else 0}')
        R(f'  s_nop 5')
        R(f'{ok}:')
        A(f's_nop 1')
        A(f'v_permlane32_swap_b32 {v(ACC)}, {v(ACC+1)}')
        A(f'v_permlane32_swap_b32 {v(ACC+2)}, {v(ACC+3)}')
        A(f'v_add_f32 {v(ACC)}, {v(ACC)}, {v(ACC+1)}')
        A(f'v_add_f32 {v(ACC+2)}, {v(ACC+2)}, {v(ACC+3)}')
        A(f'v_cvt_pk_bf16_f32 {v(ACC)}, {v(ACC)}, {v(ACC+2)}')
        A(f's_mov_b64 exec, s[{sMASK}:{sMASK+1}]')
        A(f'buffer_store_dword {v(ACC)}, {v(vRS)}, {WS}, s{sPUB} offen {self.stf}')
        if opt.get('es', 2) == 1:
            lr = A.newlabel('rep')
            R(f'  s_cmp_lt_u32 s{sH}, 8'); R(f'  s_cbranch_scc0 {lr}')
            R(f'  s_cmp_lt_u32 s{sW}, 2'); R(f'  s_cbranch_scc0 {lr}')
            R(f'  s_add_u32 s{sTMP}, s{sPUB}, {MB_REP}')
            R(f'  buffer_store_dword {v(ACC)}, {v(vRS)}, {WS}, s{sTMP} offen {self.stf}')
            R(f'  buffer_store_dword {v(ACC)}, {v(vRS)}, {WS}, s{sTMP} offen offset:2048 {self.stf}')
            R(f'  s_add_u32 s{sTMP}, s{sTMP}, 4096')
            R(f'  buffer_store_dword {v(ACC)}, {v(vRS)}, {WS}, s{sTMP} offen {self.stf}')
            R(f'{lr}:')
        A(f'v_mov_b32 {v(ACC+2)}, -1')
        A(f'buffer_store_dword {v(ACC+2)}, {v(vRS)}, {WS}, s{sCLR} offen {self.stf}')
        if opt.get('es', 2) == 1:
            lr = A.newlabel('repc')
            R(f'  s_cmp_lt_u32 s{sH}, 8'); R(f'  s_cbranch_scc0 {lr}')
            R(f'  s_cmp_lt_u32 s{sW}, 2'); R(f'  s_cbranch_scc0 {lr}')
            R(f'  s_add_u32 s{sTMP}, s{sCLR}, {MB_REP}')
            R(f'  buffer_store_dword {v(ACC+2)}, {v(vRS)}, {WS}, s{sTMP} offen {self.stf}')
            R(f'  buffer_store_dword {v(ACC+2)}, {v(vRS)}, {WS}, s{sTMP} offen offset:2048 {self.stf}')
            R(f'  s_add_u32 s{sTMP}, s{sTMP}, 4096')
            R(f'  buffer_store_dword {v(ACC+2)}, {v(vRS)}, {WS}, s{sTMP} offen {self.stf}')
            R(f'{lr}:')
        if opt.get('hint'):
            A(f's_mov_b64 exec, {(1<<H2_REP)-1}')
            A(f'v_mov_b32 {v(ACC+3)}, s{sS}')
            A(f'buffer_store_byte {v(ACC+3)}, {v(T15)}, {WS}, s{sHI} offen {self.stf}')
        A(f's_mov_b64 exec, -1')
        A(f's_waitcnt vmcnt({3 if opt.get("hint") else 2})')
        if opt.get('rdbl', 0):
            for r in range(24, 40, 2): A(f'v_mov_b64 {v(r,2)}, 0')
        A.reset()
        A(f's_add_u32 s{sTS+16}, s{sTS+16}, s{sTMP+2}')
        if opt.get('log'): A.raw(f'  s_mov_b32 s92, s{sTMP+2}')
        self.at(3, 1)
        self.ts(7)
    def hint_poll(self):
        A = self.A; opt = self.opt; R = A.raw
        WS = f's[{sWS}:{sWS+3}]'
        skip = A.newlabel('hs'); lab = A.newlabel('hp'); ok = A.newlabel('hok')
        HR = [68, 69, 70, 71]
        R(f'  s_cmp_eq_u32 s{sW}, 3')
        R(f'  s_cbranch_scc0 {skip}')
        R(f'  s_and_b32 s{sTMP}, s{sS}, 0xff')
        R(f'  s_mul_i32 s{sTMP}, s{sTMP}, 0x01010101')
        R(f'  v_lshrrev_b32 v13, 2, {v(vMS)}')
        R(f'  v_and_b32 v13, 0xff, v13')
        R(f'  s_mov_b64 exec, 0x3ffff')
        R(f'  s_mov_b32 s{sTMP+1}, 0')
        for _ in range(opt.get('nop_hint', 0)): R('  s_nop 7')
        for k in range(3):
            R(f'  buffer_load_dword v{HR[k]}, v13, {WS}, s{sHP} offen sc1')
            R(f'  s_nop {opt.get("hgap", 7)}')
        R(f'{lab}:')
        for k in range(4):
            R(f'  buffer_load_dword v{HR[(k+3)%4]}, v13, {WS}, s{sHP} offen sc1')
            R(f'  s_waitcnt vmcnt(3)')
            R(f'  v_cmp_ne_u32 vcc, s{sTMP}, v{HR[k]}')
            R(f'  s_cbranch_vccz {ok}')
        R(f'  s_add_u32 s{sTMP+1}, s{sTMP+1}, 1')
        R(f'  s_cmp_lg_u32 s{sDEAD}, 0')
        R(f'  s_cbranch_scc1 {ok}')
        R(f'  s_cmp_lt_u32 s{sTMP+1}, 0x8000')
        R(f'  s_cbranch_scc1 {lab}')
        R(f'  s_mov_b32 s{sDEAD}, 1')
        R(f'{ok}:')
        R(f'  s_mov_b64 exec, -1')
        R(f'{skip}:')
        A.reset()
    def gather(self, sG):
        if self.opt.get('es', 2) == 1: return self.gather_es(sG)
        A = self.A; opt = self.opt
        WS = f's[{sWS}:{sWS+3}]'
        lab = A.newlabel('gatp'); ok = A.newlabel('gatok'); okb = A.newlabel('gatokb'); fin = A.newlabel('gatfin')
        R = A.raw
        DBL = opt.get('gdbl', 0)
        SA = (16, 20, 64); SBb = (40, 44, 68)
        A(f's_mov_b32 s{sTMP+2}, 0')
        A(f's_add_u32 s{sTMP+1}, s{sG}, 8192')
        self.backoff(opt.get('nop_gat', 0))
        self.at(4, 1)
        def issue(G):
            l3 = A.newlabel('gat3')
            R(f'  buffer_load_dwordx4 {v(G[0],4)}, {v(vF2)}, {WS}, s{sG} offen {self.pf(1)}')
            R(f'  buffer_load_dwordx4 {v(G[1],4)}, {v(vF2)}, {WS}, s{sG} offen offset:1024 {self.pf(1)}')
            R(f'  s_cmp_eq_u32 s{sW}, 3')
            R(f'  s_cbranch_scc0 {l3}')
            R(f'  buffer_load_dwordx4 {v(G[2],4)}, {v(vMS)}, {WS}, s{sTMP+1} offen {self.pf(1)}')
            R(f'{l3}:')
        def check(G, target):
            G0, G1, G2 = G
            R(f'  v_max3_u32 {v(T13)}, {v(G0)}, {v(G0+1)}, {v(G0+2)}')
            R(f'  v_max3_u32 {v(T14)}, {v(G1)}, {v(G1+1)}, {v(G1+2)}')
            R(f'  v_max3_u32 {v(T13)}, {v(T13)}, {v(G0+3)}, {v(G1+3)}')
            R(f'  v_max3_u32 {v(T14)}, {v(T14)}, {v(G2)}, {v(G2+1)}')
            R(f'  v_max3_u32 {v(T13)}, {v(T13)}, {v(G2+2)}, {v(G2+3)}')
            R(f'  v_max_u32 {v(T13)}, {v(T13)}, {v(T14)}')
            R(f'  v_cmp_eq_u32 vcc, -1, {v(T13)}')
            R(f'  s_cbranch_vccz {target}')
        def writes(G):
            l3b = A.newlabel('gat3b')
            R(f'  ds_write_b128 {v(vF2)}, {v(G[0],4)} offset:{L_MEMST-BASE_MS}')
            R(f'  ds_write_b128 {v(vF2)}, {v(G[1],4)} offset:{L_MEMST-BASE_MS+1024}')
            R(f'  s_cmp_eq_u32 s{sW}, 3')
            R(f'  s_cbranch_scc0 {l3b}')
            R(f'  ds_write_b128 {v(vMS)}, {v(G[2],4)} offset:{L_MEMST-BASE_MS+8192}')
            R(f'{l3b}:')
        issue(SA)
        R(f'  s_add_u32 s{sTMP+2}, s{sTMP+2}, 1')
        if DBL:
            for _ in range(DBL): R('  s_nop 7')
            issue(SBb)
            l3 = A.newlabel('gw')
            R(f'  s_cmp_eq_u32 s{sW}, 3'); R(f'  s_cbranch_scc1 {l3}')
            R(f'  s_waitcnt vmcnt(2)'); R(f'  s_branch {l3}_j')
            R(f'{l3}:'); R(f'  s_waitcnt vmcnt(3)'); R(f'{l3}_j:')
            check(SA, ok)
            R(f'  s_add_u32 s{sTMP+2}, s{sTMP+2}, 1')
            R(f'  s_waitcnt vmcnt(0)')
            check(SBb, okb)
        else:
            R(f'  s_waitcnt vmcnt(0)')
            check(SA, ok)
        R(f'{lab}:')
        issue(SA)
        R(f'  s_add_u32 s{sTMP+2}, s{sTMP+2}, 1')
        R(f'  s_waitcnt vmcnt(0)')
        check(SA, ok)
        R(f'  s_cmp_lg_u32 s{sDEAD}, 0')
        R(f'  s_cbranch_scc1 {ok}')
        R(f'  s_cmp_lt_u32 s{sTMP+2}, 0x10000')
        R(f'  s_cbranch_scc1 {lab}')
        R(f'  s_mov_b32 s{sDEAD}, 1')
        R(f'{ok}:')
        writes(SA)
        if DBL:
            R(f'  s_branch {fin}')
            R(f'{okb}:')
            writes(SBb)
            R(f'{fin}:')
        A.reset()
        A(f's_add_u32 s{sTS+17}, s{sTS+17}, s{sTMP+2}')
        self.at(5, 1)

    def gather_es(self, sG):
        A = self.A; opt = self.opt
        WS = f's[{sWS}:{sWS+3}]'
        lab = A.newlabel('gatp'); ok = A.newlabel('gatok')
        R = A.raw
        E0, E1, G2, G3 = AB0, AB1, 64, 68
        A(f's_mov_b32 s{sTMP+2}, 0')
        A(f's_add_u32 s{sTMP+1}, s{sG}, 2048')
        A(f's_add_u32 s{sTMP+3}, s{sG}, s{sREP}')
        self.backoff(opt.get('nop_gat', 0))
        self.at(4, 1)
        def issue():
            l3 = A.newlabel('gat3')
            R(f'  buffer_load_dwordx4 {v(E0,4)}, {v(vMS)}, {WS}, s{sTMP+3} offen sc1')
            R(f'  buffer_load_dwordx4 {v(E1,4)}, {v(vMS)}, {WS}, s{sTMP+3} offen offset:1024 sc1')
            R(f'  buffer_load_dwordx4 {v(G2,4)}, {v(vF2)}, {WS}, s{sTMP+1} offen sc1')
            R(f'  s_cmp_eq_u32 s{sW}, 3')
            R(f'  s_cbranch_scc1 {l3}')
            R(f'  buffer_load_dwordx4 {v(G3,4)}, {v(vF2)}, {WS}, s{sTMP+1} offen offset:1024 sc1')
            R(f'{l3}:')
        def check():
            R(f'  s_waitcnt vmcnt(0)')
            R(f'  v_max3_u32 {v(T13)}, {v(E0)}, {v(E0+1)}, {v(E0+2)}')
            R(f'  v_max3_u32 {v(T14)}, {v(E1)}, {v(E1+1)}, {v(E1+2)}')
            R(f'  v_max3_u32 {v(T13)}, {v(T13)}, {v(E0+3)}, {v(E1+3)}')
            R(f'  v_max3_u32 {v(T14)}, {v(T14)}, {v(G2)}, {v(G2+1)}')
            R(f'  v_max3_u32 {v(T13)}, {v(T13)}, {v(G2+2)}, {v(G2+3)}')
            R(f'  v_max3_u32 {v(T14)}, {v(T14)}, {v(G3)}, {v(G3+1)}')
            R(f'  v_max3_u32 {v(T13)}, {v(T13)}, {v(G3+2)}, {v(G3+3)}')
            R(f'  v_max_u32 {v(T13)}, {v(T13)}, {v(T14)}')
            R(f'  v_cmp_eq_u32 vcc, -1, {v(T13)}')
            R(f'  s_cbranch_vccz {ok}')
        issue()
        R(f'  s_add_u32 s{sTMP+2}, s{sTMP+2}, 1')
        check()
        R(f'{lab}:')
        issue()
        R(f'  s_add_u32 s{sTMP+2}, s{sTMP+2}, 1')
        check()
        R(f'  s_cmp_lg_u32 s{sDEAD}, 0')
        R(f'  s_cbranch_scc1 {ok}')
        R(f'  s_cmp_lt_u32 s{sTMP+2}, 0x10000')
        R(f'  s_cbranch_scc1 {lab}')
        R(f'  s_mov_b32 s{sDEAD}, 1')
        R(f'{ok}:')
        A.reset()
        l3 = A.newlabel('gat3b')
        A(f'ds_write_b128 {v(vF2)}, {v(G2,4)} offset:{L_MEMST-BASE_MS+2048}')
        R(f'  s_cmp_eq_u32 s{sW}, 3')
        R(f'  s_cbranch_scc1 {l3}')
        R(f'  ds_write_b128 {v(vF2)}, {v(G3,4)} offset:{L_MEMST-BASE_MS+3072}')
        R(f'{l3}:')
        A.lgk.append(set())
        self.wmark = A.lgk[-1]
        A(f's_add_u32 s{sTS+17}, s{sTS+17}, s{sTMP+2}')
        self.at(5, 1)
```

```python
import sys, struct
from asmlib import *
from layout import *
import chain as CH
import worker as WK

NAME = 'parallel_sum__memory_aug_recurrent_mem_tr__mixer_channel_mlp__prompt'
KN = NAME + '_kernel'

DOC = '''
; ---------------------------------------------------------------------------------------------------------------------
; ---------------------------------------------------------------------------------------------------------------------
'''

def table_text():
    out = ['.section .rodata,"a"', '.p2align 8', 'chain_tab:']
    for tid in range(256):
        c = chain_consts(tid >> 6, tid & 63)
        vals = [c[n] for n in CH_CONSTS] + [0]*(32-len(CH_CONSTS))
        out.append('.long ' + ','.join(str(x) for x in vals))
    out += ['.p2align 8', 'worker_tab:']
    for tid in range(256):
        c = worker_consts(tid >> 6, tid & 63)
        vals = [c[n] for n in WK_CONSTS] + [0]*(48-len(WK_CONSTS))
        out.append('.long ' + ','.join(str(x) for x in vals))
    return '\n'.join(out) + '\n'

def build(opt):
    A = Asm()
    hdr = open('cdna_kernels/' + NAME + '.s.ref').read().split('; Override')[0]
    head = hdr + '; @launch grid=(256,1,1) block=(256,1,1) lds=163840\n'
    head += '.amdgcn_target "amdgcn-amd-amdhsa--gfx950"\n' + DOC + '.text\n.globl %s\n.p2align 8\n.type %s,@function\n%s:\n' % (KN, KN, KN)
    A('s_cmp_ge_u32 s2, 256')
    A('s_cbranch_scc1 k_end')
    A('s_load_dwordx2 s[14:15], s[0:1], 104')
    A('s_load_dwordx2 s[12:13], s[0:1], 112')
    A('s_getreg_b32 s3, hwreg(HW_REG_XCC_ID, 0, 4)')
    A('s_and_b32 s3, s3, 7')
    if opt.get('fake') == 1: A('s_lshr_b32 s3, s2, 5')
    if opt.get('fake') == 2: A('s_min_u32 s3, s3, 6')
    A('s_getpc_b64 s[28:29]')
    A.raw('  s_add_u32 s28, s28, chain_tab@rel32@lo+4')
    A.raw('  s_addc_u32 s29, s29, chain_tab@rel32@hi+12')
    ch = CH.Chain(A, opt)
    A('v_lshrrev_b32 v1, 6, v0')
    A.wait(lgkm=0)
    A(f'v_readfirstlane_b32 s{CH.sW}, v1')
    A(f's_mov_b32 s{CH.sWS}, s12')
    A(f's_and_b32 s{CH.sWS+1}, s13, 0xffff')
    A(f's_mov_b32 s{CH.sWS+2}, 0x10000000')
    A(f's_mov_b32 s{CH.sWS+3}, 0x20000')
    A('s_lshl_b32 s16, s3, 2')
    A('v_mov_b32 v2, s16')
    A('v_mov_b32 v3, 1')
    A(f's_cmp_eq_u32 s{CH.sW}, 0')
    A('s_cbranch_scc0 k_noatom')
    A('s_mov_b64 exec, 1')
    A.raw('  global_atomic_add v4, v2, v3, s[14:15] sc0')
    A('s_mov_b64 exec, -1')
    A.raw('k_noatom:')
    ch.preload()
    NW = 0
    if opt.get('warm0', 1) and not opt.get('chain_only'):
        NW = 4
        A.raw('  s_waitcnt lgkmcnt(0)')
        A.raw('  s_cmp_eq_u32 s3, 0'); A.raw('  s_cbranch_scc1 k_nowarm')
        A.raw('  s_sub_u32 s44, s3, 1'); A.raw('  s_lshl_b32 s44, s44, 5')
        A.raw('  s_lshr_b32 s45, s2, 3'); A.raw('  s_and_b32 s45, s45, 31'); A.raw('  s_add_u32 s44, s44, s45')
        A.raw('  s_lshl_b32 s44, s44, 15')
        A.raw('  v_lshlrev_b32 v6, 7, v0')
        for k, p in enumerate((30, 34, 32) if opt.get('ofirst') else (30, 34, 36, 32)):
            A.raw(f'  s_mov_b32 s40, s{p}'); A.raw(f'  s_and_b32 s41, s{p+1}, 0xffff')
            A.raw(f'  s_mov_b32 s42, {D*8192}'); A.raw('  s_mov_b32 s43, 0x20000')
            A.raw(f'  buffer_load_dword v{7+k}, v6, s[40:43], s44 offen')
            if opt.get('warm0', 1) == 2: A.raw(f'  buffer_load_dword v{11}, v6, s[40:43], s44 offen offset:64')
        A.raw('k_nowarm:')
    NPF = opt.get('codepf', 0)
    if NPF:
        A.raw('  s_getpc_b64 s[40:41]')
        A.raw('k_pc_ref:')
        A.raw(f'  s_sub_u32 s40, s40, k_pc_ref-{KN}')
        A.raw('  s_subb_u32 s41, s41, 0')
        A.raw('  s_and_b32 s41, s41, 0xffff')
        A.raw(f'  s_mov_b32 s42, k_code_end-{KN}')
        A.raw('  s_mov_b32 s43, 0x20000')
        A.raw('  v_lshlrev_b32 v6, 7, v0')
        for k in range(NPF):
            A.raw(f'  s_mov_b32 s44, {k*32768}')
            A.raw(f'  buffer_load_dword v{7+k}, v6, s[40:43], s44 offen')
    rt_stamp(A, opt, 0, CH.sW, off=OFF_RT)
    def dbg_time(idx, neg=False):
        lab = A.newlabel('dt')
        A.raw(f'  s_cmp_eq_u32 s{CH.sW}, 0'); A.raw(f'  s_cbranch_scc0 {lab}')
        A.raw('  s_memrealtime s[96:97]'); A.raw('  s_waitcnt lgkmcnt(0)')
        if neg: A.raw('  s_not_b32 s96, s96')
        A.raw('  s_mov_b64 exec, 1'); A.raw(f'  v_mov_b32 v62, {idx*4}'); A.raw('  v_mov_b32 v63, s96')
        A.raw('  global_atomic_umax v62, v63, s[14:15]'); A.raw('  s_mov_b64 exec, -1'); A.raw(f'{lab}:')
    self_dbg_time = dbg_time
    if opt.get('dbgt'): dbg_time(10, neg=True)
    A(f's_cmp_eq_u32 s{CH.sW}, 0')
    A('s_cbranch_scc0 k_noticket')
    A('s_mov_b64 exec, 1')
    A('v_mov_b32 v5, 0x27f00')
    A.raw('  s_waitcnt vmcnt(%d)' % ((7 if (opt.get('rt') or opt.get('dbgt')) else 6) + NPF))
    A('ds_write_b32 v5, v4')
    A('s_mov_b64 exec, -1')
    A.raw('  s_waitcnt lgkmcnt(0)')
    A.label('k_noticket')
    A('s_barrier')
    A('v_mov_b32 v5, 0x27f00')
    A('ds_read_b32 v4, v5')
    A.wait(lgkm=0)
    A(f'v_readfirstlane_b32 s{CH.sH}, v4')
    A('s_barrier')
    if opt.get('chain_only'):
        A('s_cmp_eq_u32 s3, 0')
        A('s_cbranch_scc0 k_end')
        A(f's_cmp_ge_u32 s{CH.sH}, 32')
        A('s_cbranch_scc1 k_end')
    else:
        A(f's_cmp_lt_u32 s{CH.sH}, 32')
        A('s_cbranch_scc1 k_role')
        A(f's_cmp_eq_u32 s{CH.sW}, 0')
        A('s_cbranch_scc0 k_ov_w')
        A('s_mov_b64 exec, 1')
        A(f'v_mov_b32 v2, {DBG_OVF*4}')
        A('v_mov_b32 v3, 1')
        A('global_atomic_add v4, v2, v3, s[14:15] sc0')
        A.wait(vm=0)
        A('v_readfirstlane_b32 s20, v4')
        A('s_mov_b64 exec, -1')
        A('v_and_b32 v2, 7, v0'); A('v_lshlrev_b32 v2, 2, v2')
        A('s_mov_b32 s21, 0')
        A.label('k_ov_poll')
        A('global_load_dword v3, v2, s[14:15] sc1')
        A('s_add_u32 s21, s21, 1')
        A.wait(vm=0)
        A('s_mov_b32 s22, 0')
        for x in range(8):
            A(f'v_readlane_b32 s{40+x}, v3, {x}')
        for x in range(8):
            A(f's_add_u32 s22, s22, s{40+x}')
        A('s_cmp_ge_u32 s22, 256')
        A('s_cbranch_scc1 k_ov_done')
        A('s_sleep 4')
        A('s_cmp_lt_u32 s21, 0x40000')
        A('s_cbranch_scc1 k_ov_poll')
        A.label('k_ov_done')
        A('s_mov_b32 s23, 0'); A('s_mov_b32 s24, 0')
        for x in range(7, -1, -1): pass
        A('s_mov_b32 s25, 0')
        for x in range(8):
            lab = A.newlabel('ovx')
            A(f's_cmp_lg_u32 s25, 0'); A(f's_cbranch_scc1 {lab}')
            A(f's_min_u32 s26, s{40+x}, 32'); A('s_sub_u32 s27, 32, s26')
            A('s_cmp_lt_u32 s20, s27')
            l2 = A.newlabel('ovy')
            A(f's_cbranch_scc0 {l2}')
            A(f's_mov_b32 s23, {x}'); A('s_add_u32 s24, s26, s20'); A('s_mov_b32 s25, 1')
            A(f's_branch {lab}')
            A.label(l2)
            A('s_sub_u32 s20, s20, s27')
            A.label(lab)
        A('s_lshl_b32 s23, s23, 8'); A('s_or_b32 s23, s23, s24')
        A('v_mov_b32 v4, s23'); A('v_mov_b32 v5, 0x27f00')
        A('ds_write_b32 v5, v4')
        A.wait(lgkm=0)
        A.label('k_ov_w')
        A('s_barrier')
        A('v_mov_b32 v5, 0x27f00')
        A('ds_read_b32 v4, v5')
        A.wait(lgkm=0)
        A('v_readfirstlane_b32 s20, v4')
        A('s_barrier')
        A('s_lshr_b32 s3, s20, 8')
        A(f's_and_b32 s{CH.sH}, s20, 31')
        A.label('k_role')
        if opt.get('hxor'): A(f's_xor_b32 s{CH.sH}, s{CH.sH}, {opt["hxor"]}')
        A('s_cmp_eq_u32 s3, 0')
        A('s_cbranch_scc0 k_worker')
    if opt.get('nochain'):
        ch.init(short=True)
    else:
        rt_stamp(A, opt, 1, CH.sW, off=OFF_RT)
        ch.init()
        rt_stamp(A, opt, 3, CH.sW, off=OFF_RT)
        if opt.get('dbgt'):
            dbg_time(11)
            A.raw('  s_memtime s[84:85]'); A.raw('  s_waitcnt lgkmcnt(0)')
        if opt.get('rt'):
            A.raw(f'  s_lshl_b32 s95, s2, 6'); A.raw(f'  s_add_u32 s95, s95, {OFF_RT + 6*4}')
            A.raw(f'  v_mov_b32 v62, s{CH.sH}'); A.raw('  v_mov_b32 v63, 0')
            A.raw('  buffer_store_dword v62, v63, s[4:7], s95 offen')
        if opt.get('chain_only'):
            ch.loop(False, 'f')
        else:
            A(f's_cmp_lg_u32 s{CH.sSLOW}, 0')
            A('s_cbranch_scc1 ch_slow_entry')
            ch.loop(False, 'f')
            A('s_branch ch_done')
            A.label('ch_slow_entry')
            ch.loop(True, 's')
            A.label('ch_done')
        rt_stamp(A, opt, 4, CH.sW, off=OFF_RT)
        if opt.get('dbgt'):
            dbg_time(12)
            A.raw('  s_memtime s[86:87]'); A.raw('  s_waitcnt lgkmcnt(0)'); A.raw('  s_sub_u32 s86, s86, s84')
            if opt.get('dbgt') == 1:
                A.raw('  s_mov_b64 exec, 1'); A.raw('  v_mov_b32 v62, 56'); A.raw('  v_mov_b32 v63, s86')
                A.raw('  global_atomic_umax v62, v63, s[14:15]'); A.raw('  s_mov_b64 exec, -1')
    A.wait(vm=0, lgkm=0)
    if opt.get('ts') or opt.get('tt'):
        A.raw('  s_memtime s[86:87]')
        A('s_waitcnt lgkmcnt(0)')
        A(f's_sub_u32 s{CH.sTS+19}, s86, s84')
        A(f's_lshl_b32 s27, s{CH.sH}, 2')
        A(f's_add_u32 s27, s27, s{CH.sW}')
        A(f's_lshl_b32 s27, s27, 7')
        A(f's_add_u32 s27, s27, {OFF_FLAG+0x8000}')
        A(f's_mov_b32 s{CH.sTS+18}, s{CH.sDEAD}')
        A('s_mov_b64 exec, 1')
        A('v_mov_b32 v2, 0')
        for k in range(20):
            A(f'v_mov_b32 v3, s{CH.sTS+k}')
            A(f'buffer_store_dword v3, v2, s[{CH.sWS}:{CH.sWS+3}], s27 offen offset:{4*k}')
        for k in range(8):
            A(f'v_mov_b32 v3, s{88+k}')
            A(f'buffer_store_dword v3, v2, s[{CH.sWS}:{CH.sWS+3}], s27 offen offset:{4*(20+k)}')
        A.wait(vm=0)
    if not opt.get('chain_only'):
        A('s_branch k_end')
        A.label('k_worker')
        A(f's_sub_u32 s{WK.sG}, s3, 1')
        A(f's_cmp_eq_u32 s{WK.sG}, 0')
        A(f's_cselect_b32 s{WK.sN}, 10, 9')
        A(f's_mov_b32 s{WK.sSLOW}, 1')
        A(f's_mov_b32 s53, s3')
        A(f's_mov_b32 s{WK.sDEAD}, 0')
        A('s_getpc_b64 s[30:31]')
        A.raw('  s_add_u32 s30, s30, worker_tab@rel32@lo+4')
        A.raw('  s_addc_u32 s31, s31, worker_tab@rel32@hi+12')
        wk = WK.Worker(A, opt)
        rt_stamp(A, opt, 1, CH.sW, off=OFF_RT)
        if opt.get('warmw', 0): wk.warm_weights()
        wk.layernorm()
        rt_stamp(A, opt, 2, CH.sW, off=OFF_RT)
        if opt.get('passes', 15) & 1: wk.passA()
        rt_stamp(A, opt, 5, CH.sW, off=OFF_RT)
        if opt.get('dbgt') == 2: dbg_time(15)
        if opt.get('passes', 15) & 2: wk.passC()
        rt_stamp(A, opt, 8, CH.sW, off=OFF_RT)
        if opt.get('dbgt') == 2: dbg_time(14)
        if opt.get('passes', 15) & 4: wk.passD()
        rt_stamp(A, opt, 11, CH.sW, off=OFF_RT)
        if opt.get('dbgt'): dbg_time(13)
        A.wait(vm=0, lgkm=0)
    A.label('k_end')
    A('s_endpgm')
    A.raw('k_code_end:')
    tail = f'''
.section .rodata,"a"
.p2align 6
.amdhsa_kernel {KN}
  .amdhsa_next_free_vgpr 512
  .amdhsa_next_free_sgpr 102
  .amdhsa_accum_offset 256
  .amdhsa_group_segment_fixed_size 0
  .amdhsa_kernarg_size 120
  .amdhsa_user_sgpr_count 2
  .amdhsa_user_sgpr_kernarg_segment_ptr 1
  .amdhsa_system_sgpr_workgroup_id_x 1
.end_amdhsa_kernel
'''
    print('nops', A.nops, 'auto waits', A.nwaits, 'lines', len(A.out), file=sys.stderr)
    return head + A.text() + tail + table_text()

if __name__ == '__main__':
    opt = {'nop_red': 8, 'nop_gat': 6, 'depth': 8, 'warm0': 2}
    for a_ in sys.argv[2:]:
        k, _, val = a_.partition('=')
        opt[k] = int(val) if val else 1
    open(sys.argv[1], 'w').write(build(opt))
```
